```python
import torch

def _softmax(x, axis=-1):
    return torch.softmax(x, dim=axis)
def _gelu(x):
    return torch.nn.functional.gelu(x, approximate="tanh")
def _silu(x):
    return torch.nn.functional.silu(x)
def _sigmoid(x):
    return torch.sigmoid(x)
def _layernorm(x, axis=-1, eps=1e-5):
    m = x.mean(dim=axis, keepdim=True)
    v = x.var(dim=axis, keepdim=True, unbiased=False)
    return (x - m) / torch.sqrt(v + eps)
def _scatter_add(tgt, idx, src, axis=0):
    return tgt.clone().index_add_(axis, idx, src)
def _segment_sum(src, seg, n):
    out = torch.zeros((n,) + src.shape[1:], dtype=src.dtype)
    return out.index_add_(0, seg, src)
def _pad(x, pw):
    flat = tuple(v for pair in reversed(pw) for v in pair)
    return torch.nn.functional.pad(x, flat)

kernel_name = 'standalone__gqa_block_cached__sampling'

def setup_inputs():

    _w = (lambda a: (lambda t: t.to(torch.bfloat16) if t.is_floating_point() else t)(torch.as_tensor(a)))
    B, Sq, D = 8, 4, 448
    Hq, Hkv, Sk, Dh = 16, 8, 8192, 256
    assert Hq % Hkv == 0, (Hq, Hkv)
    return {
        "x": _w((lambda *s: torch.randn(*s, dtype=torch.bfloat16) * 0.8)(B, Sq, D)),
        "k_cache": _w((lambda *s: torch.randn(*s, dtype=torch.bfloat16) * 0.8)(B, Hkv, Sk, Dh)),
        "v_cache": _w((lambda *s: torch.randn(*s, dtype=torch.bfloat16) * 0.05)(B, Hkv, Sk, Dh)),
        "wq": _w((lambda *s: torch.randn(*s, dtype=torch.bfloat16) * 0.8)(D, Hq * Dh) * (D ** -0.5)),
        "wo": _w((lambda *s: torch.randn(*s, dtype=torch.bfloat16) * 0.05)(Hq * Dh, D) * ((Hq * Dh) ** -0.5)),
    }

def reference(x, k_cache, v_cache, wq, wo):
    B, Sq, D = x.shape
    Hq, Dh = 16, 256
    Hkv = k_cache.shape[1]
    rep = Hq // Hkv
    q = (lambda x, *d: x.permute(*d))((x @ wq).reshape(B, Sq, Hq, Dh), 0, 2, 1, 3)
    k = (lambda x, n, axis: torch.repeat_interleave(x, n, dim=axis))(k_cache, rep, axis=1)
    v = (lambda x, n, axis: torch.repeat_interleave(x, n, dim=axis))(v_cache, rep, axis=1)
    scores = torch.einsum("bhqd,bhkd->bhqk", q, k) * (Dh ** -0.5)
    p = _softmax(scores, axis=-1)
    o = torch.einsum("bhqk,bhkd->bhqd", p, v)
    return (lambda x, *d: x.permute(*d))(o, 0, 2, 1, 3).reshape(B, Sq, Hq * Dh) @ wo
```

```python
import sys, struct

NAME = "standalone__gqa_block_cached__sampling"
HDR = open("standalone__gqa_block_cached__sampling.s.ref").read().split("; Override")[0]

QB = 131072; QROW = 528
STB = QB + 8 * QROW
OB = STB + 256
OROW = 272
CNT = OB + 4 * OROW
WQS = 136704
RED = WQS + 16384
OWROW = 1040
LDS_BYTES = 163840
assert RED + 8192 <= LDS_BYTES

M1_SLICE = 2176
M2_BASE = 0x400000
QM_BASE = 0x700000
QF_BASE = 0x740000
CF_BASE = 0x760000
BAL_BASE = 0x7a0000
GC_BASE = 0x788000
EPOCH_OFF = 0x790000
TAG_C = 0x9E3779B9
STAMP_BASE = 0x800000
WS_BYTES = 0x1000000

sWG, sW, sKVH, sJ, sB = "s2", "s3", "s4", "s5", "s6"
sHW = "s7"
SRD_K, SRD_V, SRD_WQ, SRD_X, SRD_WO, SRD_WS = "s[8:11]", "s[12:15]", "s[16:19]", "s[20:23]", "s[24:27]", "s[28:31]"
SRD_OUT, SRD_DBG = "s[48:51]", "s[52:55]"
sKOFF, sVOFF = "s60", "s61"
sWB = "s62"
sKSLOT, sVSLOT = "s63", "s64"
sT = "s65"
sC, sNC = "s66", "s67"
sG = "s68"; sR = "s69"
sM1OUT, sM2OUT = "s70", "s71"
sT0, sT1, sT2, sT3, sT4, sT5 = "s72", "s73", "s74", "s75", "s76", "s77"
sSEL_LO, sSEL_HI = "s78", "s79"
sY = "s80"; sSPIN = "s81"; sTAG = "s82"; sLID = "s83"
sN = "s56"; sGB = "s57"; sGC = "s58"; sSTAT = "s59"; sSTEP = "s57"
vA = 108; vZERO = 110
STAMPS = ["s[84:85]", "s[86:87]", "s[88:89]", "s[90:91]", "s[92:93]", "s[94:95]", "s[96:97]", "s[98:99]"]

vO = 0
vLANE, vN, vGQ, vTMPA = 64, 65, 66, 67
vDMA = 68; vKA = 72; vVA = 76; vS = 84; vP = 88; vM, vL = 90, 91; vAL = 92
vT = 94
vLIN16 = 104; vODUMP = 105; vT2A, vT2B = 106, 107
AQ, AK, AV = 0, 32, 64

C_LOG2E_16 = 1.4426950408889634 / 16.0
def fbits(x): return struct.unpack("<I", struct.pack("<f", x))[0]

class Gen:
    def __init__(self, stamps=False, flags="nt", spin=1 << 18, kwait=16, nocomp=False, notail=False, wopace=8, hprio=0, qsleep=2, pace=3, dbgmid=False, nowo=False, noclr=False, v0pre=True, wosame=False, wopf=True, vwait=24, rate=False, noqwait=False, hexit=False, order2=True, kwait2=24, dyn=False, n0=16, pairmap=True, bal=True, ta=4, tb=11, tc=21, nlo=24):
        self.bal = bal; self.ta = ta; self.tb = tb; self.tc = tc; self.nlo = nlo
        assert not (dyn and bal)
        self.dyn = dyn; self.n0 = n0; self.pairmap = pairmap
        self.order2 = order2; self.kwait2 = kwait2
        self.rate = rate; self.noqwait = noqwait; self.hexit = hexit
        self.vwait = vwait
        self.wopf = wopf
        self.wosame = wosame
        self.v0pre = v0pre
        self.dbgmid = dbgmid; self.nowo = nowo; self.noclr = noclr
        self.pace = pace
        self.qsleep = qsleep
        self.L = []; self.stamps = stamps; self.flags = flags; self.spin = spin; self.kwait = kwait
        self.nocomp = nocomp; self.notail = notail; self.wopace = wopace; self.hprio = hprio
    def e(self, s): self.L.append("  " + s)
    def lab(self, s): self.L.append(s + ":")
    def c(self, s): self.L.append("  ; " + s)
    def stamp(self, i):
        if self.stamps: self.e(f"s_memrealtime {STAMPS[i]}")
    def nop(self, n):
        while n > 0:
            k = min(n, 16); self.e(f"s_nop {k-1}"); n -= k
    def dma_half(self, srd, soff):
        for i in range(4):
            o = f" offset:{i*1024}" if i else ""
            self.e(f"buffer_load_dwordx4 v{vDMA+i}, {srd}, {soff} offen{o} {self.flags} lds")
    def dma_tile(self, srd, goff, slot):
        e = self.e
        e(f"s_mov_b32 m0, {slot}"); e(f"s_add_u32 {sT0}, {goff}, 16384")
        self.dma_half(srd, goff)
        e(f"s_add_u32 m0, {slot}, 4096"); e("s_nop 0")
        self.dma_half(srd, sT0)
    def dma_tile_static(self, isv, tile):
        e = self.e
        for half in range(2):
            e(f"s_add_u32 m0, {sWB}, {isv*16384 + tile*8192 + half*4096}")
            e(f"s_add_u32 {sT5}, {sKOFF}, {tile*32768 + half*16384}")
            self.dma_half(SRD_V if isv else SRD_K, sT5)
    def dma_half_static(self, hn):
        e = self.e
        tile, half, isv = hn >> 2, hn & 1, (hn >> 1) & 1
        if self.dyn:
            e(f"s_add_u32 m0, {sWB}, {isv*16384 + tile*8192 + half*4096}")
            e(f"s_add_u32 {sT5}, {sKOFF}, {tile*32768 + half*16384}")
        else:
            e(f"s_add_u32 {sT5}, {sKOFF}, {half*16384}")
            if tile: e(f"s_add_u32 {sT5}, {sT5}, {sSTEP}")
            e(f"s_add_u32 m0, {sWB}, {isv*16384 + tile*8192 + half*4096}"); e("s_nop 0")
        self.dma_half(SRD_V if isv else SRD_K, sT5)
    def read_k(self):
        for s in range(8):
            a, u = s >> 2, s & 3
            self.e(f"ds_read_b128 a[{AK+4*s}:{AK+4*s+3}], v{vKA+u}" + (f" offset:{a*256}" if a else ""))
    def read_v(self):
        for t in range(16):
            a, u = t >> 3, t & 7
            self.e(f"ds_read_b64_tr_b16 a[{AV+2*t}:{AV+2*t+1}], v{vVA+u}" + (f" offset:{a*256}" if a else ""))
    def srd(self, base, lo, hi, size):
        e = self.e
        e(f"s_mov_b32 s{base}, s{lo}"); e(f"s_and_b32 s{base+1}, s{hi}, 0xffff"); e(f"s_mov_b32 s{base+2}, {size:#x}"); e(f"s_mov_b32 s{base+3}, 0x20000")
    def spin_dec(self, label):
        e = self.e
        e(f"s_sub_u32 {sSPIN}, {sSPIN}, 1"); e(f"s_cmp_lg_u32 {sSPIN}, 0"); e(f"s_cbranch_scc1 {label}")

    def loop1(self):
        e, lab, c = self.e, self.lab, self.c
        lab("L_loop")
        if self.rate:
            for tt, si in ((8, 1), (16, 4), (24, 5)):
                e(f"s_cmp_lg_u32 {sT}, {tt}"); e(f"s_cbranch_scc1 L_rs{tt}"); e(f"s_memrealtime {STAMPS[si]}"); lab(f"L_rs{tt}")
        for s in range(8):
            if self.nocomp: break
            cc = "0" if s == 0 else f"v[{vS}:{vS+3}]"
            e(f"v_mfma_f32_16x16x32_bf16 v[{vS}:{vS+3}], a[{AK+4*s}:{AK+4*s+3}], a[{AQ+4*s}:{AQ+4*s+3}], {cc}")
        e(f"s_cmp_eq_u32 {sT}, 31"); e("s_cbranch_scc1 L_k31")
        e(f"s_waitcnt vmcnt({self.kwait})")
        self.read_k()
        e("s_waitcnt lgkmcnt(0)")
        e(f"s_cmp_ge_u32 {sT}, 29"); e("s_cbranch_scc1 L_kdone")
        self.dma_tile(SRD_K, sKOFF, sKSLOT)
        e(f"s_add_u32 {sKOFF}, {sKOFF}, 32768"); e(f"s_xor_b32 {sKSLOT}, {sKSLOT}, 8192")
        lab("L_kdone")
        for u in range(4): e(f"v_xor_b32 v{vKA+u}, 8192, v{vKA+u}")
        lab("L_soft")
        t0, t1, t2 = vT, vT+1, vT+2
        if self.nocomp: e("s_branch L_noresc")
        e(f"v_max3_f32 v{t0}, v{vS}, v{vS+1}, v{vS+2}")
        e(f"v_max_f32 v{t0}, v{t0}, v{vS+3}")
        e(f"v_mov_b32 v{t1}, v{t0}"); e("s_nop 1")
        e(f"v_permlane32_swap_b32 v{t1}, v{t0}")
        e(f"v_max_f32 v{t0}, v{t0}, v{t1}")
        e(f"v_mov_b32 v{t1}, v{t0}"); e("s_nop 1")
        e(f"v_permlane16_swap_b32 v{t1}, v{t0}")
        e(f"v_max3_f32 v{t0}, v{t0}, v{t1}, v{vM}")
        e(f"v_sub_f32 v{t1}, v{vM}, v{t0}")
        e(f"v_mul_f32 v{t1}, {sC}, v{t1}")
        e(f"v_mul_f32 v{t2}, {sNC}, v{t0}")
        e(f"v_exp_f32 v{vAL}, v{t1}")
        e(f"v_mov_b32 v{vM}, v{t0}")
        for r in range(4): e(f"v_fma_f32 v{vS+r}, v{vS+r}, {sC}, v{t2}")
        for r in range(4): e(f"v_exp_f32 v{vS+r}, v{vS+r}")
        e(f"v_cmp_neq_f32 vcc, 1.0, v{vAL}")
        e(f"v_add_f32 v{t0}, v{vS}, v{vS+1}"); e(f"v_add_f32 v{t1}, v{vS+2}, v{vS+3}")
        e(f"v_cvt_pk_bf16_f32 v{vP}, v{vS}, v{vS+1}"); e(f"v_cvt_pk_bf16_f32 v{vP+1}, v{vS+2}, v{vS+3}")
        e(f"v_add_f32 v{t0}, v{t0}, v{t1}"); e(f"v_fma_f32 v{vL}, v{vL}, v{vAL}, v{t0}")
        e("s_cbranch_vccz L_noresc")
        for i in range(32):
            e(f"v_pk_mul_f32 v[{vO+2*i}:{vO+2*i+1}], v[{vO+2*i}:{vO+2*i+1}], v[{vAL}:{vAL+1}] op_sel_hi:[1,0]")
        lab("L_noresc")
        c("V point: steady state vmcnt(24); near the end fewer ops are outstanding")
        if self.v0pre:
            e(f"s_cmp_eq_u32 {sT}, 0"); e("s_cbranch_scc1 L_pv")
        e(f"s_cmp_ge_u32 {sT}, 29"); e("s_cbranch_scc1 L_vlate")
        e(f"s_waitcnt vmcnt({self.vwait})")
        lab("L_vrd")
        self.read_v()
        e("s_waitcnt lgkmcnt(0)")
        e(f"s_cmp_ge_u32 {sT}, 30"); e("s_cbranch_scc1 L_vdone")
        self.dma_tile(SRD_V, sVOFF, sVSLOT)
        e(f"s_add_u32 {sVOFF}, {sVOFF}, 32768"); e(f"s_xor_b32 {sVSLOT}, {sVSLOT}, 8192")
        lab("L_vdone")
        for u in range(8): e(f"v_xor_b32 v{vVA+u}, 8192, v{vVA+u}")
        lab("L_pv")
        for t in range(16):
            if self.nocomp: break
            e(f"v_mfma_f32_16x16x16_bf16 v[{vO+4*t}:{vO+4*t+3}], a[{AV+2*t}:{AV+2*t+1}], v[{vP}:{vP+1}], v[{vO+4*t}:{vO+4*t+3}]")
        e(f"s_add_u32 {sT}, {sT}, 1"); e(f"s_cmp_lt_u32 {sT}, 32"); e("s_cbranch_scc1 L_loop")
        e("s_branch L_tail")
        lab("L_vlate")
        e(f"s_cmp_eq_u32 {sT}, 29"); e("s_cbranch_scc1 L_vrd")
        e(f"s_cmp_eq_u32 {sT}, 30"); e("s_cbranch_scc0 L_vlast")
        e("s_waitcnt vmcnt(8)"); e("s_branch L_vrd")
        lab("L_vlast")
        e("s_waitcnt vmcnt(0)"); e("s_branch L_vrd")
        lab("L_k31")
        self.nop(8)
        e("s_branch L_soft")


    def loop2(self):
        e, lab, c = self.e, self.lab, self.c
        dyn = self.dyn
        lab("L_loop")
        if self.rate:
            for tt, si in ((8, 1), (16, 4), (24, 5)):
                e(f"s_cmp_lg_u32 {sT}, {tt}"); e(f"s_cbranch_scc1 L_rs{tt}"); e(f"s_memrealtime {STAMPS[si]}"); lab(f"L_rs{tt}")
        t0, t1, t2 = vT, vT+1, vT+2
        def cmpN(op, k):
            if dyn or self.bal:
                e(f"s_sub_u32 {sT1}, {sN}, {k}"); e(f"s_cmp_{op}_u32 {sT}, {sT1}")
            else:
                e(f"s_cmp_{op}_u32 {sT}, {32-k}")
        c("A: QK")
        for s in range(8):
            if self.nocomp: break
            cc = "0" if s == 0 else f"v[{vS}:{vS+3}]"
            e(f"v_mfma_f32_16x16x32_bf16 v[{vS}:{vS+3}], a[{AK+4*s}:{AK+4*s+3}], a[{AQ+4*s}:{AQ+4*s+3}], {cc}")
        c("B: K point")
        if self.bal:
            e(f"s_cmp_eq_u32 {sT}, {self.ta}"); e("s_cbranch_scc1 L_balst")
            e(f"s_cmp_eq_u32 {sT}, {self.tb}"); e("s_cbranch_scc1 L_balst")
            e(f"s_cmp_eq_u32 {sT}, {self.tc}"); e("s_cbranch_scc1 L_balget")
            lab("L_balback")
        cmpN("ge", 2); e("s_cbranch_scc1 L_klate")
        e(f"s_waitcnt vmcnt({self.kwait2})")
        lab("L_krd")
        self.read_k()
        if dyn:
            cmpN("ge", 3); e("s_cbranch_scc1 L_knoref")
            c("tile id for t+3 ; atomics run two iterations ahead (regs vA, vA+1 by parity of t)")
            e(f"s_cmp_ge_u32 {sT}, {self.n0-3}"); e("s_cbranch_scc1 L_dynid")
            e(f"s_mov_b32 {sT2}, {sSTAT}"); e(f"s_add_u32 {sSTAT}, {sSTAT}, 16")
            e(f"s_cmp_eq_u32 {sT}, {self.n0-5}"); e("s_cbranch_scc1 L_dynchk")
            e(f"s_cmp_eq_u32 {sT}, {self.n0-4}"); e("s_cbranch_scc1 L_atom")
            e("s_branch L_mkoff")
            lab("L_dynid")
            e(f"s_bitcmp1_b32 {sT}, 0"); e("s_cbranch_scc1 L_dynid1")
            e(f"v_readfirstlane_b32 {sT2}, v{vA}"); e("s_branch L_dynid2")
            lab("L_dynid1")
            e(f"v_readfirstlane_b32 {sT2}, v{vA+1}")
            lab("L_dynid2")
            e("s_nop 3")
            e(f"s_add_u32 {sT2}, {sT2}, {self.n0*16}")
            e(f"s_cmp_ge_u32 {sT2}, 512"); e("s_cbranch_scc1 L_exhaust")
            lab("L_atom")
            e("s_mov_b64 exec, 1")
            e(f"s_bitcmp1_b32 {sT}, 0"); e("s_cbranch_scc1 L_atom1")
            e(f"v_mov_b32 v{vA}, 1")
            e(f"buffer_atomic_add v{vA}, v{vZERO}, {SRD_WS}, {sGC} offen sc0 sc1"); e("s_branch L_atom2")
            lab("L_atom1")
            e(f"v_mov_b32 v{vA+1}, 1")
            e(f"buffer_atomic_add v{vA+1}, v{vZERO}, {SRD_WS}, {sGC} offen sc0 sc1")
            lab("L_atom2")
            e("s_mov_b64 exec, -1")
            lab("L_mkoff")
            e(f"s_lshr_b32 {sT3}, {sT2}, 2"); e(f"s_and_b32 {sT3}, {sT3}, 3"); e(f"s_lshl_b32 {sT3}, {sT3}, 20")
            e(f"s_lshr_b32 {sT4}, {sT2}, 4"); e(f"s_lshl_b32 {sT4}, {sT4}, 15"); e(f"s_add_u32 {sT3}, {sT3}, {sT4}")
            e(f"s_and_b32 {sT4}, {sT2}, 3"); e(f"s_lshl_b32 {sT4}, {sT4}, 12"); e(f"s_add_u32 {sT3}, {sT3}, {sT4}")
            e(f"s_add_u32 {sKOFF}, {sGB}, {sT3}")
            e("s_waitcnt lgkmcnt(0)")
            self.dma_tile(SRD_K, sKOFF, sKSLOT)
            e(f"s_xor_b32 {sKSLOT}, {sKSLOT}, 8192")
            e("s_branch L_kdone")
            lab("L_knoref")
            e("s_waitcnt lgkmcnt(0)")
        else:
            e("s_waitcnt lgkmcnt(0)")
            cmpN("ge", 3); e("s_cbranch_scc1 L_kdone")
            self.dma_tile(SRD_K, sKOFF, sKSLOT)
            e(f"s_add_u32 {sKOFF}, {sKOFF}, {sSTEP}"); e(f"s_xor_b32 {sKSLOT}, {sKSLOT}, 8192")
        lab("L_kdone")
        for u in range(4): e(f"v_xor_b32 v{vKA+u}, 8192, v{vKA+u}")
        lab("L_soft")
        c("C: softmax")
        if self.nocomp: e("s_branch L_noresc")
        e(f"v_max3_f32 v{t0}, v{vS}, v{vS+1}, v{vS+2}")
        e(f"v_max_f32 v{t0}, v{t0}, v{vS+3}")
        e(f"v_mov_b32 v{t1}, v{t0}"); e("s_nop 1")
        e(f"v_permlane32_swap_b32 v{t1}, v{t0}")
        e(f"v_max_f32 v{t0}, v{t0}, v{t1}")
        e(f"v_mov_b32 v{t1}, v{t0}"); e("s_nop 1")
        e(f"v_permlane16_swap_b32 v{t1}, v{t0}")
        e(f"v_max3_f32 v{t0}, v{t0}, v{t1}, v{vM}")
        e(f"v_sub_f32 v{t1}, v{vM}, v{t0}")
        e(f"v_mul_f32 v{t1}, {sC}, v{t1}")
        e(f"v_mul_f32 v{t2}, {sNC}, v{t0}")
        e(f"v_exp_f32 v{vAL}, v{t1}")
        e(f"v_mov_b32 v{vM}, v{t0}")
        for r in range(4): e(f"v_fma_f32 v{vS+r}, v{vS+r}, {sC}, v{t2}")
        for r in range(4): e(f"v_exp_f32 v{vS+r}, v{vS+r}")
        e(f"v_cmp_neq_f32 vcc, 1.0, v{vAL}")
        e(f"v_add_f32 v{t0}, v{vS}, v{vS+1}"); e(f"v_add_f32 v{t1}, v{vS+2}, v{vS+3}")
        e(f"v_cvt_pk_bf16_f32 v{vP}, v{vS}, v{vS+1}"); e(f"v_cvt_pk_bf16_f32 v{vP+1}, v{vS+2}, v{vS+3}")
        e(f"v_add_f32 v{t0}, v{t0}, v{t1}"); e(f"v_fma_f32 v{vL}, v{vL}, v{vAL}, v{t0}")
        e("s_cbranch_vccz L_noresc")
        for i in range(32):
            e(f"v_pk_mul_f32 v[{vO+2*i}:{vO+2*i+1}], v[{vO+2*i}:{vO+2*i+1}], v[{vAL}:{vAL+1}] op_sel_hi:[1,0]")
        lab("L_noresc")
        cmpN("eq", 1); e("s_cbranch_scc1 L_vjit")
        lab("L_pv")
        c("D: PV")
        for t in range(16):
            if self.nocomp: break
            e(f"v_mfma_f32_16x16x16_bf16 v[{vO+4*t}:{vO+4*t+3}], a[{AV+2*t}:{AV+2*t+1}], v[{vP}:{vP+1}], v[{vO+4*t}:{vO+4*t+3}]")
        c("E: V point")
        cmpN("ge", 3); e("s_cbranch_scc1 L_vlate")
        e(f"s_waitcnt vmcnt({self.vwait})")
        self.read_v()
        e("s_waitcnt lgkmcnt(0)")
        if dyn:
            self.dma_tile(SRD_V, sKOFF, sVSLOT)
            e(f"s_xor_b32 {sVSLOT}, {sVSLOT}, 8192")
        else:
            self.dma_tile(SRD_V, sVOFF, sVSLOT)
            e(f"s_add_u32 {sVOFF}, {sVOFF}, {sSTEP}"); e(f"s_xor_b32 {sVSLOT}, {sVSLOT}, 8192")
        lab("L_vdone")
        for u in range(8): e(f"v_xor_b32 v{vVA+u}, 8192, v{vVA+u}")
        lab("L_next")
        e(f"s_add_u32 {sT}, {sT}, 1")
        if dyn or self.bal: e(f"s_cmp_lt_u32 {sT}, {sN}")
        else: e(f"s_cmp_lt_u32 {sT}, 32")
        e("s_cbranch_scc1 L_loop")
        e("s_branch L_tail")
        lab("L_klate")
        cmpN("eq", 1); e("s_cbranch_scc1 L_k31")
        e("s_waitcnt vmcnt(8)"); e("s_branch L_krd")
        lab("L_k31")
        self.nop(8)
        e("s_branch L_soft")
        lab("L_vlate")
        cmpN("eq", 3); e("s_cbranch_scc0 L_next")
        e("s_waitcnt vmcnt(16)")
        self.read_v()
        e("s_waitcnt lgkmcnt(0)")
        e("s_branch L_vdone")
        lab("L_vjit")
        e("s_waitcnt vmcnt(0)")
        self.read_v()
        e("s_waitcnt lgkmcnt(0)")
        e("s_branch L_pv")
        if self.bal:
            lab("L_balst")
            e(f"s_cmp_lg_u32 {sW}, 0"); e("s_cbranch_scc1 L_balback")
            e(f"s_memrealtime s[{sT2[1:]}:{sT3[1:]}]"); e("s_waitcnt lgkmcnt(0)")
            e(f"s_or_b32 {sT2}, {sT2}, 1")
            e(f"s_cmp_eq_u32 {sT}, {self.tb}"); e(f"s_cselect_b32 {sT3}, 4, 0"); e(f"s_add_u32 {sT3}, {sT3}, {CNT+8}")
            e(f"v_mov_b32 v{t0}, {sT3}"); e(f"v_mov_b32 v{t1}, {sT2}")
            e(f"ds_write_b32 v{t0}, v{t1}")
            e("s_branch L_balback")
            lab("L_balget")
            e(f"s_mov_b32 {sSPIN}, {self.spin}")
            e(f"v_mov_b32 v{t0}, {CNT+16}")
            lab("L_balget1")
            e(f"ds_read_b32 v{t1}, v{t0}"); e("s_waitcnt lgkmcnt(0)")
            e(f"v_readfirstlane_b32 {sN}, v{t1}"); e("s_nop 3")
            e(f"s_cmp_lg_u32 {sN}, 0"); e("s_cbranch_scc1 L_balback")
            e("s_sleep 4")
            self.spin_dec("L_balget1")
            e(f"s_mov_b32 {sN}, 32")
            e("s_branch L_balback")
        if dyn:
            lab("L_exhaust")
            e(f"s_add_u32 {sN}, {sT}, 3")
            e("s_branch L_knoref")
            lab("L_dynchk")
            e(f"s_mov_b32 {sSPIN}, {self.spin}")
            e(f"v_mov_b32 v{t0}, {CNT+8}")
            lab("L_dynchk1")
            e(f"ds_read_b32 v{t1}, v{t0}"); e("s_waitcnt lgkmcnt(0)")
            e(f"v_readfirstlane_b32 {sT3}, v{t1}"); e("s_nop 3")
            e(f"s_cmp_eq_u32 {sT3}, 1"); e("s_cbranch_scc1 L_atom")
            e("s_sleep 8")
            self.spin_dec("L_dynchk1")
            e("s_branch L_atom")

    def build(self):
        e, lab, c = self.e, self.lab, self.c
        L = self.L
        L.append(HDR.rstrip())
        L.append(f"; @launch grid=(256,1,1) block=(512,1,1) lds={LDS_BYTES}")
        L.append('.amdgcn_target "amdgcn-amd-amdhsa--gfx950"')
        L.append(".text"); L.append(f".globl {NAME}_kernel"); L.append(".p2align 8"); L.append(f".type {NAME}_kernel,@function")
        lab(f"{NAME}_kernel")
        e(f"s_cmp_ge_u32 {sWG}, 256"); e("s_cbranch_scc1 L_end")
        e("s_load_dwordx16 s[32:47], s[0:1], 0")
        self.stamp(0)
        e(f"v_lshrrev_b32 v{vTMPA}, 6, v0")
        e(f"v_and_b32 v{vLANE}, 63, v0")
        e(f"s_and_b32 {sT0}, {sWG}, 7"); e(f"s_lshr_b32 {sT1}, {sWG}, 3")
        e(f"v_readfirstlane_b32 {sW}, v{vTMPA}")
        if self.pairmap:
            e(f"s_and_b32 {sKVH}, {sT0}, 6"); e(f"s_and_b32 {sT2}, {sT1}, 1"); e(f"s_add_u32 {sKVH}, {sKVH}, {sT2}")
            e(f"s_and_b32 {sJ}, {sT0}, 1"); e(f"s_and_b32 {sT2}, {sT1}, 2"); e(f"s_add_u32 {sJ}, {sJ}, {sT2}")
            e(f"s_lshr_b32 {sB}, {sT1}, 2")
        else:
            e(f"s_mov_b32 {sKVH}, {sT0}"); e(f"s_and_b32 {sJ}, {sT1}, 3"); e(f"s_lshr_b32 {sB}, {sT1}, 2")
        e(f"s_lshl_b32 {sY}, {sB}, 2"); e(f"s_add_u32 {sY}, {sY}, {sJ}")
        e(f"s_lshl_b32 {sLID}, {sY}, 3"); e(f"s_add_u32 {sLID}, {sLID}, {sKVH}")
        e(f"s_lshl_b32 {sG}, {sB}, 3"); e(f"s_add_u32 {sG}, {sG}, {sKVH}")
        e(f"v_and_b32 v{vN}, 15, v{vLANE}"); e(f"v_lshrrev_b32 v{vGQ}, 4, v{vLANE}")
        e(f"s_and_b32 {sHW}, {sW}, 3")
        e(f"s_lshl_b32 {sR}, {sKVH}, 2"); e(f"s_add_u32 {sR}, {sR}, {sJ}")
        e(f"s_cmp_ge_u32 {sW}, 4"); e("s_cbranch_scc1 L_helper")

        c("DMA voffsets")
        e(f"v_lshrrev_b32 v{vT}, 5, v{vLANE}"); e(f"v_and_b32 v{vT+1}, 31, v{vLANE}")
        e(f"v_lshlrev_b32 v{vT+2}, 9, v{vT}"); e(f"v_lshlrev_b32 v{vT+3}, 1, v{vT}")
        for i in range(4):
            e(f"v_xor_b32 v{vT+4}, {4*i}, v{vT+3}"); e(f"v_xor_b32 v{vT+4}, v{vT+4}, v{vT+1}")
            e(f"v_lshl_add_u32 v{vDMA+i}, v{vT+4}, 4, v{vT+2}")
        if self.bal:
            e(f"s_lshl_b32 {sKOFF}, {sG}, 22"); e(f"s_lshr_b32 {sT0}, {sJ}, 1"); e(f"s_lshl_b32 {sT0}, {sT0}, 21"); e(f"s_add_u32 {sKOFF}, {sKOFF}, {sT0}")
            e(f"s_and_b32 {sT1}, {sJ}, 1"); e(f"s_mul_i32 {sT0}, {sT1}, {63*32768}"); e(f"s_add_u32 {sKOFF}, {sKOFF}, {sT0}")
            e(f"s_mul_i32 {sT1}, {sT1}, -65536"); e(f"s_add_u32 {sSTEP}, {sT1}, 32768")
            e(f"s_mov_b32 {sN}, 100000")
        else:
            e(f"s_lshl_b32 {sKOFF}, {sG}, 22"); e(f"s_lshl_b32 {sT0}, {sJ}, 20"); e(f"s_add_u32 {sKOFF}, {sKOFF}, {sT0}")
            e(f"s_mov_b32 {sSTEP}, 32768") if not self.dyn else None
        e(f"s_lshl_b32 {sT0}, {sW}, 12"); e(f"s_add_u32 {sKOFF}, {sKOFF}, {sT0}")
        e(f"s_lshl_b32 {sWB}, {sW}, 15")
        e("s_waitcnt lgkmcnt(0)")
        self.srd(8, 34, 35, 0x10000000); self.srd(12, 36, 37, 0x10000000)
        e("s_barrier")
        for hn in range(self.pace): self.dma_half_static(hn)
        self.srd(28, 46, 47, WS_BYTES)
        c("K/V LDS read addresses")
        e(f"v_and_b32 v{vT}, 7, v{vN}"); e(f"v_lshlrev_b32 v{vT}, 1, v{vT}")
        e(f"v_lshlrev_b32 v{vT+1}, 9, v{vN}"); e(f"v_add_u32 v{vT+1}, {sWB}, v{vT+1}")
        for u in range(4):
            e(f"v_add_u32 v{vT+2}, {4*u}, v{vGQ}"); e(f"v_xor_b32 v{vT+2}, v{vT+2}, v{vT}"); e(f"v_lshl_add_u32 v{vKA+u}, v{vT+2}, 4, v{vT+1}")
        e(f"v_lshrrev_b32 v{vT}, 2, v{vN}"); e(f"v_lshl_add_u32 v{vT}, v{vGQ}, 2, v{vT}")
        e(f"v_and_b32 v{vT+1}, 7, v{vT}"); e(f"v_lshlrev_b32 v{vT+2}, 9, v{vT}")
        e(f"v_and_b32 v{vT+3}, 3, v{vN}"); e(f"v_lshl_add_u32 v{vT+2}, v{vT+3}, 3, v{vT+2}")
        e(f"s_add_u32 {sT0}, {sWB}, 16384"); e(f"v_add_u32 v{vT+2}, {sT0}, v{vT+2}")
        for u in range(8):
            e(f"v_xor_b32 v{vT+3}, {u}, v{vT+1}"); e(f"v_lshl_add_u32 v{vVA+u}, v{vT+3}, 5, v{vT+2}")
        c("init O, m, l, consts")
        for i in range(64): e(f"v_mov_b32 v{vO+i}, 0")
        e(f"v_mov_b32 v{vM}, 0xff7fffff"); e(f"v_mov_b32 v{vL}, 0")
        e(f"s_mov_b32 {sC}, {fbits(C_LOG2E_16):#x}"); e(f"s_mov_b32 {sNC}, {fbits(-C_LOG2E_16):#x}")
        e(f"v_lshlrev_b32 v{vLIN16}, 4, v{vLANE}")
        e(f"s_lshl_b32 {sT0}, {sG}, 2"); e(f"s_add_u32 {sT0}, {sT0}, {sW}"); e(f"s_lshl_b32 {sT0}, {sT0}, 2"); e(f"s_add_u32 {sT0}, {sT0}, {sJ}")
        e(f"s_mul_i32 {sM1OUT}, {sT0}, {M1_SLICE}")
        if self.dyn:
            e(f"s_mov_b32 {sN}, 100000"); e(f"s_lshl_b32 {sGB}, {sG}, 22")
            e(f"s_lshl_b32 {sGC}, {sG}, 7"); e(f"s_add_u32 {sGC}, {sGC}, {GC_BASE:#x}")
            e(f"s_lshl_b32 {sSTAT}, {sJ}, 2"); e(f"s_add_u32 {sSTAT}, {sSTAT}, {sW}"); e(f"s_add_u32 {sSTAT}, {sSTAT}, 48")
            e(f"v_mov_b32 v{vZERO}, 0")
        c("Q frag read address")
        e(f"s_movk_i32 {sT1}, {QROW}")
        e(f"v_and_b32 v{vT+5}, 7, v{vN}"); e(f"v_mul_lo_u32 v{vT+5}, v{vT+5}, {sT1}"); e(f"v_lshl_add_u32 v{vT+5}, v{vGQ}, 4, v{vT+5}"); e(f"v_add_u32 v{vT+5}, {QB}, v{vT+5}")
        c("paced fill of halves: K0a K0b V0a V0b K1a K1b V1a V1b, then K2 (slot A after reading K0)")
        P = self.pace
        for hn in range(P, 8):
            e(f"s_waitcnt vmcnt({4*(P-1)})")
            self.dma_half_static(hn)
            if hn == max(P, 2) + 1 - (0 if P <= 2 else 0) and False: pass
        c("K0 landed long ago")
        self.read_k()
        if self.dyn:
            e(f"s_add_u32 {sKOFF}, {sKOFF}, 65536")
        else:
            e(f"s_add_u32 {sKOFF}, {sKOFF}, {sSTEP}"); e(f"s_add_u32 {sKOFF}, {sKOFF}, {sSTEP}")
        e(f"s_mov_b32 {sVOFF}, {sKOFF}")
        e(f"s_mov_b32 {sKSLOT}, {sWB}"); e(f"s_add_u32 {sVSLOT}, {sWB}, 16384")
        e(f"s_add_u32 {sT4}, {sKOFF}, 16384")
        e(f"s_waitcnt vmcnt({4*(P-1)}) lgkmcnt(0)")
        e(f"s_mov_b32 m0, {sKSLOT}"); e("s_nop 0")
        self.dma_half(SRD_K, sKOFF)
        e(f"s_waitcnt vmcnt({4*(P-1)})")
        e(f"s_add_u32 m0, {sKSLOT}, 4096"); e("s_nop 0")
        self.dma_half(SRD_K, sT4)
        e(f"s_add_u32 {sKOFF}, {sKOFF}, {32768 if self.dyn else sSTEP}"); e(f"s_xor_b32 {sKSLOT}, {sKSLOT}, 8192")
        for u in range(4): e(f"v_xor_b32 v{vKA+u}, 8192, v{vKA+u}")
        if self.v0pre:
            c("V0 -> regs, refill V2")
            self.read_v()
            e(f"s_add_u32 {sT4}, {sVOFF}, 16384")
            e(f"s_waitcnt vmcnt({4*(P-1)}) lgkmcnt(0)")
            e(f"s_mov_b32 m0, {sVSLOT}"); e("s_nop 0")
            self.dma_half(SRD_V, sVOFF)
            e(f"s_waitcnt vmcnt({4*(P-1)})")
            e(f"s_add_u32 m0, {sVSLOT}, 4096"); e("s_nop 0")
            self.dma_half(SRD_V, sT4)
            e(f"s_add_u32 {sVOFF}, {sVOFF}, {32768 if self.dyn else sSTEP}"); e(f"s_xor_b32 {sVSLOT}, {sVSLOT}, 8192")
            for u in range(8): e(f"v_xor_b32 v{vVA+u}, 8192, v{vVA+u}")
        if not self.rate: self.stamp(1)
        e("s_barrier")
        for s in range(8):
            e(f"ds_read_b128 a[{AQ+4*s}:{AQ+4*s+3}], v{vT+5}" + (f" offset:{s*64}" if s else ""))
        e(f"s_mov_b32 {sT}, 0")
        e("s_waitcnt lgkmcnt(0)")
        self.stamp(2)

        if self.order2:
            self.loop2()
        else:
            self.loop1()
        lab("L_tail")
        t0, t1, t2 = vT, vT+1, vT+2
        self.stamp(3)
        e(f"v_mov_b32 v{t1}, v{vL}"); e("s_nop 1")
        e(f"v_permlane32_swap_b32 v{t1}, v{vL}"); e(f"v_add_f32 v{vL}, v{vL}, v{t1}")
        e(f"v_mov_b32 v{t1}, v{vL}"); e("s_nop 1")
        e(f"v_permlane16_swap_b32 v{t1}, v{vL}"); e(f"v_add_f32 v{vL}, v{vL}, v{t1}")
        e(f"s_movk_i32 {sT1}, {OWROW}"); e(f"v_mul_lo_u32 v{vODUMP}, v{vN}, {sT1}")
        e(f"v_lshl_add_u32 v{vODUMP}, v{vGQ}, 4, v{vODUMP}"); e(f"v_add_u32 v{vODUMP}, {sWB}, v{vODUMP}")
        e(f"s_lshl_b32 {sT0}, {sW}, 6"); e(f"s_add_u32 {sT0}, {sT0}, {STB}")
        e(f"v_lshlrev_b32 v{t2}, 3, v{vN}"); e(f"v_add_u32 v{t2}, {sT0}, v{t2}")
        e("s_mov_b32 exec_lo, 0x00ff00ff"); e("s_mov_b32 exec_hi, 0x00ff00ff")
        for t in range(16):
            e(f"ds_write_b128 v{vODUMP}, v[{vO+4*t}:{vO+4*t+3}]" + (f" offset:{t*64}" if t else ""))
        e("s_mov_b64 exec, 0xff")
        e(f"ds_write_b64 v{t2}, v[{vM}:{vM+1}]")
        e("s_mov_b64 exec, -1")
        e(f"v_and_b32 v{vT}, 3, v{vLANE}"); e(f"v_lshrrev_b32 v{vT+1}, 2, v{vLANE}")
        e(f"s_lshr_b32 {sT0}, {sW}, 1"); e(f"s_lshl_b32 {sT0}, {sT0}, 2")
        e(f"v_add_u32 v{vT}, {sT0}, v{vT}")
        e(f"v_mul_lo_u32 v{vT2A}, v{vT}, {sT1}"); e(f"v_lshl_add_u32 v{vT2A}, v{vT+1}, 5, v{vT2A}")
        e(f"s_and_b32 {sT0}, {sW}, 1"); e(f"s_lshl_b32 {sT0}, {sT0}, 9"); e(f"v_add_u32 v{vT2A}, {sT0}, v{vT2A}")
        e(f"v_add_u32 v{vT2B}, 65536, v{vT2A}")
        e(f"v_lshlrev_b32 v{vT+2}, 3, v{vT}"); e(f"v_add_u32 v{vT+2}, {STB}, v{vT+2}")
        e("s_waitcnt lgkmcnt(0)"); e("s_barrier")
        if not self.rate: self.stamp(4)
        for w in range(4): e(f"ds_read_b64 v[{2*w}:{2*w+1}], v{vT+2} offset:{w*64}")
        for w in range(4):
            for u in range(2):
                a = vT2A if w < 2 else vT2B
                o = (w & 1) * 32768 + u * 16
                e(f"ds_read_b128 v[{8+8*w+4*u}:{8+8*w+4*u+3}], v{a}" + (f" offset:{o}" if o else ""))
        e("s_waitcnt lgkmcnt(8)")
        e("v_max3_f32 v40, v0, v2, v4"); e("v_max_f32 v40, v40, v6")
        for w in range(4): e(f"v_sub_f32 v{44+w}, v{2*w}, v40")
        for w in range(4): e(f"v_mul_f32 v{44+w}, {sC}, v{44+w}")
        for w in range(4): e(f"v_exp_f32 v{44+w}, v{44+w}")
        e("s_nop 0")
        e("v_mul_f32 v41, v44, v1"); e("v_fmac_f32 v41, v45, v3"); e("v_fmac_f32 v41, v46, v5"); e("v_fmac_f32 v41, v47, v7")
        e("s_waitcnt lgkmcnt(0)")
        for k in range(8): e(f"v_mul_f32 v{48+k}, v44, v{8+k}")
        for w in range(1, 4):
            for k in range(8): e(f"v_fmac_f32 v{48+k}, v{44+w}, v{8+8*w+k}")
        e(f"buffer_store_dwordx4 v[48:51], v{vLIN16}, {SRD_WS}, {sM1OUT} offen sc1")
        e(f"buffer_store_dwordx4 v[52:55], v{vLIN16}, {SRD_WS}, {sM1OUT} offen offset:1024 sc1")
        e(f"v_lshlrev_b32 v{vT}, 3, v{vLANE}")
        e("s_mov_b64 exec, 0xf")
        e(f"buffer_store_dwordx2 v[40:41], v{vT}, {SRD_WS}, {sM1OUT} offen offset:2048 sc1")
        e("s_mov_b64 exec, -1")
        if not self.rate: self.stamp(5)
        e("s_branch L_fin")

        lab("L_helper")
        if self.hexit:
            e("s_waitcnt lgkmcnt(0)"); self.srd(28, 46, 47, WS_BYTES)
            e("s_barrier"); e("s_barrier"); e("s_barrier"); e("s_branch L_fin")
        if self.hprio: e(f"s_setprio {self.hprio}")
        c("wq DMA voffset: (l>>1)*8192 + (l&1)*16 + (kvh*512 + 16y)*2 ; x voffset: n*896 + g*16")
        hX = 0
        hA = 32
        hD = 48
        e(f"v_lshrrev_b32 v{vT}, 1, v{vLANE}"); e(f"v_lshlrev_b32 v{vT}, 13, v{vT}")
        e(f"v_and_b32 v{vT+1}, 1, v{vLANE}"); e(f"v_lshl_add_u32 v{vT}, v{vT+1}, 4, v{vT}")
        e(f"s_lshl_b32 {sT0}, {sKVH}, 10"); e(f"s_lshl_b32 {sT1}, {sY}, 5"); e(f"s_add_u32 {sT0}, {sT0}, {sT1}")
        e(f"v_add_u32 v{vDMA}, {sT0}, v{vT}")
        e(f"s_movk_i32 {sT1}, 896"); e(f"v_mul_lo_u32 v{vDMA+1}, v{vN}, {sT1}"); e(f"v_lshl_add_u32 v{vDMA+1}, v{vGQ}, 4, v{vDMA+1}")
        e(f"s_lshl_b32 {sWB}, {sHW}, 12"); e(f"s_add_u32 {sWB}, {sWB}, {WQS}")
        c("H0 zeroes the LDS counters")
        e(f"v_mov_b32 v{vT+2}, {CNT}")
        for i in range(4): e(f"v_mov_b32 v{vT+4+i}, 0")
        e(f"ds_write_b128 v{vT+2}, v[{vT+4}:{vT+7}]"); e(f"ds_write_b128 v{vT+2}, v[{vT+4}:{vT+7}] offset:16")
        e("s_waitcnt lgkmcnt(0)")
        e(f"s_add_u32 s56, s46, {EPOCH_OFF:#x}"); e("s_addc_u32 s57, s47, 0")
        e(f"s_load_dword {sTAG}, s[56:57], 0")
        self.srd(16, 38, 39, 3670016); self.srd(20, 32, 33, 28672)
        e(f"s_lshl_b32 {sT2}, {sHW}, 18")
        e(f"s_lshl_b32 {sT3}, {sHW}, 6")
        for idx in range(4):
            if idx == 3:
                e(f"s_cmp_ge_u32 {sHW}, 2"); e("s_cbranch_scc1 L_hq_issued")
            e(f"s_add_u32 m0, {sWB}, {idx*1024}")
            e(f"s_add_u32 {sT4}, {sT3}, 14336")
            e(f"buffer_load_dwordx4 v{vDMA}, {SRD_WQ}, {sT2} offen lds")
            e(f"buffer_load_dwordx4 v[{hX+8*idx}:{hX+8*idx+3}], v{vDMA+1}, {SRD_X}, {sT3} offen")
            e(f"buffer_load_dwordx4 v[{hX+8*idx+4}:{hX+8*idx+7}], v{vDMA+1}, {SRD_X}, {sT4} offen")
            if idx < 3:
                e(f"s_add_u32 {sT2}, {sT2}, {4*262144}"); e(f"s_add_u32 {sT3}, {sT3}, 256")
        lab("L_hq_issued")
        e("s_barrier")
        self.srd(28, 46, 47, WS_BYTES); self.srd(24, 40, 41, 3670016)
        e("s_mov_b32 s34, s42"); e("s_mov_b32 s35, s43")
        c("tr-read address: wb + (8g + (i>>2))*32 + (i&3)*8  (+128 for second half, +1024*idx)")
        e(f"v_lshrrev_b32 v{vT}, 2, v{vN}"); e(f"v_lshl_add_u32 v{vT}, v{vGQ}, 3, v{vT}"); e(f"v_lshlrev_b32 v{vT}, 5, v{vT}")
        e(f"v_and_b32 v{vT+1}, 3, v{vN}"); e(f"v_lshl_add_u32 v{vT}, v{vT+1}, 3, v{vT}"); e(f"v_add_u32 v{vT}, {sWB}, v{vT}")
        for i in range(8): e(f"v_mov_b32 v{hD+i}, 0")
        c("partial write address: RED + hw*2048 + n*64 + g*16 (+1024 for h=1)")
        e(f"s_lshl_b32 {sT0}, {sHW}, 11"); e(f"s_add_u32 {sT0}, {sT0}, {RED}")
        e(f"v_lshlrev_b32 v{vT+2}, 6, v{vN}"); e(f"v_lshl_add_u32 v{vT+2}, v{vGQ}, 4, v{vT+2}"); e(f"v_add_u32 v{vT+2}, {sT0}, v{vT+2}")
        e("s_waitcnt vmcnt(0)")
        self.stamp(1)
        for idx in range(4):
            if idx == 3:
                e(f"s_cmp_ge_u32 {sHW}, 2"); e("s_cbranch_scc1 L_hq_mm")
            e(f"ds_read_b64_tr_b16 v[{hA+4*idx}:{hA+4*idx+1}], v{vT} offset:{idx*1024}")
            e(f"ds_read_b64_tr_b16 v[{hA+4*idx+2}:{hA+4*idx+3}], v{vT} offset:{idx*1024+128}")
            e("s_waitcnt lgkmcnt(0)")
            for h in range(2):
                e(f"v_mfma_f32_16x16x32_bf16 v[{hD+4*h}:{hD+4*h+3}], v[{hA+4*idx}:{hA+4*idx+3}], v[{hX+8*idx+4*h}:{hX+8*idx+4*h+3}], v[{hD+4*h}:{hD+4*h+3}]")
        lab("L_hq_mm")
        self.nop(8)
        e(f"ds_write_b128 v{vT+2}, v[{hD}:{hD+3}]"); e(f"ds_write_b128 v{vT+2}, v[{hD+4}:{hD+7}] offset:1024")
        e(f"v_mov_b32 v{vT+3}, {CNT}"); e(f"v_mov_b32 v{vT+4}, 1")
        e("s_waitcnt lgkmcnt(0)")
        e("s_mov_b64 exec, 1"); e(f"ds_add_u32 v{vT+3}, v{vT+4}"); e("s_mov_b64 exec, -1")
        c("reduce read address: RED + rho*64 + cp*8, rho = 8hw + (l>>3), cp = l&7")
        e(f"v_lshrrev_b32 v{vT}, 3, v{vLANE}"); e(f"s_lshl_b32 {sT0}, {sHW}, 3"); e(f"v_add_u32 v{vT}, {sT0}, v{vT}")
        e(f"v_and_b32 v{vT+1}, 7, v{vLANE}")
        e(f"v_lshlrev_b32 v{vT+2}, 6, v{vT}"); e(f"v_lshl_add_u32 v{vT+2}, v{vT+1}, 3, v{vT+2}"); e(f"v_add_u32 v{vT+2}, {RED}, v{vT+2}")
        c("publish address: QM + ((kvh*8 + b)*32 + y)*128 + q*32 + cp*4 ; b = rho>>2, q = rho&3")
        e(f"v_lshrrev_b32 v{vT+4}, 2, v{vT}"); e(f"v_lshlrev_b32 v{vT+4}, 12, v{vT+4}")
        e(f"v_and_b32 v{vT+5}, 3, v{vT}"); e(f"v_lshl_add_u32 v{vT+4}, v{vT+5}, 5, v{vT+4}"); e(f"v_lshl_add_u32 v{vT+4}, v{vT+1}, 2, v{vT+4}")
        e(f"s_lshl_b32 {sT0}, {sKVH}, 15"); e(f"s_lshl_b32 {sT1}, {sY}, 7"); e(f"s_add_u32 {sT0}, {sT0}, {sT1}"); e(f"s_add_u32 {sT0}, {sT0}, {QM_BASE:#x}")
        e(f"s_mov_b32 {sSPIN}, {self.spin}")
        lab("L_hs1")
        e(f"ds_read_b32 v{vT+6}, v{vT+3}"); e("s_waitcnt lgkmcnt(0)")
        e(f"v_readfirstlane_b32 {sT1}, v{vT+6}"); e("s_nop 3")
        e(f"s_cmp_ge_u32 {sT1}, 4"); e("s_cbranch_scc1 L_hs1ok")
        self.spin_dec("L_hs1")
        lab("L_hs1ok")
        for w in range(4): e(f"ds_read_b64 v[{2*w}:{2*w+1}], v{vT+2} offset:{w*2048}")
        e("s_waitcnt lgkmcnt(0)")
        e("v_add_f32 v0, v0, v2"); e("v_add_f32 v1, v1, v3"); e("v_add_f32 v4, v4, v6"); e("v_add_f32 v5, v5, v7")
        e("v_add_f32 v0, v0, v4"); e("v_add_f32 v1, v1, v5")
        e("v_cvt_pk_bf16_f32 v0, v0, v1")
        e(f"buffer_store_dword v0, v{vT+4}, {SRD_WS}, {sT0} offen sc1")
        e("s_waitcnt vmcnt(0)")
        self.stamp(2)
        c("last helper wave to finish signals: flag dword QF[kvh][y] := tag")
        e(f"v_mov_b32 v{vT+4}, 1"); e(f"v_mov_b32 v{vT+3}, {CNT+4}")
        e("s_mov_b64 exec, 1")
        e(f"ds_add_rtn_u32 v{vT+6}, v{vT+3}, v{vT+4}"); e("s_waitcnt lgkmcnt(0)")
        e(f"s_add_u32 {sTAG}, {sTAG}, {TAG_C:#x}")
        e(f"v_readfirstlane_b32 {sT1}, v{vT+6}"); e("s_nop 3")
        c("flag store: lane y' (0..31) writes QF[consumer = y'*8+kvh][y] ; consumer line = (y'*8+kvh)*128")
        e(f"s_cmp_eq_u32 {sT1}, 3"); e("s_cbranch_scc0 L_hnoflag")
        e("s_mov_b32 exec_lo, -1"); e("s_mov_b32 exec_hi, 0")
        e(f"v_lshlrev_b32 v{vT+5}, 10, v{vLANE}"); e(f"v_mov_b32 v{vT+4}, {sTAG}")
        e(f"s_lshl_b32 {sT4}, {sKVH}, 7"); e(f"s_lshl_b32 {sT5}, {sY}, 2"); e(f"s_add_u32 {sT4}, {sT4}, {sT5}"); e(f"s_add_u32 {sT4}, {sT4}, {QF_BASE:#x}")
        e(f"buffer_store_dword v{vT+4}, v{vT+5}, {SRD_WS}, {sT4} offen sc1")
        lab("L_hnoflag")
        e("s_mov_b64 exec, -1")
        e(f"v_lshlrev_b32 v{vLIN16}, 4, v{vLANE}")
        e(f"s_cmp_lg_u32 {sHW}, 0"); e("s_cbranch_scc1 L_hq_done")
        c("H0: poll own flag line via scalar loads")
        e(f"s_lshl_b32 {sT4}, {sLID}, 7"); e(f"s_add_u32 {sT4}, {sT4}, {QF_BASE:#x}")
        e(f"s_add_u32 s32, s46, {sT4}"); e("s_addc_u32 s33, s47, 0")
        e(f"s_mov_b32 {sSPIN}, {self.spin}")
        lab("L_hq_poll")
        PR = (8, 48)
        for k, r in enumerate(PR): e(f"s_load_dwordx16 s[{r}:{r+15}], s[32:33], {64*k} glc")
        e("s_waitcnt lgkmcnt(0)")
        for k, r in enumerate(PR):
            for i in range(16):
                e(f"s_xor_b32 s{r+i}, s{r+i}, {sTAG}")
                if k or i: e(f"s_or_b32 s8, s8, s{r+i}")
        e("s_cmp_eq_u32 s8, 0"); e("s_cbranch_scc1 L_hq_ok")
        e(f"s_sleep {self.qsleep}")
        self.spin_dec("L_hq_poll")
        lab("L_hq_ok")
        self.stamp(3)
        c("fetch Q (4 KB): QM + (kvh*8+b)*4096 + i*1024 + l*16")
        e(f"s_lshl_b32 {sT0}, {sKVH}, 3"); e(f"s_add_u32 {sT0}, {sT0}, {sB}"); e(f"s_lshl_b32 {sT0}, {sT0}, 12"); e(f"s_add_u32 {sT0}, {sT0}, {QM_BASE:#x}")
        for i in range(4):
            e(f"buffer_load_dwordx4 v[{4*i}:{4*i+3}], v{vLIN16}, {SRD_WS}, {sT0} offen" + (f" offset:{i*1024}" if i else "") + " sc1")
        c("LDS write address: QB + (4h+q)*528 + (128*(i&1) + 16yy + 8half)*2 ; yy=l>>3, q=(l>>1)&3, half=l&1, h=i>>1")
        e(f"v_lshrrev_b32 v{vT}, 1, v{vLANE}"); e(f"v_and_b32 v{vT}, 3, v{vT}")
        e(f"s_movk_i32 {sT1}, {QROW}"); e(f"v_mul_lo_u32 v{vT}, v{vT}, {sT1}")
        e(f"v_lshrrev_b32 v{vT+1}, 3, v{vLANE}"); e(f"v_lshl_add_u32 v{vT}, v{vT+1}, 5, v{vT}")
        e(f"v_and_b32 v{vT+1}, 1, v{vLANE}"); e(f"v_lshl_add_u32 v{vT}, v{vT+1}, 4, v{vT}")
        e(f"v_add_u32 v{vT}, {QB}, v{vT}")
        e("s_waitcnt vmcnt(0)")
        for i in range(4):
            o = (i >> 1) * 4 * QROW + (i & 1) * 256
            e(f"ds_write_b128 v{vT}, v[{4*i}:{4*i+3}]" + (f" offset:{o}" if o else ""))
        e("s_waitcnt lgkmcnt(0)")
        self.stamp(4)
        lab("L_hq_done")
        e("s_barrier")
        self.srd(48, 34, 35, 28672)
        if self.wopf:
            c("L2 prefetch of this WG's 1/8 share of the wo quarter: rows r*128 + 16b .. +16 (14336 B contiguous); wave hw: 4KB pieces")
            e(f"s_lshl_b32 {sT0}, {sR}, 7"); e(f"s_lshl_b32 {sT1}, {sB}, 4"); e(f"s_add_u32 {sT0}, {sT0}, {sT1}"); e(f"s_mul_i32 {sT0}, {sT0}, 896")
            e(f"s_lshl_b32 {sT1}, {sHW}, 12"); e(f"s_add_u32 {sT0}, {sT0}, {sT1}")
            for i in range(4):
                e(f"buffer_load_dwordx4 v[{8+4*i}:{8+4*i+3}], v{vLIN16}, {SRD_WO}, {sT0} offen" + (f" offset:{i*1024}" if i else ""))
        c("clears: M1[g][recv=hw][sender=j] (2176B) and M2[b][r][hw] (2048B)")
        e(f"s_lshl_b32 {sT0}, {sG}, 2"); e(f"s_add_u32 {sT0}, {sT0}, {sHW}"); e(f"s_lshl_b32 {sT0}, {sT0}, 2"); e(f"s_add_u32 {sT0}, {sT0}, {sJ}")
        e(f"s_mul_i32 {sM1OUT}, {sT0}, {M1_SLICE}")
        e(f"s_lshl_b32 {sT0}, {sB}, 5"); e(f"s_add_u32 {sT0}, {sT0}, {sR}"); e(f"s_lshl_b32 {sT0}, {sT0}, 13"); e(f"s_lshl_b32 {sT1}, {sHW}, 11")
        e(f"s_add_u32 {sM2OUT}, {sT0}, {sT1}"); e(f"s_add_u32 {sM2OUT}, {sM2OUT}, {M2_BASE:#x}")
        for i in range(4): e(f"v_mov_b32 v{i}, -1")
        e(f"buffer_store_dwordx4 v[0:3], v{vLIN16}, {SRD_WS}, {sM1OUT} offen sc1")
        e(f"buffer_store_dwordx4 v[0:3], v{vLIN16}, {SRD_WS}, {sM1OUT} offen offset:1024 sc1")
        e(f"buffer_store_dwordx4 v[0:3], v{vLIN16}, {SRD_WS}, {sM2OUT} offen sc1")
        e(f"buffer_store_dwordx4 v[0:3], v{vLIN16}, {SRD_WS}, {sM2OUT} offen offset:1024 sc1")
        e("s_mov_b64 exec, 0xff")
        e(f"buffer_store_dwordx4 v[0:3], v{vLIN16}, {SRD_WS}, {sM1OUT} offen offset:2048 sc1")
        if self.dyn:
            c("group counter := 0 (j==0, hw==0)")
            e(f"s_or_b32 {sT0}, {sJ}, {sHW}"); e(f"s_cmp_lg_u32 {sT0}, 0"); e("s_cbranch_scc1 L_hnogc")
            e("s_mov_b64 exec, 1"); e(f"v_mov_b32 v4, 0"); e(f"s_lshl_b32 {sT0}, {sG}, 7"); e(f"s_add_u32 {sT0}, {sT0}, {GC_BASE:#x}")
            e(f"buffer_store_dword v4, v4, {SRD_WS}, {sT0} offen sc1")
            lab("L_hnogc")
        e("s_mov_b64 exec, -1")
        e("s_waitcnt vmcnt(0)")
        if self.dbgmid: self.stamp(1)
        c("last helper wave signals clears done: lane r' writes CF[consumer wg' = (r'>>2) + 32b + 8(r'&3)][r] := tag")
        e(f"v_mov_b32 v{vT+4}, 1"); e(f"v_mov_b32 v{vT+3}, {CNT+4}")
        e("s_mov_b64 exec, 1")
        e(f"ds_add_rtn_u32 v{vT+6}, v{vT+3}, v{vT+4}"); e("s_waitcnt lgkmcnt(0)")
        e(f"v_readfirstlane_b32 {sT1}, v{vT+6}"); e("s_nop 3")
        e("s_mov_b64 exec, -1")
        e(f"s_cmp_eq_u32 {sT1}, 7"); e("s_cbranch_scc0 L_hnoflag2")
        e(f"v_lshrrev_b32 v{vT+5}, 2, v{vLANE}"); e(f"v_and_b32 v{vT+6}, 3, v{vLANE}"); e(f"v_lshl_add_u32 v{vT+5}, v{vT+6}, 3, v{vT+5}")
        e(f"v_lshlrev_b32 v{vT+5}, 7, v{vT+5}"); e(f"v_mov_b32 v{vT+4}, {sTAG}")
        e(f"s_lshl_b32 {sT4}, {sB}, 12"); e(f"s_lshl_b32 {sT5}, {sR}, 2"); e(f"s_add_u32 {sT4}, {sT4}, {sT5}"); e(f"s_add_u32 {sT4}, {sT4}, {CF_BASE:#x}")
        e("s_mov_b32 exec_lo, -1"); e("s_mov_b32 exec_hi, 0")
        e(f"buffer_store_dword v{vT+4}, v{vT+5}, {SRD_WS}, {sT4} offen sc1")
        lab("L_hnoflag2")
        e("s_mov_b64 exec, -1")
        c("wo: load, transpose, park in AGPRs a[0:127]")
        e(f"s_mov_b32 {sSEL_LO}, 0x05040100"); e(f"s_mov_b32 {sSEL_HI}, 0x07060302")
        e(f"s_lshl_b32 {sT0}, {sR}, 7")
        if self.wosame: e(f"s_mov_b32 {sT0}, 0")
        e(f"v_lshlrev_b32 v{vT}, 3, v{vGQ}"); e(f"v_add_u32 v{vT}, {sT0}, v{vT}")
        e(f"s_movk_i32 {sT1}, 896"); e(f"v_mul_lo_u32 v{vT}, v{vT}, {sT1}")
        e(f"s_mul_i32 {sT0}, {sHW}, 224"); e(f"v_lshl_add_u32 v{vT}, v{vN}, 4, v{vT}"); e(f"v_add_u32 v{vT}, {sT0}, v{vT}")
        for ks in range(4):
            if self.nowo: break
            kk = 0 if self.wosame else ks
            e(f"s_mov_b32 {sT0}, {kk*32*896}"); e(f"s_mov_b32 {sT1}, {kk*32*896 + 4*896}")
            for i in range(8):
                so = sT0 if i < 4 else sT1
                o = (i & 3) * 896
                e(f"buffer_load_dwordx4 v[{4*i}:{4*i+3}], v{vT}, {SRD_WO}, {so} offen" + (f" offset:{o}" if o else ""))
                if self.wopace < 8 and (i + 1) % self.wopace == 0: e("s_waitcnt vmcnt(0)")
            e("s_waitcnt vmcnt(0)")
            for j in range(8):
                u = j >> 1; sel = sSEL_HI if (j & 1) else sSEL_LO
                for p in range(4):
                    e(f"v_perm_b32 v{32+4*j+p}, v{4*(2*p+1)+u}, v{4*(2*p)+u}, {sel}")
            for k in range(32): e(f"v_accvgpr_write_b32 a{32*ks+k}, v{32+k}")
        if self.dbgmid: self.stamp(2)
        c("wait until all WGs of batch b have cleared their outboxes: dword at kvh*32+4b == 0x01010101 for all kvh")
        e(f"s_cmp_lg_u32 {sHW}, 0"); e("s_cbranch_scc1 L_hclrok")
        e(f"s_lshl_b32 {sT0}, {sLID}, 7"); e(f"s_add_u32 {sT0}, {sT0}, {CF_BASE:#x}")
        e(f"v_and_b32 v{vT+1}, 31, v{vLANE}"); e(f"v_lshlrev_b32 v{vT+1}, 2, v{vT+1}")
        e(f"s_mov_b32 {sSPIN}, {self.spin}")
        lab("L_hclr")
        e(f"buffer_load_dword v{vT+2}, v{vT+1}, {SRD_WS}, {sT0} offen sc1"); e("s_waitcnt vmcnt(0)")
        e(f"v_cmp_ne_u32 vcc, {sTAG}, v{vT+2}"); e("s_nop 1"); e("s_cbranch_vccz L_hclrok")
        e("s_sleep 16")
        self.spin_dec("L_hclr")
        lab("L_hclrok")
        if self.dyn:
            e(f"s_cmp_lg_u32 {sHW}, 0"); e("s_cbranch_scc1 L_hnodyn")
            e(f"v_mov_b32 v{vT+1}, {CNT+8}"); e(f"v_mov_b32 v{vT+2}, 1"); e(f"ds_write_b32 v{vT+1}, v{vT+2}")
            lab("L_hnodyn")
        if self.dbgmid: self.stamp(3)
        if self.bal:
            c("H0: balance exchange with partner (lid ^ 8)")
            e(f"s_cmp_lg_u32 {sHW}, 0"); e("s_cbranch_scc1 L_hbaldone")
            e(f"v_mov_b32 v{vT}, {CNT+8}"); e(f"s_mov_b32 {sSPIN}, {self.spin}")
            lab("L_hbal1")
            e(f"ds_read_b64 v[0:1], v{vT}"); e("s_waitcnt lgkmcnt(0)")
            e(f"v_readfirstlane_b32 {sT0}, v1"); e("s_nop 3")
            e(f"s_cmp_lg_u32 {sT0}, 0"); e("s_cbranch_scc1 L_hbal1ok")
            e("s_sleep 32")
            self.spin_dec("L_hbal1")
            lab("L_hbal1ok")
            c("v0 = a (time at ta), v1 = c (time at tb): publish {a, tag, c, tag}")
            e(f"v_mov_b32 v4, v0"); e(f"v_mov_b32 v5, {sTAG}"); e(f"v_mov_b32 v6, v1"); e(f"v_mov_b32 v7, {sTAG}"); e("v_mov_b32 v8, 0")
            e(f"s_xor_b32 {sT0}, {sLID}, 8"); e(f"s_lshl_b32 {sT0}, {sT0}, 7"); e(f"s_add_u32 {sT0}, {sT0}, {BAL_BASE:#x}")
            e("s_mov_b64 exec, 1")
            e(f"buffer_store_dwordx4 v[4:7], v8, {SRD_WS}, {sT0} offen sc1")
            e(f"s_lshl_b32 {sT0}, {sLID}, 7"); e(f"s_add_u32 {sT0}, {sT0}, {BAL_BASE:#x}")
            e(f"s_mov_b32 {sSPIN}, {self.spin}")
            lab("L_hbal2")
            e(f"buffer_load_dwordx4 v[12:15], v8, {SRD_WS}, {sT0} offen sc1"); e("s_waitcnt vmcnt(0)")
            e(f"v_xor_b32 v16, {sTAG}, v13"); e(f"v_xor_b32 v17, {sTAG}, v15"); e("v_or_b32 v16, v16, v17")
            e("s_nop 0"); e(f"v_readfirstlane_b32 {sT1}, v16"); e("s_nop 3")
            e(f"s_cmp_eq_u32 {sT1}, 0"); e("s_cbranch_scc1 L_hbal2ok")
            e("s_sleep 16")
            self.spin_dec("L_hbal2")
            c("timeout: both sides cannot agree -> cannot happen in a healthy run; use N = 32")
            e("v_mov_b32 v20, 32"); e("s_branch L_hbal3")
            lab("L_hbal2ok")
            c("A = role 0, B = role 1: (aA,cA) in v[0:1] / (aB,cB) in v12,v14 for role 0; swapped for role 1")
            e(f"s_and_b32 {sT1}, {sJ}, 1"); e(f"s_cmp_eq_u32 {sT1}, 0")
            e("s_cbranch_scc1 L_hbalA")
            e("v_mov_b32 v18, v0"); e("v_mov_b32 v19, v1"); e("v_mov_b32 v0, v12"); e("v_mov_b32 v1, v14"); e("v_mov_b32 v12, v18"); e("v_mov_b32 v14, v19")
            lab("L_hbalA")
            e("v_sub_u32 v2, v1, v0"); e("v_sub_u32 v3, v14, v12"); e("v_sub_u32 v4, v14, v1")
            e("v_cvt_f32_i32 v2, v2"); e("v_cvt_f32_i32 v3, v3"); e("v_cvt_f32_i32 v4, v4")
            nint = self.tb - self.ta
            e(f"v_mul_f32 v5, {fbits(float(nint)):#x}, v4")
            e(f"v_mov_b32 v6, {fbits(float(64-self.tb)):#x}"); e("v_fmac_f32 v5, v6, v3")
            e(f"v_mov_b32 v6, {fbits(float(self.tb)):#x}"); e("v_fmac_f32 v5, v6, v2")
            e("v_add_f32 v6, v2, v3"); e("v_rcp_f32 v6, v6"); e("s_nop 0")
            e("v_mul_f32 v5, v5, v6"); e("v_add_f32 v5, 0.5, v5"); e("v_cvt_i32_f32 v20, v5")
            e(f"v_max_i32 v20, {self.nlo}, v20"); e(f"v_min_i32 v20, {64-self.nlo}, v20")
            e(f"s_cbranch_scc1 L_hbal3")
            e("v_sub_u32 v20, 64, v20")
            lab("L_hbal3")
            e(f"v_mov_b32 v21, {CNT+16}"); e("ds_write_b32 v21, v20")
            e("s_mov_b64 exec, -1")
            lab("L_hbaldone")
        e(f"s_mov_b32 {sC}, {fbits(C_LOG2E_16):#x}")
        c("precompute tail addresses")
        e(f"s_lshl_b32 {sT0}, {sG}, 2"); e(f"s_add_u32 {sT0}, {sT0}, {sJ}"); e(f"s_mul_i32 {sT0}, {sT0}, {4*M1_SLICE}")
        e(f"s_add_u32 {sT1}, {sT0}, {M1_SLICE}"); e(f"s_add_u32 {sT2}, {sT0}, {2*M1_SLICE}"); e(f"s_add_u32 {sT3}, {sT0}, {3*M1_SLICE}")
        hST = 108
        e(f"v_and_b32 v{hST}, 3, v{vLANE}"); e(f"v_lshlrev_b32 v{hST}, 3, v{hST}")
        hOW, hOR, hYS, hP2, hOUT = 109, 110, 111, 112, 113
        e(f"v_and_b32 v{hOW}, 3, v{vLANE}"); e(f"s_movk_i32 {sT4}, {OROW}"); e(f"v_mul_lo_u32 v{hOW}, v{hOW}, {sT4}")
        e(f"v_lshrrev_b32 v{vT}, 2, v{vLANE}"); e(f"v_lshl_add_u32 v{hOW}, v{vT}, 4, v{hOW}"); e(f"v_add_u32 v{hOW}, {OB}, v{hOW}")
        e(f"v_and_b32 v{hOR}, 3, v{vN}"); e(f"v_mul_lo_u32 v{hOR}, v{hOR}, {sT4}"); e(f"v_lshl_add_u32 v{hOR}, v{vGQ}, 4, v{hOR}"); e(f"v_add_u32 v{hOR}, {OB}, v{hOR}")
        e(f"v_lshlrev_b32 v{hYS}, 6, v{vGQ}"); e(f"v_lshl_add_u32 v{hYS}, v{vN}, 4, v{hYS}")
        e(f"v_lshlrev_b32 v{hP2}, 16, v{vGQ}"); e(f"v_lshl_add_u32 v{hP2}, v{vN}, 4, v{hP2}")
        e(f"v_and_b32 v{hOUT}, 3, v{vN}"); e(f"s_lshl_b32 {sT4}, {sB}, 2"); e(f"v_add_u32 v{hOUT}, {sT4}, v{hOUT}")
        e(f"s_movk_i32 {sT4}, 896"); e(f"v_mul_lo_u32 v{hOUT}, v{hOUT}, {sT4}")
        e(f"v_lshrrev_b32 v{vT}, 2, v{vN}"); e(f"v_lshl_add_u32 v{hOUT}, v{vT}, 6, v{hOUT}")
        e(f"s_lshl_b32 s58, {sB}, 18"); e(f"s_lshr_b32 {sT4}, {sR}, 3"); e(f"s_lshl_b32 {sT4}, {sT4}, 11"); e(f"s_add_u32 s58, s58, {sT4}")
        e(f"s_and_b32 {sT4}, {sR}, 7"); e(f"s_lshl_b32 {sT4}, {sT4}, 8"); e(f"s_add_u32 s58, s58, {sT4}"); e(f"s_add_u32 s58, s58, {M2_BASE:#x}")
        e(f"s_lshr_b32 s59, {sR}, 3"); e(f"s_mul_i32 s59, s59, 224"); e(f"s_and_b32 {sT4}, {sR}, 7"); e(f"s_lshl_b32 {sT4}, {sT4}, 1"); e(f"s_add_u32 s59, s59, {sT4}")
        self.stamp(5)
        e("s_barrier")
        if self.notail: e("s_branch L_fin")
        e(f"s_cmp_lg_u32 {sHW}, 0"); e("s_cbranch_scc1 L_t3done")
        e(f"s_mov_b32 {sSPIN}, {self.spin}")
        PB = 0
        lab("L_poll1")
        for jj, so in enumerate((sT0, sT1, sT2, sT3)):
            e(f"buffer_load_dwordx4 v[{PB+8*jj}:{PB+8*jj+3}], v{vLIN16}, {SRD_WS}, {so} offen sc1")
            e(f"buffer_load_dwordx4 v[{PB+8*jj+4}:{PB+8*jj+7}], v{vLIN16}, {SRD_WS}, {so} offen offset:1024 sc1")
            e(f"buffer_load_dwordx2 v[{PB+32+2*jj}:{PB+32+2*jj+1}], v{hST}, {SRD_WS}, {so} offen offset:2048 sc1")
        e("s_waitcnt vmcnt(0)")
        mx = vT + 1
        e(f"v_max3_u32 v{mx}, v{PB}, v{PB+1}, v{PB+2}")
        for k in range(3, 39, 2): e(f"v_max3_u32 v{mx}, v{mx}, v{PB+k}, v{PB+k+1}")
        e(f"v_max_u32 v{mx}, v{mx}, v{PB+39}")
        e(f"v_cmp_eq_u32 vcc, -1, v{mx}"); e("s_nop 1"); e("s_cbranch_vccz L_poll1ok")
        self.spin_dec("L_poll1")
        lab("L_poll1ok")
        ST = PB + 32; a0 = vT + 2; F = vT + 4
        e(f"v_max3_f32 v{a0}, v{ST}, v{ST+2}, v{ST+4}"); e(f"v_max_f32 v{a0}, v{a0}, v{ST+6}")
        for w in range(4): e(f"v_sub_f32 v{F+w}, v{ST+2*w}, v{a0}")
        for w in range(4): e(f"v_mul_f32 v{F+w}, {sC}, v{F+w}")
        for w in range(4): e(f"v_exp_f32 v{F+w}, v{F+w}")
        e("s_nop 0")
        e(f"v_mul_f32 v{a0}, v{F}, v{ST+1}")
        for w in range(1, 4): e(f"v_fmac_f32 v{a0}, v{F+w}, v{ST+2*w+1}")
        e(f"v_rcp_f32 v{a0}, v{a0}"); e("s_nop 0")
        for w in range(4): e(f"v_mul_f32 v{F+w}, v{F+w}, v{a0}")
        ACC = ST
        for k in range(8): e(f"v_mul_f32 v{ACC+k}, v{F}, v{PB+k}")
        for w in range(1, 4):
            for k in range(8): e(f"v_fmac_f32 v{ACC+k}, v{F+w}, v{PB+8*w+k}")
        for p in range(4): e(f"v_cvt_pk_bf16_f32 v{PB+p}, v{ACC+2*p}, v{ACC+2*p+1}")
        e(f"ds_write_b128 v{hOW}, v[{PB}:{PB+3}]")
        lab("L_t3done")
        e("s_waitcnt lgkmcnt(0)"); e("s_barrier")
        self.stamp(6)
        BF = 64 + 48 - 64 + 40
        BF = 40
        for ks in range(4):
            e(f"ds_read_b128 v[{BF+4*ks}:{BF+4*ks+3}], v{hOR}" + (f" offset:{ks*64}" if ks else ""))
        YA = 0
        e("s_waitcnt lgkmcnt(0)")
        for ks in range(4):
            for j in range(8):
                A = 32*ks + 4*j
                cc = "0" if ks == 0 else f"v[{YA+4*j}:{YA+4*j+3}]"
                e(f"v_mfma_f32_16x16x32_bf16 v[{YA+4*j}:{YA+4*j+3}], a[{A}:{A+3}], v[{BF+4*ks}:{BF+4*ks+3}], {cc}")
        e("s_mov_b32 exec_lo, 0x000f000f"); e("s_mov_b32 exec_hi, 0x000f000f")
        self.nop(6)
        for j in range(8):
            e(f"buffer_store_dwordx4 v[{YA+4*j}:{YA+4*j+3}], v{hYS}, {SRD_WS}, {sM2OUT} offen offset:{j*256} sc1")
        e("s_mov_b64 exec, -1")
        e(f"s_cmp_lg_u32 {sHW}, 0"); e("s_cbranch_scc1 L_fin")
        e(f"s_mov_b32 {sSPIN}, {self.spin}")
        PB = 64
        lab("L_poll2")
        for i in range(8):
            if i == 0: so = "s58"
            else:
                e(f"s_add_u32 {sT1}, s58, {i*8192}"); so = sT1
            e(f"buffer_load_dwordx4 v[{PB+4*i}:{PB+4*i+3}], v{hP2}, {SRD_WS}, {so} offen sc1")
        e("s_waitcnt vmcnt(0)")
        mx = 60
        e(f"v_max3_u32 v{mx}, v{PB}, v{PB+1}, v{PB+2}")
        for k in range(3, 31, 2): e(f"v_max3_u32 v{mx}, v{mx}, v{PB+k}, v{PB+k+1}")
        e(f"v_max_u32 v{mx}, v{mx}, v{PB+31}")
        e(f"v_cmp_eq_u32 vcc, -1, v{mx}"); e("s_nop 1"); e("s_cbranch_vccz L_poll2ok")
        self.spin_dec("L_poll2")
        lab("L_poll2ok")
        for k in range(4): e(f"v_add_f32 v{32+k}, v{PB+k}, v{PB+4+k}")
        for i in range(2, 8):
            for k in range(4): e(f"v_add_f32 v{32+k}, v{32+k}, v{PB+4*i+k}")
        for k in range(4): e(f"v_mov_b32 v{36+k}, v{32+k}")
        e("s_nop 0")
        for k in range(4): e(f"v_permlane32_swap_b32 v{36+k}, v{32+k}")
        for k in range(4): e(f"v_add_f32 v{32+k}, v{32+k}, v{36+k}")
        for k in range(4): e(f"v_mov_b32 v{36+k}, v{32+k}")
        e("s_nop 0")
        for k in range(4): e(f"v_permlane16_swap_b32 v{36+k}, v{32+k}")
        for k in range(4): e(f"v_add_f32 v{32+k}, v{32+k}, v{36+k}")
        e("v_cvt_pk_bf16_f32 v40, v32, v33"); e("v_cvt_pk_bf16_f32 v41, v34, v35")
        e("s_mov_b64 exec, 0xffff")
        e(f"buffer_store_short v40, v{hOUT}, {SRD_OUT}, s59 offen")
        e(f"buffer_store_short_d16_hi v40, v{hOUT}, {SRD_OUT}, s59 offen offset:16")
        e("s_mov_b64 exec, 0xfff")
        e(f"buffer_store_short v41, v{hOUT}, {SRD_OUT}, s59 offen offset:32")
        e(f"buffer_store_short_d16_hi v41, v{hOUT}, {SRD_OUT}, s59 offen offset:48")
        e(f"s_cmp_lg_u32 {sLID}, 0"); e("s_cbranch_scc1 L_noep")
        e("s_mov_b64 exec, 1")
        e(f"v_mov_b32 v42, {sTAG}"); e(f"v_mov_b32 v43, 0"); e(f"s_mov_b32 {sT0}, {EPOCH_OFF:#x}")
        e(f"buffer_store_dword v42, v43, {SRD_WS}, {sT0} offen sc1")
        lab("L_noep")
        e("s_mov_b64 exec, -1")
        lab("L_fin")
        if self.stamps:
            self.stamp(7)
            e("s_waitcnt vmcnt(0) lgkmcnt(0)")
            e(f"s_lshl_b32 {sT0}, {sWG}, 3"); e(f"s_add_u32 {sT0}, {sT0}, {sW}"); e(f"s_lshl_b32 {sT0}, {sT0}, 5"); e(f"s_add_u32 {sT0}, {sT0}, {STAMP_BASE:#x}")
            if self.bal:
                e(f"s_cmp_lt_u32 {sW}, 4"); e("s_cbranch_scc0 L_non"); e(f"s_mov_b32 s96, {sN}"); lab("L_non")
            for i in range(8): e(f"v_mov_b32 v{i}, s{84+2*i}")
            e("v_mov_b32 v8, 0")
            e("s_mov_b64 exec, 1")
            e(f"buffer_store_dwordx4 v[0:3], v8, {SRD_WS}, {sT0} offen")
            e(f"buffer_store_dwordx4 v[4:7], v8, {SRD_WS}, {sT0} offen offset:16")
            e("s_waitcnt vmcnt(0)")
        lab("L_end")
        e("s_endpgm")
        L.append('.section .rodata,"a"'); L.append(".p2align 6"); L.append(f".amdhsa_kernel {NAME}_kernel")
        for d in ("next_free_vgpr 256", "next_free_sgpr 102", "accum_offset 128", "group_segment_fixed_size 0", "kernarg_size 64",
                  "user_sgpr_count 2", "user_sgpr_kernarg_segment_ptr 1", "system_sgpr_workgroup_id_x 1"):
            L.append("  .amdhsa_" + d)
        L.append(".end_amdhsa_kernel")
        return "\n".join(L) + "\n"

if __name__ == "__main__":
    import argparse
    ap = argparse.ArgumentParser()
    ap.add_argument("out"); ap.add_argument("--stamps", action="store_true"); ap.add_argument("--opt", default="{}")
    a = ap.parse_args()
    open(a.out, "w").write(Gen(stamps=a.stamps, **eval("dict(" + a.opt + ")" if not a.opt.startswith(("{", "dict")) else a.opt)).build())
```

```python
import sys, struct

NAME = "standalone__gqa_block_cached__sampling"
HDR = open("standalone__gqa_block_cached__sampling.s.ref").read().split("; Override")[0]

QB = 131072; QROW = 528
STB = QB + 8 * QROW
OB = STB + 256
OROW = 272
CNT = OB + 4 * OROW
WQS = 136704
RED = WQS + 16384
OWROW = 1040
LDS_BYTES = 163840
assert RED + 8192 <= LDS_BYTES

M1_SLICE = 2176
M2_BASE = 0x400000
QM_BASE = 0x600000
QF_BASE = 0x740000
CF_BASE = 0x760000
BAL_BASE = 0x7a0000
GC_BASE = 0x788000
EPOCH_OFF = 0x790000
TAG_C = 0x9E3779B9
STAMP_BASE = 0x800000
WS_BYTES = 0x1000000

sWG, sW, sKVH, sJ, sB = "s2", "s3", "s4", "s5", "s6"
sHW = "s7"
SRD_K, SRD_V, SRD_WQ, SRD_X, SRD_WO, SRD_WS = "s[8:11]", "s[12:15]", "s[16:19]", "s[20:23]", "s[24:27]", "s[28:31]"
SRD_OUT, SRD_DBG = "s[48:51]", "s[52:55]"
sKOFF, sVOFF = "s60", "s61"
sWB = "s62"
sKSLOT, sVSLOT = "s63", "s64"
sT = "s65"
sC, sNC = "s66", "s67"
sG = "s68"; sR = "s69"
sM1OUT, sM2OUT = "s70", "s71"
sT0, sT1, sT2, sT3, sT4, sT5 = "s72", "s73", "s74", "s75", "s76", "s77"
sSEL_LO, sSEL_HI = "s78", "s79"
sY = "s80"; sSPIN = "s81"; sTAG = "s82"; sLID = "s83"; sTL = "s59"
sN = "s56"; sGB = "s57"; sGC = "s58"; sSTAT = "s59"; sSTEP = "s57"
vA = 108; vZERO = 110
STAMPS = ["s[84:85]", "s[86:87]", "s[88:89]", "s[90:91]", "s[92:93]", "s[94:95]", "s[96:97]", "s[98:99]"]

vO = 0
vLANE, vN, vGQ, vTMPA = 64, 65, 66, 67
vDMA = 68; vKA = 72; vVA = 76; vS = 84; vP = 88; vM, vL = 90, 91; vAL = 92
vT = 94
vLIN16 = 104; vODUMP = 105; vT2A, vT2B = 106, 107
AQ, AK, AV = 0, 32, 64

C_LOG2E_16 = 1.4426950408889634 / 16.0
def fbits(x): return struct.unpack("<I", struct.pack("<f", x))[0]

class Gen:
    def __init__(self, stamps=False, flags="nt", spin=1 << 18, kwait=16, nocomp=False, notail=False, wopace=8, hprio=0, qsleep=2, pace=3, dbgmid=False, nowo=False, noclr=False, v0pre=True, wosame=False, wopf=True, vwait=24, rate=False, noqwait=False, hexit=False, order2=True, kwait2=24, dyn=False, n0=16, pairmap=True, bal=True, ta=4, tb=11, tc=21, nlo=24, quiet=0, dbgq=False, hop1=True, qdelay=True, pre0=2):
        self.pre0 = pre0
        self.qdelay = qdelay
        self.hop1 = hop1
        self.dbgq = dbgq
        self.quiet = quiet
        self.bal = bal; self.ta = ta; self.tb = tb; self.tc = tc; self.nlo = nlo
        assert not (dyn and bal)
        self.dyn = dyn; self.n0 = n0; self.pairmap = pairmap
        self.order2 = order2; self.kwait2 = kwait2
        self.rate = rate; self.noqwait = noqwait; self.hexit = hexit
        self.vwait = vwait
        self.wopf = wopf
        self.wosame = wosame
        self.v0pre = v0pre
        self.dbgmid = dbgmid; self.nowo = nowo; self.noclr = noclr
        self.pace = pace
        self.qsleep = qsleep
        self.L = []; self.stamps = stamps; self.flags = flags; self.spin = spin; self.kwait = kwait
        self.nocomp = nocomp; self.notail = notail; self.wopace = wopace; self.hprio = hprio
    def e(self, s): self.L.append("  " + s)
    def lab(self, s): self.L.append(s + ":")
    def c(self, s): self.L.append("  ; " + s)
    def stamp(self, i):
        if self.stamps: self.e(f"s_memrealtime {STAMPS[i]}")
    def nop(self, n):
        while n > 0:
            k = min(n, 16); self.e(f"s_nop {k-1}"); n -= k
    def dma_half(self, srd, soff):
        for i in range(4):
            o = f" offset:{i*1024}" if i else ""
            self.e(f"buffer_load_dwordx4 v{vDMA+i}, {srd}, {soff} offen{o} {self.flags} lds")
    def dma_tile(self, srd, goff, slot):
        e = self.e
        e(f"s_mov_b32 m0, {slot}"); e(f"s_add_u32 {sT0}, {goff}, 16384")
        self.dma_half(srd, goff)
        e(f"s_add_u32 m0, {slot}, 4096"); e("s_nop 0")
        self.dma_half(srd, sT0)
    def dma_tile_static(self, isv, tile):
        e = self.e
        for half in range(2):
            e(f"s_add_u32 m0, {sWB}, {isv*16384 + tile*8192 + half*4096}")
            e(f"s_add_u32 {sT5}, {sKOFF}, {tile*32768 + half*16384}")
            self.dma_half(SRD_V if isv else SRD_K, sT5)
    def dma_half_static(self, hn):
        e = self.e
        tile, half, isv = hn >> 2, hn & 1, (hn >> 1) & 1
        if self.dyn:
            e(f"s_add_u32 m0, {sWB}, {isv*16384 + tile*8192 + half*4096}")
            e(f"s_add_u32 {sT5}, {sKOFF}, {tile*32768 + half*16384}")
        else:
            e(f"s_add_u32 {sT5}, {sKOFF}, {half*16384}")
            if tile: e(f"s_add_u32 {sT5}, {sT5}, {sSTEP}")
            e(f"s_add_u32 m0, {sWB}, {isv*16384 + tile*8192 + half*4096}"); e("s_nop 0")
        self.dma_half(SRD_V if isv else SRD_K, sT5)
    def read_k(self):
        for s in range(8):
            a, u = s >> 2, s & 3
            self.e(f"ds_read_b128 a[{AK+4*s}:{AK+4*s+3}], v{vKA+u}" + (f" offset:{a*256}" if a else ""))
    def read_v(self):
        for t in range(16):
            a, u = t >> 3, t & 7
            self.e(f"ds_read_b64_tr_b16 a[{AV+2*t}:{AV+2*t+1}], v{vVA+u}" + (f" offset:{a*256}" if a else ""))
    def srd(self, base, lo, hi, size):
        e = self.e
        e(f"s_mov_b32 s{base}, s{lo}"); e(f"s_and_b32 s{base+1}, s{hi}, 0xffff"); e(f"s_mov_b32 s{base+2}, {size:#x}"); e(f"s_mov_b32 s{base+3}, 0x20000")
    def spin_dec(self, label):
        e = self.e
        e(f"s_sub_u32 {sSPIN}, {sSPIN}, 1"); e(f"s_cmp_lg_u32 {sSPIN}, 0"); e(f"s_cbranch_scc1 {label}")

    def loop1(self):
        e, lab, c = self.e, self.lab, self.c
        lab("L_loop")
        if self.rate:
            for tt, si in ((8, 1), (16, 4), (24, 5)):
                e(f"s_cmp_lg_u32 {sT}, {tt}"); e(f"s_cbranch_scc1 L_rs{tt}"); e(f"s_memrealtime {STAMPS[si]}"); lab(f"L_rs{tt}")
        for s in range(8):
            if self.nocomp: break
            cc = "0" if s == 0 else f"v[{vS}:{vS+3}]"
            e(f"v_mfma_f32_16x16x32_bf16 v[{vS}:{vS+3}], a[{AK+4*s}:{AK+4*s+3}], a[{AQ+4*s}:{AQ+4*s+3}], {cc}")
        e(f"s_cmp_eq_u32 {sT}, 31"); e("s_cbranch_scc1 L_k31")
        e(f"s_waitcnt vmcnt({self.kwait})")
        self.read_k()
        e("s_waitcnt lgkmcnt(0)")
        e(f"s_cmp_ge_u32 {sT}, 29"); e("s_cbranch_scc1 L_kdone")
        self.dma_tile(SRD_K, sKOFF, sKSLOT)
        e(f"s_add_u32 {sKOFF}, {sKOFF}, 32768"); e(f"s_xor_b32 {sKSLOT}, {sKSLOT}, 8192")
        lab("L_kdone")
        for u in range(4): e(f"v_xor_b32 v{vKA+u}, 8192, v{vKA+u}")
        lab("L_soft")
        t0, t1, t2 = vT, vT+1, vT+2
        if self.nocomp: e("s_branch L_noresc")
        e(f"v_max3_f32 v{t0}, v{vS}, v{vS+1}, v{vS+2}")
        e(f"v_max_f32 v{t0}, v{t0}, v{vS+3}")
        e(f"v_mov_b32 v{t1}, v{t0}"); e("s_nop 1")
        e(f"v_permlane32_swap_b32 v{t1}, v{t0}")
        e(f"v_max_f32 v{t0}, v{t0}, v{t1}")
        e(f"v_mov_b32 v{t1}, v{t0}"); e("s_nop 1")
        e(f"v_permlane16_swap_b32 v{t1}, v{t0}")
        e(f"v_max3_f32 v{t0}, v{t0}, v{t1}, v{vM}")
        e(f"v_sub_f32 v{t1}, v{vM}, v{t0}")
        e(f"v_mul_f32 v{t1}, {sC}, v{t1}")
        e(f"v_mul_f32 v{t2}, {sNC}, v{t0}")
        e(f"v_exp_f32 v{vAL}, v{t1}")
        e(f"v_mov_b32 v{vM}, v{t0}")
        for r in range(4): e(f"v_fma_f32 v{vS+r}, v{vS+r}, {sC}, v{t2}")
        for r in range(4): e(f"v_exp_f32 v{vS+r}, v{vS+r}")
        e(f"v_cmp_neq_f32 vcc, 1.0, v{vAL}")
        e(f"v_add_f32 v{t0}, v{vS}, v{vS+1}"); e(f"v_add_f32 v{t1}, v{vS+2}, v{vS+3}")
        e(f"v_cvt_pk_bf16_f32 v{vP}, v{vS}, v{vS+1}"); e(f"v_cvt_pk_bf16_f32 v{vP+1}, v{vS+2}, v{vS+3}")
        e(f"v_add_f32 v{t0}, v{t0}, v{t1}"); e(f"v_fma_f32 v{vL}, v{vL}, v{vAL}, v{t0}")
        e("s_cbranch_vccz L_noresc")
        for i in range(32):
            e(f"v_pk_mul_f32 v[{vO+2*i}:{vO+2*i+1}], v[{vO+2*i}:{vO+2*i+1}], v[{vAL}:{vAL+1}] op_sel_hi:[1,0]")
        lab("L_noresc")
        c("V point: steady state vmcnt(24); near the end fewer ops are outstanding")
        if self.v0pre:
            e(f"s_cmp_eq_u32 {sT}, 0"); e("s_cbranch_scc1 L_pv")
        e(f"s_cmp_ge_u32 {sT}, 29"); e("s_cbranch_scc1 L_vlate")
        e(f"s_waitcnt vmcnt({self.vwait})")
        lab("L_vrd")
        self.read_v()
        e("s_waitcnt lgkmcnt(0)")
        e(f"s_cmp_ge_u32 {sT}, 30"); e("s_cbranch_scc1 L_vdone")
        self.dma_tile(SRD_V, sVOFF, sVSLOT)
        e(f"s_add_u32 {sVOFF}, {sVOFF}, 32768"); e(f"s_xor_b32 {sVSLOT}, {sVSLOT}, 8192")
        lab("L_vdone")
        for u in range(8): e(f"v_xor_b32 v{vVA+u}, 8192, v{vVA+u}")
        lab("L_pv")
        for t in range(16):
            if self.nocomp: break
            e(f"v_mfma_f32_16x16x16_bf16 v[{vO+4*t}:{vO+4*t+3}], a[{AV+2*t}:{AV+2*t+1}], v[{vP}:{vP+1}], v[{vO+4*t}:{vO+4*t+3}]")
        e(f"s_add_u32 {sT}, {sT}, 1"); e(f"s_cmp_lt_u32 {sT}, 32"); e("s_cbranch_scc1 L_loop")
        e("s_branch L_tail")
        lab("L_vlate")
        e(f"s_cmp_eq_u32 {sT}, 29"); e("s_cbranch_scc1 L_vrd")
        e(f"s_cmp_eq_u32 {sT}, 30"); e("s_cbranch_scc0 L_vlast")
        e("s_waitcnt vmcnt(8)"); e("s_branch L_vrd")
        lab("L_vlast")
        e("s_waitcnt vmcnt(0)"); e("s_branch L_vrd")
        lab("L_k31")
        self.nop(8)
        e("s_branch L_soft")


    def loop2(self):
        e, lab, c = self.e, self.lab, self.c
        dyn = self.dyn
        lab("L_loop")
        if self.rate:
            for tt, si in ((8, 1), (16, 4), (24, 5)):
                e(f"s_cmp_lg_u32 {sT}, {tt}"); e(f"s_cbranch_scc1 L_rs{tt}"); e(f"s_memrealtime {STAMPS[si]}"); lab(f"L_rs{tt}")
        t0, t1, t2 = vT, vT+1, vT+2
        def cmpN(op, k):
            if dyn or self.bal:
                e(f"s_sub_u32 {sT1}, {sN}, {k}"); e(f"s_cmp_{op}_u32 {sT}, {sT1}")
            else:
                e(f"s_cmp_{op}_u32 {sT}, {32-k}")
        c("A: QK")
        for s in range(8):
            if self.nocomp: break
            cc = "0" if s == 0 else f"v[{vS}:{vS+3}]"
            e(f"v_mfma_f32_16x16x32_bf16 v[{vS}:{vS+3}], a[{AK+4*s}:{AK+4*s+3}], a[{AQ+4*s}:{AQ+4*s+3}], {cc}")
        c("B: K point")
        if self.bal:
            e(f"s_cmp_eq_u32 {sT}, {self.ta}"); e("s_cbranch_scc1 L_balst")
            e(f"s_cmp_eq_u32 {sT}, {self.tb}"); e("s_cbranch_scc1 L_balst")
            e(f"s_cmp_eq_u32 {sT}, {self.tc}"); e("s_cbranch_scc1 L_balget")
            lab("L_balback")
        cmpN("ge", 2); e("s_cbranch_scc1 L_klate")
        e(f"s_waitcnt vmcnt({self.kwait2})")
        lab("L_krd")
        self.read_k()
        if dyn:
            cmpN("ge", 3); e("s_cbranch_scc1 L_knoref")
            c("tile id for t+3 ; atomics run two iterations ahead (regs vA, vA+1 by parity of t)")
            e(f"s_cmp_ge_u32 {sT}, {self.n0-3}"); e("s_cbranch_scc1 L_dynid")
            e(f"s_mov_b32 {sT2}, {sSTAT}"); e(f"s_add_u32 {sSTAT}, {sSTAT}, 16")
            e(f"s_cmp_eq_u32 {sT}, {self.n0-5}"); e("s_cbranch_scc1 L_dynchk")
            e(f"s_cmp_eq_u32 {sT}, {self.n0-4}"); e("s_cbranch_scc1 L_atom")
            e("s_branch L_mkoff")
            lab("L_dynid")
            e(f"s_bitcmp1_b32 {sT}, 0"); e("s_cbranch_scc1 L_dynid1")
            e(f"v_readfirstlane_b32 {sT2}, v{vA}"); e("s_branch L_dynid2")
            lab("L_dynid1")
            e(f"v_readfirstlane_b32 {sT2}, v{vA+1}")
            lab("L_dynid2")
            e("s_nop 3")
            e(f"s_add_u32 {sT2}, {sT2}, {self.n0*16}")
            e(f"s_cmp_ge_u32 {sT2}, 512"); e("s_cbranch_scc1 L_exhaust")
            lab("L_atom")
            e("s_mov_b64 exec, 1")
            e(f"s_bitcmp1_b32 {sT}, 0"); e("s_cbranch_scc1 L_atom1")
            e(f"v_mov_b32 v{vA}, 1")
            e(f"buffer_atomic_add v{vA}, v{vZERO}, {SRD_WS}, {sGC} offen sc0 sc1"); e("s_branch L_atom2")
            lab("L_atom1")
            e(f"v_mov_b32 v{vA+1}, 1")
            e(f"buffer_atomic_add v{vA+1}, v{vZERO}, {SRD_WS}, {sGC} offen sc0 sc1")
            lab("L_atom2")
            e("s_mov_b64 exec, -1")
            lab("L_mkoff")
            e(f"s_lshr_b32 {sT3}, {sT2}, 2"); e(f"s_and_b32 {sT3}, {sT3}, 3"); e(f"s_lshl_b32 {sT3}, {sT3}, 20")
            e(f"s_lshr_b32 {sT4}, {sT2}, 4"); e(f"s_lshl_b32 {sT4}, {sT4}, 15"); e(f"s_add_u32 {sT3}, {sT3}, {sT4}")
            e(f"s_and_b32 {sT4}, {sT2}, 3"); e(f"s_lshl_b32 {sT4}, {sT4}, 12"); e(f"s_add_u32 {sT3}, {sT3}, {sT4}")
            e(f"s_add_u32 {sKOFF}, {sGB}, {sT3}")
            e("s_waitcnt lgkmcnt(0)")
            self.dma_tile(SRD_K, sKOFF, sKSLOT)
            e(f"s_xor_b32 {sKSLOT}, {sKSLOT}, 8192")
            e("s_branch L_kdone")
            lab("L_knoref")
            e("s_waitcnt lgkmcnt(0)")
        else:
            e("s_waitcnt lgkmcnt(0)")
            cmpN("ge", 3); e("s_cbranch_scc1 L_kdone")
            self.dma_tile(SRD_K, sKOFF, sKSLOT)
            e(f"s_add_u32 {sKOFF}, {sKOFF}, {sSTEP}"); e(f"s_xor_b32 {sKSLOT}, {sKSLOT}, 8192")
        lab("L_kdone")
        for u in range(4): e(f"v_xor_b32 v{vKA+u}, 8192, v{vKA+u}")
        lab("L_soft")
        c("C: softmax")
        if self.nocomp: e("s_branch L_noresc")
        e(f"v_max3_f32 v{t0}, v{vS}, v{vS+1}, v{vS+2}")
        e(f"v_max_f32 v{t0}, v{t0}, v{vS+3}")
        e(f"v_mov_b32 v{t1}, v{t0}"); e("s_nop 1")
        e(f"v_permlane32_swap_b32 v{t1}, v{t0}")
        e(f"v_max_f32 v{t0}, v{t0}, v{t1}")
        e(f"v_mov_b32 v{t1}, v{t0}"); e("s_nop 1")
        e(f"v_permlane16_swap_b32 v{t1}, v{t0}")
        e(f"v_max3_f32 v{t0}, v{t0}, v{t1}, v{vM}")
        e(f"v_sub_f32 v{t1}, v{vM}, v{t0}")
        e(f"v_mul_f32 v{t1}, {sC}, v{t1}")
        e(f"v_mul_f32 v{t2}, {sNC}, v{t0}")
        e(f"v_exp_f32 v{vAL}, v{t1}")
        e(f"v_mov_b32 v{vM}, v{t0}")
        for r in range(4): e(f"v_fma_f32 v{vS+r}, v{vS+r}, {sC}, v{t2}")
        for r in range(4): e(f"v_exp_f32 v{vS+r}, v{vS+r}")
        e(f"v_cmp_neq_f32 vcc, 1.0, v{vAL}")
        e(f"v_add_f32 v{t0}, v{vS}, v{vS+1}"); e(f"v_add_f32 v{t1}, v{vS+2}, v{vS+3}")
        e(f"v_cvt_pk_bf16_f32 v{vP}, v{vS}, v{vS+1}"); e(f"v_cvt_pk_bf16_f32 v{vP+1}, v{vS+2}, v{vS+3}")
        e(f"v_add_f32 v{t0}, v{t0}, v{t1}"); e(f"v_fma_f32 v{vL}, v{vL}, v{vAL}, v{t0}")
        e("s_cbranch_vccz L_noresc")
        for i in range(32):
            e(f"v_pk_mul_f32 v[{vO+2*i}:{vO+2*i+1}], v[{vO+2*i}:{vO+2*i+1}], v[{vAL}:{vAL+1}] op_sel_hi:[1,0]")
        lab("L_noresc")
        cmpN("eq", 1); e("s_cbranch_scc1 L_vjit")
        lab("L_pv")
        c("D: PV")
        for t in range(16):
            if self.nocomp: break
            e(f"v_mfma_f32_16x16x16_bf16 v[{vO+4*t}:{vO+4*t+3}], a[{AV+2*t}:{AV+2*t+1}], v[{vP}:{vP+1}], v[{vO+4*t}:{vO+4*t+3}]")
        c("E: V point")
        cmpN("ge", 3); e("s_cbranch_scc1 L_vlate")
        e(f"s_waitcnt vmcnt({self.vwait})")
        self.read_v()
        e("s_waitcnt lgkmcnt(0)")
        if dyn:
            self.dma_tile(SRD_V, sKOFF, sVSLOT)
            e(f"s_xor_b32 {sVSLOT}, {sVSLOT}, 8192")
        else:
            self.dma_tile(SRD_V, sVOFF, sVSLOT)
            e(f"s_add_u32 {sVOFF}, {sVOFF}, {sSTEP}"); e(f"s_xor_b32 {sVSLOT}, {sVSLOT}, 8192")
        lab("L_vdone")
        for u in range(8): e(f"v_xor_b32 v{vVA+u}, 8192, v{vVA+u}")
        lab("L_next")
        e(f"s_add_u32 {sT}, {sT}, 1")
        if dyn or self.bal: e(f"s_cmp_lt_u32 {sT}, {sN}")
        else: e(f"s_cmp_lt_u32 {sT}, 32")
        e("s_cbranch_scc1 L_loop")
        e("s_branch L_tail")
        lab("L_klate")
        cmpN("eq", 1); e("s_cbranch_scc1 L_k31")
        e("s_waitcnt vmcnt(8)"); e("s_branch L_krd")
        lab("L_k31")
        self.nop(8)
        e("s_branch L_soft")
        lab("L_vlate")
        cmpN("eq", 3); e("s_cbranch_scc0 L_next")
        e("s_waitcnt vmcnt(16)")
        self.read_v()
        e("s_waitcnt lgkmcnt(0)")
        e("s_branch L_vdone")
        lab("L_vjit")
        e("s_waitcnt vmcnt(0)")
        self.read_v()
        e("s_waitcnt lgkmcnt(0)")
        e("s_branch L_pv")
        if self.bal:
            lab("L_balst")
            e(f"s_cmp_lg_u32 {sW}, 0"); e("s_cbranch_scc1 L_balback")
            e(f"s_memrealtime s[{sT2[1:]}:{sT3[1:]}]"); e("s_waitcnt lgkmcnt(0)")
            e(f"s_or_b32 {sT2}, {sT2}, 1")
            e(f"s_cmp_eq_u32 {sT}, {self.tb}"); e(f"s_cselect_b32 {sT3}, 4, 0"); e(f"s_add_u32 {sT3}, {sT3}, {CNT+8}")
            e(f"v_mov_b32 v{t0}, {sT3}"); e(f"v_mov_b32 v{t1}, {sT2}")
            e(f"ds_write_b32 v{t0}, v{t1}")
            e("s_branch L_balback")
            lab("L_balget")
            e(f"s_mov_b32 {sSPIN}, {self.spin}")
            e(f"v_mov_b32 v{t0}, {CNT+16}")
            lab("L_balget1")
            e(f"ds_read_b32 v{t1}, v{t0}"); e("s_waitcnt lgkmcnt(0)")
            e(f"v_readfirstlane_b32 {sN}, v{t1}"); e("s_nop 3")
            e(f"s_cmp_lg_u32 {sN}, 0"); e("s_cbranch_scc1 L_balback")
            e("s_sleep 4")
            self.spin_dec("L_balget1")
            e(f"s_mov_b32 {sN}, 32")
            e("s_branch L_balback")
        if dyn:
            lab("L_exhaust")
            e(f"s_add_u32 {sN}, {sT}, 3")
            e("s_branch L_knoref")
            lab("L_dynchk")
            e(f"s_mov_b32 {sSPIN}, {self.spin}")
            e(f"v_mov_b32 v{t0}, {CNT+8}")
            lab("L_dynchk1")
            e(f"ds_read_b32 v{t1}, v{t0}"); e("s_waitcnt lgkmcnt(0)")
            e(f"v_readfirstlane_b32 {sT3}, v{t1}"); e("s_nop 3")
            e(f"s_cmp_eq_u32 {sT3}, 1"); e("s_cbranch_scc1 L_atom")
            e("s_sleep 8")
            self.spin_dec("L_dynchk1")
            e("s_branch L_atom")

    def build(self):
        e, lab, c = self.e, self.lab, self.c
        L = self.L
        L.append(HDR.rstrip())
        L.append(f"; @launch grid=(256,1,1) block=(512,1,1) lds={LDS_BYTES}")
        L.append('.amdgcn_target "amdgcn-amd-amdhsa--gfx950"')
        L.append(".text"); L.append(f".globl {NAME}_kernel"); L.append(".p2align 8"); L.append(f".type {NAME}_kernel,@function")
        lab(f"{NAME}_kernel")
        e(f"s_cmp_ge_u32 {sWG}, 256"); e("s_cbranch_scc1 L_end")
        e("s_load_dwordx16 s[32:47], s[0:1], 0")
        self.stamp(0)
        e(f"v_lshrrev_b32 v{vTMPA}, 6, v0")
        e(f"v_and_b32 v{vLANE}, 63, v0")
        e(f"s_and_b32 {sT0}, {sWG}, 7"); e(f"s_lshr_b32 {sT1}, {sWG}, 3")
        e(f"v_readfirstlane_b32 {sW}, v{vTMPA}")
        if self.pairmap:
            e(f"s_and_b32 {sKVH}, {sT0}, 6"); e(f"s_and_b32 {sT2}, {sT1}, 1"); e(f"s_add_u32 {sKVH}, {sKVH}, {sT2}")
            e(f"s_and_b32 {sJ}, {sT0}, 1"); e(f"s_and_b32 {sT2}, {sT1}, 2"); e(f"s_add_u32 {sJ}, {sJ}, {sT2}")
            e(f"s_lshr_b32 {sB}, {sT1}, 2")
        else:
            e(f"s_mov_b32 {sKVH}, {sT0}"); e(f"s_and_b32 {sJ}, {sT1}, 3"); e(f"s_lshr_b32 {sB}, {sT1}, 2")
        e(f"s_lshl_b32 {sY}, {sB}, 2"); e(f"s_add_u32 {sY}, {sY}, {sJ}")
        e(f"s_lshl_b32 {sLID}, {sY}, 3"); e(f"s_add_u32 {sLID}, {sLID}, {sKVH}")
        e(f"s_lshl_b32 {sG}, {sB}, 3"); e(f"s_add_u32 {sG}, {sG}, {sKVH}")
        e(f"v_and_b32 v{vN}, 15, v{vLANE}"); e(f"v_lshrrev_b32 v{vGQ}, 4, v{vLANE}")
        e(f"s_and_b32 {sHW}, {sW}, 3")
        e(f"s_lshl_b32 {sR}, {sKVH}, 2"); e(f"s_add_u32 {sR}, {sR}, {sJ}")
        e(f"s_cmp_ge_u32 {sW}, 4"); e("s_cbranch_scc1 L_helper")

        c("DMA voffsets")
        e(f"v_lshrrev_b32 v{vT}, 5, v{vLANE}"); e(f"v_and_b32 v{vT+1}, 31, v{vLANE}")
        e(f"v_lshlrev_b32 v{vT+2}, 9, v{vT}"); e(f"v_lshlrev_b32 v{vT+3}, 1, v{vT}")
        for i in range(4):
            e(f"v_xor_b32 v{vT+4}, {4*i}, v{vT+3}"); e(f"v_xor_b32 v{vT+4}, v{vT+4}, v{vT+1}")
            e(f"v_lshl_add_u32 v{vDMA+i}, v{vT+4}, 4, v{vT+2}")
        if self.bal:
            e(f"s_lshl_b32 {sKOFF}, {sG}, 22"); e(f"s_lshr_b32 {sT0}, {sJ}, 1"); e(f"s_lshl_b32 {sT0}, {sT0}, 21"); e(f"s_add_u32 {sKOFF}, {sKOFF}, {sT0}")
            e(f"s_and_b32 {sT1}, {sJ}, 1"); e(f"s_mul_i32 {sT0}, {sT1}, {63*32768}"); e(f"s_add_u32 {sKOFF}, {sKOFF}, {sT0}")
            e(f"s_mul_i32 {sT1}, {sT1}, -65536"); e(f"s_add_u32 {sSTEP}, {sT1}, 32768")
            e(f"s_mov_b32 {sN}, 100000")
        else:
            e(f"s_lshl_b32 {sKOFF}, {sG}, 22"); e(f"s_lshl_b32 {sT0}, {sJ}, 20"); e(f"s_add_u32 {sKOFF}, {sKOFF}, {sT0}")
            e(f"s_mov_b32 {sSTEP}, 32768") if not self.dyn else None
        e(f"s_lshl_b32 {sT0}, {sW}, 12"); e(f"s_add_u32 {sKOFF}, {sKOFF}, {sT0}")
        e(f"s_lshl_b32 {sWB}, {sW}, 15")
        e("s_waitcnt lgkmcnt(0)")
        self.srd(8, 34, 35, 0x10000000); self.srd(12, 36, 37, 0x10000000)
        for hn in range(self.pre0): self.dma_half_static(hn)
        e("s_barrier")
        first = self.quiet if self.quiet else self.pace
        for hn in range(self.pre0, first): self.dma_half_static(hn)
        self.srd(28, 46, 47, WS_BYTES)
        c("K/V LDS read addresses")
        e(f"v_and_b32 v{vT}, 7, v{vN}"); e(f"v_lshlrev_b32 v{vT}, 1, v{vT}")
        e(f"v_lshlrev_b32 v{vT+1}, 9, v{vN}"); e(f"v_add_u32 v{vT+1}, {sWB}, v{vT+1}")
        for u in range(4):
            e(f"v_add_u32 v{vT+2}, {4*u}, v{vGQ}"); e(f"v_xor_b32 v{vT+2}, v{vT+2}, v{vT}"); e(f"v_lshl_add_u32 v{vKA+u}, v{vT+2}, 4, v{vT+1}")
        e(f"v_lshrrev_b32 v{vT}, 2, v{vN}"); e(f"v_lshl_add_u32 v{vT}, v{vGQ}, 2, v{vT}")
        e(f"v_and_b32 v{vT+1}, 7, v{vT}"); e(f"v_lshlrev_b32 v{vT+2}, 9, v{vT}")
        e(f"v_and_b32 v{vT+3}, 3, v{vN}"); e(f"v_lshl_add_u32 v{vT+2}, v{vT+3}, 3, v{vT+2}")
        e(f"s_add_u32 {sT0}, {sWB}, 16384"); e(f"v_add_u32 v{vT+2}, {sT0}, v{vT+2}")
        for u in range(8):
            e(f"v_xor_b32 v{vT+3}, {u}, v{vT+1}"); e(f"v_lshl_add_u32 v{vVA+u}, v{vT+3}, 5, v{vT+2}")
        c("init O, m, l, consts")
        for i in range(64): e(f"v_mov_b32 v{vO+i}, 0")
        e(f"v_mov_b32 v{vM}, 0xff7fffff"); e(f"v_mov_b32 v{vL}, 0")
        e(f"s_mov_b32 {sC}, {fbits(C_LOG2E_16):#x}"); e(f"s_mov_b32 {sNC}, {fbits(-C_LOG2E_16):#x}")
        e(f"v_lshlrev_b32 v{vLIN16}, 4, v{vLANE}")
        e(f"s_lshl_b32 {sT0}, {sG}, 2"); e(f"s_add_u32 {sT0}, {sT0}, {sW}"); e(f"s_lshl_b32 {sT0}, {sT0}, 2"); e(f"s_add_u32 {sT0}, {sT0}, {sJ}")
        e(f"s_mul_i32 {sM1OUT}, {sT0}, {M1_SLICE}")
        if self.dyn:
            e(f"s_mov_b32 {sN}, 100000"); e(f"s_lshl_b32 {sGB}, {sG}, 22")
            e(f"s_lshl_b32 {sGC}, {sG}, 7"); e(f"s_add_u32 {sGC}, {sGC}, {GC_BASE:#x}")
            e(f"s_lshl_b32 {sSTAT}, {sJ}, 2"); e(f"s_add_u32 {sSTAT}, {sSTAT}, {sW}"); e(f"s_add_u32 {sSTAT}, {sSTAT}, 48")
            e(f"v_mov_b32 v{vZERO}, 0")
        c("Q frag read address")
        e(f"s_movk_i32 {sT1}, {QROW}")
        e(f"v_and_b32 v{vT+5}, 7, v{vN}"); e(f"v_mul_lo_u32 v{vT+5}, v{vT+5}, {sT1}"); e(f"v_lshl_add_u32 v{vT+5}, v{vGQ}, 4, v{vT+5}"); e(f"v_add_u32 v{vT+5}, {QB}, v{vT+5}")
        c("paced fill of halves: K0a K0b V0a V0b K1a K1b V1a V1b, then K2 (slot A after reading K0)")
        P = self.pace
        if self.quiet:
            e("s_barrier")
            for hn in range(max(self.quiet, self.pre0), P): self.dma_half_static(hn)
        for hn in range(max(P, self.quiet, self.pre0), 8):
            e(f"s_waitcnt vmcnt({4*(P-1)})")
            self.dma_half_static(hn)
            if hn == max(P, 2) + 1 - (0 if P <= 2 else 0) and False: pass
        c("K0 landed")
        e("s_waitcnt vmcnt(24)")
        self.read_k()
        if self.dyn:
            e(f"s_add_u32 {sKOFF}, {sKOFF}, 65536")
        else:
            e(f"s_add_u32 {sKOFF}, {sKOFF}, {sSTEP}"); e(f"s_add_u32 {sKOFF}, {sKOFF}, {sSTEP}")
        e(f"s_mov_b32 {sVOFF}, {sKOFF}")
        e(f"s_mov_b32 {sKSLOT}, {sWB}"); e(f"s_add_u32 {sVSLOT}, {sWB}, 16384")
        e(f"s_add_u32 {sT4}, {sKOFF}, 16384")
        e(f"s_waitcnt vmcnt({4*(P-1)}) lgkmcnt(0)")
        e(f"s_mov_b32 m0, {sKSLOT}"); e("s_nop 0")
        self.dma_half(SRD_K, sKOFF)
        e(f"s_waitcnt vmcnt({4*(P-1)})")
        e(f"s_add_u32 m0, {sKSLOT}, 4096"); e("s_nop 0")
        self.dma_half(SRD_K, sT4)
        e(f"s_add_u32 {sKOFF}, {sKOFF}, {32768 if self.dyn else sSTEP}"); e(f"s_xor_b32 {sKSLOT}, {sKSLOT}, 8192")
        for u in range(4): e(f"v_xor_b32 v{vKA+u}, 8192, v{vKA+u}")
        if self.v0pre:
            c("V0 -> regs, refill V2")
            e("s_waitcnt vmcnt(24)")
            self.read_v()
            e(f"s_add_u32 {sT4}, {sVOFF}, 16384")
            e(f"s_waitcnt vmcnt({4*(P-1)}) lgkmcnt(0)")
            e(f"s_mov_b32 m0, {sVSLOT}"); e("s_nop 0")
            self.dma_half(SRD_V, sVOFF)
            e(f"s_waitcnt vmcnt({4*(P-1)})")
            e(f"s_add_u32 m0, {sVSLOT}, 4096"); e("s_nop 0")
            self.dma_half(SRD_V, sT4)
            e(f"s_add_u32 {sVOFF}, {sVOFF}, {32768 if self.dyn else sSTEP}"); e(f"s_xor_b32 {sVSLOT}, {sVSLOT}, 8192")
            for u in range(8): e(f"v_xor_b32 v{vVA+u}, 8192, v{vVA+u}")
        if not self.rate: self.stamp(1)
        e("s_barrier")
        for s in range(8):
            e(f"ds_read_b128 a[{AQ+4*s}:{AQ+4*s+3}], v{vT+5}" + (f" offset:{s*64}" if s else ""))
        e(f"s_mov_b32 {sT}, 0")
        e("s_waitcnt lgkmcnt(0)")
        self.stamp(2)

        if self.order2:
            self.loop2()
        else:
            self.loop1()
        lab("L_tail")
        t0, t1, t2 = vT, vT+1, vT+2
        self.stamp(3)
        e(f"v_mov_b32 v{t1}, v{vL}"); e("s_nop 1")
        e(f"v_permlane32_swap_b32 v{t1}, v{vL}"); e(f"v_add_f32 v{vL}, v{vL}, v{t1}")
        e(f"v_mov_b32 v{t1}, v{vL}"); e("s_nop 1")
        e(f"v_permlane16_swap_b32 v{t1}, v{vL}"); e(f"v_add_f32 v{vL}, v{vL}, v{t1}")
        e(f"s_movk_i32 {sT1}, {OWROW}"); e(f"v_mul_lo_u32 v{vODUMP}, v{vN}, {sT1}")
        e(f"v_lshl_add_u32 v{vODUMP}, v{vGQ}, 4, v{vODUMP}"); e(f"v_add_u32 v{vODUMP}, {sWB}, v{vODUMP}")
        e(f"s_lshl_b32 {sT0}, {sW}, 6"); e(f"s_add_u32 {sT0}, {sT0}, {STB}")
        e(f"v_lshlrev_b32 v{t2}, 3, v{vN}"); e(f"v_add_u32 v{t2}, {sT0}, v{t2}")
        e("s_mov_b32 exec_lo, 0x00ff00ff"); e("s_mov_b32 exec_hi, 0x00ff00ff")
        for t in range(16):
            e(f"ds_write_b128 v{vODUMP}, v[{vO+4*t}:{vO+4*t+3}]" + (f" offset:{t*64}" if t else ""))
        e("s_mov_b64 exec, 0xff")
        e(f"ds_write_b64 v{t2}, v[{vM}:{vM+1}]")
        e("s_mov_b64 exec, -1")
        e(f"v_and_b32 v{vT}, 3, v{vLANE}"); e(f"v_lshrrev_b32 v{vT+1}, 2, v{vLANE}")
        e(f"s_lshr_b32 {sT0}, {sW}, 1"); e(f"s_lshl_b32 {sT0}, {sT0}, 2")
        e(f"v_add_u32 v{vT}, {sT0}, v{vT}")
        e(f"v_mul_lo_u32 v{vT2A}, v{vT}, {sT1}"); e(f"v_lshl_add_u32 v{vT2A}, v{vT+1}, 5, v{vT2A}")
        e(f"s_and_b32 {sT0}, {sW}, 1"); e(f"s_lshl_b32 {sT0}, {sT0}, 9"); e(f"v_add_u32 v{vT2A}, {sT0}, v{vT2A}")
        e(f"v_add_u32 v{vT2B}, 65536, v{vT2A}")
        e(f"v_lshlrev_b32 v{vT+2}, 3, v{vT}"); e(f"v_add_u32 v{vT+2}, {STB}, v{vT+2}")
        e("s_waitcnt lgkmcnt(0)"); e("s_barrier")
        if not self.rate: self.stamp(4)
        for w in range(4): e(f"ds_read_b64 v[{2*w}:{2*w+1}], v{vT+2} offset:{w*64}")
        for w in range(4):
            for u in range(2):
                a = vT2A if w < 2 else vT2B
                o = (w & 1) * 32768 + u * 16
                e(f"ds_read_b128 v[{8+8*w+4*u}:{8+8*w+4*u+3}], v{a}" + (f" offset:{o}" if o else ""))
        e("s_waitcnt lgkmcnt(8)")
        e("v_max3_f32 v40, v0, v2, v4"); e("v_max_f32 v40, v40, v6")
        for w in range(4): e(f"v_sub_f32 v{44+w}, v{2*w}, v40")
        for w in range(4): e(f"v_mul_f32 v{44+w}, {sC}, v{44+w}")
        for w in range(4): e(f"v_exp_f32 v{44+w}, v{44+w}")
        e("s_nop 0")
        e("v_mul_f32 v41, v44, v1"); e("v_fmac_f32 v41, v45, v3"); e("v_fmac_f32 v41, v46, v5"); e("v_fmac_f32 v41, v47, v7")
        e("s_waitcnt lgkmcnt(0)")
        for k in range(8): e(f"v_mul_f32 v{48+k}, v44, v{8+k}")
        for w in range(1, 4):
            for k in range(8): e(f"v_fmac_f32 v{48+k}, v{44+w}, v{8+8*w+k}")
        e(f"buffer_store_dwordx4 v[48:51], v{vLIN16}, {SRD_WS}, {sM1OUT} offen sc1")
        e(f"buffer_store_dwordx4 v[52:55], v{vLIN16}, {SRD_WS}, {sM1OUT} offen offset:1024 sc1")
        e(f"v_lshlrev_b32 v{vT}, 3, v{vLANE}")
        e("s_mov_b64 exec, 0xf")
        e(f"buffer_store_dwordx2 v[40:41], v{vT}, {SRD_WS}, {sM1OUT} offen offset:2048 sc1")
        e("s_mov_b64 exec, -1")
        if not self.rate: self.stamp(5)
        e("s_branch L_fin")

        lab("L_helper")
        if self.hexit:
            e("s_waitcnt lgkmcnt(0)"); self.srd(28, 46, 47, WS_BYTES)
            e("s_barrier"); e("s_barrier"); e("s_barrier")
            if self.quiet: e("s_barrier")
            e("s_branch L_fin")
        if self.hprio: e(f"s_setprio {self.hprio}")
        c("wq DMA voffset: (l>>1)*8192 + (l&1)*16 + (kvh*512 + 16y)*2 ; x voffset: n*896 + g*16")
        hX = 0
        hA = 32
        hD = 48
        e(f"v_lshrrev_b32 v{vT}, 1, v{vLANE}"); e(f"v_lshlrev_b32 v{vT}, 13, v{vT}")
        e(f"v_and_b32 v{vT+1}, 1, v{vLANE}"); e(f"v_lshl_add_u32 v{vT}, v{vT+1}, 4, v{vT}")
        e(f"s_lshl_b32 {sT0}, {sKVH}, 10"); e(f"s_lshl_b32 {sT1}, {sY}, 5"); e(f"s_add_u32 {sT0}, {sT0}, {sT1}")
        e(f"v_add_u32 v{vDMA}, {sT0}, v{vT}")
        e(f"s_movk_i32 {sT1}, 896"); e(f"v_mul_lo_u32 v{vDMA+1}, v{vN}, {sT1}"); e(f"v_lshl_add_u32 v{vDMA+1}, v{vGQ}, 4, v{vDMA+1}")
        e(f"s_lshl_b32 {sWB}, {sHW}, 12"); e(f"s_add_u32 {sWB}, {sWB}, {WQS}")
        c("H0 zeroes the LDS counters")
        e(f"v_mov_b32 v{vT+2}, {CNT}")
        for i in range(4): e(f"v_mov_b32 v{vT+4+i}, 0")
        e(f"ds_write_b128 v{vT+2}, v[{vT+4}:{vT+7}]"); e(f"ds_write_b128 v{vT+2}, v[{vT+4}:{vT+7}] offset:16")
        e("s_waitcnt lgkmcnt(0)")
        if self.dbgq: self.stamp(2)
        e(f"s_add_u32 s56, s46, {EPOCH_OFF:#x}"); e("s_addc_u32 s57, s47, 0")
        e(f"s_load_dwordx2 s[60:61], s[56:57], 0")
        self.srd(16, 38, 39, 3670016); self.srd(20, 32, 33, 28672)
        e(f"s_lshl_b32 {sT2}, {sHW}, 18")
        e(f"s_lshl_b32 {sT3}, {sHW}, 6")
        for idx in range(4):
            if idx == 3:
                e(f"s_cmp_ge_u32 {sHW}, 2"); e("s_cbranch_scc1 L_hq_issued")
            e(f"s_add_u32 m0, {sWB}, {idx*1024}")
            e(f"s_add_u32 {sT4}, {sT3}, 14336")
            e(f"buffer_load_dwordx4 v{vDMA}, {SRD_WQ}, {sT2} offen lds")
            e(f"buffer_load_dwordx4 v[{hX+8*idx}:{hX+8*idx+3}], v{vDMA+1}, {SRD_X}, {sT3} offen")
            e(f"buffer_load_dwordx4 v[{hX+8*idx+4}:{hX+8*idx+7}], v{vDMA+1}, {SRD_X}, {sT4} offen")
            if idx < 3:
                e(f"s_add_u32 {sT2}, {sT2}, {4*262144}"); e(f"s_add_u32 {sT3}, {sT3}, 256")
        lab("L_hq_issued")
        if self.dbgq: self.stamp(3)
        e("s_barrier")
        if self.dbgq: self.stamp(4)
        self.srd(28, 46, 47, WS_BYTES); self.srd(24, 40, 41, 3670016)
        e("s_mov_b32 s34, s42"); e("s_mov_b32 s35, s43")
        c("tr-read address: wb + (8g + (i>>2))*32 + (i&3)*8  (+128 for second half, +1024*idx)")
        e(f"v_lshrrev_b32 v{vT}, 2, v{vN}"); e(f"v_lshl_add_u32 v{vT}, v{vGQ}, 3, v{vT}"); e(f"v_lshlrev_b32 v{vT}, 5, v{vT}")
        e(f"v_and_b32 v{vT+1}, 3, v{vN}"); e(f"v_lshl_add_u32 v{vT}, v{vT+1}, 3, v{vT}"); e(f"v_add_u32 v{vT}, {sWB}, v{vT}")
        for i in range(8): e(f"v_mov_b32 v{hD+i}, 0")
        c("partial write address: RED + hw*2048 + n*64 + g*16 (+1024 for h=1)")
        e(f"s_lshl_b32 {sT0}, {sHW}, 11"); e(f"s_add_u32 {sT0}, {sT0}, {RED}")
        e(f"v_lshlrev_b32 v{vT+2}, 6, v{vN}"); e(f"v_lshl_add_u32 v{vT+2}, v{vGQ}, 4, v{vT+2}"); e(f"v_add_u32 v{vT+2}, {sT0}, v{vT+2}")
        e("s_waitcnt vmcnt(0)")
        self.stamp(1)
        for idx in range(4):
            if idx == 3:
                e(f"s_cmp_ge_u32 {sHW}, 2"); e("s_cbranch_scc1 L_hq_mm")
            e(f"ds_read_b64_tr_b16 v[{hA+4*idx}:{hA+4*idx+1}], v{vT} offset:{idx*1024}")
            e(f"ds_read_b64_tr_b16 v[{hA+4*idx+2}:{hA+4*idx+3}], v{vT} offset:{idx*1024+128}")
            e("s_waitcnt lgkmcnt(0)")
            for h in range(2):
                e(f"v_mfma_f32_16x16x32_bf16 v[{hD+4*h}:{hD+4*h+3}], v[{hA+4*idx}:{hA+4*idx+3}], v[{hX+8*idx+4*h}:{hX+8*idx+4*h+3}], v[{hD+4*h}:{hD+4*h+3}]")
        lab("L_hq_mm")
        self.nop(8)
        e(f"ds_write_b128 v{vT+2}, v[{hD}:{hD+3}]"); e(f"ds_write_b128 v{vT+2}, v[{hD+4}:{hD+7}] offset:1024")
        e(f"v_mov_b32 v{vT+3}, {CNT}"); e(f"v_mov_b32 v{vT+4}, 1")
        e("s_waitcnt lgkmcnt(0)")
        e("s_mov_b64 exec, 1"); e(f"ds_add_u32 v{vT+3}, v{vT+4}"); e("s_mov_b64 exec, -1")
        c("reduce read address: RED + rho*64 + cp*8, rho = 8hw + (l>>3), cp = l&7")
        e(f"v_lshrrev_b32 v{vT}, 3, v{vLANE}"); e(f"s_lshl_b32 {sT0}, {sHW}, 3"); e(f"v_add_u32 v{vT}, {sT0}, v{vT}")
        e(f"v_and_b32 v{vT+1}, 7, v{vLANE}")
        e(f"v_lshlrev_b32 v{vT+2}, 6, v{vT}"); e(f"v_lshl_add_u32 v{vT+2}, v{vT+1}, 3, v{vT+2}"); e(f"v_add_u32 v{vT+2}, {RED}, v{vT+2}")
        if self.hop1:
            c("launch tag: E' = E + C (64 bit); TL = low 16 bits << 16, sTAG = bits 16..47")
            e(f"s_add_u32 s60, s60, 0x7f4a7c15"); e(f"s_addc_u32 s61, s61, 0x9e3779b9")
            e(f"s_lshl_b32 {sTL}, s60, 16"); e(f"s_lshr_b32 {sTAG}, s60, 16"); e(f"s_lshl_b32 {sT1}, s61, 16"); e(f"s_or_b32 {sTAG}, {sTAG}, {sT1}")
            c("publish address: QM + ((kvh*8 + b)*32 + y)*512 + q*128 + cp*16 ; b = rho>>2, q = rho&3")
            e(f"v_lshrrev_b32 v{vT+4}, 2, v{vT}"); e(f"v_lshlrev_b32 v{vT+4}, 14, v{vT+4}")
            e(f"v_and_b32 v{vT+5}, 3, v{vT}"); e(f"v_lshl_add_u32 v{vT+4}, v{vT+5}, 7, v{vT+4}"); e(f"v_lshl_add_u32 v{vT+4}, v{vT+1}, 4, v{vT+4}")
            e(f"s_lshl_b32 {sT0}, {sKVH}, 17"); e(f"s_lshl_b32 {sT1}, {sY}, 9"); e(f"s_add_u32 {sT0}, {sT0}, {sT1}"); e(f"s_add_u32 {sT0}, {sT0}, {QM_BASE:#x}")
            e(f"s_mov_b32 {sSPIN}, {self.spin}")
            lab("L_hs1")
            e(f"ds_read_b32 v{vT+6}, v{vT+3}"); e("s_waitcnt lgkmcnt(0)")
            e(f"v_readfirstlane_b32 {sT1}, v{vT+6}"); e("s_nop 3")
            e(f"s_cmp_ge_u32 {sT1}, 4"); e("s_cbranch_scc1 L_hs1ok")
            self.spin_dec("L_hs1")
            lab("L_hs1ok")
            for w in range(4): e(f"ds_read_b64 v[{2*w}:{2*w+1}], v{vT+2} offset:{w*2048}")
            e("s_waitcnt lgkmcnt(0)")
            e("v_add_f32 v0, v0, v2"); e("v_add_f32 v1, v1, v3"); e("v_add_f32 v4, v4, v6"); e("v_add_f32 v5, v5, v7")
            e("v_add_f32 v0, v0, v4"); e("v_add_f32 v1, v1, v5")
            e("v_cvt_pk_bf16_f32 v0, v0, v1")
            c("granules {tl|val, tag}")
            e(f"v_and_b32 v4, 0xffff, v0"); e(f"v_lshrrev_b32 v6, 16, v0")
            e(f"v_or_b32 v4, {sTL}, v4"); e(f"v_or_b32 v6, {sTL}, v6"); e(f"v_mov_b32 v5, {sTAG}"); e(f"v_mov_b32 v7, {sTAG}")
            e(f"buffer_store_dwordx4 v[4:7], v{vT+4}, {SRD_WS}, {sT0} offen sc1")
            self.stamp(2) if not self.dbgq else None
            if self.quiet: e("s_barrier")
            e(f"v_lshlrev_b32 v{vLIN16}, 4, v{vLANE}")
            c("poll own 4 KB: QM + (kvh*8+b)*16384 + hw*4096 + i*1024 + l*16")
            e(f"s_lshl_b32 {sT0}, {sKVH}, 3"); e(f"s_add_u32 {sT0}, {sT0}, {sB}"); e(f"s_lshl_b32 {sT0}, {sT0}, 14"); e(f"s_lshl_b32 {sT1}, {sHW}, 12")
            e(f"s_add_u32 {sT0}, {sT0}, {sT1}"); e(f"s_add_u32 {sT0}, {sT0}, {QM_BASE:#x}")
            c("LDS write address: QB + (4h+q)*528 + (128*(hw&1) + 16yy + 2cp)*2 ; yy = 2i + (l>>5), q=(l&31)>>3, cp=l&7, h=hw>>1")
            e(f"v_bfe_u32 v{vT}, v{vLANE}, 3, 2")
            e(f"s_lshr_b32 {sT1}, {sHW}, 1"); e(f"s_lshl_b32 {sT1}, {sT1}, 2"); e(f"v_add_u32 v{vT}, {sT1}, v{vT}")
            e(f"s_movk_i32 {sT1}, {QROW}"); e(f"v_mul_lo_u32 v{vT}, v{vT}, {sT1}")
            e(f"v_lshrrev_b32 v{vT+1}, 5, v{vLANE}"); e(f"v_lshl_add_u32 v{vT}, v{vT+1}, 5, v{vT}")
            e(f"v_and_b32 v{vT+1}, 7, v{vLANE}"); e(f"v_lshl_add_u32 v{vT}, v{vT+1}, 2, v{vT}")
            e(f"s_and_b32 {sT1}, {sHW}, 1"); e(f"s_lshl_b32 {sT1}, {sT1}, 8"); e(f"s_add_u32 {sT1}, {sT1}, {QB}"); e(f"v_add_u32 v{vT}, {sT1}, v{vT}")
            e(f"s_mov_b32 {sSPIN}, {self.spin}"); e(f"s_mov_b32 {sT2}, 0xffff0000"); e(f"s_mov_b32 {sT3}, 0x05040100")
            if self.qdelay: e(f"s_waitcnt vmcnt(0)")
            lab("L_hq_poll")
            for i in range(4):
                e(f"buffer_load_dwordx4 v[{8+4*i}:{8+4*i+3}], v{vLIN16}, {SRD_WS}, {sT0} offen" + (f" offset:{i*1024}" if i else "") + " sc1")
            e("s_waitcnt vmcnt(0)")
            for i in range(4):
                b = 8 + 4*i
                e(f"v_and_b32 v{24+2*i}, {sT2}, v{b}"); e(f"v_and_b32 v{25+2*i}, {sT2}, v{b+2}")
                e(f"v_xor_b32 v{24+2*i}, {sTL}, v{24+2*i}"); e(f"v_xor_b32 v{25+2*i}, {sTL}, v{25+2*i}")
                e(f"v_xor_b32 v{32+2*i}, {sTAG}, v{b+1}"); e(f"v_xor_b32 v{33+2*i}, {sTAG}, v{b+3}")
            e("v_or3_b32 v24, v24, v25, v26"); e("v_or3_b32 v27, v27, v28, v29"); e("v_or3_b32 v30, v30, v31, v32"); e("v_or3_b32 v33, v33, v34, v35")
            e("v_or3_b32 v36, v36, v37, v38"); e("v_or3_b32 v24, v24, v27, v30"); e("v_or3_b32 v33, v33, v36, v39"); e("v_or_b32 v24, v24, v33")
            e("v_cmp_ne_u32 vcc, 0, v24"); e("s_nop 1"); e("s_cbranch_vccz L_hq_ok")
            self.spin_dec("L_hq_poll")
            lab("L_hq_ok")
            if not self.dbgq: self.stamp(3)
            for i in range(4):
                b = 8 + 4*i
                e(f"v_perm_b32 v{24+i}, v{b+2}, v{b}, {sT3}")
            for i in range(4):
                e(f"ds_write_b32 v{vT}, v{24+i}" + (f" offset:{i*64}" if i else ""))
            e("s_waitcnt lgkmcnt(0)")
            if not self.dbgq: self.stamp(4)
        else:
            c("publish address: QM + ((kvh*8 + b)*32 + y)*128 + q*32 + cp*4 ; b = rho>>2, q = rho&3")
            e(f"v_lshrrev_b32 v{vT+4}, 2, v{vT}"); e(f"v_lshlrev_b32 v{vT+4}, 12, v{vT+4}")
            e(f"v_and_b32 v{vT+5}, 3, v{vT}"); e(f"v_lshl_add_u32 v{vT+4}, v{vT+5}, 5, v{vT+4}"); e(f"v_lshl_add_u32 v{vT+4}, v{vT+1}, 2, v{vT+4}")
            e(f"s_lshl_b32 {sT0}, {sKVH}, 15"); e(f"s_lshl_b32 {sT1}, {sY}, 7"); e(f"s_add_u32 {sT0}, {sT0}, {sT1}"); e(f"s_add_u32 {sT0}, {sT0}, {QM_BASE:#x}")
            e(f"s_mov_b32 {sSPIN}, {self.spin}")
            lab("L_hs1")
            e(f"ds_read_b32 v{vT+6}, v{vT+3}"); e("s_waitcnt lgkmcnt(0)")
            e(f"v_readfirstlane_b32 {sT1}, v{vT+6}"); e("s_nop 3")
            e(f"s_cmp_ge_u32 {sT1}, 4"); e("s_cbranch_scc1 L_hs1ok")
            self.spin_dec("L_hs1")
            lab("L_hs1ok")
            for w in range(4): e(f"ds_read_b64 v[{2*w}:{2*w+1}], v{vT+2} offset:{w*2048}")
            e("s_waitcnt lgkmcnt(0)")
            e("v_add_f32 v0, v0, v2"); e("v_add_f32 v1, v1, v3"); e("v_add_f32 v4, v4, v6"); e("v_add_f32 v5, v5, v7")
            e("v_add_f32 v0, v0, v4"); e("v_add_f32 v1, v1, v5")
            e("v_cvt_pk_bf16_f32 v0, v0, v1")
            e(f"buffer_store_dword v0, v{vT+4}, {SRD_WS}, {sT0} offen sc1")
            e("s_waitcnt vmcnt(0)")
            if not self.dbgq: self.stamp(2)
            c("last helper wave to finish signals: flag dword QF[kvh][y] := tag")
            e(f"v_mov_b32 v{vT+4}, 1"); e(f"v_mov_b32 v{vT+3}, {CNT+4}")
            e("s_mov_b64 exec, 1")
            e(f"ds_add_rtn_u32 v{vT+6}, v{vT+3}, v{vT+4}"); e("s_waitcnt lgkmcnt(0)")
            e(f"s_add_u32 {sTAG}, {sTAG}, {TAG_C:#x}")
            e(f"v_readfirstlane_b32 {sT1}, v{vT+6}"); e("s_nop 3")
            c("flag store: lane y' (0..31) writes QF[consumer = y'*8+kvh][y] ; consumer line = (y'*8+kvh)*128")
            e(f"s_cmp_eq_u32 {sT1}, 3"); e("s_cbranch_scc0 L_hnoflag")
            e("s_mov_b32 exec_lo, -1"); e("s_mov_b32 exec_hi, 0")
            e(f"v_lshlrev_b32 v{vT+5}, 10, v{vLANE}"); e(f"v_mov_b32 v{vT+4}, {sTAG}")
            e(f"s_lshl_b32 {sT4}, {sKVH}, 7"); e(f"s_lshl_b32 {sT5}, {sY}, 2"); e(f"s_add_u32 {sT4}, {sT4}, {sT5}"); e(f"s_add_u32 {sT4}, {sT4}, {QF_BASE:#x}")
            e(f"buffer_store_dword v{vT+4}, v{vT+5}, {SRD_WS}, {sT4} offen sc1")
            lab("L_hnoflag")
            e("s_mov_b64 exec, -1")
            if self.quiet: e("s_barrier")
            e(f"v_lshlrev_b32 v{vLIN16}, 4, v{vLANE}")
            e(f"s_cmp_lg_u32 {sHW}, 0"); e("s_cbranch_scc1 L_hq_done")
            c("H0: poll own flag line via scalar loads")
            e(f"s_lshl_b32 {sT4}, {sLID}, 7"); e(f"s_add_u32 {sT4}, {sT4}, {QF_BASE:#x}")
            e(f"s_add_u32 s32, s46, {sT4}"); e("s_addc_u32 s33, s47, 0")
            e(f"s_mov_b32 {sSPIN}, {self.spin}")
            lab("L_hq_poll")
            PR = (8, 48)
            for k, r in enumerate(PR): e(f"s_load_dwordx16 s[{r}:{r+15}], s[32:33], {64*k} glc")
            e("s_waitcnt lgkmcnt(0)")
            for k, r in enumerate(PR):
                for i in range(16):
                    e(f"s_xor_b32 s{r+i}, s{r+i}, {sTAG}")
                    if k or i: e(f"s_or_b32 s8, s8, s{r+i}")
            e("s_cmp_eq_u32 s8, 0"); e("s_cbranch_scc1 L_hq_ok")
            e(f"s_sleep {self.qsleep}")
            self.spin_dec("L_hq_poll")
            lab("L_hq_ok")
            if not self.dbgq: self.stamp(3)
            c("fetch Q (4 KB): QM + (kvh*8+b)*4096 + i*1024 + l*16")
            e(f"s_lshl_b32 {sT0}, {sKVH}, 3"); e(f"s_add_u32 {sT0}, {sT0}, {sB}"); e(f"s_lshl_b32 {sT0}, {sT0}, 12"); e(f"s_add_u32 {sT0}, {sT0}, {QM_BASE:#x}")
            for i in range(4):
                e(f"buffer_load_dwordx4 v[{4*i}:{4*i+3}], v{vLIN16}, {SRD_WS}, {sT0} offen" + (f" offset:{i*1024}" if i else "") + " sc1")
            c("LDS write address: QB + (4h+q)*528 + (128*(i&1) + 16yy + 8half)*2 ; yy=l>>3, q=(l>>1)&3, half=l&1, h=i>>1")
            e(f"v_lshrrev_b32 v{vT}, 1, v{vLANE}"); e(f"v_and_b32 v{vT}, 3, v{vT}")
            e(f"s_movk_i32 {sT1}, {QROW}"); e(f"v_mul_lo_u32 v{vT}, v{vT}, {sT1}")
            e(f"v_lshrrev_b32 v{vT+1}, 3, v{vLANE}"); e(f"v_lshl_add_u32 v{vT}, v{vT+1}, 5, v{vT}")
            e(f"v_and_b32 v{vT+1}, 1, v{vLANE}"); e(f"v_lshl_add_u32 v{vT}, v{vT+1}, 4, v{vT}")
            e(f"v_add_u32 v{vT}, {QB}, v{vT}")
            e("s_waitcnt vmcnt(0)")
            for i in range(4):
                o = (i >> 1) * 4 * QROW + (i & 1) * 256
                e(f"ds_write_b128 v{vT}, v[{4*i}:{4*i+3}]" + (f" offset:{o}" if o else ""))
            e("s_waitcnt lgkmcnt(0)")
            if not self.dbgq: self.stamp(4)
        lab("L_hq_done")
        e("s_barrier")
        self.srd(48, 34, 35, 28672)
        if self.wopf:
            c("L2 prefetch of this WG's 1/8 share of the wo quarter: rows r*128 + 16b .. +16 (14336 B contiguous); wave hw: 4KB pieces")
            e(f"s_lshl_b32 {sT0}, {sR}, 7"); e(f"s_lshl_b32 {sT1}, {sB}, 4"); e(f"s_add_u32 {sT0}, {sT0}, {sT1}"); e(f"s_mul_i32 {sT0}, {sT0}, 896")
            e(f"s_lshl_b32 {sT1}, {sHW}, 12"); e(f"s_add_u32 {sT0}, {sT0}, {sT1}")
            for i in range(4):
                e(f"buffer_load_dwordx4 v[{8+4*i}:{8+4*i+3}], v{vLIN16}, {SRD_WO}, {sT0} offen" + (f" offset:{i*1024}" if i else ""))
        c("clears: M1[g][recv=hw][sender=j] (2176B) and M2[b][r][hw] (2048B)")
        e(f"s_lshl_b32 {sT0}, {sG}, 2"); e(f"s_add_u32 {sT0}, {sT0}, {sHW}"); e(f"s_lshl_b32 {sT0}, {sT0}, 2"); e(f"s_add_u32 {sT0}, {sT0}, {sJ}")
        e(f"s_mul_i32 {sM1OUT}, {sT0}, {M1_SLICE}")
        e(f"s_lshl_b32 {sT0}, {sB}, 5"); e(f"s_add_u32 {sT0}, {sT0}, {sR}"); e(f"s_lshl_b32 {sT0}, {sT0}, 13"); e(f"s_lshl_b32 {sT1}, {sHW}, 11")
        e(f"s_add_u32 {sM2OUT}, {sT0}, {sT1}"); e(f"s_add_u32 {sM2OUT}, {sM2OUT}, {M2_BASE:#x}")
        for i in range(4): e(f"v_mov_b32 v{i}, -1")
        e(f"buffer_store_dwordx4 v[0:3], v{vLIN16}, {SRD_WS}, {sM1OUT} offen sc1")
        e(f"buffer_store_dwordx4 v[0:3], v{vLIN16}, {SRD_WS}, {sM1OUT} offen offset:1024 sc1")
        e(f"buffer_store_dwordx4 v[0:3], v{vLIN16}, {SRD_WS}, {sM2OUT} offen sc1")
        e(f"buffer_store_dwordx4 v[0:3], v{vLIN16}, {SRD_WS}, {sM2OUT} offen offset:1024 sc1")
        e("s_mov_b64 exec, 0xff")
        e(f"buffer_store_dwordx4 v[0:3], v{vLIN16}, {SRD_WS}, {sM1OUT} offen offset:2048 sc1")
        if self.dyn:
            c("group counter := 0 (j==0, hw==0)")
            e(f"s_or_b32 {sT0}, {sJ}, {sHW}"); e(f"s_cmp_lg_u32 {sT0}, 0"); e("s_cbranch_scc1 L_hnogc")
            e("s_mov_b64 exec, 1"); e(f"v_mov_b32 v4, 0"); e(f"s_lshl_b32 {sT0}, {sG}, 7"); e(f"s_add_u32 {sT0}, {sT0}, {GC_BASE:#x}")
            e(f"buffer_store_dword v4, v4, {SRD_WS}, {sT0} offen sc1")
            lab("L_hnogc")
        e("s_mov_b64 exec, -1")
        e("s_waitcnt vmcnt(0)")
        if self.dbgmid: self.stamp(1)
        c("last helper wave signals clears done: lane r' writes CF[consumer wg' = (r'>>2) + 32b + 8(r'&3)][r] := tag")
        e(f"v_mov_b32 v{vT+4}, 1"); e(f"v_mov_b32 v{vT+3}, {CNT+4}")
        e("s_mov_b64 exec, 1")
        e(f"ds_add_rtn_u32 v{vT+6}, v{vT+3}, v{vT+4}"); e("s_waitcnt lgkmcnt(0)")
        e(f"v_readfirstlane_b32 {sT1}, v{vT+6}"); e("s_nop 3")
        e("s_mov_b64 exec, -1")
        e(f"s_cmp_eq_u32 {sT1}, {3 if self.hop1 else 7}"); e("s_cbranch_scc0 L_hnoflag2")
        e(f"v_lshrrev_b32 v{vT+5}, 2, v{vLANE}"); e(f"v_and_b32 v{vT+6}, 3, v{vLANE}"); e(f"v_lshl_add_u32 v{vT+5}, v{vT+6}, 3, v{vT+5}")
        e(f"v_lshlrev_b32 v{vT+5}, 7, v{vT+5}"); e(f"v_mov_b32 v{vT+4}, {sTAG}")
        e(f"s_lshl_b32 {sT4}, {sB}, 12"); e(f"s_lshl_b32 {sT5}, {sR}, 2"); e(f"s_add_u32 {sT4}, {sT4}, {sT5}"); e(f"s_add_u32 {sT4}, {sT4}, {CF_BASE:#x}")
        e("s_mov_b32 exec_lo, -1"); e("s_mov_b32 exec_hi, 0")
        e(f"buffer_store_dword v{vT+4}, v{vT+5}, {SRD_WS}, {sT4} offen sc1")
        lab("L_hnoflag2")
        e("s_mov_b64 exec, -1")
        c("wo: load, transpose, park in AGPRs a[0:127]")
        e(f"s_mov_b32 {sSEL_LO}, 0x05040100"); e(f"s_mov_b32 {sSEL_HI}, 0x07060302")
        e(f"s_lshl_b32 {sT0}, {sR}, 7")
        if self.wosame: e(f"s_mov_b32 {sT0}, 0")
        e(f"v_lshlrev_b32 v{vT}, 3, v{vGQ}"); e(f"v_add_u32 v{vT}, {sT0}, v{vT}")
        e(f"s_movk_i32 {sT1}, 896"); e(f"v_mul_lo_u32 v{vT}, v{vT}, {sT1}")
        e(f"s_mul_i32 {sT0}, {sHW}, 224"); e(f"v_lshl_add_u32 v{vT}, v{vN}, 4, v{vT}"); e(f"v_add_u32 v{vT}, {sT0}, v{vT}")
        for ks in range(4):
            if self.nowo: break
            kk = 0 if self.wosame else ks
            e(f"s_mov_b32 {sT0}, {kk*32*896}"); e(f"s_mov_b32 {sT1}, {kk*32*896 + 4*896}")
            for i in range(8):
                so = sT0 if i < 4 else sT1
                o = (i & 3) * 896
                e(f"buffer_load_dwordx4 v[{4*i}:{4*i+3}], v{vT}, {SRD_WO}, {so} offen" + (f" offset:{o}" if o else ""))
                if self.wopace < 8 and (i + 1) % self.wopace == 0: e("s_waitcnt vmcnt(0)")
            e("s_waitcnt vmcnt(0)")
            for j in range(8):
                u = j >> 1; sel = sSEL_HI if (j & 1) else sSEL_LO
                for p in range(4):
                    e(f"v_perm_b32 v{32+4*j+p}, v{4*(2*p+1)+u}, v{4*(2*p)+u}, {sel}")
            for k in range(32): e(f"v_accvgpr_write_b32 a{32*ks+k}, v{32+k}")
        if self.dbgmid: self.stamp(2)
        c("wait until all WGs of batch b have cleared their outboxes: dword at kvh*32+4b == 0x01010101 for all kvh")
        e(f"s_cmp_lg_u32 {sHW}, 0"); e("s_cbranch_scc1 L_hclrok")
        e(f"s_lshl_b32 {sT0}, {sLID}, 7"); e(f"s_add_u32 {sT0}, {sT0}, {CF_BASE:#x}")
        e(f"v_and_b32 v{vT+1}, 31, v{vLANE}"); e(f"v_lshlrev_b32 v{vT+1}, 2, v{vT+1}")
        e(f"s_mov_b32 {sSPIN}, {self.spin}")
        lab("L_hclr")
        e(f"buffer_load_dword v{vT+2}, v{vT+1}, {SRD_WS}, {sT0} offen sc1"); e("s_waitcnt vmcnt(0)")
        e(f"v_cmp_ne_u32 vcc, {sTAG}, v{vT+2}"); e("s_nop 1"); e("s_cbranch_vccz L_hclrok")
        e("s_sleep 16")
        self.spin_dec("L_hclr")
        lab("L_hclrok")
        if self.dyn:
            e(f"s_cmp_lg_u32 {sHW}, 0"); e("s_cbranch_scc1 L_hnodyn")
            e(f"v_mov_b32 v{vT+1}, {CNT+8}"); e(f"v_mov_b32 v{vT+2}, 1"); e(f"ds_write_b32 v{vT+1}, v{vT+2}")
            lab("L_hnodyn")
        if self.dbgmid: self.stamp(3)
        if self.bal:
            c("H0: balance exchange with partner (lid ^ 8)")
            e(f"s_cmp_lg_u32 {sHW}, 0"); e("s_cbranch_scc1 L_hbaldone")
            e(f"v_mov_b32 v{vT}, {CNT+8}"); e(f"s_mov_b32 {sSPIN}, {self.spin}")
            lab("L_hbal1")
            e(f"ds_read_b64 v[0:1], v{vT}"); e("s_waitcnt lgkmcnt(0)")
            e(f"v_readfirstlane_b32 {sT0}, v1"); e("s_nop 3")
            e(f"s_cmp_lg_u32 {sT0}, 0"); e("s_cbranch_scc1 L_hbal1ok")
            e("s_sleep 32")
            self.spin_dec("L_hbal1")
            lab("L_hbal1ok")
            c("v0 = a (time at ta), v1 = c (time at tb): publish {a, tag, c, tag}")
            e(f"v_mov_b32 v4, v0"); e(f"v_mov_b32 v5, {sTAG}"); e(f"v_mov_b32 v6, v1"); e(f"v_mov_b32 v7, {sTAG}"); e("v_mov_b32 v8, 0")
            e(f"s_xor_b32 {sT0}, {sLID}, 8"); e(f"s_lshl_b32 {sT0}, {sT0}, 7"); e(f"s_add_u32 {sT0}, {sT0}, {BAL_BASE:#x}")
            e("s_mov_b64 exec, 1")
            e(f"buffer_store_dwordx4 v[4:7], v8, {SRD_WS}, {sT0} offen sc1")
            e(f"s_lshl_b32 {sT0}, {sLID}, 7"); e(f"s_add_u32 {sT0}, {sT0}, {BAL_BASE:#x}")
            e(f"s_mov_b32 {sSPIN}, {self.spin}")
            lab("L_hbal2")
            e(f"buffer_load_dwordx4 v[12:15], v8, {SRD_WS}, {sT0} offen sc1"); e("s_waitcnt vmcnt(0)")
            e(f"v_xor_b32 v16, {sTAG}, v13"); e(f"v_xor_b32 v17, {sTAG}, v15"); e("v_or_b32 v16, v16, v17")
            e("s_nop 0"); e(f"v_readfirstlane_b32 {sT1}, v16"); e("s_nop 3")
            e(f"s_cmp_eq_u32 {sT1}, 0"); e("s_cbranch_scc1 L_hbal2ok")
            e("s_sleep 16")
            self.spin_dec("L_hbal2")
            c("timeout: both sides cannot agree -> cannot happen in a healthy run; use N = 32")
            e("v_mov_b32 v20, 32"); e("s_branch L_hbal3")
            lab("L_hbal2ok")
            c("A = role 0, B = role 1: (aA,cA) in v[0:1] / (aB,cB) in v12,v14 for role 0; swapped for role 1")
            e(f"s_and_b32 {sT1}, {sJ}, 1"); e(f"s_cmp_eq_u32 {sT1}, 0")
            e("s_cbranch_scc1 L_hbalA")
            e("v_mov_b32 v18, v0"); e("v_mov_b32 v19, v1"); e("v_mov_b32 v0, v12"); e("v_mov_b32 v1, v14"); e("v_mov_b32 v12, v18"); e("v_mov_b32 v14, v19")
            lab("L_hbalA")
            e("v_sub_u32 v2, v1, v0"); e("v_sub_u32 v3, v14, v12"); e("v_sub_u32 v4, v14, v1")
            e("v_cvt_f32_i32 v2, v2"); e("v_cvt_f32_i32 v3, v3"); e("v_cvt_f32_i32 v4, v4")
            nint = self.tb - self.ta
            e(f"v_mul_f32 v5, {fbits(float(nint)):#x}, v4")
            e(f"v_mov_b32 v6, {fbits(float(64-self.tb)):#x}"); e("v_fmac_f32 v5, v6, v3")
            e(f"v_mov_b32 v6, {fbits(float(self.tb)):#x}"); e("v_fmac_f32 v5, v6, v2")
            e("v_add_f32 v6, v2, v3"); e("v_rcp_f32 v6, v6"); e("s_nop 0")
            e("v_mul_f32 v5, v5, v6"); e("v_add_f32 v5, 0.5, v5"); e("v_cvt_i32_f32 v20, v5")
            e(f"v_max_i32 v20, {self.nlo}, v20"); e(f"v_min_i32 v20, {64-self.nlo}, v20")
            e(f"s_cbranch_scc1 L_hbal3")
            e("v_sub_u32 v20, 64, v20")
            lab("L_hbal3")
            e(f"v_mov_b32 v21, {CNT+16}"); e("ds_write_b32 v21, v20")
            e("s_mov_b64 exec, -1")
            lab("L_hbaldone")
        e(f"s_mov_b32 {sC}, {fbits(C_LOG2E_16):#x}")
        c("precompute tail addresses")
        e(f"s_lshl_b32 {sT0}, {sG}, 2"); e(f"s_add_u32 {sT0}, {sT0}, {sJ}"); e(f"s_mul_i32 {sT0}, {sT0}, {4*M1_SLICE}")
        e(f"s_add_u32 {sT1}, {sT0}, {M1_SLICE}"); e(f"s_add_u32 {sT2}, {sT0}, {2*M1_SLICE}"); e(f"s_add_u32 {sT3}, {sT0}, {3*M1_SLICE}")
        hST = 108
        e(f"v_and_b32 v{hST}, 3, v{vLANE}"); e(f"v_lshlrev_b32 v{hST}, 3, v{hST}")
        hOW, hOR, hYS, hP2, hOUT = 109, 110, 111, 112, 113
        e(f"v_and_b32 v{hOW}, 3, v{vLANE}"); e(f"s_movk_i32 {sT4}, {OROW}"); e(f"v_mul_lo_u32 v{hOW}, v{hOW}, {sT4}")
        e(f"v_lshrrev_b32 v{vT}, 2, v{vLANE}"); e(f"v_lshl_add_u32 v{hOW}, v{vT}, 4, v{hOW}"); e(f"v_add_u32 v{hOW}, {OB}, v{hOW}")
        e(f"v_and_b32 v{hOR}, 3, v{vN}"); e(f"v_mul_lo_u32 v{hOR}, v{hOR}, {sT4}"); e(f"v_lshl_add_u32 v{hOR}, v{vGQ}, 4, v{hOR}"); e(f"v_add_u32 v{hOR}, {OB}, v{hOR}")
        e(f"v_lshlrev_b32 v{hYS}, 6, v{vGQ}"); e(f"v_lshl_add_u32 v{hYS}, v{vN}, 4, v{hYS}")
        e(f"v_lshlrev_b32 v{hP2}, 16, v{vGQ}"); e(f"v_lshl_add_u32 v{hP2}, v{vN}, 4, v{hP2}")
        e(f"v_and_b32 v{hOUT}, 3, v{vN}"); e(f"s_lshl_b32 {sT4}, {sB}, 2"); e(f"v_add_u32 v{hOUT}, {sT4}, v{hOUT}")
        e(f"s_movk_i32 {sT4}, 896"); e(f"v_mul_lo_u32 v{hOUT}, v{hOUT}, {sT4}")
        e(f"v_lshrrev_b32 v{vT}, 2, v{vN}"); e(f"v_lshl_add_u32 v{hOUT}, v{vT}, 6, v{hOUT}")
        e(f"s_lshl_b32 s58, {sB}, 18"); e(f"s_lshr_b32 {sT4}, {sR}, 3"); e(f"s_lshl_b32 {sT4}, {sT4}, 11"); e(f"s_add_u32 s58, s58, {sT4}")
        e(f"s_and_b32 {sT4}, {sR}, 7"); e(f"s_lshl_b32 {sT4}, {sT4}, 8"); e(f"s_add_u32 s58, s58, {sT4}"); e(f"s_add_u32 s58, s58, {M2_BASE:#x}")
        e(f"s_lshr_b32 s59, {sR}, 3"); e(f"s_mul_i32 s59, s59, 224"); e(f"s_and_b32 {sT4}, {sR}, 7"); e(f"s_lshl_b32 {sT4}, {sT4}, 1"); e(f"s_add_u32 s59, s59, {sT4}")
        self.stamp(5)
        e("s_barrier")
        if self.notail: e("s_branch L_fin")
        e(f"s_cmp_lg_u32 {sHW}, 0"); e("s_cbranch_scc1 L_t3done")
        e(f"s_mov_b32 {sSPIN}, {self.spin}")
        PB = 0
        lab("L_poll1")
        for jj, so in enumerate((sT0, sT1, sT2, sT3)):
            e(f"buffer_load_dwordx4 v[{PB+8*jj}:{PB+8*jj+3}], v{vLIN16}, {SRD_WS}, {so} offen sc1")
            e(f"buffer_load_dwordx4 v[{PB+8*jj+4}:{PB+8*jj+7}], v{vLIN16}, {SRD_WS}, {so} offen offset:1024 sc1")
            e(f"buffer_load_dwordx2 v[{PB+32+2*jj}:{PB+32+2*jj+1}], v{hST}, {SRD_WS}, {so} offen offset:2048 sc1")
        e("s_waitcnt vmcnt(0)")
        mx = vT + 1
        e(f"v_max3_u32 v{mx}, v{PB}, v{PB+1}, v{PB+2}")
        for k in range(3, 39, 2): e(f"v_max3_u32 v{mx}, v{mx}, v{PB+k}, v{PB+k+1}")
        e(f"v_max_u32 v{mx}, v{mx}, v{PB+39}")
        e(f"v_cmp_eq_u32 vcc, -1, v{mx}"); e("s_nop 1"); e("s_cbranch_vccz L_poll1ok")
        self.spin_dec("L_poll1")
        lab("L_poll1ok")
        ST = PB + 32; a0 = vT + 2; F = vT + 4
        e(f"v_max3_f32 v{a0}, v{ST}, v{ST+2}, v{ST+4}"); e(f"v_max_f32 v{a0}, v{a0}, v{ST+6}")
        for w in range(4): e(f"v_sub_f32 v{F+w}, v{ST+2*w}, v{a0}")
        for w in range(4): e(f"v_mul_f32 v{F+w}, {sC}, v{F+w}")
        for w in range(4): e(f"v_exp_f32 v{F+w}, v{F+w}")
        e("s_nop 0")
        e(f"v_mul_f32 v{a0}, v{F}, v{ST+1}")
        for w in range(1, 4): e(f"v_fmac_f32 v{a0}, v{F+w}, v{ST+2*w+1}")
        e(f"v_rcp_f32 v{a0}, v{a0}"); e("s_nop 0")
        for w in range(4): e(f"v_mul_f32 v{F+w}, v{F+w}, v{a0}")
        ACC = ST
        for k in range(8): e(f"v_mul_f32 v{ACC+k}, v{F}, v{PB+k}")
        for w in range(1, 4):
            for k in range(8): e(f"v_fmac_f32 v{ACC+k}, v{F+w}, v{PB+8*w+k}")
        for p in range(4): e(f"v_cvt_pk_bf16_f32 v{PB+p}, v{ACC+2*p}, v{ACC+2*p+1}")
        e(f"ds_write_b128 v{hOW}, v[{PB}:{PB+3}]")
        lab("L_t3done")
        e("s_waitcnt lgkmcnt(0)"); e("s_barrier")
        self.stamp(6)
        BF = 64 + 48 - 64 + 40
        BF = 40
        for ks in range(4):
            e(f"ds_read_b128 v[{BF+4*ks}:{BF+4*ks+3}], v{hOR}" + (f" offset:{ks*64}" if ks else ""))
        YA = 0
        e("s_waitcnt lgkmcnt(0)")
        for ks in range(4):
            for j in range(8):
                A = 32*ks + 4*j
                cc = "0" if ks == 0 else f"v[{YA+4*j}:{YA+4*j+3}]"
                e(f"v_mfma_f32_16x16x32_bf16 v[{YA+4*j}:{YA+4*j+3}], a[{A}:{A+3}], v[{BF+4*ks}:{BF+4*ks+3}], {cc}")
        e("s_mov_b32 exec_lo, 0x000f000f"); e("s_mov_b32 exec_hi, 0x000f000f")
        self.nop(6)
        for j in range(8):
            e(f"buffer_store_dwordx4 v[{YA+4*j}:{YA+4*j+3}], v{hYS}, {SRD_WS}, {sM2OUT} offen offset:{j*256} sc1")
        e("s_mov_b64 exec, -1")
        e(f"s_cmp_lg_u32 {sHW}, 0"); e("s_cbranch_scc1 L_fin")
        e(f"s_mov_b32 {sSPIN}, {self.spin}")
        PB = 64
        lab("L_poll2")
        for i in range(8):
            if i == 0: so = "s58"
            else:
                e(f"s_add_u32 {sT1}, s58, {i*8192}"); so = sT1
            e(f"buffer_load_dwordx4 v[{PB+4*i}:{PB+4*i+3}], v{hP2}, {SRD_WS}, {so} offen sc1")
        e("s_waitcnt vmcnt(0)")
        mx = 60
        e(f"v_max3_u32 v{mx}, v{PB}, v{PB+1}, v{PB+2}")
        for k in range(3, 31, 2): e(f"v_max3_u32 v{mx}, v{mx}, v{PB+k}, v{PB+k+1}")
        e(f"v_max_u32 v{mx}, v{mx}, v{PB+31}")
        e(f"v_cmp_eq_u32 vcc, -1, v{mx}"); e("s_nop 1"); e("s_cbranch_vccz L_poll2ok")
        self.spin_dec("L_poll2")
        lab("L_poll2ok")
        for k in range(4): e(f"v_add_f32 v{32+k}, v{PB+k}, v{PB+4+k}")
        for i in range(2, 8):
            for k in range(4): e(f"v_add_f32 v{32+k}, v{32+k}, v{PB+4*i+k}")
        for k in range(4): e(f"v_mov_b32 v{36+k}, v{32+k}")
        e("s_nop 0")
        for k in range(4): e(f"v_permlane32_swap_b32 v{36+k}, v{32+k}")
        for k in range(4): e(f"v_add_f32 v{32+k}, v{32+k}, v{36+k}")
        for k in range(4): e(f"v_mov_b32 v{36+k}, v{32+k}")
        e("s_nop 0")
        for k in range(4): e(f"v_permlane16_swap_b32 v{36+k}, v{32+k}")
        for k in range(4): e(f"v_add_f32 v{32+k}, v{32+k}, v{36+k}")
        e("v_cvt_pk_bf16_f32 v40, v32, v33"); e("v_cvt_pk_bf16_f32 v41, v34, v35")
        e("s_mov_b64 exec, 0xffff")
        e(f"buffer_store_short v40, v{hOUT}, {SRD_OUT}, s59 offen")
        e(f"buffer_store_short_d16_hi v40, v{hOUT}, {SRD_OUT}, s59 offen offset:16")
        e("s_mov_b64 exec, 0xfff")
        e(f"buffer_store_short v41, v{hOUT}, {SRD_OUT}, s59 offen offset:32")
        e(f"buffer_store_short_d16_hi v41, v{hOUT}, {SRD_OUT}, s59 offen offset:48")
        e(f"s_cmp_lg_u32 {sLID}, 0"); e("s_cbranch_scc1 L_noep")
        e("s_mov_b64 exec, 1")
        e(f"v_mov_b32 v42, s60"); e(f"v_mov_b32 v43, s61"); e(f"v_mov_b32 v44, 0"); e(f"s_mov_b32 {sT0}, {EPOCH_OFF:#x}")
        e(f"buffer_store_dwordx2 v[42:43], v44, {SRD_WS}, {sT0} offen sc1")
        lab("L_noep")
        e("s_mov_b64 exec, -1")
        lab("L_fin")
        if self.stamps:
            self.stamp(7)
            e("s_waitcnt vmcnt(0) lgkmcnt(0)")
            e(f"s_lshl_b32 {sT0}, {sWG}, 3"); e(f"s_add_u32 {sT0}, {sT0}, {sW}"); e(f"s_lshl_b32 {sT0}, {sT0}, 5"); e(f"s_add_u32 {sT0}, {sT0}, {STAMP_BASE:#x}")
            if self.bal:
                e(f"s_cmp_lt_u32 {sW}, 4"); e("s_cbranch_scc0 L_non"); e(f"s_mov_b32 s96, {sN}"); lab("L_non")
            for i in range(8): e(f"v_mov_b32 v{i}, s{84+2*i}")
            e("v_mov_b32 v8, 0")
            e("s_mov_b64 exec, 1")
            e(f"buffer_store_dwordx4 v[0:3], v8, {SRD_WS}, {sT0} offen")
            e(f"buffer_store_dwordx4 v[4:7], v8, {SRD_WS}, {sT0} offen offset:16")
            e("s_waitcnt vmcnt(0)")
        lab("L_end")
        e("s_endpgm")
        L.append('.section .rodata,"a"'); L.append(".p2align 6"); L.append(f".amdhsa_kernel {NAME}_kernel")
        for d in ("next_free_vgpr 256", "next_free_sgpr 102", "accum_offset 128", "group_segment_fixed_size 0", "kernarg_size 64",
                  "user_sgpr_count 2", "user_sgpr_kernarg_segment_ptr 1", "system_sgpr_workgroup_id_x 1"):
            L.append("  .amdhsa_" + d)
        L.append(".end_amdhsa_kernel")
        return "\n".join(L) + "\n"

if __name__ == "__main__":
    import argparse
    ap = argparse.ArgumentParser()
    ap.add_argument("out"); ap.add_argument("--stamps", action="store_true"); ap.add_argument("--opt", default="{}")
    a = ap.parse_args()
    open(a.out, "w").write(Gen(stamps=a.stamps, **eval("dict(" + a.opt + ")" if not a.opt.startswith(("{", "dict")) else a.opt)).build())
```

```python
import sys, struct

NAME = "standalone__gqa_block_cached__sampling"
HDR = open("standalone__gqa_block_cached__sampling.s.ref").read().split("; Override")[0]

QB = 131072; QROW = 528
STB = QB + 8 * QROW
OB = STB + 256
OROW = 272
CNT = OB + 4 * OROW
WQS = 136704
RED = WQS + 16384
OWROW = 1040
LDS_BYTES = 163840
assert RED + 8192 <= LDS_BYTES

M1_SLICE = 2176
M2_BASE = 0x400000
QM_BASE = 0x600000
QF_BASE = 0x740000
CF_BASE = 0x760000
BAL_BASE = 0x7a0000
GC_BASE = 0x788000
EPOCH_OFF = 0x790000
TAG_C = 0x9E3779B9
STAMP_BASE = 0x800000
WS_BYTES = 0x1000000

sWG, sW, sKVH, sJ, sB = "s2", "s3", "s4", "s5", "s6"
sHW = "s7"
SRD_K, SRD_V, SRD_WQ, SRD_X, SRD_WO, SRD_WS = "s[8:11]", "s[12:15]", "s[16:19]", "s[20:23]", "s[24:27]", "s[28:31]"
SRD_OUT, SRD_DBG = "s[48:51]", "s[52:55]"
sKOFF, sVOFF = "s60", "s61"
sWB = "s62"
sKSLOT, sVSLOT = "s63", "s64"
sT = "s65"
sC, sNC = "s66", "s67"
sG = "s68"; sR = "s69"
sM1OUT, sM2OUT = "s70", "s71"
sT0, sT1, sT2, sT3, sT4, sT5 = "s72", "s73", "s74", "s75", "s76", "s77"
sSEL_LO, sSEL_HI = "s78", "s79"
sY = "s80"; sSPIN = "s81"; sTAG = "s82"; sLID = "s83"; sTL = "s59"
sN = "s56"; sGB = "s57"; sGC = "s58"; sSTAT = "s59"; sSTEP = "s57"
vA = 108; vZERO = 110
STAMPS = ["s[84:85]", "s[86:87]", "s[88:89]", "s[90:91]", "s[92:93]", "s[94:95]", "s[96:97]", "s[98:99]"]

vO = 0
vLANE, vN, vGQ, vTMPA = 64, 65, 66, 67
vDMA = 68; vKA = 72; vVA = 76; vS = 84; vP = 88; vM, vL = 90, 91; vAL = 92
vT = 94
vLIN16 = 104; vODUMP = 105; vT2A, vT2B = 106, 107
AQ, AK, AV = 0, 32, 64

C_LOG2E_16 = 1.4426950408889634 / 16.0
def fbits(x): return struct.unpack("<I", struct.pack("<f", x))[0]

class Gen:
    def __init__(self, stamps=False, flags="nt", spin=1 << 18, kwait=16, nocomp=False, notail=False, wopace=8, hprio=0, qsleep=2, pace=3, dbgmid=False, nowo=False, noclr=False, v0pre=True, wosame=False, wopf=True, vwait=24, rate=False, noqwait=False, hexit=False, order2=True, kwait2=24, dyn=False, n0=16, pairmap=True, bal=True, ta=4, tb=11, tc=21, nlo=24, quiet=0, dbgq=False, hop1=True, qdelay=True, pre0=2, ldyn=False, t0s=44, t1s=92, plo=108, xmap=1):
        self.xmap = xmap
        self.ldyn = ldyn; self.t0s = t0s; self.t1s = t1s; self.plo = plo
        self.pre0 = pre0
        self.qdelay = qdelay
        self.hop1 = hop1
        self.dbgq = dbgq
        self.quiet = quiet
        self.bal = bal; self.ta = ta; self.tb = tb; self.tc = tc; self.nlo = nlo
        assert not (dyn and bal)
        self.dyn = dyn; self.n0 = n0; self.pairmap = pairmap
        self.order2 = order2; self.kwait2 = kwait2
        self.rate = rate; self.noqwait = noqwait; self.hexit = hexit
        self.vwait = vwait
        self.wopf = wopf
        self.wosame = wosame
        self.v0pre = v0pre
        self.dbgmid = dbgmid; self.nowo = nowo; self.noclr = noclr
        self.pace = pace
        self.qsleep = qsleep
        self.L = []; self.stamps = stamps; self.flags = flags; self.spin = spin; self.kwait = kwait
        self.nocomp = nocomp; self.notail = notail; self.wopace = wopace; self.hprio = hprio
    def e(self, s): self.L.append("  " + s)
    def lab(self, s): self.L.append(s + ":")
    def c(self, s): self.L.append("  ; " + s)
    def stamp(self, i):
        if self.stamps: self.e(f"s_memrealtime {STAMPS[i]}")
    def nop(self, n):
        while n > 0:
            k = min(n, 16); self.e(f"s_nop {k-1}"); n -= k
    def dma_half(self, srd, soff):
        for i in range(4):
            o = f" offset:{i*1024}" if i else ""
            self.e(f"buffer_load_dwordx4 v{vDMA+i}, {srd}, {soff} offen{o} {self.flags} lds")
    def dma_tile(self, srd, goff, slot):
        e = self.e
        e(f"s_mov_b32 m0, {slot}"); e(f"s_add_u32 {sT0}, {goff}, 16384")
        self.dma_half(srd, goff)
        e(f"s_add_u32 m0, {slot}, 4096"); e("s_nop 0")
        self.dma_half(srd, sT0)
    def dma_tile_static(self, isv, tile):
        e = self.e
        for half in range(2):
            e(f"s_add_u32 m0, {sWB}, {isv*16384 + tile*8192 + half*4096}")
            e(f"s_add_u32 {sT5}, {sKOFF}, {tile*32768 + half*16384}")
            self.dma_half(SRD_V if isv else SRD_K, sT5)
    def dma_half_static(self, hn):
        e = self.e
        tile, half, isv = hn >> 2, hn & 1, (hn >> 1) & 1
        if self.dyn:
            e(f"s_add_u32 m0, {sWB}, {isv*16384 + tile*8192 + half*4096}")
            e(f"s_add_u32 {sT5}, {sKOFF}, {tile*32768 + half*16384}")
        else:
            e(f"s_add_u32 {sT5}, {sKOFF}, {half*16384}")
            if tile: e(f"s_add_u32 {sT5}, {sT5}, {sSTEP}")
            e(f"s_add_u32 m0, {sWB}, {isv*16384 + tile*8192 + half*4096}"); e("s_nop 0")
        self.dma_half(SRD_V if isv else SRD_K, sT5)
    def read_k(self):
        for s in range(8):
            a, u = s >> 2, s & 3
            self.e(f"ds_read_b128 a[{AK+4*s}:{AK+4*s+3}], v{vKA+u}" + (f" offset:{a*256}" if a else ""))
    def read_v(self):
        for t in range(16):
            a, u = t >> 3, t & 7
            self.e(f"ds_read_b64_tr_b16 a[{AV+2*t}:{AV+2*t+1}], v{vVA+u}" + (f" offset:{a*256}" if a else ""))
    def srd(self, base, lo, hi, size):
        e = self.e
        e(f"s_mov_b32 s{base}, s{lo}"); e(f"s_and_b32 s{base+1}, s{hi}, 0xffff"); e(f"s_mov_b32 s{base+2}, {size:#x}"); e(f"s_mov_b32 s{base+3}, 0x20000")
    def spin_dec(self, label):
        e = self.e
        e(f"s_sub_u32 {sSPIN}, {sSPIN}, 1"); e(f"s_cmp_lg_u32 {sSPIN}, 0"); e(f"s_cbranch_scc1 {label}")

    def loop1(self):
        e, lab, c = self.e, self.lab, self.c
        lab("L_loop")
        if self.rate:
            for tt, si in ((8, 1), (16, 4), (24, 5)):
                e(f"s_cmp_lg_u32 {sT}, {tt}"); e(f"s_cbranch_scc1 L_rs{tt}"); e(f"s_memrealtime {STAMPS[si]}"); lab(f"L_rs{tt}")
        for s in range(8):
            if self.nocomp: break
            cc = "0" if s == 0 else f"v[{vS}:{vS+3}]"
            e(f"v_mfma_f32_16x16x32_bf16 v[{vS}:{vS+3}], a[{AK+4*s}:{AK+4*s+3}], a[{AQ+4*s}:{AQ+4*s+3}], {cc}")
        e(f"s_cmp_eq_u32 {sT}, 31"); e("s_cbranch_scc1 L_k31")
        e(f"s_waitcnt vmcnt({self.kwait})")
        self.read_k()
        e("s_waitcnt lgkmcnt(0)")
        e(f"s_cmp_ge_u32 {sT}, 29"); e("s_cbranch_scc1 L_kdone")
        self.dma_tile(SRD_K, sKOFF, sKSLOT)
        e(f"s_add_u32 {sKOFF}, {sKOFF}, 32768"); e(f"s_xor_b32 {sKSLOT}, {sKSLOT}, 8192")
        lab("L_kdone")
        for u in range(4): e(f"v_xor_b32 v{vKA+u}, 8192, v{vKA+u}")
        lab("L_soft")
        t0, t1, t2 = vT, vT+1, vT+2
        if self.nocomp: e("s_branch L_noresc")
        e(f"v_max3_f32 v{t0}, v{vS}, v{vS+1}, v{vS+2}")
        e(f"v_max_f32 v{t0}, v{t0}, v{vS+3}")
        e(f"v_mov_b32 v{t1}, v{t0}"); e("s_nop 1")
        e(f"v_permlane32_swap_b32 v{t1}, v{t0}")
        e(f"v_max_f32 v{t0}, v{t0}, v{t1}")
        e(f"v_mov_b32 v{t1}, v{t0}"); e("s_nop 1")
        e(f"v_permlane16_swap_b32 v{t1}, v{t0}")
        e(f"v_max3_f32 v{t0}, v{t0}, v{t1}, v{vM}")
        e(f"v_sub_f32 v{t1}, v{vM}, v{t0}")
        e(f"v_mul_f32 v{t1}, {sC}, v{t1}")
        e(f"v_mul_f32 v{t2}, {sNC}, v{t0}")
        e(f"v_exp_f32 v{vAL}, v{t1}")
        e(f"v_mov_b32 v{vM}, v{t0}")
        for r in range(4): e(f"v_fma_f32 v{vS+r}, v{vS+r}, {sC}, v{t2}")
        for r in range(4): e(f"v_exp_f32 v{vS+r}, v{vS+r}")
        e(f"v_cmp_neq_f32 vcc, 1.0, v{vAL}")
        e(f"v_add_f32 v{t0}, v{vS}, v{vS+1}"); e(f"v_add_f32 v{t1}, v{vS+2}, v{vS+3}")
        e(f"v_cvt_pk_bf16_f32 v{vP}, v{vS}, v{vS+1}"); e(f"v_cvt_pk_bf16_f32 v{vP+1}, v{vS+2}, v{vS+3}")
        e(f"v_add_f32 v{t0}, v{t0}, v{t1}"); e(f"v_fma_f32 v{vL}, v{vL}, v{vAL}, v{t0}")
        e("s_cbranch_vccz L_noresc")
        for i in range(32):
            e(f"v_pk_mul_f32 v[{vO+2*i}:{vO+2*i+1}], v[{vO+2*i}:{vO+2*i+1}], v[{vAL}:{vAL+1}] op_sel_hi:[1,0]")
        lab("L_noresc")
        c("V point: steady state vmcnt(24); near the end fewer ops are outstanding")
        if self.v0pre:
            e(f"s_cmp_eq_u32 {sT}, 0"); e("s_cbranch_scc1 L_pv")
        e(f"s_cmp_ge_u32 {sT}, 29"); e("s_cbranch_scc1 L_vlate")
        e(f"s_waitcnt vmcnt({self.vwait})")
        lab("L_vrd")
        self.read_v()
        e("s_waitcnt lgkmcnt(0)")
        e(f"s_cmp_ge_u32 {sT}, 30"); e("s_cbranch_scc1 L_vdone")
        self.dma_tile(SRD_V, sVOFF, sVSLOT)
        e(f"s_add_u32 {sVOFF}, {sVOFF}, 32768"); e(f"s_xor_b32 {sVSLOT}, {sVSLOT}, 8192")
        lab("L_vdone")
        for u in range(8): e(f"v_xor_b32 v{vVA+u}, 8192, v{vVA+u}")
        lab("L_pv")
        for t in range(16):
            if self.nocomp: break
            e(f"v_mfma_f32_16x16x16_bf16 v[{vO+4*t}:{vO+4*t+3}], a[{AV+2*t}:{AV+2*t+1}], v[{vP}:{vP+1}], v[{vO+4*t}:{vO+4*t+3}]")
        e(f"s_add_u32 {sT}, {sT}, 1"); e(f"s_cmp_lt_u32 {sT}, 32"); e("s_cbranch_scc1 L_loop")
        e("s_branch L_tail")
        lab("L_vlate")
        e(f"s_cmp_eq_u32 {sT}, 29"); e("s_cbranch_scc1 L_vrd")
        e(f"s_cmp_eq_u32 {sT}, 30"); e("s_cbranch_scc0 L_vlast")
        e("s_waitcnt vmcnt(8)"); e("s_branch L_vrd")
        lab("L_vlast")
        e("s_waitcnt vmcnt(0)"); e("s_branch L_vrd")
        lab("L_k31")
        self.nop(8)
        e("s_branch L_soft")


    def loop2(self):
        e, lab, c = self.e, self.lab, self.c
        dyn = self.dyn
        ld = self.ldyn
        lab("L_loop")
        if self.rate:
            for tt, si in ((8, 1), (16, 4), (24, 5)):
                e(f"s_cmp_lg_u32 {sT}, {tt}"); e(f"s_cbranch_scc1 L_rs{tt}"); e(f"s_memrealtime {STAMPS[si]}"); lab(f"L_rs{tt}")
        t0, t1, t2 = vT, vT+1, vT+2
        def cmpN(op, k):
            if dyn or self.bal or ld:
                e(f"s_sub_u32 {sT1}, {sN}, {k}"); e(f"s_cmp_{op}_u32 {sT}, {sT1}")
            else:
                e(f"s_cmp_{op}_u32 {sT}, {32-k}")
        if ld:
            c("grab next tile id (lane 0) and read limit/final early")
            cmpN("ge", 3); e("s_cbranch_scc1 L_nograb")
            e("s_mov_b64 exec, 1")
            e(f"ds_add_rtn_u32 v{vA}, v{vZERO}, v{vA+1}")
            e("s_mov_b64 exec, -1")
            lab("L_nograb")
        c("A: QK")
        for s in range(8):
            if self.nocomp: break
            cc = "0" if s == 0 else f"v[{vS}:{vS+3}]"
            e(f"v_mfma_f32_16x16x32_bf16 v[{vS}:{vS+3}], a[{AK+4*s}:{AK+4*s+3}], a[{AQ+4*s}:{AQ+4*s+3}], {cc}")
        c("B: K point")
        if self.bal and not ld:
            e(f"s_cmp_eq_u32 {sT}, {self.ta}"); e("s_cbranch_scc1 L_balst")
            e(f"s_cmp_eq_u32 {sT}, {self.tb}"); e("s_cbranch_scc1 L_balst")
            e(f"s_cmp_eq_u32 {sT}, {self.tc}"); e("s_cbranch_scc1 L_balget")
            lab("L_balback")
        cmpN("ge", 2); e("s_cbranch_scc1 L_klate")
        e(f"s_waitcnt vmcnt({self.kwait2})")
        lab("L_krd")
        self.read_k()
        if dyn:
            cmpN("ge", 3); e("s_cbranch_scc1 L_knoref")
            c("tile id for t+3 ; atomics run two iterations ahead (regs vA, vA+1 by parity of t)")
            e(f"s_cmp_ge_u32 {sT}, {self.n0-3}"); e("s_cbranch_scc1 L_dynid")
            e(f"s_mov_b32 {sT2}, {sSTAT}"); e(f"s_add_u32 {sSTAT}, {sSTAT}, 16")
            e(f"s_cmp_eq_u32 {sT}, {self.n0-5}"); e("s_cbranch_scc1 L_dynchk")
            e(f"s_cmp_eq_u32 {sT}, {self.n0-4}"); e("s_cbranch_scc1 L_atom")
            e("s_branch L_mkoff")
            lab("L_dynid")
            e(f"s_bitcmp1_b32 {sT}, 0"); e("s_cbranch_scc1 L_dynid1")
            e(f"v_readfirstlane_b32 {sT2}, v{vA}"); e("s_branch L_dynid2")
            lab("L_dynid1")
            e(f"v_readfirstlane_b32 {sT2}, v{vA+1}")
            lab("L_dynid2")
            e("s_nop 3")
            e(f"s_add_u32 {sT2}, {sT2}, {self.n0*16}")
            e(f"s_cmp_ge_u32 {sT2}, 512"); e("s_cbranch_scc1 L_exhaust")
            lab("L_atom")
            e("s_mov_b64 exec, 1")
            e(f"s_bitcmp1_b32 {sT}, 0"); e("s_cbranch_scc1 L_atom1")
            e(f"v_mov_b32 v{vA}, 1")
            e(f"buffer_atomic_add v{vA}, v{vZERO}, {SRD_WS}, {sGC} offen sc0 sc1"); e("s_branch L_atom2")
            lab("L_atom1")
            e(f"v_mov_b32 v{vA+1}, 1")
            e(f"buffer_atomic_add v{vA+1}, v{vZERO}, {SRD_WS}, {sGC} offen sc0 sc1")
            lab("L_atom2")
            e("s_mov_b64 exec, -1")
            lab("L_mkoff")
            e(f"s_lshr_b32 {sT3}, {sT2}, 2"); e(f"s_and_b32 {sT3}, {sT3}, 3"); e(f"s_lshl_b32 {sT3}, {sT3}, 20")
            e(f"s_lshr_b32 {sT4}, {sT2}, 4"); e(f"s_lshl_b32 {sT4}, {sT4}, 15"); e(f"s_add_u32 {sT3}, {sT3}, {sT4}")
            e(f"s_and_b32 {sT4}, {sT2}, 3"); e(f"s_lshl_b32 {sT4}, {sT4}, 12"); e(f"s_add_u32 {sT3}, {sT3}, {sT4}")
            e(f"s_add_u32 {sKOFF}, {sGB}, {sT3}")
            e("s_waitcnt lgkmcnt(0)")
            self.dma_tile(SRD_K, sKOFF, sKSLOT)
            e(f"s_xor_b32 {sKSLOT}, {sKSLOT}, 8192")
            e("s_branch L_kdone")
            lab("L_knoref")
            e("s_waitcnt lgkmcnt(0)")
        elif ld:
            e("s_waitcnt lgkmcnt(0)")
            cmpN("ge", 3); e("s_cbranch_scc1 L_kdone")
            e(f"v_readfirstlane_b32 {sT2}, v{vA}"); e("s_nop 3")
            e(f"s_cmp_ge_u32 {sT2}, {self.plo}"); e("s_cbranch_scc1 L_limchk")
            lab("L_tileok")
            e(f"s_xor_b32 {sT2}, {sT2}, {sSTAT}")
            e(f"s_lshr_b32 {sT3}, {sT2}, 2"); e(f"s_lshl_b32 {sT3}, {sT3}, 15"); e(f"s_and_b32 {sT2}, {sT2}, 3"); e(f"s_lshl_b32 {sT2}, {sT2}, 12")
            e(f"s_add_u32 {sKOFF}, {sGC}, {sT3}"); e(f"s_add_u32 {sKOFF}, {sKOFF}, {sT2}")
            self.dma_tile(SRD_K, sKOFF, sKSLOT)
            e(f"s_xor_b32 {sKSLOT}, {sKSLOT}, 8192")
        else:
            e("s_waitcnt lgkmcnt(0)")
            cmpN("ge", 3); e("s_cbranch_scc1 L_kdone")
            self.dma_tile(SRD_K, sKOFF, sKSLOT)
            e(f"s_add_u32 {sKOFF}, {sKOFF}, {sSTEP}"); e(f"s_xor_b32 {sKSLOT}, {sKSLOT}, 8192")
        lab("L_kdone")
        for u in range(4): e(f"v_xor_b32 v{vKA+u}, 8192, v{vKA+u}")
        lab("L_soft")
        c("C: softmax")
        if self.nocomp: e("s_branch L_noresc")
        e(f"v_max3_f32 v{t0}, v{vS}, v{vS+1}, v{vS+2}")
        e(f"v_max_f32 v{t0}, v{t0}, v{vS+3}")
        e(f"v_mov_b32 v{t1}, v{t0}"); e("s_nop 1")
        e(f"v_permlane32_swap_b32 v{t1}, v{t0}")
        e(f"v_max_f32 v{t0}, v{t0}, v{t1}")
        e(f"v_mov_b32 v{t1}, v{t0}"); e("s_nop 1")
        e(f"v_permlane16_swap_b32 v{t1}, v{t0}")
        e(f"v_max3_f32 v{t0}, v{t0}, v{t1}, v{vM}")
        e(f"v_sub_f32 v{t1}, v{vM}, v{t0}")
        e(f"v_mul_f32 v{t1}, {sC}, v{t1}")
        e(f"v_mul_f32 v{t2}, {sNC}, v{t0}")
        e(f"v_exp_f32 v{vAL}, v{t1}")
        e(f"v_mov_b32 v{vM}, v{t0}")
        for r in range(4): e(f"v_fma_f32 v{vS+r}, v{vS+r}, {sC}, v{t2}")
        for r in range(4): e(f"v_exp_f32 v{vS+r}, v{vS+r}")
        e(f"v_cmp_neq_f32 vcc, 1.0, v{vAL}")
        e(f"v_add_f32 v{t0}, v{vS}, v{vS+1}"); e(f"v_add_f32 v{t1}, v{vS+2}, v{vS+3}")
        e(f"v_cvt_pk_bf16_f32 v{vP}, v{vS}, v{vS+1}"); e(f"v_cvt_pk_bf16_f32 v{vP+1}, v{vS+2}, v{vS+3}")
        e(f"v_add_f32 v{t0}, v{t0}, v{t1}"); e(f"v_fma_f32 v{vL}, v{vL}, v{vAL}, v{t0}")
        e("s_cbranch_vccz L_noresc")
        for i in range(32):
            e(f"v_pk_mul_f32 v[{vO+2*i}:{vO+2*i+1}], v[{vO+2*i}:{vO+2*i+1}], v[{vAL}:{vAL+1}] op_sel_hi:[1,0]")
        lab("L_noresc")
        cmpN("eq", 1); e("s_cbranch_scc1 L_vjit")
        lab("L_pv")
        c("D: PV")
        for t in range(16):
            if self.nocomp: break
            e(f"v_mfma_f32_16x16x16_bf16 v[{vO+4*t}:{vO+4*t+3}], a[{AV+2*t}:{AV+2*t+1}], v[{vP}:{vP+1}], v[{vO+4*t}:{vO+4*t+3}]")
        c("E: V point")
        cmpN("ge", 3); e("s_cbranch_scc1 L_vlate")
        e(f"s_waitcnt vmcnt({self.vwait})")
        self.read_v()
        e("s_waitcnt lgkmcnt(0)")
        if dyn or ld:
            self.dma_tile(SRD_V, sKOFF, sVSLOT)
            e(f"s_xor_b32 {sVSLOT}, {sVSLOT}, 8192")
        else:
            self.dma_tile(SRD_V, sVOFF, sVSLOT)
            e(f"s_add_u32 {sVOFF}, {sVOFF}, {sSTEP}"); e(f"s_xor_b32 {sVSLOT}, {sVSLOT}, 8192")
        lab("L_vdone")
        for u in range(8): e(f"v_xor_b32 v{vVA+u}, 8192, v{vVA+u}")
        lab("L_next")
        e(f"s_add_u32 {sT}, {sT}, 1")
        if dyn or self.bal or ld: e(f"s_cmp_lt_u32 {sT}, {sN}")
        else: e(f"s_cmp_lt_u32 {sT}, 32")
        e("s_cbranch_scc1 L_loop")
        e("s_branch L_tail")
        lab("L_klate")
        cmpN("eq", 1); e("s_cbranch_scc1 L_k31")
        e("s_waitcnt vmcnt(8)"); e("s_branch L_krd")
        lab("L_k31")
        self.nop(8)
        e("s_branch L_soft")
        lab("L_vlate")
        cmpN("eq", 3); e("s_cbranch_scc0 L_next")
        e("s_waitcnt vmcnt(16)")
        self.read_v()
        e("s_waitcnt lgkmcnt(0)")
        e("s_branch L_vdone")
        lab("L_vjit")
        e("s_waitcnt vmcnt(0)")
        self.read_v()
        e("s_waitcnt lgkmcnt(0)")
        e("s_branch L_pv")
        if ld:
            lab("L_limchk")
            e(f"s_mov_b32 {sSPIN}, {self.spin}")
            e(f"v_mov_b32 v{t0}, {CNT+12}")
            lab("L_limchk1")
            e(f"ds_read2_b32 v[{t1+1}:{t1+2}], v{t0} offset0:0 offset1:1"); e("s_waitcnt lgkmcnt(0)")
            e(f"v_readfirstlane_b32 {sT3}, v{t1+2}"); e(f"v_readfirstlane_b32 {sT4}, v{t1+1}"); e("s_nop 3")
            e(f"s_cmp_lg_u32 {sT3}, 0"); e("s_cbranch_scc1 L_limfin")
            e("s_sleep 2")
            self.spin_dec("L_limchk1")
            lab("L_limfin")
            e(f"s_cmp_lt_u32 {sT2}, {sT4}"); e("s_cbranch_scc1 L_tileok")
            e(f"s_add_u32 {sN}, {sT}, 3")
            e("s_branch L_kdone")
        if self.bal and not ld:
            lab("L_balst")
            e(f"s_cmp_lg_u32 {sW}, 0"); e("s_cbranch_scc1 L_balback")
            e(f"s_memrealtime s[{sT2[1:]}:{sT3[1:]}]"); e("s_waitcnt lgkmcnt(0)")
            e(f"s_or_b32 {sT2}, {sT2}, 1")
            e(f"s_cmp_eq_u32 {sT}, {self.tb}"); e(f"s_cselect_b32 {sT3}, 4, 0"); e(f"s_add_u32 {sT3}, {sT3}, {CNT+8}")
            e(f"v_mov_b32 v{t0}, {sT3}"); e(f"v_mov_b32 v{t1}, {sT2}")
            e(f"ds_write_b32 v{t0}, v{t1}")
            e("s_branch L_balback")
            lab("L_balget")
            e(f"s_mov_b32 {sSPIN}, {self.spin}")
            e(f"v_mov_b32 v{t0}, {CNT+16}")
            lab("L_balget1")
            e(f"ds_read_b32 v{t1}, v{t0}"); e("s_waitcnt lgkmcnt(0)")
            e(f"v_readfirstlane_b32 {sN}, v{t1}"); e("s_nop 3")
            e(f"s_cmp_lg_u32 {sN}, 0"); e("s_cbranch_scc1 L_balback")
            e("s_sleep 4")
            self.spin_dec("L_balget1")
            e(f"s_mov_b32 {sN}, 32")
            e("s_branch L_balback")
        if dyn:
            lab("L_exhaust")
            e(f"s_add_u32 {sN}, {sT}, 3")
            e("s_branch L_knoref")
            lab("L_dynchk")
            e(f"s_mov_b32 {sSPIN}, {self.spin}")
            e(f"v_mov_b32 v{t0}, {CNT+8}")
            lab("L_dynchk1")
            e(f"ds_read_b32 v{t1}, v{t0}"); e("s_waitcnt lgkmcnt(0)")
            e(f"v_readfirstlane_b32 {sT3}, v{t1}"); e("s_nop 3")
            e(f"s_cmp_eq_u32 {sT3}, 1"); e("s_cbranch_scc1 L_atom")
            e("s_sleep 8")
            self.spin_dec("L_dynchk1")
            e("s_branch L_atom")

    def build(self):
        e, lab, c = self.e, self.lab, self.c
        L = self.L
        L.append(HDR.rstrip())
        L.append(f"; @launch grid=(256,1,1) block=(512,1,1) lds={LDS_BYTES}")
        L.append('.amdgcn_target "amdgcn-amd-amdhsa--gfx950"')
        L.append(".text"); L.append(f".globl {NAME}_kernel"); L.append(".p2align 8"); L.append(f".type {NAME}_kernel,@function")
        lab(f"{NAME}_kernel")
        e(f"s_cmp_ge_u32 {sWG}, 256"); e("s_cbranch_scc1 L_end")
        e("s_load_dwordx16 s[32:47], s[0:1], 0")
        self.stamp(0)
        e(f"v_lshrrev_b32 v{vTMPA}, 6, v0")
        e(f"v_and_b32 v{vLANE}, 63, v0")
        e(f"s_and_b32 {sT0}, {sWG}, 7"); e(f"s_lshr_b32 {sT1}, {sWG}, 3")
        e(f"v_readfirstlane_b32 {sW}, v{vTMPA}")
        if self.pairmap and self.xmap == 3:
            c("pairs on XCDs x, x^3: kvh = 4*(x>>2) + 2*gray(x&3) + (y&1)")
            e(f"s_lshr_b32 {sT2}, {sT0}, 1"); e(f"s_xor_b32 {sT2}, {sT2}, {sT0}"); e(f"s_and_b32 {sT2}, {sT2}, 1"); e(f"s_lshl_b32 {sT2}, {sT2}, 1")
            e(f"s_and_b32 {sKVH}, {sT0}, 4"); e(f"s_add_u32 {sKVH}, {sKVH}, {sT2}"); e(f"s_and_b32 {sT2}, {sT1}, 1"); e(f"s_add_u32 {sKVH}, {sKVH}, {sT2}")
            e(f"s_and_b32 {sJ}, {sT0}, 1"); e(f"s_and_b32 {sT2}, {sT1}, 2"); e(f"s_add_u32 {sJ}, {sJ}, {sT2}")
            e(f"s_lshr_b32 {sB}, {sT1}, 2")
        elif self.pairmap and self.xmap == 5:
            c("pairs on XCDs x, x^5 : (0,5),(1,4),(2,7),(3,6): pair id = (x ^ (x&1)*5) >> 1 ... canonical even member e = x if even else x^5; kvh = (e & 6) + (y&1)")
            e(f"s_and_b32 {sT2}, {sT0}, 1"); e(f"s_mul_i32 {sT2}, {sT2}, 5"); e(f"s_xor_b32 {sT2}, {sT2}, {sT0}")
            e(f"s_and_b32 {sKVH}, {sT2}, 6"); e(f"s_and_b32 {sT2}, {sT1}, 1"); e(f"s_add_u32 {sKVH}, {sKVH}, {sT2}")
            e(f"s_and_b32 {sJ}, {sT0}, 1"); e(f"s_and_b32 {sT2}, {sT1}, 2"); e(f"s_add_u32 {sJ}, {sJ}, {sT2}")
            e(f"s_lshr_b32 {sB}, {sT1}, 2")
        elif self.pairmap:
            e(f"s_and_b32 {sKVH}, {sT0}, 6"); e(f"s_and_b32 {sT2}, {sT1}, 1"); e(f"s_add_u32 {sKVH}, {sKVH}, {sT2}")
            e(f"s_and_b32 {sJ}, {sT0}, 1"); e(f"s_and_b32 {sT2}, {sT1}, 2"); e(f"s_add_u32 {sJ}, {sJ}, {sT2}")
            e(f"s_lshr_b32 {sB}, {sT1}, 2")
        else:
            e(f"s_mov_b32 {sKVH}, {sT0}"); e(f"s_and_b32 {sJ}, {sT1}, 3"); e(f"s_lshr_b32 {sB}, {sT1}, 2")
        e(f"s_lshl_b32 {sY}, {sB}, 2"); e(f"s_add_u32 {sY}, {sY}, {sJ}")
        e(f"s_lshl_b32 {sLID}, {sY}, 3"); e(f"s_add_u32 {sLID}, {sLID}, {sKVH}")
        e(f"s_lshl_b32 {sG}, {sB}, 3"); e(f"s_add_u32 {sG}, {sG}, {sKVH}")
        e(f"v_and_b32 v{vN}, 15, v{vLANE}"); e(f"v_lshrrev_b32 v{vGQ}, 4, v{vLANE}")
        e(f"s_and_b32 {sHW}, {sW}, 3")
        e(f"s_lshl_b32 {sR}, {sKVH}, 2"); e(f"s_add_u32 {sR}, {sR}, {sJ}")
        e(f"s_cmp_ge_u32 {sW}, 4"); e("s_cbranch_scc1 L_helper")

        c("DMA voffsets")
        e(f"v_lshrrev_b32 v{vT}, 5, v{vLANE}"); e(f"v_and_b32 v{vT+1}, 31, v{vLANE}")
        e(f"v_lshlrev_b32 v{vT+2}, 9, v{vT}"); e(f"v_lshlrev_b32 v{vT+3}, 1, v{vT}")
        for i in range(4):
            e(f"v_xor_b32 v{vT+4}, {4*i}, v{vT+3}"); e(f"v_xor_b32 v{vT+4}, v{vT+4}, v{vT+1}")
            e(f"v_lshl_add_u32 v{vDMA+i}, v{vT+4}, 4, v{vT+2}")
        if self.bal:
            e(f"s_lshl_b32 {sKOFF}, {sG}, 22"); e(f"s_lshr_b32 {sT0}, {sJ}, 1"); e(f"s_lshl_b32 {sT0}, {sT0}, 21"); e(f"s_add_u32 {sKOFF}, {sKOFF}, {sT0}")
            e(f"s_and_b32 {sT1}, {sJ}, 1"); e(f"s_mul_i32 {sT0}, {sT1}, {63*32768}"); e(f"s_add_u32 {sKOFF}, {sKOFF}, {sT0}")
            e(f"s_mul_i32 {sT1}, {sT1}, -65536"); e(f"s_add_u32 {sSTEP}, {sT1}, 32768")
            e(f"s_mov_b32 {sN}, 100000")
        else:
            e(f"s_lshl_b32 {sKOFF}, {sG}, 22"); e(f"s_lshl_b32 {sT0}, {sJ}, 20"); e(f"s_add_u32 {sKOFF}, {sKOFF}, {sT0}")
            e(f"s_mov_b32 {sSTEP}, 32768") if not self.dyn else None
        e(f"s_lshl_b32 {sT0}, {sW}, 12"); e(f"s_add_u32 {sKOFF}, {sKOFF}, {sT0}")
        e(f"s_lshl_b32 {sWB}, {sW}, 15")
        e("s_waitcnt lgkmcnt(0)")
        self.srd(8, 34, 35, 0x10000000); self.srd(12, 36, 37, 0x10000000)
        for hn in range(self.pre0): self.dma_half_static(hn)
        e("s_barrier")
        first = self.quiet if self.quiet else self.pace
        for hn in range(self.pre0, first): self.dma_half_static(hn)
        self.srd(28, 46, 47, WS_BYTES)
        c("K/V LDS read addresses")
        e(f"v_and_b32 v{vT}, 7, v{vN}"); e(f"v_lshlrev_b32 v{vT}, 1, v{vT}")
        e(f"v_lshlrev_b32 v{vT+1}, 9, v{vN}"); e(f"v_add_u32 v{vT+1}, {sWB}, v{vT+1}")
        for u in range(4):
            e(f"v_add_u32 v{vT+2}, {4*u}, v{vGQ}"); e(f"v_xor_b32 v{vT+2}, v{vT+2}, v{vT}"); e(f"v_lshl_add_u32 v{vKA+u}, v{vT+2}, 4, v{vT+1}")
        e(f"v_lshrrev_b32 v{vT}, 2, v{vN}"); e(f"v_lshl_add_u32 v{vT}, v{vGQ}, 2, v{vT}")
        e(f"v_and_b32 v{vT+1}, 7, v{vT}"); e(f"v_lshlrev_b32 v{vT+2}, 9, v{vT}")
        e(f"v_and_b32 v{vT+3}, 3, v{vN}"); e(f"v_lshl_add_u32 v{vT+2}, v{vT+3}, 3, v{vT+2}")
        e(f"s_add_u32 {sT0}, {sWB}, 16384"); e(f"v_add_u32 v{vT+2}, {sT0}, v{vT+2}")
        for u in range(8):
            e(f"v_xor_b32 v{vT+3}, {u}, v{vT+1}"); e(f"v_lshl_add_u32 v{vVA+u}, v{vT+3}, 5, v{vT+2}")
        c("init O, m, l, consts")
        for i in range(64): e(f"v_mov_b32 v{vO+i}, 0")
        e(f"v_mov_b32 v{vM}, 0xff7fffff"); e(f"v_mov_b32 v{vL}, 0")
        e(f"s_mov_b32 {sC}, {fbits(C_LOG2E_16):#x}"); e(f"s_mov_b32 {sNC}, {fbits(-C_LOG2E_16):#x}")
        e(f"v_lshlrev_b32 v{vLIN16}, 4, v{vLANE}")
        e(f"s_lshl_b32 {sT0}, {sG}, 2"); e(f"s_add_u32 {sT0}, {sT0}, {sW}"); e(f"s_lshl_b32 {sT0}, {sT0}, 2"); e(f"s_add_u32 {sT0}, {sT0}, {sJ}")
        e(f"s_mul_i32 {sM1OUT}, {sT0}, {M1_SLICE}")
        if self.dyn:
            e(f"s_mov_b32 {sN}, 100000"); e(f"s_lshl_b32 {sGB}, {sG}, 22")
            e(f"s_lshl_b32 {sGC}, {sG}, 7"); e(f"s_add_u32 {sGC}, {sGC}, {GC_BASE:#x}")
            e(f"s_lshl_b32 {sSTAT}, {sJ}, 2"); e(f"s_add_u32 {sSTAT}, {sSTAT}, {sW}"); e(f"s_add_u32 {sSTAT}, {sSTAT}, 48")
            e(f"v_mov_b32 v{vZERO}, 0")
        if self.ldyn:
            e(f"s_lshl_b32 {sGC}, {sG}, 22"); e(f"s_lshr_b32 {sT0}, {sJ}, 1"); e(f"s_lshl_b32 {sT0}, {sT0}, 21"); e(f"s_add_u32 {sGC}, {sGC}, {sT0}")
            e(f"s_and_b32 {sSTAT}, {sJ}, 1"); e(f"s_mul_i32 {sSTAT}, {sSTAT}, 255")
            e(f"v_mov_b32 v{vA+1}, 1"); e(f"v_mov_b32 v{vZERO}, {CNT+8}")
        c("Q frag read address")
        e(f"s_movk_i32 {sT1}, {QROW}")
        e(f"v_and_b32 v{vT+5}, 7, v{vN}"); e(f"v_mul_lo_u32 v{vT+5}, v{vT+5}, {sT1}"); e(f"v_lshl_add_u32 v{vT+5}, v{vGQ}, 4, v{vT+5}"); e(f"v_add_u32 v{vT+5}, {QB}, v{vT+5}")
        c("paced fill of halves: K0a K0b V0a V0b K1a K1b V1a V1b, then K2 (slot A after reading K0)")
        P = self.pace
        if self.quiet:
            e("s_barrier")
            for hn in range(max(self.quiet, self.pre0), P): self.dma_half_static(hn)
        for hn in range(max(P, self.quiet, self.pre0), 8):
            e(f"s_waitcnt vmcnt({4*(P-1)})")
            self.dma_half_static(hn)
            if hn == max(P, 2) + 1 - (0 if P <= 2 else 0) and False: pass
        c("K0 landed")
        e("s_waitcnt vmcnt(24)")
        self.read_k()
        if self.dyn:
            e(f"s_add_u32 {sKOFF}, {sKOFF}, 65536")
        else:
            e(f"s_add_u32 {sKOFF}, {sKOFF}, {sSTEP}"); e(f"s_add_u32 {sKOFF}, {sKOFF}, {sSTEP}")
        e(f"s_mov_b32 {sVOFF}, {sKOFF}")
        e(f"s_mov_b32 {sKSLOT}, {sWB}"); e(f"s_add_u32 {sVSLOT}, {sWB}, 16384")
        e(f"s_add_u32 {sT4}, {sKOFF}, 16384")
        e(f"s_waitcnt vmcnt({4*(P-1)}) lgkmcnt(0)")
        e(f"s_mov_b32 m0, {sKSLOT}"); e("s_nop 0")
        self.dma_half(SRD_K, sKOFF)
        e(f"s_waitcnt vmcnt({4*(P-1)})")
        e(f"s_add_u32 m0, {sKSLOT}, 4096"); e("s_nop 0")
        self.dma_half(SRD_K, sT4)
        e(f"s_add_u32 {sKOFF}, {sKOFF}, {32768 if self.dyn else sSTEP}"); e(f"s_xor_b32 {sKSLOT}, {sKSLOT}, 8192")
        for u in range(4): e(f"v_xor_b32 v{vKA+u}, 8192, v{vKA+u}")
        if self.v0pre:
            c("V0 -> regs, refill V2")
            e("s_waitcnt vmcnt(24)")
            self.read_v()
            e(f"s_add_u32 {sT4}, {sVOFF}, 16384")
            e(f"s_waitcnt vmcnt({4*(P-1)}) lgkmcnt(0)")
            e(f"s_mov_b32 m0, {sVSLOT}"); e("s_nop 0")
            self.dma_half(SRD_V, sVOFF)
            e(f"s_waitcnt vmcnt({4*(P-1)})")
            e(f"s_add_u32 m0, {sVSLOT}, 4096"); e("s_nop 0")
            self.dma_half(SRD_V, sT4)
            e(f"s_add_u32 {sVOFF}, {sVOFF}, {32768 if self.dyn else sSTEP}"); e(f"s_xor_b32 {sVSLOT}, {sVSLOT}, 8192")
            for u in range(8): e(f"v_xor_b32 v{vVA+u}, 8192, v{vVA+u}")
        if not self.rate: self.stamp(1)
        e("s_barrier")
        for s in range(8):
            e(f"ds_read_b128 a[{AQ+4*s}:{AQ+4*s+3}], v{vT+5}" + (f" offset:{s*64}" if s else ""))
        e(f"s_mov_b32 {sT}, 0")
        e("s_waitcnt lgkmcnt(0)")
        self.stamp(2)

        if self.order2:
            self.loop2()
        else:
            self.loop1()
        lab("L_tail")
        t0, t1, t2 = vT, vT+1, vT+2
        self.stamp(3)
        e(f"v_mov_b32 v{t1}, v{vL}"); e("s_nop 1")
        e(f"v_permlane32_swap_b32 v{t1}, v{vL}"); e(f"v_add_f32 v{vL}, v{vL}, v{t1}")
        e(f"v_mov_b32 v{t1}, v{vL}"); e("s_nop 1")
        e(f"v_permlane16_swap_b32 v{t1}, v{vL}"); e(f"v_add_f32 v{vL}, v{vL}, v{t1}")
        e(f"s_movk_i32 {sT1}, {OWROW}"); e(f"v_mul_lo_u32 v{vODUMP}, v{vN}, {sT1}")
        e(f"v_lshl_add_u32 v{vODUMP}, v{vGQ}, 4, v{vODUMP}"); e(f"v_add_u32 v{vODUMP}, {sWB}, v{vODUMP}")
        e(f"s_lshl_b32 {sT0}, {sW}, 6"); e(f"s_add_u32 {sT0}, {sT0}, {STB}")
        e(f"v_lshlrev_b32 v{t2}, 3, v{vN}"); e(f"v_add_u32 v{t2}, {sT0}, v{t2}")
        e("s_mov_b32 exec_lo, 0x00ff00ff"); e("s_mov_b32 exec_hi, 0x00ff00ff")
        for t in range(16):
            e(f"ds_write_b128 v{vODUMP}, v[{vO+4*t}:{vO+4*t+3}]" + (f" offset:{t*64}" if t else ""))
        e("s_mov_b64 exec, 0xff")
        e(f"ds_write_b64 v{t2}, v[{vM}:{vM+1}]")
        e("s_mov_b64 exec, -1")
        e(f"v_and_b32 v{vT}, 3, v{vLANE}"); e(f"v_lshrrev_b32 v{vT+1}, 2, v{vLANE}")
        e(f"s_lshr_b32 {sT0}, {sW}, 1"); e(f"s_lshl_b32 {sT0}, {sT0}, 2")
        e(f"v_add_u32 v{vT}, {sT0}, v{vT}")
        e(f"v_mul_lo_u32 v{vT2A}, v{vT}, {sT1}"); e(f"v_lshl_add_u32 v{vT2A}, v{vT+1}, 5, v{vT2A}")
        e(f"s_and_b32 {sT0}, {sW}, 1"); e(f"s_lshl_b32 {sT0}, {sT0}, 9"); e(f"v_add_u32 v{vT2A}, {sT0}, v{vT2A}")
        e(f"v_add_u32 v{vT2B}, 65536, v{vT2A}")
        e(f"v_lshlrev_b32 v{vT+2}, 3, v{vT}"); e(f"v_add_u32 v{vT+2}, {STB}, v{vT+2}")
        e("s_waitcnt lgkmcnt(0)"); e("s_barrier")
        if not self.rate: self.stamp(4)
        for w in range(4): e(f"ds_read_b64 v[{2*w}:{2*w+1}], v{vT+2} offset:{w*64}")
        for w in range(4):
            for u in range(2):
                a = vT2A if w < 2 else vT2B
                o = (w & 1) * 32768 + u * 16
                e(f"ds_read_b128 v[{8+8*w+4*u}:{8+8*w+4*u+3}], v{a}" + (f" offset:{o}" if o else ""))
        e("s_waitcnt lgkmcnt(8)")
        e("v_max3_f32 v40, v0, v2, v4"); e("v_max_f32 v40, v40, v6")
        for w in range(4): e(f"v_sub_f32 v{44+w}, v{2*w}, v40")
        for w in range(4): e(f"v_mul_f32 v{44+w}, {sC}, v{44+w}")
        for w in range(4): e(f"v_exp_f32 v{44+w}, v{44+w}")
        e("s_nop 0")
        e("v_mul_f32 v41, v44, v1"); e("v_fmac_f32 v41, v45, v3"); e("v_fmac_f32 v41, v46, v5"); e("v_fmac_f32 v41, v47, v7")
        e("s_waitcnt lgkmcnt(0)")
        for k in range(8): e(f"v_mul_f32 v{48+k}, v44, v{8+k}")
        for w in range(1, 4):
            for k in range(8): e(f"v_fmac_f32 v{48+k}, v{44+w}, v{8+8*w+k}")
        e(f"buffer_store_dwordx4 v[48:51], v{vLIN16}, {SRD_WS}, {sM1OUT} offen sc1")
        e(f"buffer_store_dwordx4 v[52:55], v{vLIN16}, {SRD_WS}, {sM1OUT} offen offset:1024 sc1")
        e(f"v_lshlrev_b32 v{vT}, 3, v{vLANE}")
        e("s_mov_b64 exec, 0xf")
        e(f"buffer_store_dwordx2 v[40:41], v{vT}, {SRD_WS}, {sM1OUT} offen offset:2048 sc1")
        e("s_mov_b64 exec, -1")
        if not self.rate: self.stamp(5)
        e("s_branch L_fin")

        lab("L_helper")
        if self.hexit:
            e("s_waitcnt lgkmcnt(0)"); self.srd(28, 46, 47, WS_BYTES)
            e("s_barrier"); e("s_barrier"); e("s_barrier")
            if self.quiet: e("s_barrier")
            e("s_branch L_fin")
        if self.hprio: e(f"s_setprio {self.hprio}")
        c("wq DMA voffset: (l>>1)*8192 + (l&1)*16 + (kvh*512 + 16y)*2 ; x voffset: n*896 + g*16")
        hX = 0
        hA = 32
        hD = 48
        e(f"v_lshrrev_b32 v{vT}, 1, v{vLANE}"); e(f"v_lshlrev_b32 v{vT}, 13, v{vT}")
        e(f"v_and_b32 v{vT+1}, 1, v{vLANE}"); e(f"v_lshl_add_u32 v{vT}, v{vT+1}, 4, v{vT}")
        e(f"s_lshl_b32 {sT0}, {sKVH}, 10"); e(f"s_lshl_b32 {sT1}, {sY}, 5"); e(f"s_add_u32 {sT0}, {sT0}, {sT1}")
        e(f"v_add_u32 v{vDMA}, {sT0}, v{vT}")
        e(f"s_movk_i32 {sT1}, 896"); e(f"v_mul_lo_u32 v{vDMA+1}, v{vN}, {sT1}"); e(f"v_lshl_add_u32 v{vDMA+1}, v{vGQ}, 4, v{vDMA+1}")
        e(f"s_lshl_b32 {sWB}, {sHW}, 12"); e(f"s_add_u32 {sWB}, {sWB}, {WQS}")
        c("H0 zeroes the LDS counters")
        e(f"v_mov_b32 v{vT+2}, {CNT}")
        for i in range(4): e(f"v_mov_b32 v{vT+4+i}, 0")
        e(f"ds_write_b128 v{vT+2}, v[{vT+4}:{vT+7}] offset:16")
        if self.ldyn:
            e(f"v_mov_b32 v{vT+6}, 12"); e(f"v_mov_b32 v{vT+7}, {self.plo}")
        e(f"ds_write_b128 v{vT+2}, v[{vT+4}:{vT+7}]")
        e("s_waitcnt lgkmcnt(0)")
        if self.dbgq: self.stamp(2)
        e(f"s_add_u32 s56, s46, {EPOCH_OFF:#x}"); e("s_addc_u32 s57, s47, 0")
        e(f"s_load_dwordx2 s[60:61], s[56:57], 0")
        self.srd(16, 38, 39, 3670016); self.srd(20, 32, 33, 28672)
        e(f"s_lshl_b32 {sT2}, {sHW}, 18")
        e(f"s_lshl_b32 {sT3}, {sHW}, 6")
        for idx in range(4):
            if idx == 3:
                e(f"s_cmp_ge_u32 {sHW}, 2"); e("s_cbranch_scc1 L_hq_issued")
            e(f"s_add_u32 m0, {sWB}, {idx*1024}")
            e(f"s_add_u32 {sT4}, {sT3}, 14336")
            e(f"buffer_load_dwordx4 v{vDMA}, {SRD_WQ}, {sT2} offen lds")
            e(f"buffer_load_dwordx4 v[{hX+8*idx}:{hX+8*idx+3}], v{vDMA+1}, {SRD_X}, {sT3} offen")
            e(f"buffer_load_dwordx4 v[{hX+8*idx+4}:{hX+8*idx+7}], v{vDMA+1}, {SRD_X}, {sT4} offen")
            if idx < 3:
                e(f"s_add_u32 {sT2}, {sT2}, {4*262144}"); e(f"s_add_u32 {sT3}, {sT3}, 256")
        lab("L_hq_issued")
        if self.dbgq: self.stamp(3)
        e("s_barrier")
        if self.dbgq: self.stamp(4)
        self.srd(28, 46, 47, WS_BYTES); self.srd(24, 40, 41, 3670016)
        e("s_mov_b32 s34, s42"); e("s_mov_b32 s35, s43")
        c("tr-read address: wb + (8g + (i>>2))*32 + (i&3)*8  (+128 for second half, +1024*idx)")
        e(f"v_lshrrev_b32 v{vT}, 2, v{vN}"); e(f"v_lshl_add_u32 v{vT}, v{vGQ}, 3, v{vT}"); e(f"v_lshlrev_b32 v{vT}, 5, v{vT}")
        e(f"v_and_b32 v{vT+1}, 3, v{vN}"); e(f"v_lshl_add_u32 v{vT}, v{vT+1}, 3, v{vT}"); e(f"v_add_u32 v{vT}, {sWB}, v{vT}")
        for i in range(8): e(f"v_mov_b32 v{hD+i}, 0")
        c("partial write address: RED + hw*2048 + n*64 + g*16 (+1024 for h=1)")
        e(f"s_lshl_b32 {sT0}, {sHW}, 11"); e(f"s_add_u32 {sT0}, {sT0}, {RED}")
        e(f"v_lshlrev_b32 v{vT+2}, 6, v{vN}"); e(f"v_lshl_add_u32 v{vT+2}, v{vGQ}, 4, v{vT+2}"); e(f"v_add_u32 v{vT+2}, {sT0}, v{vT+2}")
        e("s_waitcnt vmcnt(0)")
        self.stamp(1)
        for idx in range(4):
            if idx == 3:
                e(f"s_cmp_ge_u32 {sHW}, 2"); e("s_cbranch_scc1 L_hq_mm")
            e(f"ds_read_b64_tr_b16 v[{hA+4*idx}:{hA+4*idx+1}], v{vT} offset:{idx*1024}")
            e(f"ds_read_b64_tr_b16 v[{hA+4*idx+2}:{hA+4*idx+3}], v{vT} offset:{idx*1024+128}")
            e("s_waitcnt lgkmcnt(0)")
            for h in range(2):
                e(f"v_mfma_f32_16x16x32_bf16 v[{hD+4*h}:{hD+4*h+3}], v[{hA+4*idx}:{hA+4*idx+3}], v[{hX+8*idx+4*h}:{hX+8*idx+4*h+3}], v[{hD+4*h}:{hD+4*h+3}]")
        lab("L_hq_mm")
        self.nop(8)
        e(f"ds_write_b128 v{vT+2}, v[{hD}:{hD+3}]"); e(f"ds_write_b128 v{vT+2}, v[{hD+4}:{hD+7}] offset:1024")
        e(f"v_mov_b32 v{vT+3}, {CNT}"); e(f"v_mov_b32 v{vT+4}, 1")
        e("s_waitcnt lgkmcnt(0)")
        e("s_mov_b64 exec, 1"); e(f"ds_add_u32 v{vT+3}, v{vT+4}"); e("s_mov_b64 exec, -1")
        c("reduce read address: RED + rho*64 + cp*8, rho = 8hw + (l>>3), cp = l&7")
        e(f"v_lshrrev_b32 v{vT}, 3, v{vLANE}"); e(f"s_lshl_b32 {sT0}, {sHW}, 3"); e(f"v_add_u32 v{vT}, {sT0}, v{vT}")
        e(f"v_and_b32 v{vT+1}, 7, v{vLANE}")
        e(f"v_lshlrev_b32 v{vT+2}, 6, v{vT}"); e(f"v_lshl_add_u32 v{vT+2}, v{vT+1}, 3, v{vT+2}"); e(f"v_add_u32 v{vT+2}, {RED}, v{vT+2}")
        if self.hop1:
            c("launch tag: E' = E + C (64 bit); TL = low 16 bits << 16, sTAG = bits 16..47")
            e(f"s_add_u32 s60, s60, 0x7f4a7c15"); e(f"s_addc_u32 s61, s61, 0x9e3779b9")
            e(f"s_lshl_b32 {sTL}, s60, 16"); e(f"s_lshr_b32 {sTAG}, s60, 16"); e(f"s_lshl_b32 {sT1}, s61, 16"); e(f"s_or_b32 {sTAG}, {sTAG}, {sT1}")
            c("publish address: QM + ((kvh*8 + b)*32 + y)*512 + q*128 + cp*16 ; b = rho>>2, q = rho&3")
            e(f"v_lshrrev_b32 v{vT+4}, 2, v{vT}"); e(f"v_lshlrev_b32 v{vT+4}, 14, v{vT+4}")
            e(f"v_and_b32 v{vT+5}, 3, v{vT}"); e(f"v_lshl_add_u32 v{vT+4}, v{vT+5}, 7, v{vT+4}"); e(f"v_lshl_add_u32 v{vT+4}, v{vT+1}, 4, v{vT+4}")
            e(f"s_lshl_b32 {sT0}, {sKVH}, 17"); e(f"s_lshl_b32 {sT1}, {sY}, 9"); e(f"s_add_u32 {sT0}, {sT0}, {sT1}"); e(f"s_add_u32 {sT0}, {sT0}, {QM_BASE:#x}")
            e(f"s_mov_b32 {sSPIN}, {self.spin}")
            lab("L_hs1")
            e(f"ds_read_b32 v{vT+6}, v{vT+3}"); e("s_waitcnt lgkmcnt(0)")
            e(f"v_readfirstlane_b32 {sT1}, v{vT+6}"); e("s_nop 3")
            e(f"s_cmp_ge_u32 {sT1}, 4"); e("s_cbranch_scc1 L_hs1ok")
            self.spin_dec("L_hs1")
            lab("L_hs1ok")
            for w in range(4): e(f"ds_read_b64 v[{2*w}:{2*w+1}], v{vT+2} offset:{w*2048}")
            e("s_waitcnt lgkmcnt(0)")
            e("v_add_f32 v0, v0, v2"); e("v_add_f32 v1, v1, v3"); e("v_add_f32 v4, v4, v6"); e("v_add_f32 v5, v5, v7")
            e("v_add_f32 v0, v0, v4"); e("v_add_f32 v1, v1, v5")
            e("v_cvt_pk_bf16_f32 v0, v0, v1")
            c("granules {tl|val, tag}")
            e(f"v_and_b32 v4, 0xffff, v0"); e(f"v_lshrrev_b32 v6, 16, v0")
            e(f"v_or_b32 v4, {sTL}, v4"); e(f"v_or_b32 v6, {sTL}, v6"); e(f"v_mov_b32 v5, {sTAG}"); e(f"v_mov_b32 v7, {sTAG}")
            e(f"buffer_store_dwordx4 v[4:7], v{vT+4}, {SRD_WS}, {sT0} offen sc1")
            self.stamp(2) if not self.dbgq else None
            if self.quiet: e("s_barrier")
            e(f"v_lshlrev_b32 v{vLIN16}, 4, v{vLANE}")
            c("poll own 4 KB: QM + (kvh*8+b)*16384 + hw*4096 + i*1024 + l*16")
            e(f"s_lshl_b32 {sT0}, {sKVH}, 3"); e(f"s_add_u32 {sT0}, {sT0}, {sB}"); e(f"s_lshl_b32 {sT0}, {sT0}, 14"); e(f"s_lshl_b32 {sT1}, {sHW}, 12")
            e(f"s_add_u32 {sT0}, {sT0}, {sT1}"); e(f"s_add_u32 {sT0}, {sT0}, {QM_BASE:#x}")
            c("LDS write address: QB + (4h+q)*528 + (128*(hw&1) + 16yy + 2cp)*2 ; yy = 2i + (l>>5), q=(l&31)>>3, cp=l&7, h=hw>>1")
            e(f"v_bfe_u32 v{vT}, v{vLANE}, 3, 2")
            e(f"s_lshr_b32 {sT1}, {sHW}, 1"); e(f"s_lshl_b32 {sT1}, {sT1}, 2"); e(f"v_add_u32 v{vT}, {sT1}, v{vT}")
            e(f"s_movk_i32 {sT1}, {QROW}"); e(f"v_mul_lo_u32 v{vT}, v{vT}, {sT1}")
            e(f"v_lshrrev_b32 v{vT+1}, 5, v{vLANE}"); e(f"v_lshl_add_u32 v{vT}, v{vT+1}, 5, v{vT}")
            e(f"v_and_b32 v{vT+1}, 7, v{vLANE}"); e(f"v_lshl_add_u32 v{vT}, v{vT+1}, 2, v{vT}")
            e(f"s_and_b32 {sT1}, {sHW}, 1"); e(f"s_lshl_b32 {sT1}, {sT1}, 8"); e(f"s_add_u32 {sT1}, {sT1}, {QB}"); e(f"v_add_u32 v{vT}, {sT1}, v{vT}")
            e(f"s_mov_b32 {sSPIN}, {self.spin}"); e(f"s_mov_b32 {sT2}, 0xffff0000"); e(f"s_mov_b32 {sT3}, 0x05040100")
            if self.qdelay: e(f"s_waitcnt vmcnt(0)")
            lab("L_hq_poll")
            for i in range(4):
                e(f"buffer_load_dwordx4 v[{8+4*i}:{8+4*i+3}], v{vLIN16}, {SRD_WS}, {sT0} offen" + (f" offset:{i*1024}" if i else "") + " sc1")
            e("s_waitcnt vmcnt(0)")
            for i in range(4):
                b = 8 + 4*i
                e(f"v_and_b32 v{24+2*i}, {sT2}, v{b}"); e(f"v_and_b32 v{25+2*i}, {sT2}, v{b+2}")
                e(f"v_xor_b32 v{24+2*i}, {sTL}, v{24+2*i}"); e(f"v_xor_b32 v{25+2*i}, {sTL}, v{25+2*i}")
                e(f"v_xor_b32 v{32+2*i}, {sTAG}, v{b+1}"); e(f"v_xor_b32 v{33+2*i}, {sTAG}, v{b+3}")
            e("v_or3_b32 v24, v24, v25, v26"); e("v_or3_b32 v27, v27, v28, v29"); e("v_or3_b32 v30, v30, v31, v32"); e("v_or3_b32 v33, v33, v34, v35")
            e("v_or3_b32 v36, v36, v37, v38"); e("v_or3_b32 v24, v24, v27, v30"); e("v_or3_b32 v33, v33, v36, v39"); e("v_or_b32 v24, v24, v33")
            e("v_cmp_ne_u32 vcc, 0, v24"); e("s_nop 1"); e("s_cbranch_vccz L_hq_ok")
            self.spin_dec("L_hq_poll")
            lab("L_hq_ok")
            if not self.dbgq: self.stamp(3)
            for i in range(4):
                b = 8 + 4*i
                e(f"v_perm_b32 v{24+i}, v{b+2}, v{b}, {sT3}")
            for i in range(4):
                e(f"ds_write_b32 v{vT}, v{24+i}" + (f" offset:{i*64}" if i else ""))
            e("s_waitcnt lgkmcnt(0)")
            if not self.dbgq: self.stamp(4)
        else:
            c("publish address: QM + ((kvh*8 + b)*32 + y)*128 + q*32 + cp*4 ; b = rho>>2, q = rho&3")
            e(f"v_lshrrev_b32 v{vT+4}, 2, v{vT}"); e(f"v_lshlrev_b32 v{vT+4}, 12, v{vT+4}")
            e(f"v_and_b32 v{vT+5}, 3, v{vT}"); e(f"v_lshl_add_u32 v{vT+4}, v{vT+5}, 5, v{vT+4}"); e(f"v_lshl_add_u32 v{vT+4}, v{vT+1}, 2, v{vT+4}")
            e(f"s_lshl_b32 {sT0}, {sKVH}, 15"); e(f"s_lshl_b32 {sT1}, {sY}, 7"); e(f"s_add_u32 {sT0}, {sT0}, {sT1}"); e(f"s_add_u32 {sT0}, {sT0}, {QM_BASE:#x}")
            e(f"s_mov_b32 {sSPIN}, {self.spin}")
            lab("L_hs1")
            e(f"ds_read_b32 v{vT+6}, v{vT+3}"); e("s_waitcnt lgkmcnt(0)")
            e(f"v_readfirstlane_b32 {sT1}, v{vT+6}"); e("s_nop 3")
            e(f"s_cmp_ge_u32 {sT1}, 4"); e("s_cbranch_scc1 L_hs1ok")
            self.spin_dec("L_hs1")
            lab("L_hs1ok")
            for w in range(4): e(f"ds_read_b64 v[{2*w}:{2*w+1}], v{vT+2} offset:{w*2048}")
            e("s_waitcnt lgkmcnt(0)")
            e("v_add_f32 v0, v0, v2"); e("v_add_f32 v1, v1, v3"); e("v_add_f32 v4, v4, v6"); e("v_add_f32 v5, v5, v7")
            e("v_add_f32 v0, v0, v4"); e("v_add_f32 v1, v1, v5")
            e("v_cvt_pk_bf16_f32 v0, v0, v1")
            e(f"buffer_store_dword v0, v{vT+4}, {SRD_WS}, {sT0} offen sc1")
            e("s_waitcnt vmcnt(0)")
            if not self.dbgq: self.stamp(2)
            c("last helper wave to finish signals: flag dword QF[kvh][y] := tag")
            e(f"v_mov_b32 v{vT+4}, 1"); e(f"v_mov_b32 v{vT+3}, {CNT+4}")
            e("s_mov_b64 exec, 1")
            e(f"ds_add_rtn_u32 v{vT+6}, v{vT+3}, v{vT+4}"); e("s_waitcnt lgkmcnt(0)")
            e(f"s_add_u32 {sTAG}, {sTAG}, {TAG_C:#x}")
            e(f"v_readfirstlane_b32 {sT1}, v{vT+6}"); e("s_nop 3")
            c("flag store: lane y' (0..31) writes QF[consumer = y'*8+kvh][y] ; consumer line = (y'*8+kvh)*128")
            e(f"s_cmp_eq_u32 {sT1}, 3"); e("s_cbranch_scc0 L_hnoflag")
            e("s_mov_b32 exec_lo, -1"); e("s_mov_b32 exec_hi, 0")
            e(f"v_lshlrev_b32 v{vT+5}, 10, v{vLANE}"); e(f"v_mov_b32 v{vT+4}, {sTAG}")
            e(f"s_lshl_b32 {sT4}, {sKVH}, 7"); e(f"s_lshl_b32 {sT5}, {sY}, 2"); e(f"s_add_u32 {sT4}, {sT4}, {sT5}"); e(f"s_add_u32 {sT4}, {sT4}, {QF_BASE:#x}")
            e(f"buffer_store_dword v{vT+4}, v{vT+5}, {SRD_WS}, {sT4} offen sc1")
            lab("L_hnoflag")
            e("s_mov_b64 exec, -1")
            if self.quiet: e("s_barrier")
            e(f"v_lshlrev_b32 v{vLIN16}, 4, v{vLANE}")
            e(f"s_cmp_lg_u32 {sHW}, 0"); e("s_cbranch_scc1 L_hq_done")
            c("H0: poll own flag line via scalar loads")
            e(f"s_lshl_b32 {sT4}, {sLID}, 7"); e(f"s_add_u32 {sT4}, {sT4}, {QF_BASE:#x}")
            e(f"s_add_u32 s32, s46, {sT4}"); e("s_addc_u32 s33, s47, 0")
            e(f"s_mov_b32 {sSPIN}, {self.spin}")
            lab("L_hq_poll")
            PR = (8, 48)
            for k, r in enumerate(PR): e(f"s_load_dwordx16 s[{r}:{r+15}], s[32:33], {64*k} glc")
            e("s_waitcnt lgkmcnt(0)")
            for k, r in enumerate(PR):
                for i in range(16):
                    e(f"s_xor_b32 s{r+i}, s{r+i}, {sTAG}")
                    if k or i: e(f"s_or_b32 s8, s8, s{r+i}")
            e("s_cmp_eq_u32 s8, 0"); e("s_cbranch_scc1 L_hq_ok")
            e(f"s_sleep {self.qsleep}")
            self.spin_dec("L_hq_poll")
            lab("L_hq_ok")
            if not self.dbgq: self.stamp(3)
            c("fetch Q (4 KB): QM + (kvh*8+b)*4096 + i*1024 + l*16")
            e(f"s_lshl_b32 {sT0}, {sKVH}, 3"); e(f"s_add_u32 {sT0}, {sT0}, {sB}"); e(f"s_lshl_b32 {sT0}, {sT0}, 12"); e(f"s_add_u32 {sT0}, {sT0}, {QM_BASE:#x}")
            for i in range(4):
                e(f"buffer_load_dwordx4 v[{4*i}:{4*i+3}], v{vLIN16}, {SRD_WS}, {sT0} offen" + (f" offset:{i*1024}" if i else "") + " sc1")
            c("LDS write address: QB + (4h+q)*528 + (128*(i&1) + 16yy + 8half)*2 ; yy=l>>3, q=(l>>1)&3, half=l&1, h=i>>1")
            e(f"v_lshrrev_b32 v{vT}, 1, v{vLANE}"); e(f"v_and_b32 v{vT}, 3, v{vT}")
            e(f"s_movk_i32 {sT1}, {QROW}"); e(f"v_mul_lo_u32 v{vT}, v{vT}, {sT1}")
            e(f"v_lshrrev_b32 v{vT+1}, 3, v{vLANE}"); e(f"v_lshl_add_u32 v{vT}, v{vT+1}, 5, v{vT}")
            e(f"v_and_b32 v{vT+1}, 1, v{vLANE}"); e(f"v_lshl_add_u32 v{vT}, v{vT+1}, 4, v{vT}")
            e(f"v_add_u32 v{vT}, {QB}, v{vT}")
            e("s_waitcnt vmcnt(0)")
            for i in range(4):
                o = (i >> 1) * 4 * QROW + (i & 1) * 256
                e(f"ds_write_b128 v{vT}, v[{4*i}:{4*i+3}]" + (f" offset:{o}" if o else ""))
            e("s_waitcnt lgkmcnt(0)")
            if not self.dbgq: self.stamp(4)
        lab("L_hq_done")
        e("s_barrier")
        self.srd(48, 34, 35, 28672)
        if self.wopf:
            c("L2 prefetch of this WG's 1/8 share of the wo quarter: rows r*128 + 16b .. +16 (14336 B contiguous); wave hw: 4KB pieces")
            e(f"s_lshl_b32 {sT0}, {sR}, 7"); e(f"s_lshl_b32 {sT1}, {sB}, 4"); e(f"s_add_u32 {sT0}, {sT0}, {sT1}"); e(f"s_mul_i32 {sT0}, {sT0}, 896")
            e(f"s_lshl_b32 {sT1}, {sHW}, 12"); e(f"s_add_u32 {sT0}, {sT0}, {sT1}")
            for i in range(4):
                e(f"buffer_load_dwordx4 v[{8+4*i}:{8+4*i+3}], v{vLIN16}, {SRD_WO}, {sT0} offen" + (f" offset:{i*1024}" if i else ""))
        c("clears: M1[g][recv=hw][sender=j] (2176B) and M2[b][r][hw] (2048B)")
        e(f"s_lshl_b32 {sT0}, {sG}, 2"); e(f"s_add_u32 {sT0}, {sT0}, {sHW}"); e(f"s_lshl_b32 {sT0}, {sT0}, 2"); e(f"s_add_u32 {sT0}, {sT0}, {sJ}")
        e(f"s_mul_i32 {sM1OUT}, {sT0}, {M1_SLICE}")
        e(f"s_lshl_b32 {sT0}, {sB}, 5"); e(f"s_add_u32 {sT0}, {sT0}, {sR}"); e(f"s_lshl_b32 {sT0}, {sT0}, 13"); e(f"s_lshl_b32 {sT1}, {sHW}, 11")
        e(f"s_add_u32 {sM2OUT}, {sT0}, {sT1}"); e(f"s_add_u32 {sM2OUT}, {sM2OUT}, {M2_BASE:#x}")
        for i in range(4): e(f"v_mov_b32 v{i}, -1")
        e(f"buffer_store_dwordx4 v[0:3], v{vLIN16}, {SRD_WS}, {sM1OUT} offen sc1")
        e(f"buffer_store_dwordx4 v[0:3], v{vLIN16}, {SRD_WS}, {sM1OUT} offen offset:1024 sc1")
        e(f"buffer_store_dwordx4 v[0:3], v{vLIN16}, {SRD_WS}, {sM2OUT} offen sc1")
        e(f"buffer_store_dwordx4 v[0:3], v{vLIN16}, {SRD_WS}, {sM2OUT} offen offset:1024 sc1")
        e("s_mov_b64 exec, 0xff")
        e(f"buffer_store_dwordx4 v[0:3], v{vLIN16}, {SRD_WS}, {sM1OUT} offen offset:2048 sc1")
        if self.dyn:
            c("group counter := 0 (j==0, hw==0)")
            e(f"s_or_b32 {sT0}, {sJ}, {sHW}"); e(f"s_cmp_lg_u32 {sT0}, 0"); e("s_cbranch_scc1 L_hnogc")
            e("s_mov_b64 exec, 1"); e(f"v_mov_b32 v4, 0"); e(f"s_lshl_b32 {sT0}, {sG}, 7"); e(f"s_add_u32 {sT0}, {sT0}, {GC_BASE:#x}")
            e(f"buffer_store_dword v4, v4, {SRD_WS}, {sT0} offen sc1")
            lab("L_hnogc")
        e("s_mov_b64 exec, -1")
        e("s_waitcnt vmcnt(0)")
        if self.dbgmid: self.stamp(1)
        c("last helper wave signals clears done: lane r' writes CF[consumer wg' = (r'>>2) + 32b + 8(r'&3)][r] := tag")
        e(f"v_mov_b32 v{vT+4}, 1"); e(f"v_mov_b32 v{vT+3}, {CNT+4}")
        e("s_mov_b64 exec, 1")
        e(f"ds_add_rtn_u32 v{vT+6}, v{vT+3}, v{vT+4}"); e("s_waitcnt lgkmcnt(0)")
        e(f"v_readfirstlane_b32 {sT1}, v{vT+6}"); e("s_nop 3")
        e("s_mov_b64 exec, -1")
        e(f"s_cmp_eq_u32 {sT1}, {3 if self.hop1 else 7}"); e("s_cbranch_scc0 L_hnoflag2")
        e(f"v_lshrrev_b32 v{vT+5}, 2, v{vLANE}"); e(f"v_and_b32 v{vT+6}, 3, v{vLANE}"); e(f"v_lshl_add_u32 v{vT+5}, v{vT+6}, 3, v{vT+5}")
        e(f"v_lshlrev_b32 v{vT+5}, 7, v{vT+5}"); e(f"v_mov_b32 v{vT+4}, {sTAG}")
        e(f"s_lshl_b32 {sT4}, {sB}, 12"); e(f"s_lshl_b32 {sT5}, {sR}, 2"); e(f"s_add_u32 {sT4}, {sT4}, {sT5}"); e(f"s_add_u32 {sT4}, {sT4}, {CF_BASE:#x}")
        e("s_mov_b32 exec_lo, -1"); e("s_mov_b32 exec_hi, 0")
        e(f"buffer_store_dword v{vT+4}, v{vT+5}, {SRD_WS}, {sT4} offen sc1")
        lab("L_hnoflag2")
        e("s_mov_b64 exec, -1")
        c("wo: load, transpose, park in AGPRs a[0:127]")
        e(f"s_mov_b32 {sSEL_LO}, 0x05040100"); e(f"s_mov_b32 {sSEL_HI}, 0x07060302")
        e(f"s_lshl_b32 {sT0}, {sR}, 7")
        if self.wosame: e(f"s_mov_b32 {sT0}, 0")
        e(f"v_lshlrev_b32 v{vT}, 3, v{vGQ}"); e(f"v_add_u32 v{vT}, {sT0}, v{vT}")
        e(f"s_movk_i32 {sT1}, 896"); e(f"v_mul_lo_u32 v{vT}, v{vT}, {sT1}")
        e(f"s_mul_i32 {sT0}, {sHW}, 224"); e(f"v_lshl_add_u32 v{vT}, v{vN}, 4, v{vT}"); e(f"v_add_u32 v{vT}, {sT0}, v{vT}")
        for ks in range(4):
            if self.nowo: break
            kk = 0 if self.wosame else ks
            e(f"s_mov_b32 {sT0}, {kk*32*896}"); e(f"s_mov_b32 {sT1}, {kk*32*896 + 4*896}")
            for i in range(8):
                so = sT0 if i < 4 else sT1
                o = (i & 3) * 896
                e(f"buffer_load_dwordx4 v[{4*i}:{4*i+3}], v{vT}, {SRD_WO}, {so} offen" + (f" offset:{o}" if o else ""))
                if self.wopace < 8 and (i + 1) % self.wopace == 0: e("s_waitcnt vmcnt(0)")
            e("s_waitcnt vmcnt(0)")
            for j in range(8):
                u = j >> 1; sel = sSEL_HI if (j & 1) else sSEL_LO
                for p in range(4):
                    e(f"v_perm_b32 v{32+4*j+p}, v{4*(2*p+1)+u}, v{4*(2*p)+u}, {sel}")
            for k in range(32): e(f"v_accvgpr_write_b32 a{32*ks+k}, v{32+k}")
        if self.dbgmid: self.stamp(2)
        c("wait until all WGs of batch b have cleared their outboxes: dword at kvh*32+4b == 0x01010101 for all kvh")
        e(f"s_cmp_lg_u32 {sHW}, 0"); e("s_cbranch_scc1 L_hclrok")
        e(f"s_lshl_b32 {sT0}, {sLID}, 7"); e(f"s_add_u32 {sT0}, {sT0}, {CF_BASE:#x}")
        e(f"v_and_b32 v{vT+1}, 31, v{vLANE}"); e(f"v_lshlrev_b32 v{vT+1}, 2, v{vT+1}")
        e(f"s_mov_b32 {sSPIN}, {self.spin}")
        lab("L_hclr")
        e(f"buffer_load_dword v{vT+2}, v{vT+1}, {SRD_WS}, {sT0} offen sc1"); e("s_waitcnt vmcnt(0)")
        e(f"v_cmp_ne_u32 vcc, {sTAG}, v{vT+2}"); e("s_nop 1"); e("s_cbranch_vccz L_hclrok")
        e("s_sleep 16")
        self.spin_dec("L_hclr")
        lab("L_hclrok")
        if self.dyn:
            e(f"s_cmp_lg_u32 {sHW}, 0"); e("s_cbranch_scc1 L_hnodyn")
            e(f"v_mov_b32 v{vT+1}, {CNT+8}"); e(f"v_mov_b32 v{vT+2}, 1"); e(f"ds_write_b32 v{vT+1}, v{vT+2}")
            lab("L_hnodyn")
        if self.dbgmid: self.stamp(3)
        if self.ldyn:
            c("H0: late balance exchange with partner (lid ^ 8). LDS: CNT+8 tile counter, CNT+12 limit, CNT+16 final")
            e(f"s_cmp_lg_u32 {sHW}, 0"); e("s_cbranch_scc1 L_hbaldone")
            e(f"v_mov_b32 v{vT}, {CNT+8}"); e(f"s_mov_b32 {sSPIN}, {self.spin}")
            lab("L_hb0")
            e(f"ds_read_b32 v0, v{vT}"); e("s_waitcnt lgkmcnt(0)")
            e(f"v_readfirstlane_b32 {sT0}, v0"); e("s_nop 3")
            e(f"s_cmp_ge_u32 {sT0}, {self.t0s}"); e("s_cbranch_scc1 L_hb0ok")
            e("s_sleep 32"); self.spin_dec("L_hb0")
            lab("L_hb0ok")
            e("s_memrealtime s[8:9]"); e("s_waitcnt lgkmcnt(0)")
            e(f"s_lshl_b32 {sT1}, {sLID}, 7"); e(f"s_add_u32 {sT1}, {sT1}, {BAL_BASE:#x}")
            e(f"s_add_u32 s10, s46, {sT1}"); e("s_addc_u32 s11, s47, 0")
            e(f"s_mov_b32 {sSPIN}, {self.spin}")
            lab("L_hb1")
            e(f"ds_read_b32 v0, v{vT}"); e("s_load_dwordx8 s[12:19], s[10:11], 0 glc"); e("s_waitcnt lgkmcnt(0)")
            e(f"v_readfirstlane_b32 {sT2}, v0"); e("s_nop 3")
            e(f"s_cmp_ge_u32 {sT2}, {self.t1s}"); e("s_cbranch_scc1 L_hb1ok")
            e(f"s_cmp_eq_u32 s17, {sTAG}"); e("s_cbranch_scc1 L_hb1ok")
            e("s_sleep 12"); self.spin_dec("L_hb1")
            lab("L_hb1ok")
            e("s_memrealtime s[20:21]"); e("s_waitcnt lgkmcnt(0)")
            c("publish {T0|T1<<16, tag, tau0, tag} {tau1, tag}")
            e(f"s_lshl_b32 {sT3}, {sT2}, 16"); e(f"s_or_b32 {sT3}, {sT3}, {sT0}")
            e(f"v_mov_b32 v4, {sT3}"); e(f"v_mov_b32 v5, {sTAG}"); e("v_mov_b32 v6, s8"); e(f"v_mov_b32 v7, {sTAG}"); e("v_mov_b32 v8, s20"); e(f"v_mov_b32 v9, {sTAG}"); e("v_mov_b32 v10, 0")
            e(f"s_xor_b32 {sT1}, {sLID}, 8"); e(f"s_lshl_b32 {sT1}, {sT1}, 7"); e(f"s_add_u32 {sT1}, {sT1}, {BAL_BASE:#x}")
            e("s_mov_b64 exec, 1")
            e(f"buffer_store_dwordx4 v[4:7], v10, {SRD_WS}, {sT1} offen sc1")
            e(f"buffer_store_dwordx2 v[8:9], v10, {SRD_WS}, {sT1} offen offset:16 sc1")
            e(f"s_mov_b32 {sSPIN}, {self.spin}")
            lab("L_hb2")
            e("s_load_dwordx8 s[12:19], s[10:11], 0 glc"); e("s_waitcnt lgkmcnt(0)")
            e(f"s_xor_b32 s22, s13, {sTAG}"); e(f"s_xor_b32 s23, s15, {sTAG}"); e("s_or_b32 s22, s22, s23"); e(f"s_xor_b32 s23, s17, {sTAG}"); e("s_or_b32 s22, s22, s23")
            e("s_cmp_eq_u32 s22, 0"); e("s_cbranch_scc1 L_hb2ok")
            e("s_sleep 4"); self.spin_dec("L_hb2")
            e("v_mov_b32 v20, 128"); e("s_branch L_hb3")
            lab("L_hb2ok")
            c("own: sT3 = T0|T1<<16, s8 tau0, s20 tau1 ; partner: s12 = T0|T1<<16, s14 tau0, s16 tau1 ; put A in (s12a..), role 1 swaps")
            e(f"s_and_b32 {sT1}, {sJ}, 1"); e(f"s_cmp_eq_u32 {sT1}, 0")
            e(f"s_cselect_b32 s22, {sT3}, s12"); e("s_cselect_b32 s23, s8, s14"); e("s_cselect_b32 s9, s20, s16")
            e(f"s_cselect_b32 s12, s12, {sT3}"); e("s_cselect_b32 s14, s14, s8"); e("s_cselect_b32 s16, s16, s20")
            c("rA = (T1A-T0A)/(tau1A-tau0A) ; nA = (TA1*rB' ...)  solve tauA + (n-TA)/rA = tauB + (256-n-TB)/rB")
            e("s_lshr_b32 s13, s22, 16"); e("s_and_b32 s22, s22, 0xffff")
            e("s_lshr_b32 s15, s12, 16"); e("s_and_b32 s12, s12, 0xffff")
            e("s_sub_u32 s22, s13, s22"); e("s_sub_u32 s23, s9, s23")
            e("s_sub_u32 s12, s15, s12"); e("s_sub_u32 s14, s16, s14")
            e("s_sub_u32 s16, s16, s9")
            e("v_cvt_f32_u32 v0, s22"); e("v_cvt_f32_u32 v1, s23"); e("v_cvt_f32_u32 v2, s12"); e("v_cvt_f32_u32 v3, s14")
            e("v_cvt_f32_i32 v4, s16"); e("v_cvt_f32_u32 v5, s13"); e("v_cvt_f32_u32 v6, s15")
            c("pA = dtauA/dTA (time per tile), pB = dtauB/dTB ; n = (delta + TA*pA + (256 - TB)*pB) / (pA + pB)")
            e("v_rcp_f32 v0, v0"); e("v_rcp_f32 v2, v2"); e("s_nop 0")
            e("v_mul_f32 v1, v1, v0"); e("v_mul_f32 v3, v3, v2")
            e(f"v_sub_f32 v6, {fbits(256.0):#x}, v6")
            e("v_fmac_f32 v4, v5, v1"); e("v_fmac_f32 v4, v6, v3")
            e("v_add_f32 v6, v1, v3"); e("v_rcp_f32 v6, v6"); e("s_nop 0")
            e("v_mul_f32 v5, v4, v6"); e("v_add_f32 v5, 0.5, v5"); e("v_cvt_i32_f32 v20, v5")
            e(f"v_max_i32 v20, {self.plo}, v20"); e(f"v_min_i32 v20, {256-self.plo}, v20")
            e(f"s_cmp_eq_u32 {sT1}, 0"); e(f"s_cbranch_scc1 L_hb3")
            e(f"v_sub_u32 v20, 256, v20")
            lab("L_hb3")
            e("v_mov_b32 v21, 1"); e(f"v_mov_b32 v22, {CNT+12}")
            e("ds_write_b32 v22, v20"); e("s_waitcnt lgkmcnt(0)"); e("ds_write_b32 v22, v21 offset:4")
            e("s_mov_b64 exec, -1")
            lab("L_hbaldone")
        elif self.bal:
            c("H0: balance exchange with partner (lid ^ 8)")
            e(f"s_cmp_lg_u32 {sHW}, 0"); e("s_cbranch_scc1 L_hbaldone")
            e(f"v_mov_b32 v{vT}, {CNT+8}"); e(f"s_mov_b32 {sSPIN}, {self.spin}")
            lab("L_hbal1")
            e(f"ds_read_b64 v[0:1], v{vT}"); e("s_waitcnt lgkmcnt(0)")
            e(f"v_readfirstlane_b32 {sT0}, v1"); e("s_nop 3")
            e(f"s_cmp_lg_u32 {sT0}, 0"); e("s_cbranch_scc1 L_hbal1ok")
            e("s_sleep 32")
            self.spin_dec("L_hbal1")
            lab("L_hbal1ok")
            c("v0 = a (time at ta), v1 = c (time at tb): publish {a, tag, c, tag}")
            e(f"v_mov_b32 v4, v0"); e(f"v_mov_b32 v5, {sTAG}"); e(f"v_mov_b32 v6, v1"); e(f"v_mov_b32 v7, {sTAG}"); e("v_mov_b32 v8, 0")
            e(f"s_xor_b32 {sT0}, {sLID}, 8"); e(f"s_lshl_b32 {sT0}, {sT0}, 7"); e(f"s_add_u32 {sT0}, {sT0}, {BAL_BASE:#x}")
            e("s_mov_b64 exec, 1")
            e(f"buffer_store_dwordx4 v[4:7], v8, {SRD_WS}, {sT0} offen sc1")
            e(f"s_lshl_b32 {sT0}, {sLID}, 7"); e(f"s_add_u32 {sT0}, {sT0}, {BAL_BASE:#x}")
            e(f"s_mov_b32 {sSPIN}, {self.spin}")
            lab("L_hbal2")
            e(f"buffer_load_dwordx4 v[12:15], v8, {SRD_WS}, {sT0} offen sc1"); e("s_waitcnt vmcnt(0)")
            e(f"v_xor_b32 v16, {sTAG}, v13"); e(f"v_xor_b32 v17, {sTAG}, v15"); e("v_or_b32 v16, v16, v17")
            e("s_nop 0"); e(f"v_readfirstlane_b32 {sT1}, v16"); e("s_nop 3")
            e(f"s_cmp_eq_u32 {sT1}, 0"); e("s_cbranch_scc1 L_hbal2ok")
            e("s_sleep 16")
            self.spin_dec("L_hbal2")
            c("timeout: both sides cannot agree -> cannot happen in a healthy run; use N = 32")
            e("v_mov_b32 v20, 32"); e("s_branch L_hbal3")
            lab("L_hbal2ok")
            c("A = role 0, B = role 1: (aA,cA) in v[0:1] / (aB,cB) in v12,v14 for role 0; swapped for role 1")
            e(f"s_and_b32 {sT1}, {sJ}, 1"); e(f"s_cmp_eq_u32 {sT1}, 0")
            e("s_cbranch_scc1 L_hbalA")
            e("v_mov_b32 v18, v0"); e("v_mov_b32 v19, v1"); e("v_mov_b32 v0, v12"); e("v_mov_b32 v1, v14"); e("v_mov_b32 v12, v18"); e("v_mov_b32 v14, v19")
            lab("L_hbalA")
            e("v_sub_u32 v2, v1, v0"); e("v_sub_u32 v3, v14, v12"); e("v_sub_u32 v4, v14, v1")
            e("v_cvt_f32_i32 v2, v2"); e("v_cvt_f32_i32 v3, v3"); e("v_cvt_f32_i32 v4, v4")
            nint = self.tb - self.ta
            e(f"v_mul_f32 v5, {fbits(float(nint)):#x}, v4")
            e(f"v_mov_b32 v6, {fbits(float(64-self.tb)):#x}"); e("v_fmac_f32 v5, v6, v3")
            e(f"v_mov_b32 v6, {fbits(float(self.tb)):#x}"); e("v_fmac_f32 v5, v6, v2")
            e("v_add_f32 v6, v2, v3"); e("v_rcp_f32 v6, v6"); e("s_nop 0")
            e("v_mul_f32 v5, v5, v6"); e("v_add_f32 v5, 0.5, v5"); e("v_cvt_i32_f32 v20, v5")
            e(f"v_max_i32 v20, {self.nlo}, v20"); e(f"v_min_i32 v20, {64-self.nlo}, v20")
            e(f"s_cbranch_scc1 L_hbal3")
            e("v_sub_u32 v20, 64, v20")
            lab("L_hbal3")
            e(f"v_mov_b32 v21, {CNT+16}"); e("ds_write_b32 v21, v20")
            e("s_mov_b64 exec, -1")
            lab("L_hbaldone")
        e(f"s_mov_b32 {sC}, {fbits(C_LOG2E_16):#x}")
        c("precompute tail addresses")
        e(f"s_lshl_b32 {sT0}, {sG}, 2"); e(f"s_add_u32 {sT0}, {sT0}, {sJ}"); e(f"s_mul_i32 {sT0}, {sT0}, {4*M1_SLICE}")
        e(f"s_add_u32 {sT1}, {sT0}, {M1_SLICE}"); e(f"s_add_u32 {sT2}, {sT0}, {2*M1_SLICE}"); e(f"s_add_u32 {sT3}, {sT0}, {3*M1_SLICE}")
        hST = 108
        e(f"v_and_b32 v{hST}, 3, v{vLANE}"); e(f"v_lshlrev_b32 v{hST}, 3, v{hST}")
        hOW, hOR, hYS, hP2, hOUT = 109, 110, 111, 112, 113
        e(f"v_and_b32 v{hOW}, 3, v{vLANE}"); e(f"s_movk_i32 {sT4}, {OROW}"); e(f"v_mul_lo_u32 v{hOW}, v{hOW}, {sT4}")
        e(f"v_lshrrev_b32 v{vT}, 2, v{vLANE}"); e(f"v_lshl_add_u32 v{hOW}, v{vT}, 4, v{hOW}"); e(f"v_add_u32 v{hOW}, {OB}, v{hOW}")
        e(f"v_and_b32 v{hOR}, 3, v{vN}"); e(f"v_mul_lo_u32 v{hOR}, v{hOR}, {sT4}"); e(f"v_lshl_add_u32 v{hOR}, v{vGQ}, 4, v{hOR}"); e(f"v_add_u32 v{hOR}, {OB}, v{hOR}")
        e(f"v_lshlrev_b32 v{hYS}, 6, v{vGQ}"); e(f"v_lshl_add_u32 v{hYS}, v{vN}, 4, v{hYS}")
        e(f"v_lshlrev_b32 v{hP2}, 16, v{vGQ}"); e(f"v_lshl_add_u32 v{hP2}, v{vN}, 4, v{hP2}")
        e(f"v_and_b32 v{hOUT}, 3, v{vN}"); e(f"s_lshl_b32 {sT4}, {sB}, 2"); e(f"v_add_u32 v{hOUT}, {sT4}, v{hOUT}")
        e(f"s_movk_i32 {sT4}, 896"); e(f"v_mul_lo_u32 v{hOUT}, v{hOUT}, {sT4}")
        e(f"v_lshrrev_b32 v{vT}, 2, v{vN}"); e(f"v_lshl_add_u32 v{hOUT}, v{vT}, 6, v{hOUT}")
        e(f"s_lshl_b32 s58, {sB}, 18"); e(f"s_lshr_b32 {sT4}, {sR}, 3"); e(f"s_lshl_b32 {sT4}, {sT4}, 11"); e(f"s_add_u32 s58, s58, {sT4}")
        e(f"s_and_b32 {sT4}, {sR}, 7"); e(f"s_lshl_b32 {sT4}, {sT4}, 8"); e(f"s_add_u32 s58, s58, {sT4}"); e(f"s_add_u32 s58, s58, {M2_BASE:#x}")
        e(f"s_lshr_b32 s59, {sR}, 3"); e(f"s_mul_i32 s59, s59, 224"); e(f"s_and_b32 {sT4}, {sR}, 7"); e(f"s_lshl_b32 {sT4}, {sT4}, 1"); e(f"s_add_u32 s59, s59, {sT4}")
        self.stamp(5)
        e("s_barrier")
        if self.notail: e("s_branch L_fin")
        e(f"s_cmp_lg_u32 {sHW}, 0"); e("s_cbranch_scc1 L_t3done")
        e(f"s_mov_b32 {sSPIN}, {self.spin}")
        PB = 0
        lab("L_poll1")
        for jj, so in enumerate((sT0, sT1, sT2, sT3)):
            e(f"buffer_load_dwordx4 v[{PB+8*jj}:{PB+8*jj+3}], v{vLIN16}, {SRD_WS}, {so} offen sc1")
            e(f"buffer_load_dwordx4 v[{PB+8*jj+4}:{PB+8*jj+7}], v{vLIN16}, {SRD_WS}, {so} offen offset:1024 sc1")
            e(f"buffer_load_dwordx2 v[{PB+32+2*jj}:{PB+32+2*jj+1}], v{hST}, {SRD_WS}, {so} offen offset:2048 sc1")
        e("s_waitcnt vmcnt(0)")
        mx = vT + 1
        e(f"v_max3_u32 v{mx}, v{PB}, v{PB+1}, v{PB+2}")
        for k in range(3, 39, 2): e(f"v_max3_u32 v{mx}, v{mx}, v{PB+k}, v{PB+k+1}")
        e(f"v_max_u32 v{mx}, v{mx}, v{PB+39}")
        e(f"v_cmp_eq_u32 vcc, -1, v{mx}"); e("s_nop 1"); e("s_cbranch_vccz L_poll1ok")
        self.spin_dec("L_poll1")
        lab("L_poll1ok")
        ST = PB + 32; a0 = vT + 2; F = vT + 4
        e(f"v_max3_f32 v{a0}, v{ST}, v{ST+2}, v{ST+4}"); e(f"v_max_f32 v{a0}, v{a0}, v{ST+6}")
        for w in range(4): e(f"v_sub_f32 v{F+w}, v{ST+2*w}, v{a0}")
        for w in range(4): e(f"v_mul_f32 v{F+w}, {sC}, v{F+w}")
        for w in range(4): e(f"v_exp_f32 v{F+w}, v{F+w}")
        e("s_nop 0")
        e(f"v_mul_f32 v{a0}, v{F}, v{ST+1}")
        for w in range(1, 4): e(f"v_fmac_f32 v{a0}, v{F+w}, v{ST+2*w+1}")
        e(f"v_rcp_f32 v{a0}, v{a0}"); e("s_nop 0")
        for w in range(4): e(f"v_mul_f32 v{F+w}, v{F+w}, v{a0}")
        ACC = ST
        for k in range(8): e(f"v_mul_f32 v{ACC+k}, v{F}, v{PB+k}")
        for w in range(1, 4):
            for k in range(8): e(f"v_fmac_f32 v{ACC+k}, v{F+w}, v{PB+8*w+k}")
        for p in range(4): e(f"v_cvt_pk_bf16_f32 v{PB+p}, v{ACC+2*p}, v{ACC+2*p+1}")
        e(f"ds_write_b128 v{hOW}, v[{PB}:{PB+3}]")
        lab("L_t3done")
        e("s_waitcnt lgkmcnt(0)"); e("s_barrier")
        self.stamp(6)
        BF = 64 + 48 - 64 + 40
        BF = 40
        for ks in range(4):
            e(f"ds_read_b128 v[{BF+4*ks}:{BF+4*ks+3}], v{hOR}" + (f" offset:{ks*64}" if ks else ""))
        YA = 0
        e("s_waitcnt lgkmcnt(0)")
        for ks in range(4):
            for j in range(8):
                A = 32*ks + 4*j
                cc = "0" if ks == 0 else f"v[{YA+4*j}:{YA+4*j+3}]"
                e(f"v_mfma_f32_16x16x32_bf16 v[{YA+4*j}:{YA+4*j+3}], a[{A}:{A+3}], v[{BF+4*ks}:{BF+4*ks+3}], {cc}")
        e("s_mov_b32 exec_lo, 0x000f000f"); e("s_mov_b32 exec_hi, 0x000f000f")
        self.nop(6)
        for j in range(8):
            e(f"buffer_store_dwordx4 v[{YA+4*j}:{YA+4*j+3}], v{hYS}, {SRD_WS}, {sM2OUT} offen offset:{j*256} sc1")
        e("s_mov_b64 exec, -1")
        e(f"s_cmp_lg_u32 {sHW}, 0"); e("s_cbranch_scc1 L_fin")
        e(f"s_mov_b32 {sSPIN}, {self.spin}")
        PB = 64
        lab("L_poll2")
        for i in range(8):
            if i == 0: so = "s58"
            else:
                e(f"s_add_u32 {sT1}, s58, {i*8192}"); so = sT1
            e(f"buffer_load_dwordx4 v[{PB+4*i}:{PB+4*i+3}], v{hP2}, {SRD_WS}, {so} offen sc1")
        e("s_waitcnt vmcnt(0)")
        mx = 60
        e(f"v_max3_u32 v{mx}, v{PB}, v{PB+1}, v{PB+2}")
        for k in range(3, 31, 2): e(f"v_max3_u32 v{mx}, v{mx}, v{PB+k}, v{PB+k+1}")
        e(f"v_max_u32 v{mx}, v{mx}, v{PB+31}")
        e(f"v_cmp_eq_u32 vcc, -1, v{mx}"); e("s_nop 1"); e("s_cbranch_vccz L_poll2ok")
        self.spin_dec("L_poll2")
        lab("L_poll2ok")
        for k in range(4): e(f"v_add_f32 v{32+k}, v{PB+k}, v{PB+4+k}")
        for i in range(2, 8):
            for k in range(4): e(f"v_add_f32 v{32+k}, v{32+k}, v{PB+4*i+k}")
        for k in range(4): e(f"v_mov_b32 v{36+k}, v{32+k}")
        e("s_nop 0")
        for k in range(4): e(f"v_permlane32_swap_b32 v{36+k}, v{32+k}")
        for k in range(4): e(f"v_add_f32 v{32+k}, v{32+k}, v{36+k}")
        for k in range(4): e(f"v_mov_b32 v{36+k}, v{32+k}")
        e("s_nop 0")
        for k in range(4): e(f"v_permlane16_swap_b32 v{36+k}, v{32+k}")
        for k in range(4): e(f"v_add_f32 v{32+k}, v{32+k}, v{36+k}")
        e("v_cvt_pk_bf16_f32 v40, v32, v33"); e("v_cvt_pk_bf16_f32 v41, v34, v35")
        e("s_mov_b64 exec, 0xffff")
        e(f"buffer_store_short v40, v{hOUT}, {SRD_OUT}, s59 offen")
        e(f"buffer_store_short_d16_hi v40, v{hOUT}, {SRD_OUT}, s59 offen offset:16")
        e("s_mov_b64 exec, 0xfff")
        e(f"buffer_store_short v41, v{hOUT}, {SRD_OUT}, s59 offen offset:32")
        e(f"buffer_store_short_d16_hi v41, v{hOUT}, {SRD_OUT}, s59 offen offset:48")
        e(f"s_cmp_lg_u32 {sLID}, 0"); e("s_cbranch_scc1 L_noep")
        e("s_mov_b64 exec, 1")
        e(f"v_mov_b32 v42, s60"); e(f"v_mov_b32 v43, s61"); e(f"v_mov_b32 v44, 0"); e(f"s_mov_b32 {sT0}, {EPOCH_OFF:#x}")
        e(f"buffer_store_dwordx2 v[42:43], v44, {SRD_WS}, {sT0} offen sc1")
        lab("L_noep")
        e("s_mov_b64 exec, -1")
        lab("L_fin")
        if self.stamps:
            self.stamp(7)
            e("s_waitcnt vmcnt(0) lgkmcnt(0)")
            e(f"s_lshl_b32 {sT0}, {sWG}, 3"); e(f"s_add_u32 {sT0}, {sT0}, {sW}"); e(f"s_lshl_b32 {sT0}, {sT0}, 5"); e(f"s_add_u32 {sT0}, {sT0}, {STAMP_BASE:#x}")
            if self.bal or self.ldyn:
                e(f"s_cmp_lt_u32 {sW}, 4"); e("s_cbranch_scc0 L_non"); e(f"s_mov_b32 s96, {sN}"); lab("L_non")
            for i in range(8): e(f"v_mov_b32 v{i}, s{84+2*i}")
            e("v_mov_b32 v8, 0")
            e("s_mov_b64 exec, 1")
            e(f"buffer_store_dwordx4 v[0:3], v8, {SRD_WS}, {sT0} offen")
            e(f"buffer_store_dwordx4 v[4:7], v8, {SRD_WS}, {sT0} offen offset:16")
            e("s_waitcnt vmcnt(0)")
        lab("L_end")
        e("s_endpgm")
        L.append('.section .rodata,"a"'); L.append(".p2align 6"); L.append(f".amdhsa_kernel {NAME}_kernel")
        for d in ("next_free_vgpr 256", "next_free_sgpr 102", "accum_offset 128", "group_segment_fixed_size 0", "kernarg_size 64",
                  "user_sgpr_count 2", "user_sgpr_kernarg_segment_ptr 1", "system_sgpr_workgroup_id_x 1"):
            L.append("  .amdhsa_" + d)
        L.append(".end_amdhsa_kernel")
        return "\n".join(L) + "\n"

if __name__ == "__main__":
    import argparse
    ap = argparse.ArgumentParser()
    ap.add_argument("out"); ap.add_argument("--stamps", action="store_true"); ap.add_argument("--opt", default="{}")
    a = ap.parse_args()
    open(a.out, "w").write(Gen(stamps=a.stamps, **eval("dict(" + a.opt + ")" if not a.opt.startswith(("{", "dict")) else a.opt)).build())
```

```python
import sys, struct

NAME = "standalone__gqa_block_cached__sampling"
HDR = open("standalone__gqa_block_cached__sampling.s.ref").read().split("; Override")[0]

QB = 131072; QROW = 528
STB = QB + 8 * QROW
OB = STB + 256
OROW = 272
CNT = OB + 4 * OROW
WQS = 136704
RED = WQS + 16384
OWROW = 1040
LDS_BYTES = 163840
assert RED + 8192 <= LDS_BYTES

M1_SLICE = 2176
M2_BASE = 0x400000
QM_BASE = 0x600000
QF_BASE = 0x740000
CF_BASE = 0x760000
BAL_BASE = 0x7a0000
GC_BASE = 0x788000
EPOCH_OFF = 0x790000
TAG_C = 0x9E3779B9
STAMP_BASE = 0x800000
WS_BYTES = 0x1000000

sWG, sW, sKVH, sJ, sB = "s2", "s3", "s4", "s5", "s6"
sHW = "s7"
SRD_K, SRD_V, SRD_WQ, SRD_X, SRD_WO, SRD_WS = "s[8:11]", "s[12:15]", "s[16:19]", "s[20:23]", "s[24:27]", "s[28:31]"
SRD_OUT, SRD_DBG = "s[48:51]", "s[52:55]"
sKOFF, sVOFF = "s60", "s61"
sWB = "s62"
sKSLOT, sVSLOT = "s63", "s64"
sT = "s65"
sC, sNC = "s66", "s67"
sG = "s68"; sR = "s69"
sM1OUT, sM2OUT = "s70", "s71"
sT0, sT1, sT2, sT3, sT4, sT5 = "s72", "s73", "s74", "s75", "s76", "s77"
sSEL_LO, sSEL_HI = "s78", "s79"
sY = "s80"; sSPIN = "s81"; sTAG = "s82"; sLID = "s83"; sTL = "s59"
sN = "s56"; sGB = "s57"; sGC = "s58"; sSTAT = "s59"; sSTEP = "s57"
vA = 108; vZERO = 110
STAMPS = ["s[84:85]", "s[86:87]", "s[88:89]", "s[90:91]", "s[92:93]", "s[94:95]", "s[96:97]", "s[98:99]"]

vO = 0
vLANE, vN, vGQ, vTMPA = 64, 65, 66, 67
vDMA = 68; vKA = 72; vVA = 76; vS = 84; vP = 88; vM, vL = 90, 91; vAL = 92
vT = 94
vLIN16 = 104; vODUMP = 105; vT2A, vT2B = 106, 107
AQ, AK, AV = 0, 32, 64

C_LOG2E_16 = 1.4426950408889634 / 16.0
def fbits(x): return struct.unpack("<I", struct.pack("<f", x))[0]

class Gen:
    def __init__(self, stamps=False, flags="nt", spin=1 << 18, kwait=16, nocomp=False, notail=False, wopace=8, hprio=0, qsleep=2, pace=3, dbgmid=False, nowo=False, noclr=False, v0pre=True, wosame=False, wopf=True, vwait=24, rate=False, noqwait=False, hexit=False, order2=True, kwait2=24, dyn=False, n0=16, pairmap=True, bal=True, ta=4, tb=11, tc=21, nlo=24, quiet=0, dbgq=False, hop1=True, qdelay=True, pre0=2, ldyn=False, t0s=44, t1s=92, plo=108, xmap=1, dbgspan=False):
        self.dbgspan = dbgspan
        self.xmap = xmap
        self.ldyn = ldyn; self.t0s = t0s; self.t1s = t1s; self.plo = plo
        self.pre0 = pre0
        self.qdelay = qdelay
        self.hop1 = hop1
        self.dbgq = dbgq
        self.quiet = quiet
        self.bal = bal; self.ta = ta; self.tb = tb; self.tc = tc; self.nlo = nlo
        assert not (dyn and bal)
        self.dyn = dyn; self.n0 = n0; self.pairmap = pairmap
        self.order2 = order2; self.kwait2 = kwait2
        self.rate = rate; self.noqwait = noqwait; self.hexit = hexit
        self.vwait = vwait
        self.wopf = wopf
        self.wosame = wosame
        self.v0pre = v0pre
        self.dbgmid = dbgmid; self.nowo = nowo; self.noclr = noclr
        self.pace = pace
        self.qsleep = qsleep
        self.L = []; self.stamps = stamps; self.flags = flags; self.spin = spin; self.kwait = kwait
        self.nocomp = nocomp; self.notail = notail; self.wopace = wopace; self.hprio = hprio
    def e(self, s): self.L.append("  " + s)
    def lab(self, s): self.L.append(s + ":")
    def c(self, s): self.L.append("  ; " + s)
    def stamp(self, i):
        if self.stamps or (getattr(self, "dbgspan", False) and i in (2, 3)): self.e(f"s_memrealtime {STAMPS[i]}")
    def nop(self, n):
        while n > 0:
            k = min(n, 16); self.e(f"s_nop {k-1}"); n -= k
    def dma_half(self, srd, soff):
        for i in range(4):
            o = f" offset:{i*1024}" if i else ""
            self.e(f"buffer_load_dwordx4 v{vDMA+i}, {srd}, {soff} offen{o} {self.flags} lds")
    def dma_tile(self, srd, goff, slot):
        e = self.e
        e(f"s_mov_b32 m0, {slot}"); e(f"s_add_u32 {sT0}, {goff}, 16384")
        self.dma_half(srd, goff)
        e(f"s_add_u32 m0, {slot}, 4096"); e("s_nop 0")
        self.dma_half(srd, sT0)
    def dma_tile_static(self, isv, tile):
        e = self.e
        for half in range(2):
            e(f"s_add_u32 m0, {sWB}, {isv*16384 + tile*8192 + half*4096}")
            e(f"s_add_u32 {sT5}, {sKOFF}, {tile*32768 + half*16384}")
            self.dma_half(SRD_V if isv else SRD_K, sT5)
    def dma_half_static(self, hn):
        e = self.e
        tile, half, isv = hn >> 2, hn & 1, (hn >> 1) & 1
        if self.dyn:
            e(f"s_add_u32 m0, {sWB}, {isv*16384 + tile*8192 + half*4096}")
            e(f"s_add_u32 {sT5}, {sKOFF}, {tile*32768 + half*16384}")
        else:
            e(f"s_add_u32 {sT5}, {sKOFF}, {half*16384}")
            if tile: e(f"s_add_u32 {sT5}, {sT5}, {sSTEP}")
            e(f"s_add_u32 m0, {sWB}, {isv*16384 + tile*8192 + half*4096}"); e("s_nop 0")
        self.dma_half(SRD_V if isv else SRD_K, sT5)
    def read_k(self):
        for s in range(8):
            a, u = s >> 2, s & 3
            self.e(f"ds_read_b128 a[{AK+4*s}:{AK+4*s+3}], v{vKA+u}" + (f" offset:{a*256}" if a else ""))
    def read_v(self):
        for t in range(16):
            a, u = t >> 3, t & 7
            self.e(f"ds_read_b64_tr_b16 a[{AV+2*t}:{AV+2*t+1}], v{vVA+u}" + (f" offset:{a*256}" if a else ""))
    def srd(self, base, lo, hi, size):
        e = self.e
        e(f"s_mov_b32 s{base}, s{lo}"); e(f"s_and_b32 s{base+1}, s{hi}, 0xffff"); e(f"s_mov_b32 s{base+2}, {size:#x}"); e(f"s_mov_b32 s{base+3}, 0x20000")
    def spin_dec(self, label):
        e = self.e
        e(f"s_sub_u32 {sSPIN}, {sSPIN}, 1"); e(f"s_cmp_lg_u32 {sSPIN}, 0"); e(f"s_cbranch_scc1 {label}")

    def loop1(self):
        e, lab, c = self.e, self.lab, self.c
        lab("L_loop")
        if self.rate:
            for tt, si in ((8, 1), (16, 4), (24, 5)):
                e(f"s_cmp_lg_u32 {sT}, {tt}"); e(f"s_cbranch_scc1 L_rs{tt}"); e(f"s_memrealtime {STAMPS[si]}"); lab(f"L_rs{tt}")
        for s in range(8):
            if self.nocomp: break
            cc = "0" if s == 0 else f"v[{vS}:{vS+3}]"
            e(f"v_mfma_f32_16x16x32_bf16 v[{vS}:{vS+3}], a[{AK+4*s}:{AK+4*s+3}], a[{AQ+4*s}:{AQ+4*s+3}], {cc}")
        e(f"s_cmp_eq_u32 {sT}, 31"); e("s_cbranch_scc1 L_k31")
        e(f"s_waitcnt vmcnt({self.kwait})")
        self.read_k()
        e("s_waitcnt lgkmcnt(0)")
        e(f"s_cmp_ge_u32 {sT}, 29"); e("s_cbranch_scc1 L_kdone")
        self.dma_tile(SRD_K, sKOFF, sKSLOT)
        e(f"s_add_u32 {sKOFF}, {sKOFF}, 32768"); e(f"s_xor_b32 {sKSLOT}, {sKSLOT}, 8192")
        lab("L_kdone")
        for u in range(4): e(f"v_xor_b32 v{vKA+u}, 8192, v{vKA+u}")
        lab("L_soft")
        t0, t1, t2 = vT, vT+1, vT+2
        if self.nocomp: e("s_branch L_noresc")
        e(f"v_max3_f32 v{t0}, v{vS}, v{vS+1}, v{vS+2}")
        e(f"v_max_f32 v{t0}, v{t0}, v{vS+3}")
        e(f"v_mov_b32 v{t1}, v{t0}"); e("s_nop 1")
        e(f"v_permlane32_swap_b32 v{t1}, v{t0}")
        e(f"v_max_f32 v{t0}, v{t0}, v{t1}")
        e(f"v_mov_b32 v{t1}, v{t0}"); e("s_nop 1")
        e(f"v_permlane16_swap_b32 v{t1}, v{t0}")
        e(f"v_max3_f32 v{t0}, v{t0}, v{t1}, v{vM}")
        e(f"v_sub_f32 v{t1}, v{vM}, v{t0}")
        e(f"v_mul_f32 v{t1}, {sC}, v{t1}")
        e(f"v_mul_f32 v{t2}, {sNC}, v{t0}")
        e(f"v_exp_f32 v{vAL}, v{t1}")
        e(f"v_mov_b32 v{vM}, v{t0}")
        for r in range(4): e(f"v_fma_f32 v{vS+r}, v{vS+r}, {sC}, v{t2}")
        for r in range(4): e(f"v_exp_f32 v{vS+r}, v{vS+r}")
        e(f"v_cmp_neq_f32 vcc, 1.0, v{vAL}")
        e(f"v_add_f32 v{t0}, v{vS}, v{vS+1}"); e(f"v_add_f32 v{t1}, v{vS+2}, v{vS+3}")
        e(f"v_cvt_pk_bf16_f32 v{vP}, v{vS}, v{vS+1}"); e(f"v_cvt_pk_bf16_f32 v{vP+1}, v{vS+2}, v{vS+3}")
        e(f"v_add_f32 v{t0}, v{t0}, v{t1}"); e(f"v_fma_f32 v{vL}, v{vL}, v{vAL}, v{t0}")
        e("s_cbranch_vccz L_noresc")
        for i in range(32):
            e(f"v_pk_mul_f32 v[{vO+2*i}:{vO+2*i+1}], v[{vO+2*i}:{vO+2*i+1}], v[{vAL}:{vAL+1}] op_sel_hi:[1,0]")
        lab("L_noresc")
        c("V point: steady state vmcnt(24); near the end fewer ops are outstanding")
        if self.v0pre:
            e(f"s_cmp_eq_u32 {sT}, 0"); e("s_cbranch_scc1 L_pv")
        e(f"s_cmp_ge_u32 {sT}, 29"); e("s_cbranch_scc1 L_vlate")
        e(f"s_waitcnt vmcnt({self.vwait})")
        lab("L_vrd")
        self.read_v()
        e("s_waitcnt lgkmcnt(0)")
        e(f"s_cmp_ge_u32 {sT}, 30"); e("s_cbranch_scc1 L_vdone")
        self.dma_tile(SRD_V, sVOFF, sVSLOT)
        e(f"s_add_u32 {sVOFF}, {sVOFF}, 32768"); e(f"s_xor_b32 {sVSLOT}, {sVSLOT}, 8192")
        lab("L_vdone")
        for u in range(8): e(f"v_xor_b32 v{vVA+u}, 8192, v{vVA+u}")
        lab("L_pv")
        for t in range(16):
            if self.nocomp: break
            e(f"v_mfma_f32_16x16x16_bf16 v[{vO+4*t}:{vO+4*t+3}], a[{AV+2*t}:{AV+2*t+1}], v[{vP}:{vP+1}], v[{vO+4*t}:{vO+4*t+3}]")
        e(f"s_add_u32 {sT}, {sT}, 1"); e(f"s_cmp_lt_u32 {sT}, 32"); e("s_cbranch_scc1 L_loop")
        e("s_branch L_tail")
        lab("L_vlate")
        e(f"s_cmp_eq_u32 {sT}, 29"); e("s_cbranch_scc1 L_vrd")
        e(f"s_cmp_eq_u32 {sT}, 30"); e("s_cbranch_scc0 L_vlast")
        e("s_waitcnt vmcnt(8)"); e("s_branch L_vrd")
        lab("L_vlast")
        e("s_waitcnt vmcnt(0)"); e("s_branch L_vrd")
        lab("L_k31")
        self.nop(8)
        e("s_branch L_soft")


    def loop2(self):
        e, lab, c = self.e, self.lab, self.c
        dyn = self.dyn
        ld = self.ldyn
        lab("L_loop")
        if self.rate:
            for tt, si in ((8, 1), (16, 4), (24, 5)):
                e(f"s_cmp_lg_u32 {sT}, {tt}"); e(f"s_cbranch_scc1 L_rs{tt}"); e(f"s_memrealtime {STAMPS[si]}"); lab(f"L_rs{tt}")
        t0, t1, t2 = vT, vT+1, vT+2
        def cmpN(op, k):
            if dyn or self.bal or ld:
                e(f"s_sub_u32 {sT1}, {sN}, {k}"); e(f"s_cmp_{op}_u32 {sT}, {sT1}")
            else:
                e(f"s_cmp_{op}_u32 {sT}, {32-k}")
        if ld:
            c("grab next tile id (lane 0) and read limit/final early")
            cmpN("ge", 3); e("s_cbranch_scc1 L_nograb")
            e("s_mov_b64 exec, 1")
            e(f"ds_add_rtn_u32 v{vA}, v{vZERO}, v{vA+1}")
            e("s_mov_b64 exec, -1")
            lab("L_nograb")
        c("A: QK")
        for s in range(8):
            if self.nocomp: break
            cc = "0" if s == 0 else f"v[{vS}:{vS+3}]"
            e(f"v_mfma_f32_16x16x32_bf16 v[{vS}:{vS+3}], a[{AK+4*s}:{AK+4*s+3}], a[{AQ+4*s}:{AQ+4*s+3}], {cc}")
        c("B: K point")
        if self.bal and not ld:
            e(f"s_cmp_eq_u32 {sT}, {self.ta}"); e("s_cbranch_scc1 L_balst")
            e(f"s_cmp_eq_u32 {sT}, {self.tb}"); e("s_cbranch_scc1 L_balst")
            e(f"s_cmp_eq_u32 {sT}, {self.tc}"); e("s_cbranch_scc1 L_balget")
            lab("L_balback")
        cmpN("ge", 2); e("s_cbranch_scc1 L_klate")
        e(f"s_waitcnt vmcnt({self.kwait2})")
        lab("L_krd")
        self.read_k()
        if dyn:
            cmpN("ge", 3); e("s_cbranch_scc1 L_knoref")
            c("tile id for t+3 ; atomics run two iterations ahead (regs vA, vA+1 by parity of t)")
            e(f"s_cmp_ge_u32 {sT}, {self.n0-3}"); e("s_cbranch_scc1 L_dynid")
            e(f"s_mov_b32 {sT2}, {sSTAT}"); e(f"s_add_u32 {sSTAT}, {sSTAT}, 16")
            e(f"s_cmp_eq_u32 {sT}, {self.n0-5}"); e("s_cbranch_scc1 L_dynchk")
            e(f"s_cmp_eq_u32 {sT}, {self.n0-4}"); e("s_cbranch_scc1 L_atom")
            e("s_branch L_mkoff")
            lab("L_dynid")
            e(f"s_bitcmp1_b32 {sT}, 0"); e("s_cbranch_scc1 L_dynid1")
            e(f"v_readfirstlane_b32 {sT2}, v{vA}"); e("s_branch L_dynid2")
            lab("L_dynid1")
            e(f"v_readfirstlane_b32 {sT2}, v{vA+1}")
            lab("L_dynid2")
            e("s_nop 3")
            e(f"s_add_u32 {sT2}, {sT2}, {self.n0*16}")
            e(f"s_cmp_ge_u32 {sT2}, 512"); e("s_cbranch_scc1 L_exhaust")
            lab("L_atom")
            e("s_mov_b64 exec, 1")
            e(f"s_bitcmp1_b32 {sT}, 0"); e("s_cbranch_scc1 L_atom1")
            e(f"v_mov_b32 v{vA}, 1")
            e(f"buffer_atomic_add v{vA}, v{vZERO}, {SRD_WS}, {sGC} offen sc0 sc1"); e("s_branch L_atom2")
            lab("L_atom1")
            e(f"v_mov_b32 v{vA+1}, 1")
            e(f"buffer_atomic_add v{vA+1}, v{vZERO}, {SRD_WS}, {sGC} offen sc0 sc1")
            lab("L_atom2")
            e("s_mov_b64 exec, -1")
            lab("L_mkoff")
            e(f"s_lshr_b32 {sT3}, {sT2}, 2"); e(f"s_and_b32 {sT3}, {sT3}, 3"); e(f"s_lshl_b32 {sT3}, {sT3}, 20")
            e(f"s_lshr_b32 {sT4}, {sT2}, 4"); e(f"s_lshl_b32 {sT4}, {sT4}, 15"); e(f"s_add_u32 {sT3}, {sT3}, {sT4}")
            e(f"s_and_b32 {sT4}, {sT2}, 3"); e(f"s_lshl_b32 {sT4}, {sT4}, 12"); e(f"s_add_u32 {sT3}, {sT3}, {sT4}")
            e(f"s_add_u32 {sKOFF}, {sGB}, {sT3}")
            e("s_waitcnt lgkmcnt(0)")
            self.dma_tile(SRD_K, sKOFF, sKSLOT)
            e(f"s_xor_b32 {sKSLOT}, {sKSLOT}, 8192")
            e("s_branch L_kdone")
            lab("L_knoref")
            e("s_waitcnt lgkmcnt(0)")
        elif ld:
            e("s_waitcnt lgkmcnt(0)")
            cmpN("ge", 3); e("s_cbranch_scc1 L_kdone")
            e(f"v_readfirstlane_b32 {sT2}, v{vA}"); e("s_nop 3")
            e(f"s_cmp_ge_u32 {sT2}, {self.plo}"); e("s_cbranch_scc1 L_limchk")
            lab("L_tileok")
            e(f"s_xor_b32 {sT2}, {sT2}, {sSTAT}")
            e(f"s_lshr_b32 {sT3}, {sT2}, 2"); e(f"s_lshl_b32 {sT3}, {sT3}, 15"); e(f"s_and_b32 {sT2}, {sT2}, 3"); e(f"s_lshl_b32 {sT2}, {sT2}, 12")
            e(f"s_add_u32 {sKOFF}, {sGC}, {sT3}"); e(f"s_add_u32 {sKOFF}, {sKOFF}, {sT2}")
            self.dma_tile(SRD_K, sKOFF, sKSLOT)
            e(f"s_xor_b32 {sKSLOT}, {sKSLOT}, 8192")
        else:
            e("s_waitcnt lgkmcnt(0)")
            cmpN("ge", 3); e("s_cbranch_scc1 L_kdone")
            self.dma_tile(SRD_K, sKOFF, sKSLOT)
            e(f"s_add_u32 {sKOFF}, {sKOFF}, {sSTEP}"); e(f"s_xor_b32 {sKSLOT}, {sKSLOT}, 8192")
        lab("L_kdone")
        for u in range(4): e(f"v_xor_b32 v{vKA+u}, 8192, v{vKA+u}")
        lab("L_soft")
        c("C: softmax")
        if self.nocomp: e("s_branch L_noresc")
        e(f"v_max3_f32 v{t0}, v{vS}, v{vS+1}, v{vS+2}")
        e(f"v_max_f32 v{t0}, v{t0}, v{vS+3}")
        e(f"v_mov_b32 v{t1}, v{t0}"); e("s_nop 1")
        e(f"v_permlane32_swap_b32 v{t1}, v{t0}")
        e(f"v_max_f32 v{t0}, v{t0}, v{t1}")
        e(f"v_mov_b32 v{t1}, v{t0}"); e("s_nop 1")
        e(f"v_permlane16_swap_b32 v{t1}, v{t0}")
        e(f"v_max3_f32 v{t0}, v{t0}, v{t1}, v{vM}")
        e(f"v_sub_f32 v{t1}, v{vM}, v{t0}")
        e(f"v_mul_f32 v{t1}, {sC}, v{t1}")
        e(f"v_mul_f32 v{t2}, {sNC}, v{t0}")
        e(f"v_exp_f32 v{vAL}, v{t1}")
        e(f"v_mov_b32 v{vM}, v{t0}")
        for r in range(4): e(f"v_fma_f32 v{vS+r}, v{vS+r}, {sC}, v{t2}")
        for r in range(4): e(f"v_exp_f32 v{vS+r}, v{vS+r}")
        e(f"v_cmp_neq_f32 vcc, 1.0, v{vAL}")
        e(f"v_add_f32 v{t0}, v{vS}, v{vS+1}"); e(f"v_add_f32 v{t1}, v{vS+2}, v{vS+3}")
        e(f"v_cvt_pk_bf16_f32 v{vP}, v{vS}, v{vS+1}"); e(f"v_cvt_pk_bf16_f32 v{vP+1}, v{vS+2}, v{vS+3}")
        e(f"v_add_f32 v{t0}, v{t0}, v{t1}"); e(f"v_fma_f32 v{vL}, v{vL}, v{vAL}, v{t0}")
        e("s_cbranch_vccz L_noresc")
        for i in range(32):
            e(f"v_pk_mul_f32 v[{vO+2*i}:{vO+2*i+1}], v[{vO+2*i}:{vO+2*i+1}], v[{vAL}:{vAL+1}] op_sel_hi:[1,0]")
        lab("L_noresc")
        cmpN("eq", 1); e("s_cbranch_scc1 L_vjit")
        lab("L_pv")
        c("D: PV")
        for t in range(16):
            if self.nocomp: break
            e(f"v_mfma_f32_16x16x16_bf16 v[{vO+4*t}:{vO+4*t+3}], a[{AV+2*t}:{AV+2*t+1}], v[{vP}:{vP+1}], v[{vO+4*t}:{vO+4*t+3}]")
        c("E: V point")
        cmpN("ge", 3); e("s_cbranch_scc1 L_vlate")
        e(f"s_waitcnt vmcnt({self.vwait})")
        self.read_v()
        e("s_waitcnt lgkmcnt(0)")
        if dyn or ld:
            self.dma_tile(SRD_V, sKOFF, sVSLOT)
            e(f"s_xor_b32 {sVSLOT}, {sVSLOT}, 8192")
        else:
            self.dma_tile(SRD_V, sVOFF, sVSLOT)
            e(f"s_add_u32 {sVOFF}, {sVOFF}, {sSTEP}"); e(f"s_xor_b32 {sVSLOT}, {sVSLOT}, 8192")
        lab("L_vdone")
        for u in range(8): e(f"v_xor_b32 v{vVA+u}, 8192, v{vVA+u}")
        lab("L_next")
        e(f"s_add_u32 {sT}, {sT}, 1")
        if dyn or self.bal or ld: e(f"s_cmp_lt_u32 {sT}, {sN}")
        else: e(f"s_cmp_lt_u32 {sT}, 32")
        e("s_cbranch_scc1 L_loop")
        e("s_branch L_tail")
        lab("L_klate")
        cmpN("eq", 1); e("s_cbranch_scc1 L_k31")
        e("s_waitcnt vmcnt(8)"); e("s_branch L_krd")
        lab("L_k31")
        self.nop(8)
        e("s_branch L_soft")
        lab("L_vlate")
        cmpN("eq", 3); e("s_cbranch_scc0 L_next")
        e("s_waitcnt vmcnt(16)")
        self.read_v()
        e("s_waitcnt lgkmcnt(0)")
        e("s_branch L_vdone")
        lab("L_vjit")
        e("s_waitcnt vmcnt(0)")
        self.read_v()
        e("s_waitcnt lgkmcnt(0)")
        e("s_branch L_pv")
        if ld:
            lab("L_limchk")
            e(f"s_mov_b32 {sSPIN}, {self.spin}")
            e(f"v_mov_b32 v{t0}, {CNT+12}")
            lab("L_limchk1")
            e(f"ds_read2_b32 v[{t1+1}:{t1+2}], v{t0} offset0:0 offset1:1"); e("s_waitcnt lgkmcnt(0)")
            e(f"v_readfirstlane_b32 {sT3}, v{t1+2}"); e(f"v_readfirstlane_b32 {sT4}, v{t1+1}"); e("s_nop 3")
            e(f"s_cmp_lg_u32 {sT3}, 0"); e("s_cbranch_scc1 L_limfin")
            e("s_sleep 2")
            self.spin_dec("L_limchk1")
            lab("L_limfin")
            e(f"s_cmp_lt_u32 {sT2}, {sT4}"); e("s_cbranch_scc1 L_tileok")
            e(f"s_add_u32 {sN}, {sT}, 3")
            e("s_branch L_kdone")
        if self.bal and not ld:
            lab("L_balst")
            e(f"s_cmp_lg_u32 {sW}, 0"); e("s_cbranch_scc1 L_balback")
            e(f"s_memrealtime s[{sT2[1:]}:{sT3[1:]}]"); e("s_waitcnt lgkmcnt(0)")
            e(f"s_or_b32 {sT2}, {sT2}, 1")
            e(f"s_cmp_eq_u32 {sT}, {self.tb}"); e(f"s_cselect_b32 {sT3}, 4, 0"); e(f"s_add_u32 {sT3}, {sT3}, {CNT+8}")
            e(f"v_mov_b32 v{t0}, {sT3}"); e(f"v_mov_b32 v{t1}, {sT2}")
            e(f"ds_write_b32 v{t0}, v{t1}")
            e("s_branch L_balback")
            lab("L_balget")
            e(f"s_mov_b32 {sSPIN}, {self.spin}")
            e(f"v_mov_b32 v{t0}, {CNT+16}")
            lab("L_balget1")
            e(f"ds_read_b32 v{t1}, v{t0}"); e("s_waitcnt lgkmcnt(0)")
            e(f"v_readfirstlane_b32 {sN}, v{t1}"); e("s_nop 3")
            e(f"s_cmp_lg_u32 {sN}, 0"); e("s_cbranch_scc1 L_balback")
            e("s_sleep 4")
            self.spin_dec("L_balget1")
            e(f"s_mov_b32 {sN}, 32")
            e("s_branch L_balback")
        if dyn:
            lab("L_exhaust")
            e(f"s_add_u32 {sN}, {sT}, 3")
            e("s_branch L_knoref")
            lab("L_dynchk")
            e(f"s_mov_b32 {sSPIN}, {self.spin}")
            e(f"v_mov_b32 v{t0}, {CNT+8}")
            lab("L_dynchk1")
            e(f"ds_read_b32 v{t1}, v{t0}"); e("s_waitcnt lgkmcnt(0)")
            e(f"v_readfirstlane_b32 {sT3}, v{t1}"); e("s_nop 3")
            e(f"s_cmp_eq_u32 {sT3}, 1"); e("s_cbranch_scc1 L_atom")
            e("s_sleep 8")
            self.spin_dec("L_dynchk1")
            e("s_branch L_atom")

    def build(self):
        e, lab, c = self.e, self.lab, self.c
        L = self.L
        L.append(HDR.rstrip())
        L.append(f"; @launch grid=(256,1,1) block=(512,1,1) lds={LDS_BYTES}")
        L.append('.amdgcn_target "amdgcn-amd-amdhsa--gfx950"')
        L.append(".text"); L.append(f".globl {NAME}_kernel"); L.append(".p2align 8"); L.append(f".type {NAME}_kernel,@function")
        lab(f"{NAME}_kernel")
        e(f"s_cmp_ge_u32 {sWG}, 256"); e("s_cbranch_scc1 L_end")
        e("s_load_dwordx16 s[32:47], s[0:1], 0")
        self.stamp(0)
        if self.dbgspan: e("s_memrealtime s[100:101]")
        e(f"v_lshrrev_b32 v{vTMPA}, 6, v0")
        e(f"v_and_b32 v{vLANE}, 63, v0")
        e(f"s_and_b32 {sT0}, {sWG}, 7"); e(f"s_lshr_b32 {sT1}, {sWG}, 3")
        e(f"v_readfirstlane_b32 {sW}, v{vTMPA}")
        if self.pairmap and self.xmap == 3:
            c("pairs on XCDs x, x^3: kvh = 4*(x>>2) + 2*gray(x&3) + (y&1)")
            e(f"s_lshr_b32 {sT2}, {sT0}, 1"); e(f"s_xor_b32 {sT2}, {sT2}, {sT0}"); e(f"s_and_b32 {sT2}, {sT2}, 1"); e(f"s_lshl_b32 {sT2}, {sT2}, 1")
            e(f"s_and_b32 {sKVH}, {sT0}, 4"); e(f"s_add_u32 {sKVH}, {sKVH}, {sT2}"); e(f"s_and_b32 {sT2}, {sT1}, 1"); e(f"s_add_u32 {sKVH}, {sKVH}, {sT2}")
            e(f"s_and_b32 {sJ}, {sT0}, 1"); e(f"s_and_b32 {sT2}, {sT1}, 2"); e(f"s_add_u32 {sJ}, {sJ}, {sT2}")
            e(f"s_lshr_b32 {sB}, {sT1}, 2")
        elif self.pairmap and self.xmap == 5:
            c("pairs on XCDs x, x^5 : (0,5),(1,4),(2,7),(3,6): pair id = (x ^ (x&1)*5) >> 1 ... canonical even member e = x if even else x^5; kvh = (e & 6) + (y&1)")
            e(f"s_and_b32 {sT2}, {sT0}, 1"); e(f"s_mul_i32 {sT2}, {sT2}, 5"); e(f"s_xor_b32 {sT2}, {sT2}, {sT0}")
            e(f"s_and_b32 {sKVH}, {sT2}, 6"); e(f"s_and_b32 {sT2}, {sT1}, 1"); e(f"s_add_u32 {sKVH}, {sKVH}, {sT2}")
            e(f"s_and_b32 {sJ}, {sT0}, 1"); e(f"s_and_b32 {sT2}, {sT1}, 2"); e(f"s_add_u32 {sJ}, {sJ}, {sT2}")
            e(f"s_lshr_b32 {sB}, {sT1}, 2")
        elif self.pairmap:
            e(f"s_and_b32 {sKVH}, {sT0}, 6"); e(f"s_and_b32 {sT2}, {sT1}, 1"); e(f"s_add_u32 {sKVH}, {sKVH}, {sT2}")
            e(f"s_and_b32 {sJ}, {sT0}, 1"); e(f"s_and_b32 {sT2}, {sT1}, 2"); e(f"s_add_u32 {sJ}, {sJ}, {sT2}")
            e(f"s_lshr_b32 {sB}, {sT1}, 2")
        else:
            e(f"s_mov_b32 {sKVH}, {sT0}"); e(f"s_and_b32 {sJ}, {sT1}, 3"); e(f"s_lshr_b32 {sB}, {sT1}, 2")
        e(f"s_lshl_b32 {sY}, {sB}, 2"); e(f"s_add_u32 {sY}, {sY}, {sJ}")
        e(f"s_lshl_b32 {sLID}, {sY}, 3"); e(f"s_add_u32 {sLID}, {sLID}, {sKVH}")
        e(f"s_lshl_b32 {sG}, {sB}, 3"); e(f"s_add_u32 {sG}, {sG}, {sKVH}")
        e(f"v_and_b32 v{vN}, 15, v{vLANE}"); e(f"v_lshrrev_b32 v{vGQ}, 4, v{vLANE}")
        e(f"s_and_b32 {sHW}, {sW}, 3")
        e(f"s_lshl_b32 {sR}, {sKVH}, 2"); e(f"s_add_u32 {sR}, {sR}, {sJ}")
        e(f"s_cmp_ge_u32 {sW}, 4"); e("s_cbranch_scc1 L_helper")

        c("DMA voffsets")
        e(f"v_lshrrev_b32 v{vT}, 5, v{vLANE}"); e(f"v_and_b32 v{vT+1}, 31, v{vLANE}")
        e(f"v_lshlrev_b32 v{vT+2}, 9, v{vT}"); e(f"v_lshlrev_b32 v{vT+3}, 1, v{vT}")
        for i in range(4):
            e(f"v_xor_b32 v{vT+4}, {4*i}, v{vT+3}"); e(f"v_xor_b32 v{vT+4}, v{vT+4}, v{vT+1}")
            e(f"v_lshl_add_u32 v{vDMA+i}, v{vT+4}, 4, v{vT+2}")
        if self.bal:
            e(f"s_lshl_b32 {sKOFF}, {sG}, 22"); e(f"s_lshr_b32 {sT0}, {sJ}, 1"); e(f"s_lshl_b32 {sT0}, {sT0}, 21"); e(f"s_add_u32 {sKOFF}, {sKOFF}, {sT0}")
            e(f"s_and_b32 {sT1}, {sJ}, 1"); e(f"s_mul_i32 {sT0}, {sT1}, {63*32768}"); e(f"s_add_u32 {sKOFF}, {sKOFF}, {sT0}")
            e(f"s_mul_i32 {sT1}, {sT1}, -65536"); e(f"s_add_u32 {sSTEP}, {sT1}, 32768")
            e(f"s_mov_b32 {sN}, 100000")
        else:
            e(f"s_lshl_b32 {sKOFF}, {sG}, 22"); e(f"s_lshl_b32 {sT0}, {sJ}, 20"); e(f"s_add_u32 {sKOFF}, {sKOFF}, {sT0}")
            e(f"s_mov_b32 {sSTEP}, 32768") if not self.dyn else None
        e(f"s_lshl_b32 {sT0}, {sW}, 12"); e(f"s_add_u32 {sKOFF}, {sKOFF}, {sT0}")
        e(f"s_lshl_b32 {sWB}, {sW}, 15")
        e("s_waitcnt lgkmcnt(0)")
        self.srd(8, 34, 35, 0x10000000); self.srd(12, 36, 37, 0x10000000)
        for hn in range(self.pre0): self.dma_half_static(hn)
        e("s_barrier")
        first = self.quiet if self.quiet else self.pace
        for hn in range(self.pre0, first): self.dma_half_static(hn)
        self.srd(28, 46, 47, WS_BYTES)
        c("K/V LDS read addresses")
        e(f"v_and_b32 v{vT}, 7, v{vN}"); e(f"v_lshlrev_b32 v{vT}, 1, v{vT}")
        e(f"v_lshlrev_b32 v{vT+1}, 9, v{vN}"); e(f"v_add_u32 v{vT+1}, {sWB}, v{vT+1}")
        for u in range(4):
            e(f"v_add_u32 v{vT+2}, {4*u}, v{vGQ}"); e(f"v_xor_b32 v{vT+2}, v{vT+2}, v{vT}"); e(f"v_lshl_add_u32 v{vKA+u}, v{vT+2}, 4, v{vT+1}")
        e(f"v_lshrrev_b32 v{vT}, 2, v{vN}"); e(f"v_lshl_add_u32 v{vT}, v{vGQ}, 2, v{vT}")
        e(f"v_and_b32 v{vT+1}, 7, v{vT}"); e(f"v_lshlrev_b32 v{vT+2}, 9, v{vT}")
        e(f"v_and_b32 v{vT+3}, 3, v{vN}"); e(f"v_lshl_add_u32 v{vT+2}, v{vT+3}, 3, v{vT+2}")
        e(f"s_add_u32 {sT0}, {sWB}, 16384"); e(f"v_add_u32 v{vT+2}, {sT0}, v{vT+2}")
        for u in range(8):
            e(f"v_xor_b32 v{vT+3}, {u}, v{vT+1}"); e(f"v_lshl_add_u32 v{vVA+u}, v{vT+3}, 5, v{vT+2}")
        c("init O, m, l, consts")
        for i in range(64): e(f"v_mov_b32 v{vO+i}, 0")
        e(f"v_mov_b32 v{vM}, 0xff7fffff"); e(f"v_mov_b32 v{vL}, 0")
        e(f"s_mov_b32 {sC}, {fbits(C_LOG2E_16):#x}"); e(f"s_mov_b32 {sNC}, {fbits(-C_LOG2E_16):#x}")
        e(f"v_lshlrev_b32 v{vLIN16}, 4, v{vLANE}")
        e(f"s_lshl_b32 {sT0}, {sG}, 2"); e(f"s_add_u32 {sT0}, {sT0}, {sW}"); e(f"s_lshl_b32 {sT0}, {sT0}, 2"); e(f"s_add_u32 {sT0}, {sT0}, {sJ}")
        e(f"s_mul_i32 {sM1OUT}, {sT0}, {M1_SLICE}")
        if self.dyn:
            e(f"s_mov_b32 {sN}, 100000"); e(f"s_lshl_b32 {sGB}, {sG}, 22")
            e(f"s_lshl_b32 {sGC}, {sG}, 7"); e(f"s_add_u32 {sGC}, {sGC}, {GC_BASE:#x}")
            e(f"s_lshl_b32 {sSTAT}, {sJ}, 2"); e(f"s_add_u32 {sSTAT}, {sSTAT}, {sW}"); e(f"s_add_u32 {sSTAT}, {sSTAT}, 48")
            e(f"v_mov_b32 v{vZERO}, 0")
        if self.ldyn:
            e(f"s_lshl_b32 {sGC}, {sG}, 22"); e(f"s_lshr_b32 {sT0}, {sJ}, 1"); e(f"s_lshl_b32 {sT0}, {sT0}, 21"); e(f"s_add_u32 {sGC}, {sGC}, {sT0}")
            e(f"s_and_b32 {sSTAT}, {sJ}, 1"); e(f"s_mul_i32 {sSTAT}, {sSTAT}, 255")
            e(f"v_mov_b32 v{vA+1}, 1"); e(f"v_mov_b32 v{vZERO}, {CNT+8}")
        c("Q frag read address")
        e(f"s_movk_i32 {sT1}, {QROW}")
        e(f"v_and_b32 v{vT+5}, 7, v{vN}"); e(f"v_mul_lo_u32 v{vT+5}, v{vT+5}, {sT1}"); e(f"v_lshl_add_u32 v{vT+5}, v{vGQ}, 4, v{vT+5}"); e(f"v_add_u32 v{vT+5}, {QB}, v{vT+5}")
        c("paced fill of halves: K0a K0b V0a V0b K1a K1b V1a V1b, then K2 (slot A after reading K0)")
        P = self.pace
        if self.quiet:
            e("s_barrier")
            for hn in range(max(self.quiet, self.pre0), P): self.dma_half_static(hn)
        for hn in range(max(P, self.quiet, self.pre0), 8):
            e(f"s_waitcnt vmcnt({4*(P-1)})")
            self.dma_half_static(hn)
            if hn == max(P, 2) + 1 - (0 if P <= 2 else 0) and False: pass
        c("K0 landed")
        e("s_waitcnt vmcnt(24)")
        self.read_k()
        if self.dyn:
            e(f"s_add_u32 {sKOFF}, {sKOFF}, 65536")
        else:
            e(f"s_add_u32 {sKOFF}, {sKOFF}, {sSTEP}"); e(f"s_add_u32 {sKOFF}, {sKOFF}, {sSTEP}")
        e(f"s_mov_b32 {sVOFF}, {sKOFF}")
        e(f"s_mov_b32 {sKSLOT}, {sWB}"); e(f"s_add_u32 {sVSLOT}, {sWB}, 16384")
        e(f"s_add_u32 {sT4}, {sKOFF}, 16384")
        e(f"s_waitcnt vmcnt({4*(P-1)}) lgkmcnt(0)")
        e(f"s_mov_b32 m0, {sKSLOT}"); e("s_nop 0")
        self.dma_half(SRD_K, sKOFF)
        e(f"s_waitcnt vmcnt({4*(P-1)})")
        e(f"s_add_u32 m0, {sKSLOT}, 4096"); e("s_nop 0")
        self.dma_half(SRD_K, sT4)
        e(f"s_add_u32 {sKOFF}, {sKOFF}, {32768 if self.dyn else sSTEP}"); e(f"s_xor_b32 {sKSLOT}, {sKSLOT}, 8192")
        for u in range(4): e(f"v_xor_b32 v{vKA+u}, 8192, v{vKA+u}")
        if self.v0pre:
            c("V0 -> regs, refill V2")
            e("s_waitcnt vmcnt(24)")
            self.read_v()
            e(f"s_add_u32 {sT4}, {sVOFF}, 16384")
            e(f"s_waitcnt vmcnt({4*(P-1)}) lgkmcnt(0)")
            e(f"s_mov_b32 m0, {sVSLOT}"); e("s_nop 0")
            self.dma_half(SRD_V, sVOFF)
            e(f"s_waitcnt vmcnt({4*(P-1)})")
            e(f"s_add_u32 m0, {sVSLOT}, 4096"); e("s_nop 0")
            self.dma_half(SRD_V, sT4)
            e(f"s_add_u32 {sVOFF}, {sVOFF}, {32768 if self.dyn else sSTEP}"); e(f"s_xor_b32 {sVSLOT}, {sVSLOT}, 8192")
            for u in range(8): e(f"v_xor_b32 v{vVA+u}, 8192, v{vVA+u}")
        if not self.rate: self.stamp(1)
        e("s_barrier")
        for s in range(8):
            e(f"ds_read_b128 a[{AQ+4*s}:{AQ+4*s+3}], v{vT+5}" + (f" offset:{s*64}" if s else ""))
        e(f"s_mov_b32 {sT}, 0")
        e("s_waitcnt lgkmcnt(0)")
        self.stamp(2)

        if self.order2:
            self.loop2()
        else:
            self.loop1()
        lab("L_tail")
        t0, t1, t2 = vT, vT+1, vT+2
        self.stamp(3)
        e(f"v_mov_b32 v{t1}, v{vL}"); e("s_nop 1")
        e(f"v_permlane32_swap_b32 v{t1}, v{vL}"); e(f"v_add_f32 v{vL}, v{vL}, v{t1}")
        e(f"v_mov_b32 v{t1}, v{vL}"); e("s_nop 1")
        e(f"v_permlane16_swap_b32 v{t1}, v{vL}"); e(f"v_add_f32 v{vL}, v{vL}, v{t1}")
        e(f"s_movk_i32 {sT1}, {OWROW}"); e(f"v_mul_lo_u32 v{vODUMP}, v{vN}, {sT1}")
        e(f"v_lshl_add_u32 v{vODUMP}, v{vGQ}, 4, v{vODUMP}"); e(f"v_add_u32 v{vODUMP}, {sWB}, v{vODUMP}")
        e(f"s_lshl_b32 {sT0}, {sW}, 6"); e(f"s_add_u32 {sT0}, {sT0}, {STB}")
        e(f"v_lshlrev_b32 v{t2}, 3, v{vN}"); e(f"v_add_u32 v{t2}, {sT0}, v{t2}")
        e("s_mov_b32 exec_lo, 0x00ff00ff"); e("s_mov_b32 exec_hi, 0x00ff00ff")
        for t in range(16):
            e(f"ds_write_b128 v{vODUMP}, v[{vO+4*t}:{vO+4*t+3}]" + (f" offset:{t*64}" if t else ""))
        e("s_mov_b64 exec, 0xff")
        e(f"ds_write_b64 v{t2}, v[{vM}:{vM+1}]")
        e("s_mov_b64 exec, -1")
        e(f"v_and_b32 v{vT}, 3, v{vLANE}"); e(f"v_lshrrev_b32 v{vT+1}, 2, v{vLANE}")
        e(f"s_lshr_b32 {sT0}, {sW}, 1"); e(f"s_lshl_b32 {sT0}, {sT0}, 2")
        e(f"v_add_u32 v{vT}, {sT0}, v{vT}")
        e(f"v_mul_lo_u32 v{vT2A}, v{vT}, {sT1}"); e(f"v_lshl_add_u32 v{vT2A}, v{vT+1}, 5, v{vT2A}")
        e(f"s_and_b32 {sT0}, {sW}, 1"); e(f"s_lshl_b32 {sT0}, {sT0}, 9"); e(f"v_add_u32 v{vT2A}, {sT0}, v{vT2A}")
        e(f"v_add_u32 v{vT2B}, 65536, v{vT2A}")
        e(f"v_lshlrev_b32 v{vT+2}, 3, v{vT}"); e(f"v_add_u32 v{vT+2}, {STB}, v{vT+2}")
        e("s_waitcnt lgkmcnt(0)"); e("s_barrier")
        if not self.rate: self.stamp(4)
        for w in range(4): e(f"ds_read_b64 v[{2*w}:{2*w+1}], v{vT+2} offset:{w*64}")
        for w in range(4):
            for u in range(2):
                a = vT2A if w < 2 else vT2B
                o = (w & 1) * 32768 + u * 16
                e(f"ds_read_b128 v[{8+8*w+4*u}:{8+8*w+4*u+3}], v{a}" + (f" offset:{o}" if o else ""))
        e("s_waitcnt lgkmcnt(8)")
        e("v_max3_f32 v40, v0, v2, v4"); e("v_max_f32 v40, v40, v6")
        for w in range(4): e(f"v_sub_f32 v{44+w}, v{2*w}, v40")
        for w in range(4): e(f"v_mul_f32 v{44+w}, {sC}, v{44+w}")
        for w in range(4): e(f"v_exp_f32 v{44+w}, v{44+w}")
        e("s_nop 0")
        e("v_mul_f32 v41, v44, v1"); e("v_fmac_f32 v41, v45, v3"); e("v_fmac_f32 v41, v46, v5"); e("v_fmac_f32 v41, v47, v7")
        e("s_waitcnt lgkmcnt(0)")
        for k in range(8): e(f"v_mul_f32 v{48+k}, v44, v{8+k}")
        for w in range(1, 4):
            for k in range(8): e(f"v_fmac_f32 v{48+k}, v{44+w}, v{8+8*w+k}")
        e(f"buffer_store_dwordx4 v[48:51], v{vLIN16}, {SRD_WS}, {sM1OUT} offen sc1")
        e(f"buffer_store_dwordx4 v[52:55], v{vLIN16}, {SRD_WS}, {sM1OUT} offen offset:1024 sc1")
        e(f"v_lshlrev_b32 v{vT}, 3, v{vLANE}")
        e("s_mov_b64 exec, 0xf")
        e(f"buffer_store_dwordx2 v[40:41], v{vT}, {SRD_WS}, {sM1OUT} offen offset:2048 sc1")
        e("s_mov_b64 exec, -1")
        if not self.rate: self.stamp(5)
        e("s_branch L_fin")

        lab("L_helper")
        if self.hexit:
            e("s_waitcnt lgkmcnt(0)"); self.srd(28, 46, 47, WS_BYTES)
            e("s_barrier"); e("s_barrier"); e("s_barrier")
            if self.quiet: e("s_barrier")
            e("s_branch L_fin")
        if self.hprio: e(f"s_setprio {self.hprio}")
        c("wq DMA voffset: (l>>1)*8192 + (l&1)*16 + (kvh*512 + 16y)*2 ; x voffset: n*896 + g*16")
        hX = 0
        hA = 32
        hD = 48
        e(f"v_lshrrev_b32 v{vT}, 1, v{vLANE}"); e(f"v_lshlrev_b32 v{vT}, 13, v{vT}")
        e(f"v_and_b32 v{vT+1}, 1, v{vLANE}"); e(f"v_lshl_add_u32 v{vT}, v{vT+1}, 4, v{vT}")
        e(f"s_lshl_b32 {sT0}, {sKVH}, 10"); e(f"s_lshl_b32 {sT1}, {sY}, 5"); e(f"s_add_u32 {sT0}, {sT0}, {sT1}")
        e(f"v_add_u32 v{vDMA}, {sT0}, v{vT}")
        e(f"s_movk_i32 {sT1}, 896"); e(f"v_mul_lo_u32 v{vDMA+1}, v{vN}, {sT1}"); e(f"v_lshl_add_u32 v{vDMA+1}, v{vGQ}, 4, v{vDMA+1}")
        e(f"s_lshl_b32 {sWB}, {sHW}, 12"); e(f"s_add_u32 {sWB}, {sWB}, {WQS}")
        c("H0 zeroes the LDS counters")
        e(f"v_mov_b32 v{vT+2}, {CNT}")
        for i in range(4): e(f"v_mov_b32 v{vT+4+i}, 0")
        e(f"ds_write_b128 v{vT+2}, v[{vT+4}:{vT+7}] offset:16")
        if self.ldyn:
            e(f"v_mov_b32 v{vT+6}, 12"); e(f"v_mov_b32 v{vT+7}, {self.plo}")
        e(f"ds_write_b128 v{vT+2}, v[{vT+4}:{vT+7}]")
        e("s_waitcnt lgkmcnt(0)")
        if self.dbgq: self.stamp(2)
        e(f"s_add_u32 s56, s46, {EPOCH_OFF:#x}"); e("s_addc_u32 s57, s47, 0")
        e(f"s_load_dwordx2 s[60:61], s[56:57], 0")
        self.srd(16, 38, 39, 3670016); self.srd(20, 32, 33, 28672)
        e(f"s_lshl_b32 {sT2}, {sHW}, 18")
        e(f"s_lshl_b32 {sT3}, {sHW}, 6")
        for idx in range(4):
            if idx == 3:
                e(f"s_cmp_ge_u32 {sHW}, 2"); e("s_cbranch_scc1 L_hq_issued")
            e(f"s_add_u32 m0, {sWB}, {idx*1024}")
            e(f"s_add_u32 {sT4}, {sT3}, 14336")
            e(f"buffer_load_dwordx4 v{vDMA}, {SRD_WQ}, {sT2} offen lds")
            e(f"buffer_load_dwordx4 v[{hX+8*idx}:{hX+8*idx+3}], v{vDMA+1}, {SRD_X}, {sT3} offen")
            e(f"buffer_load_dwordx4 v[{hX+8*idx+4}:{hX+8*idx+7}], v{vDMA+1}, {SRD_X}, {sT4} offen")
            if idx < 3:
                e(f"s_add_u32 {sT2}, {sT2}, {4*262144}"); e(f"s_add_u32 {sT3}, {sT3}, 256")
        lab("L_hq_issued")
        if self.dbgq: self.stamp(3)
        e("s_barrier")
        if self.dbgq: self.stamp(4)
        self.srd(28, 46, 47, WS_BYTES); self.srd(24, 40, 41, 3670016)
        e("s_mov_b32 s34, s42"); e("s_mov_b32 s35, s43")
        c("tr-read address: wb + (8g + (i>>2))*32 + (i&3)*8  (+128 for second half, +1024*idx)")
        e(f"v_lshrrev_b32 v{vT}, 2, v{vN}"); e(f"v_lshl_add_u32 v{vT}, v{vGQ}, 3, v{vT}"); e(f"v_lshlrev_b32 v{vT}, 5, v{vT}")
        e(f"v_and_b32 v{vT+1}, 3, v{vN}"); e(f"v_lshl_add_u32 v{vT}, v{vT+1}, 3, v{vT}"); e(f"v_add_u32 v{vT}, {sWB}, v{vT}")
        for i in range(8): e(f"v_mov_b32 v{hD+i}, 0")
        c("partial write address: RED + hw*2048 + n*64 + g*16 (+1024 for h=1)")
        e(f"s_lshl_b32 {sT0}, {sHW}, 11"); e(f"s_add_u32 {sT0}, {sT0}, {RED}")
        e(f"v_lshlrev_b32 v{vT+2}, 6, v{vN}"); e(f"v_lshl_add_u32 v{vT+2}, v{vGQ}, 4, v{vT+2}"); e(f"v_add_u32 v{vT+2}, {sT0}, v{vT+2}")
        e("s_waitcnt vmcnt(0)")
        self.stamp(1)
        for idx in range(4):
            if idx == 3:
                e(f"s_cmp_ge_u32 {sHW}, 2"); e("s_cbranch_scc1 L_hq_mm")
            e(f"ds_read_b64_tr_b16 v[{hA+4*idx}:{hA+4*idx+1}], v{vT} offset:{idx*1024}")
            e(f"ds_read_b64_tr_b16 v[{hA+4*idx+2}:{hA+4*idx+3}], v{vT} offset:{idx*1024+128}")
            e("s_waitcnt lgkmcnt(0)")
            for h in range(2):
                e(f"v_mfma_f32_16x16x32_bf16 v[{hD+4*h}:{hD+4*h+3}], v[{hA+4*idx}:{hA+4*idx+3}], v[{hX+8*idx+4*h}:{hX+8*idx+4*h+3}], v[{hD+4*h}:{hD+4*h+3}]")
        lab("L_hq_mm")
        self.nop(8)
        e(f"ds_write_b128 v{vT+2}, v[{hD}:{hD+3}]"); e(f"ds_write_b128 v{vT+2}, v[{hD+4}:{hD+7}] offset:1024")
        e(f"v_mov_b32 v{vT+3}, {CNT}"); e(f"v_mov_b32 v{vT+4}, 1")
        e("s_waitcnt lgkmcnt(0)")
        e("s_mov_b64 exec, 1"); e(f"ds_add_u32 v{vT+3}, v{vT+4}"); e("s_mov_b64 exec, -1")
        c("reduce read address: RED + rho*64 + cp*8, rho = 8hw + (l>>3), cp = l&7")
        e(f"v_lshrrev_b32 v{vT}, 3, v{vLANE}"); e(f"s_lshl_b32 {sT0}, {sHW}, 3"); e(f"v_add_u32 v{vT}, {sT0}, v{vT}")
        e(f"v_and_b32 v{vT+1}, 7, v{vLANE}")
        e(f"v_lshlrev_b32 v{vT+2}, 6, v{vT}"); e(f"v_lshl_add_u32 v{vT+2}, v{vT+1}, 3, v{vT+2}"); e(f"v_add_u32 v{vT+2}, {RED}, v{vT+2}")
        if self.hop1:
            c("launch tag: E' = E + C (64 bit); TL = low 16 bits << 16, sTAG = bits 16..47")
            e(f"s_add_u32 s60, s60, 0x7f4a7c15"); e(f"s_addc_u32 s61, s61, 0x9e3779b9")
            e(f"s_lshl_b32 {sTL}, s60, 16"); e(f"s_lshr_b32 {sTAG}, s60, 16"); e(f"s_lshl_b32 {sT1}, s61, 16"); e(f"s_or_b32 {sTAG}, {sTAG}, {sT1}")
            c("publish address: QM + ((kvh*8 + b)*32 + y)*512 + q*128 + cp*16 ; b = rho>>2, q = rho&3")
            e(f"v_lshrrev_b32 v{vT+4}, 2, v{vT}"); e(f"v_lshlrev_b32 v{vT+4}, 14, v{vT+4}")
            e(f"v_and_b32 v{vT+5}, 3, v{vT}"); e(f"v_lshl_add_u32 v{vT+4}, v{vT+5}, 7, v{vT+4}"); e(f"v_lshl_add_u32 v{vT+4}, v{vT+1}, 4, v{vT+4}")
            e(f"s_lshl_b32 {sT0}, {sKVH}, 17"); e(f"s_lshl_b32 {sT1}, {sY}, 9"); e(f"s_add_u32 {sT0}, {sT0}, {sT1}"); e(f"s_add_u32 {sT0}, {sT0}, {QM_BASE:#x}")
            e(f"s_mov_b32 {sSPIN}, {self.spin}")
            lab("L_hs1")
            e(f"ds_read_b32 v{vT+6}, v{vT+3}"); e("s_waitcnt lgkmcnt(0)")
            e(f"v_readfirstlane_b32 {sT1}, v{vT+6}"); e("s_nop 3")
            e(f"s_cmp_ge_u32 {sT1}, 4"); e("s_cbranch_scc1 L_hs1ok")
            self.spin_dec("L_hs1")
            lab("L_hs1ok")
            for w in range(4): e(f"ds_read_b64 v[{2*w}:{2*w+1}], v{vT+2} offset:{w*2048}")
            e("s_waitcnt lgkmcnt(0)")
            e("v_add_f32 v0, v0, v2"); e("v_add_f32 v1, v1, v3"); e("v_add_f32 v4, v4, v6"); e("v_add_f32 v5, v5, v7")
            e("v_add_f32 v0, v0, v4"); e("v_add_f32 v1, v1, v5")
            e("v_cvt_pk_bf16_f32 v0, v0, v1")
            c("granules {tl|val, tag}")
            e(f"v_and_b32 v4, 0xffff, v0"); e(f"v_lshrrev_b32 v6, 16, v0")
            e(f"v_or_b32 v4, {sTL}, v4"); e(f"v_or_b32 v6, {sTL}, v6"); e(f"v_mov_b32 v5, {sTAG}"); e(f"v_mov_b32 v7, {sTAG}")
            e(f"buffer_store_dwordx4 v[4:7], v{vT+4}, {SRD_WS}, {sT0} offen sc1")
            self.stamp(2) if not self.dbgq else None
            if self.quiet: e("s_barrier")
            e(f"v_lshlrev_b32 v{vLIN16}, 4, v{vLANE}")
            c("poll own 4 KB: QM + (kvh*8+b)*16384 + hw*4096 + i*1024 + l*16")
            e(f"s_lshl_b32 {sT0}, {sKVH}, 3"); e(f"s_add_u32 {sT0}, {sT0}, {sB}"); e(f"s_lshl_b32 {sT0}, {sT0}, 14"); e(f"s_lshl_b32 {sT1}, {sHW}, 12")
            e(f"s_add_u32 {sT0}, {sT0}, {sT1}"); e(f"s_add_u32 {sT0}, {sT0}, {QM_BASE:#x}")
            c("LDS write address: QB + (4h+q)*528 + (128*(hw&1) + 16yy + 2cp)*2 ; yy = 2i + (l>>5), q=(l&31)>>3, cp=l&7, h=hw>>1")
            e(f"v_bfe_u32 v{vT}, v{vLANE}, 3, 2")
            e(f"s_lshr_b32 {sT1}, {sHW}, 1"); e(f"s_lshl_b32 {sT1}, {sT1}, 2"); e(f"v_add_u32 v{vT}, {sT1}, v{vT}")
            e(f"s_movk_i32 {sT1}, {QROW}"); e(f"v_mul_lo_u32 v{vT}, v{vT}, {sT1}")
            e(f"v_lshrrev_b32 v{vT+1}, 5, v{vLANE}"); e(f"v_lshl_add_u32 v{vT}, v{vT+1}, 5, v{vT}")
            e(f"v_and_b32 v{vT+1}, 7, v{vLANE}"); e(f"v_lshl_add_u32 v{vT}, v{vT+1}, 2, v{vT}")
            e(f"s_and_b32 {sT1}, {sHW}, 1"); e(f"s_lshl_b32 {sT1}, {sT1}, 8"); e(f"s_add_u32 {sT1}, {sT1}, {QB}"); e(f"v_add_u32 v{vT}, {sT1}, v{vT}")
            e(f"s_mov_b32 {sSPIN}, {self.spin}"); e(f"s_mov_b32 {sT2}, 0xffff0000"); e(f"s_mov_b32 {sT3}, 0x05040100")
            if self.qdelay: e(f"s_waitcnt vmcnt(0)")
            lab("L_hq_poll")
            for i in range(4):
                e(f"buffer_load_dwordx4 v[{8+4*i}:{8+4*i+3}], v{vLIN16}, {SRD_WS}, {sT0} offen" + (f" offset:{i*1024}" if i else "") + " sc1")
            e("s_waitcnt vmcnt(0)")
            for i in range(4):
                b = 8 + 4*i
                e(f"v_and_b32 v{24+2*i}, {sT2}, v{b}"); e(f"v_and_b32 v{25+2*i}, {sT2}, v{b+2}")
                e(f"v_xor_b32 v{24+2*i}, {sTL}, v{24+2*i}"); e(f"v_xor_b32 v{25+2*i}, {sTL}, v{25+2*i}")
                e(f"v_xor_b32 v{32+2*i}, {sTAG}, v{b+1}"); e(f"v_xor_b32 v{33+2*i}, {sTAG}, v{b+3}")
            e("v_or3_b32 v24, v24, v25, v26"); e("v_or3_b32 v27, v27, v28, v29"); e("v_or3_b32 v30, v30, v31, v32"); e("v_or3_b32 v33, v33, v34, v35")
            e("v_or3_b32 v36, v36, v37, v38"); e("v_or3_b32 v24, v24, v27, v30"); e("v_or3_b32 v33, v33, v36, v39"); e("v_or_b32 v24, v24, v33")
            e("v_cmp_ne_u32 vcc, 0, v24"); e("s_nop 1"); e("s_cbranch_vccz L_hq_ok")
            self.spin_dec("L_hq_poll")
            lab("L_hq_ok")
            if not self.dbgq: self.stamp(3)
            for i in range(4):
                b = 8 + 4*i
                e(f"v_perm_b32 v{24+i}, v{b+2}, v{b}, {sT3}")
            for i in range(4):
                e(f"ds_write_b32 v{vT}, v{24+i}" + (f" offset:{i*64}" if i else ""))
            e("s_waitcnt lgkmcnt(0)")
            if not self.dbgq: self.stamp(4)
        else:
            c("publish address: QM + ((kvh*8 + b)*32 + y)*128 + q*32 + cp*4 ; b = rho>>2, q = rho&3")
            e(f"v_lshrrev_b32 v{vT+4}, 2, v{vT}"); e(f"v_lshlrev_b32 v{vT+4}, 12, v{vT+4}")
            e(f"v_and_b32 v{vT+5}, 3, v{vT}"); e(f"v_lshl_add_u32 v{vT+4}, v{vT+5}, 5, v{vT+4}"); e(f"v_lshl_add_u32 v{vT+4}, v{vT+1}, 2, v{vT+4}")
            e(f"s_lshl_b32 {sT0}, {sKVH}, 15"); e(f"s_lshl_b32 {sT1}, {sY}, 7"); e(f"s_add_u32 {sT0}, {sT0}, {sT1}"); e(f"s_add_u32 {sT0}, {sT0}, {QM_BASE:#x}")
            e(f"s_mov_b32 {sSPIN}, {self.spin}")
            lab("L_hs1")
            e(f"ds_read_b32 v{vT+6}, v{vT+3}"); e("s_waitcnt lgkmcnt(0)")
            e(f"v_readfirstlane_b32 {sT1}, v{vT+6}"); e("s_nop 3")
            e(f"s_cmp_ge_u32 {sT1}, 4"); e("s_cbranch_scc1 L_hs1ok")
            self.spin_dec("L_hs1")
            lab("L_hs1ok")
            for w in range(4): e(f"ds_read_b64 v[{2*w}:{2*w+1}], v{vT+2} offset:{w*2048}")
            e("s_waitcnt lgkmcnt(0)")
            e("v_add_f32 v0, v0, v2"); e("v_add_f32 v1, v1, v3"); e("v_add_f32 v4, v4, v6"); e("v_add_f32 v5, v5, v7")
            e("v_add_f32 v0, v0, v4"); e("v_add_f32 v1, v1, v5")
            e("v_cvt_pk_bf16_f32 v0, v0, v1")
            e(f"buffer_store_dword v0, v{vT+4}, {SRD_WS}, {sT0} offen sc1")
            e("s_waitcnt vmcnt(0)")
            if not self.dbgq: self.stamp(2)
            c("last helper wave to finish signals: flag dword QF[kvh][y] := tag")
            e(f"v_mov_b32 v{vT+4}, 1"); e(f"v_mov_b32 v{vT+3}, {CNT+4}")
            e("s_mov_b64 exec, 1")
            e(f"ds_add_rtn_u32 v{vT+6}, v{vT+3}, v{vT+4}"); e("s_waitcnt lgkmcnt(0)")
            e(f"s_add_u32 {sTAG}, {sTAG}, {TAG_C:#x}")
            e(f"v_readfirstlane_b32 {sT1}, v{vT+6}"); e("s_nop 3")
            c("flag store: lane y' (0..31) writes QF[consumer = y'*8+kvh][y] ; consumer line = (y'*8+kvh)*128")
            e(f"s_cmp_eq_u32 {sT1}, 3"); e("s_cbranch_scc0 L_hnoflag")
            e("s_mov_b32 exec_lo, -1"); e("s_mov_b32 exec_hi, 0")
            e(f"v_lshlrev_b32 v{vT+5}, 10, v{vLANE}"); e(f"v_mov_b32 v{vT+4}, {sTAG}")
            e(f"s_lshl_b32 {sT4}, {sKVH}, 7"); e(f"s_lshl_b32 {sT5}, {sY}, 2"); e(f"s_add_u32 {sT4}, {sT4}, {sT5}"); e(f"s_add_u32 {sT4}, {sT4}, {QF_BASE:#x}")
            e(f"buffer_store_dword v{vT+4}, v{vT+5}, {SRD_WS}, {sT4} offen sc1")
            lab("L_hnoflag")
            e("s_mov_b64 exec, -1")
            if self.quiet: e("s_barrier")
            e(f"v_lshlrev_b32 v{vLIN16}, 4, v{vLANE}")
            e(f"s_cmp_lg_u32 {sHW}, 0"); e("s_cbranch_scc1 L_hq_done")
            c("H0: poll own flag line via scalar loads")
            e(f"s_lshl_b32 {sT4}, {sLID}, 7"); e(f"s_add_u32 {sT4}, {sT4}, {QF_BASE:#x}")
            e(f"s_add_u32 s32, s46, {sT4}"); e("s_addc_u32 s33, s47, 0")
            e(f"s_mov_b32 {sSPIN}, {self.spin}")
            lab("L_hq_poll")
            PR = (8, 48)
            for k, r in enumerate(PR): e(f"s_load_dwordx16 s[{r}:{r+15}], s[32:33], {64*k} glc")
            e("s_waitcnt lgkmcnt(0)")
            for k, r in enumerate(PR):
                for i in range(16):
                    e(f"s_xor_b32 s{r+i}, s{r+i}, {sTAG}")
                    if k or i: e(f"s_or_b32 s8, s8, s{r+i}")
            e("s_cmp_eq_u32 s8, 0"); e("s_cbranch_scc1 L_hq_ok")
            e(f"s_sleep {self.qsleep}")
            self.spin_dec("L_hq_poll")
            lab("L_hq_ok")
            if not self.dbgq: self.stamp(3)
            c("fetch Q (4 KB): QM + (kvh*8+b)*4096 + i*1024 + l*16")
            e(f"s_lshl_b32 {sT0}, {sKVH}, 3"); e(f"s_add_u32 {sT0}, {sT0}, {sB}"); e(f"s_lshl_b32 {sT0}, {sT0}, 12"); e(f"s_add_u32 {sT0}, {sT0}, {QM_BASE:#x}")
            for i in range(4):
                e(f"buffer_load_dwordx4 v[{4*i}:{4*i+3}], v{vLIN16}, {SRD_WS}, {sT0} offen" + (f" offset:{i*1024}" if i else "") + " sc1")
            c("LDS write address: QB + (4h+q)*528 + (128*(i&1) + 16yy + 8half)*2 ; yy=l>>3, q=(l>>1)&3, half=l&1, h=i>>1")
            e(f"v_lshrrev_b32 v{vT}, 1, v{vLANE}"); e(f"v_and_b32 v{vT}, 3, v{vT}")
            e(f"s_movk_i32 {sT1}, {QROW}"); e(f"v_mul_lo_u32 v{vT}, v{vT}, {sT1}")
            e(f"v_lshrrev_b32 v{vT+1}, 3, v{vLANE}"); e(f"v_lshl_add_u32 v{vT}, v{vT+1}, 5, v{vT}")
            e(f"v_and_b32 v{vT+1}, 1, v{vLANE}"); e(f"v_lshl_add_u32 v{vT}, v{vT+1}, 4, v{vT}")
            e(f"v_add_u32 v{vT}, {QB}, v{vT}")
            e("s_waitcnt vmcnt(0)")
            for i in range(4):
                o = (i >> 1) * 4 * QROW + (i & 1) * 256
                e(f"ds_write_b128 v{vT}, v[{4*i}:{4*i+3}]" + (f" offset:{o}" if o else ""))
            e("s_waitcnt lgkmcnt(0)")
            if not self.dbgq: self.stamp(4)
        lab("L_hq_done")
        e("s_barrier")
        self.srd(48, 34, 35, 28672)
        if self.wopf:
            c("L2 prefetch of this WG's 1/8 share of the wo quarter: rows r*128 + 16b .. +16 (14336 B contiguous); wave hw: 4KB pieces")
            e(f"s_lshl_b32 {sT0}, {sR}, 7"); e(f"s_lshl_b32 {sT1}, {sB}, 4"); e(f"s_add_u32 {sT0}, {sT0}, {sT1}"); e(f"s_mul_i32 {sT0}, {sT0}, 896")
            e(f"s_lshl_b32 {sT1}, {sHW}, 12"); e(f"s_add_u32 {sT0}, {sT0}, {sT1}")
            for i in range(4):
                e(f"buffer_load_dwordx4 v[{8+4*i}:{8+4*i+3}], v{vLIN16}, {SRD_WO}, {sT0} offen" + (f" offset:{i*1024}" if i else ""))
        c("clears: M1[g][recv=hw][sender=j] (2176B) and M2[b][r][hw] (2048B)")
        e(f"s_lshl_b32 {sT0}, {sG}, 2"); e(f"s_add_u32 {sT0}, {sT0}, {sHW}"); e(f"s_lshl_b32 {sT0}, {sT0}, 2"); e(f"s_add_u32 {sT0}, {sT0}, {sJ}")
        e(f"s_mul_i32 {sM1OUT}, {sT0}, {M1_SLICE}")
        e(f"s_lshl_b32 {sT0}, {sB}, 5"); e(f"s_add_u32 {sT0}, {sT0}, {sR}"); e(f"s_lshl_b32 {sT0}, {sT0}, 13"); e(f"s_lshl_b32 {sT1}, {sHW}, 11")
        e(f"s_add_u32 {sM2OUT}, {sT0}, {sT1}"); e(f"s_add_u32 {sM2OUT}, {sM2OUT}, {M2_BASE:#x}")
        for i in range(4): e(f"v_mov_b32 v{i}, -1")
        e(f"buffer_store_dwordx4 v[0:3], v{vLIN16}, {SRD_WS}, {sM1OUT} offen sc1")
        e(f"buffer_store_dwordx4 v[0:3], v{vLIN16}, {SRD_WS}, {sM1OUT} offen offset:1024 sc1")
        e(f"buffer_store_dwordx4 v[0:3], v{vLIN16}, {SRD_WS}, {sM2OUT} offen sc1")
        e(f"buffer_store_dwordx4 v[0:3], v{vLIN16}, {SRD_WS}, {sM2OUT} offen offset:1024 sc1")
        e("s_mov_b64 exec, 0xff")
        e(f"buffer_store_dwordx4 v[0:3], v{vLIN16}, {SRD_WS}, {sM1OUT} offen offset:2048 sc1")
        if self.dyn:
            c("group counter := 0 (j==0, hw==0)")
            e(f"s_or_b32 {sT0}, {sJ}, {sHW}"); e(f"s_cmp_lg_u32 {sT0}, 0"); e("s_cbranch_scc1 L_hnogc")
            e("s_mov_b64 exec, 1"); e(f"v_mov_b32 v4, 0"); e(f"s_lshl_b32 {sT0}, {sG}, 7"); e(f"s_add_u32 {sT0}, {sT0}, {GC_BASE:#x}")
            e(f"buffer_store_dword v4, v4, {SRD_WS}, {sT0} offen sc1")
            lab("L_hnogc")
        e("s_mov_b64 exec, -1")
        e("s_waitcnt vmcnt(0)")
        if self.dbgmid: self.stamp(1)
        c("last helper wave signals clears done: lane r' writes CF[consumer wg' = (r'>>2) + 32b + 8(r'&3)][r] := tag")
        e(f"v_mov_b32 v{vT+4}, 1"); e(f"v_mov_b32 v{vT+3}, {CNT+4}")
        e("s_mov_b64 exec, 1")
        e(f"ds_add_rtn_u32 v{vT+6}, v{vT+3}, v{vT+4}"); e("s_waitcnt lgkmcnt(0)")
        e(f"v_readfirstlane_b32 {sT1}, v{vT+6}"); e("s_nop 3")
        e("s_mov_b64 exec, -1")
        e(f"s_cmp_eq_u32 {sT1}, {3 if self.hop1 else 7}"); e("s_cbranch_scc0 L_hnoflag2")
        e(f"v_lshrrev_b32 v{vT+5}, 2, v{vLANE}"); e(f"v_and_b32 v{vT+6}, 3, v{vLANE}"); e(f"v_lshl_add_u32 v{vT+5}, v{vT+6}, 3, v{vT+5}")
        e(f"v_lshlrev_b32 v{vT+5}, 7, v{vT+5}"); e(f"v_mov_b32 v{vT+4}, {sTAG}")
        e(f"s_lshl_b32 {sT4}, {sB}, 12"); e(f"s_lshl_b32 {sT5}, {sR}, 2"); e(f"s_add_u32 {sT4}, {sT4}, {sT5}"); e(f"s_add_u32 {sT4}, {sT4}, {CF_BASE:#x}")
        e("s_mov_b32 exec_lo, -1"); e("s_mov_b32 exec_hi, 0")
        e(f"buffer_store_dword v{vT+4}, v{vT+5}, {SRD_WS}, {sT4} offen sc1")
        lab("L_hnoflag2")
        e("s_mov_b64 exec, -1")
        c("wo: load, transpose, park in AGPRs a[0:127]")
        e(f"s_mov_b32 {sSEL_LO}, 0x05040100"); e(f"s_mov_b32 {sSEL_HI}, 0x07060302")
        e(f"s_lshl_b32 {sT0}, {sR}, 7")
        if self.wosame: e(f"s_mov_b32 {sT0}, 0")
        e(f"v_lshlrev_b32 v{vT}, 3, v{vGQ}"); e(f"v_add_u32 v{vT}, {sT0}, v{vT}")
        e(f"s_movk_i32 {sT1}, 896"); e(f"v_mul_lo_u32 v{vT}, v{vT}, {sT1}")
        e(f"s_mul_i32 {sT0}, {sHW}, 224"); e(f"v_lshl_add_u32 v{vT}, v{vN}, 4, v{vT}"); e(f"v_add_u32 v{vT}, {sT0}, v{vT}")
        for ks in range(4):
            if self.nowo: break
            kk = 0 if self.wosame else ks
            e(f"s_mov_b32 {sT0}, {kk*32*896}"); e(f"s_mov_b32 {sT1}, {kk*32*896 + 4*896}")
            for i in range(8):
                so = sT0 if i < 4 else sT1
                o = (i & 3) * 896
                e(f"buffer_load_dwordx4 v[{4*i}:{4*i+3}], v{vT}, {SRD_WO}, {so} offen" + (f" offset:{o}" if o else ""))
                if self.wopace < 8 and (i + 1) % self.wopace == 0: e("s_waitcnt vmcnt(0)")
            e("s_waitcnt vmcnt(0)")
            for j in range(8):
                u = j >> 1; sel = sSEL_HI if (j & 1) else sSEL_LO
                for p in range(4):
                    e(f"v_perm_b32 v{32+4*j+p}, v{4*(2*p+1)+u}, v{4*(2*p)+u}, {sel}")
            for k in range(32): e(f"v_accvgpr_write_b32 a{32*ks+k}, v{32+k}")
        if self.dbgmid: self.stamp(2)
        c("wait until all WGs of batch b have cleared their outboxes: dword at kvh*32+4b == 0x01010101 for all kvh")
        e(f"s_cmp_lg_u32 {sHW}, 0"); e("s_cbranch_scc1 L_hclrok")
        e(f"s_lshl_b32 {sT0}, {sLID}, 7"); e(f"s_add_u32 {sT0}, {sT0}, {CF_BASE:#x}")
        e(f"v_and_b32 v{vT+1}, 31, v{vLANE}"); e(f"v_lshlrev_b32 v{vT+1}, 2, v{vT+1}")
        e(f"s_mov_b32 {sSPIN}, {self.spin}")
        lab("L_hclr")
        e(f"buffer_load_dword v{vT+2}, v{vT+1}, {SRD_WS}, {sT0} offen sc1"); e("s_waitcnt vmcnt(0)")
        e(f"v_cmp_ne_u32 vcc, {sTAG}, v{vT+2}"); e("s_nop 1"); e("s_cbranch_vccz L_hclrok")
        e("s_sleep 16")
        self.spin_dec("L_hclr")
        lab("L_hclrok")
        if self.dyn:
            e(f"s_cmp_lg_u32 {sHW}, 0"); e("s_cbranch_scc1 L_hnodyn")
            e(f"v_mov_b32 v{vT+1}, {CNT+8}"); e(f"v_mov_b32 v{vT+2}, 1"); e(f"ds_write_b32 v{vT+1}, v{vT+2}")
            lab("L_hnodyn")
        if self.dbgmid: self.stamp(3)
        if self.ldyn:
            c("H0: late balance exchange with partner (lid ^ 8). LDS: CNT+8 tile counter, CNT+12 limit, CNT+16 final")
            e(f"s_cmp_lg_u32 {sHW}, 0"); e("s_cbranch_scc1 L_hbaldone")
            e(f"v_mov_b32 v{vT}, {CNT+8}"); e(f"s_mov_b32 {sSPIN}, {self.spin}")
            lab("L_hb0")
            e(f"ds_read_b32 v0, v{vT}"); e("s_waitcnt lgkmcnt(0)")
            e(f"v_readfirstlane_b32 {sT0}, v0"); e("s_nop 3")
            e(f"s_cmp_ge_u32 {sT0}, {self.t0s}"); e("s_cbranch_scc1 L_hb0ok")
            e("s_sleep 32"); self.spin_dec("L_hb0")
            lab("L_hb0ok")
            e("s_memrealtime s[8:9]"); e("s_waitcnt lgkmcnt(0)")
            e(f"s_lshl_b32 {sT1}, {sLID}, 7"); e(f"s_add_u32 {sT1}, {sT1}, {BAL_BASE:#x}")
            e(f"s_add_u32 s10, s46, {sT1}"); e("s_addc_u32 s11, s47, 0")
            e(f"s_mov_b32 {sSPIN}, {self.spin}")
            lab("L_hb1")
            e(f"ds_read_b32 v0, v{vT}"); e("s_load_dwordx8 s[12:19], s[10:11], 0 glc"); e("s_waitcnt lgkmcnt(0)")
            e(f"v_readfirstlane_b32 {sT2}, v0"); e("s_nop 3")
            e(f"s_cmp_ge_u32 {sT2}, {self.t1s}"); e("s_cbranch_scc1 L_hb1ok")
            e(f"s_cmp_eq_u32 s17, {sTAG}"); e("s_cbranch_scc1 L_hb1ok")
            e("s_sleep 12"); self.spin_dec("L_hb1")
            lab("L_hb1ok")
            e("s_memrealtime s[20:21]"); e("s_waitcnt lgkmcnt(0)")
            c("publish {T0|T1<<16, tag, tau0, tag} {tau1, tag}")
            e(f"s_lshl_b32 {sT3}, {sT2}, 16"); e(f"s_or_b32 {sT3}, {sT3}, {sT0}")
            e(f"v_mov_b32 v4, {sT3}"); e(f"v_mov_b32 v5, {sTAG}"); e("v_mov_b32 v6, s8"); e(f"v_mov_b32 v7, {sTAG}"); e("v_mov_b32 v8, s20"); e(f"v_mov_b32 v9, {sTAG}"); e("v_mov_b32 v10, 0")
            e(f"s_xor_b32 {sT1}, {sLID}, 8"); e(f"s_lshl_b32 {sT1}, {sT1}, 7"); e(f"s_add_u32 {sT1}, {sT1}, {BAL_BASE:#x}")
            e("s_mov_b64 exec, 1")
            e(f"buffer_store_dwordx4 v[4:7], v10, {SRD_WS}, {sT1} offen sc1")
            e(f"buffer_store_dwordx2 v[8:9], v10, {SRD_WS}, {sT1} offen offset:16 sc1")
            e(f"s_mov_b32 {sSPIN}, {self.spin}")
            lab("L_hb2")
            e("s_load_dwordx8 s[12:19], s[10:11], 0 glc"); e("s_waitcnt lgkmcnt(0)")
            e(f"s_xor_b32 s22, s13, {sTAG}"); e(f"s_xor_b32 s23, s15, {sTAG}"); e("s_or_b32 s22, s22, s23"); e(f"s_xor_b32 s23, s17, {sTAG}"); e("s_or_b32 s22, s22, s23")
            e("s_cmp_eq_u32 s22, 0"); e("s_cbranch_scc1 L_hb2ok")
            e("s_sleep 4"); self.spin_dec("L_hb2")
            e("v_mov_b32 v20, 128"); e("s_branch L_hb3")
            lab("L_hb2ok")
            c("own: sT3 = T0|T1<<16, s8 tau0, s20 tau1 ; partner: s12 = T0|T1<<16, s14 tau0, s16 tau1 ; put A in (s12a..), role 1 swaps")
            e(f"s_and_b32 {sT1}, {sJ}, 1"); e(f"s_cmp_eq_u32 {sT1}, 0")
            e(f"s_cselect_b32 s22, {sT3}, s12"); e("s_cselect_b32 s23, s8, s14"); e("s_cselect_b32 s9, s20, s16")
            e(f"s_cselect_b32 s12, s12, {sT3}"); e("s_cselect_b32 s14, s14, s8"); e("s_cselect_b32 s16, s16, s20")
            c("rA = (T1A-T0A)/(tau1A-tau0A) ; nA = (TA1*rB' ...)  solve tauA + (n-TA)/rA = tauB + (256-n-TB)/rB")
            e("s_lshr_b32 s13, s22, 16"); e("s_and_b32 s22, s22, 0xffff")
            e("s_lshr_b32 s15, s12, 16"); e("s_and_b32 s12, s12, 0xffff")
            e("s_sub_u32 s22, s13, s22"); e("s_sub_u32 s23, s9, s23")
            e("s_sub_u32 s12, s15, s12"); e("s_sub_u32 s14, s16, s14")
            e("s_sub_u32 s16, s16, s9")
            e("v_cvt_f32_u32 v0, s22"); e("v_cvt_f32_u32 v1, s23"); e("v_cvt_f32_u32 v2, s12"); e("v_cvt_f32_u32 v3, s14")
            e("v_cvt_f32_i32 v4, s16"); e("v_cvt_f32_u32 v5, s13"); e("v_cvt_f32_u32 v6, s15")
            c("pA = dtauA/dTA (time per tile), pB = dtauB/dTB ; n = (delta + TA*pA + (256 - TB)*pB) / (pA + pB)")
            e("v_rcp_f32 v0, v0"); e("v_rcp_f32 v2, v2"); e("s_nop 0")
            e("v_mul_f32 v1, v1, v0"); e("v_mul_f32 v3, v3, v2")
            e(f"v_sub_f32 v6, {fbits(256.0):#x}, v6")
            e("v_fmac_f32 v4, v5, v1"); e("v_fmac_f32 v4, v6, v3")
            e("v_add_f32 v6, v1, v3"); e("v_rcp_f32 v6, v6"); e("s_nop 0")
            e("v_mul_f32 v5, v4, v6"); e("v_add_f32 v5, 0.5, v5"); e("v_cvt_i32_f32 v20, v5")
            e(f"v_max_i32 v20, {self.plo}, v20"); e(f"v_min_i32 v20, {256-self.plo}, v20")
            e(f"s_cmp_eq_u32 {sT1}, 0"); e(f"s_cbranch_scc1 L_hb3")
            e(f"v_sub_u32 v20, 256, v20")
            lab("L_hb3")
            e("v_mov_b32 v21, 1"); e(f"v_mov_b32 v22, {CNT+12}")
            e("ds_write_b32 v22, v20"); e("s_waitcnt lgkmcnt(0)"); e("ds_write_b32 v22, v21 offset:4")
            e("s_mov_b64 exec, -1")
            lab("L_hbaldone")
        elif self.bal:
            c("H0: balance exchange with partner (lid ^ 8)")
            e(f"s_cmp_lg_u32 {sHW}, 0"); e("s_cbranch_scc1 L_hbaldone")
            e(f"v_mov_b32 v{vT}, {CNT+8}"); e(f"s_mov_b32 {sSPIN}, {self.spin}")
            lab("L_hbal1")
            e(f"ds_read_b64 v[0:1], v{vT}"); e("s_waitcnt lgkmcnt(0)")
            e(f"v_readfirstlane_b32 {sT0}, v1"); e("s_nop 3")
            e(f"s_cmp_lg_u32 {sT0}, 0"); e("s_cbranch_scc1 L_hbal1ok")
            e("s_sleep 32")
            self.spin_dec("L_hbal1")
            lab("L_hbal1ok")
            c("v0 = a (time at ta), v1 = c (time at tb): publish {a, tag, c, tag}")
            e(f"v_mov_b32 v4, v0"); e(f"v_mov_b32 v5, {sTAG}"); e(f"v_mov_b32 v6, v1"); e(f"v_mov_b32 v7, {sTAG}"); e("v_mov_b32 v8, 0")
            e(f"s_xor_b32 {sT0}, {sLID}, 8"); e(f"s_lshl_b32 {sT0}, {sT0}, 7"); e(f"s_add_u32 {sT0}, {sT0}, {BAL_BASE:#x}")
            e("s_mov_b64 exec, 1")
            e(f"buffer_store_dwordx4 v[4:7], v8, {SRD_WS}, {sT0} offen sc1")
            e(f"s_lshl_b32 {sT0}, {sLID}, 7"); e(f"s_add_u32 {sT0}, {sT0}, {BAL_BASE:#x}")
            e(f"s_mov_b32 {sSPIN}, {self.spin}")
            lab("L_hbal2")
            e(f"buffer_load_dwordx4 v[12:15], v8, {SRD_WS}, {sT0} offen sc1"); e("s_waitcnt vmcnt(0)")
            e(f"v_xor_b32 v16, {sTAG}, v13"); e(f"v_xor_b32 v17, {sTAG}, v15"); e("v_or_b32 v16, v16, v17")
            e("s_nop 0"); e(f"v_readfirstlane_b32 {sT1}, v16"); e("s_nop 3")
            e(f"s_cmp_eq_u32 {sT1}, 0"); e("s_cbranch_scc1 L_hbal2ok")
            e("s_sleep 16")
            self.spin_dec("L_hbal2")
            c("timeout: both sides cannot agree -> cannot happen in a healthy run; use N = 32")
            e("v_mov_b32 v20, 32"); e("s_branch L_hbal3")
            lab("L_hbal2ok")
            c("A = role 0, B = role 1: (aA,cA) in v[0:1] / (aB,cB) in v12,v14 for role 0; swapped for role 1")
            e(f"s_and_b32 {sT1}, {sJ}, 1"); e(f"s_cmp_eq_u32 {sT1}, 0")
            e("s_cbranch_scc1 L_hbalA")
            e("v_mov_b32 v18, v0"); e("v_mov_b32 v19, v1"); e("v_mov_b32 v0, v12"); e("v_mov_b32 v1, v14"); e("v_mov_b32 v12, v18"); e("v_mov_b32 v14, v19")
            lab("L_hbalA")
            e("v_sub_u32 v2, v1, v0"); e("v_sub_u32 v3, v14, v12"); e("v_sub_u32 v4, v14, v1")
            e("v_cvt_f32_i32 v2, v2"); e("v_cvt_f32_i32 v3, v3"); e("v_cvt_f32_i32 v4, v4")
            nint = self.tb - self.ta
            e(f"v_mul_f32 v5, {fbits(float(nint)):#x}, v4")
            e(f"v_mov_b32 v6, {fbits(float(64-self.tb)):#x}"); e("v_fmac_f32 v5, v6, v3")
            e(f"v_mov_b32 v6, {fbits(float(self.tb)):#x}"); e("v_fmac_f32 v5, v6, v2")
            e("v_add_f32 v6, v2, v3"); e("v_rcp_f32 v6, v6"); e("s_nop 0")
            e("v_mul_f32 v5, v5, v6"); e("v_add_f32 v5, 0.5, v5"); e("v_cvt_i32_f32 v20, v5")
            e(f"v_max_i32 v20, {self.nlo}, v20"); e(f"v_min_i32 v20, {64-self.nlo}, v20")
            e(f"s_cbranch_scc1 L_hbal3")
            e("v_sub_u32 v20, 64, v20")
            lab("L_hbal3")
            e(f"v_mov_b32 v21, {CNT+16}"); e("ds_write_b32 v21, v20")
            e("s_mov_b64 exec, -1")
            lab("L_hbaldone")
        e(f"s_mov_b32 {sC}, {fbits(C_LOG2E_16):#x}")
        c("precompute tail addresses")
        e(f"s_lshl_b32 {sT0}, {sG}, 2"); e(f"s_add_u32 {sT0}, {sT0}, {sJ}"); e(f"s_mul_i32 {sT0}, {sT0}, {4*M1_SLICE}")
        e(f"s_add_u32 {sT1}, {sT0}, {M1_SLICE}"); e(f"s_add_u32 {sT2}, {sT0}, {2*M1_SLICE}"); e(f"s_add_u32 {sT3}, {sT0}, {3*M1_SLICE}")
        hST = 108
        e(f"v_and_b32 v{hST}, 3, v{vLANE}"); e(f"v_lshlrev_b32 v{hST}, 3, v{hST}")
        hOW, hOR, hYS, hP2, hOUT = 109, 110, 111, 112, 113
        e(f"v_and_b32 v{hOW}, 3, v{vLANE}"); e(f"s_movk_i32 {sT4}, {OROW}"); e(f"v_mul_lo_u32 v{hOW}, v{hOW}, {sT4}")
        e(f"v_lshrrev_b32 v{vT}, 2, v{vLANE}"); e(f"v_lshl_add_u32 v{hOW}, v{vT}, 4, v{hOW}"); e(f"v_add_u32 v{hOW}, {OB}, v{hOW}")
        e(f"v_and_b32 v{hOR}, 3, v{vN}"); e(f"v_mul_lo_u32 v{hOR}, v{hOR}, {sT4}"); e(f"v_lshl_add_u32 v{hOR}, v{vGQ}, 4, v{hOR}"); e(f"v_add_u32 v{hOR}, {OB}, v{hOR}")
        e(f"v_lshlrev_b32 v{hYS}, 6, v{vGQ}"); e(f"v_lshl_add_u32 v{hYS}, v{vN}, 4, v{hYS}")
        e(f"v_lshlrev_b32 v{hP2}, 16, v{vGQ}"); e(f"v_lshl_add_u32 v{hP2}, v{vN}, 4, v{hP2}")
        e(f"v_and_b32 v{hOUT}, 3, v{vN}"); e(f"s_lshl_b32 {sT4}, {sB}, 2"); e(f"v_add_u32 v{hOUT}, {sT4}, v{hOUT}")
        e(f"s_movk_i32 {sT4}, 896"); e(f"v_mul_lo_u32 v{hOUT}, v{hOUT}, {sT4}")
        e(f"v_lshrrev_b32 v{vT}, 2, v{vN}"); e(f"v_lshl_add_u32 v{hOUT}, v{vT}, 6, v{hOUT}")
        e(f"s_lshl_b32 s58, {sB}, 18"); e(f"s_lshr_b32 {sT4}, {sR}, 3"); e(f"s_lshl_b32 {sT4}, {sT4}, 11"); e(f"s_add_u32 s58, s58, {sT4}")
        e(f"s_and_b32 {sT4}, {sR}, 7"); e(f"s_lshl_b32 {sT4}, {sT4}, 8"); e(f"s_add_u32 s58, s58, {sT4}"); e(f"s_add_u32 s58, s58, {M2_BASE:#x}")
        e(f"s_lshr_b32 s59, {sR}, 3"); e(f"s_mul_i32 s59, s59, 224"); e(f"s_and_b32 {sT4}, {sR}, 7"); e(f"s_lshl_b32 {sT4}, {sT4}, 1"); e(f"s_add_u32 s59, s59, {sT4}")
        self.stamp(5)
        e("s_barrier")
        if self.notail: e("s_branch L_fin")
        e(f"s_cmp_lg_u32 {sHW}, 0"); e("s_cbranch_scc1 L_t3done")
        e(f"s_mov_b32 {sSPIN}, {self.spin}")
        PB = 0
        lab("L_poll1")
        for jj, so in enumerate((sT0, sT1, sT2, sT3)):
            e(f"buffer_load_dwordx4 v[{PB+8*jj}:{PB+8*jj+3}], v{vLIN16}, {SRD_WS}, {so} offen sc1")
            e(f"buffer_load_dwordx4 v[{PB+8*jj+4}:{PB+8*jj+7}], v{vLIN16}, {SRD_WS}, {so} offen offset:1024 sc1")
            e(f"buffer_load_dwordx2 v[{PB+32+2*jj}:{PB+32+2*jj+1}], v{hST}, {SRD_WS}, {so} offen offset:2048 sc1")
        e("s_waitcnt vmcnt(0)")
        mx = vT + 1
        e(f"v_max3_u32 v{mx}, v{PB}, v{PB+1}, v{PB+2}")
        for k in range(3, 39, 2): e(f"v_max3_u32 v{mx}, v{mx}, v{PB+k}, v{PB+k+1}")
        e(f"v_max_u32 v{mx}, v{mx}, v{PB+39}")
        e(f"v_cmp_eq_u32 vcc, -1, v{mx}"); e("s_nop 1"); e("s_cbranch_vccz L_poll1ok")
        self.spin_dec("L_poll1")
        lab("L_poll1ok")
        ST = PB + 32; a0 = vT + 2; F = vT + 4
        e(f"v_max3_f32 v{a0}, v{ST}, v{ST+2}, v{ST+4}"); e(f"v_max_f32 v{a0}, v{a0}, v{ST+6}")
        for w in range(4): e(f"v_sub_f32 v{F+w}, v{ST+2*w}, v{a0}")
        for w in range(4): e(f"v_mul_f32 v{F+w}, {sC}, v{F+w}")
        for w in range(4): e(f"v_exp_f32 v{F+w}, v{F+w}")
        e("s_nop 0")
        e(f"v_mul_f32 v{a0}, v{F}, v{ST+1}")
        for w in range(1, 4): e(f"v_fmac_f32 v{a0}, v{F+w}, v{ST+2*w+1}")
        e(f"v_rcp_f32 v{a0}, v{a0}"); e("s_nop 0")
        for w in range(4): e(f"v_mul_f32 v{F+w}, v{F+w}, v{a0}")
        ACC = ST
        for k in range(8): e(f"v_mul_f32 v{ACC+k}, v{F}, v{PB+k}")
        for w in range(1, 4):
            for k in range(8): e(f"v_fmac_f32 v{ACC+k}, v{F+w}, v{PB+8*w+k}")
        for p in range(4): e(f"v_cvt_pk_bf16_f32 v{PB+p}, v{ACC+2*p}, v{ACC+2*p+1}")
        e(f"ds_write_b128 v{hOW}, v[{PB}:{PB+3}]")
        lab("L_t3done")
        e("s_waitcnt lgkmcnt(0)"); e("s_barrier")
        self.stamp(6)
        BF = 64 + 48 - 64 + 40
        BF = 40
        for ks in range(4):
            e(f"ds_read_b128 v[{BF+4*ks}:{BF+4*ks+3}], v{hOR}" + (f" offset:{ks*64}" if ks else ""))
        YA = 0
        e("s_waitcnt lgkmcnt(0)")
        for ks in range(4):
            for j in range(8):
                A = 32*ks + 4*j
                cc = "0" if ks == 0 else f"v[{YA+4*j}:{YA+4*j+3}]"
                e(f"v_mfma_f32_16x16x32_bf16 v[{YA+4*j}:{YA+4*j+3}], a[{A}:{A+3}], v[{BF+4*ks}:{BF+4*ks+3}], {cc}")
        e("s_mov_b32 exec_lo, 0x000f000f"); e("s_mov_b32 exec_hi, 0x000f000f")
        self.nop(6)
        for j in range(8):
            e(f"buffer_store_dwordx4 v[{YA+4*j}:{YA+4*j+3}], v{hYS}, {SRD_WS}, {sM2OUT} offen offset:{j*256} sc1")
        e("s_mov_b64 exec, -1")
        e(f"s_cmp_lg_u32 {sHW}, 0"); e("s_cbranch_scc1 L_fin")
        e(f"s_mov_b32 {sSPIN}, {self.spin}")
        PB = 64
        lab("L_poll2")
        for i in range(8):
            if i == 0: so = "s58"
            else:
                e(f"s_add_u32 {sT1}, s58, {i*8192}"); so = sT1
            e(f"buffer_load_dwordx4 v[{PB+4*i}:{PB+4*i+3}], v{hP2}, {SRD_WS}, {so} offen sc1")
        e("s_waitcnt vmcnt(0)")
        mx = 60
        e(f"v_max3_u32 v{mx}, v{PB}, v{PB+1}, v{PB+2}")
        for k in range(3, 31, 2): e(f"v_max3_u32 v{mx}, v{mx}, v{PB+k}, v{PB+k+1}")
        e(f"v_max_u32 v{mx}, v{mx}, v{PB+31}")
        e(f"v_cmp_eq_u32 vcc, -1, v{mx}"); e("s_nop 1"); e("s_cbranch_vccz L_poll2ok")
        self.spin_dec("L_poll2")
        lab("L_poll2ok")
        for k in range(4): e(f"v_add_f32 v{32+k}, v{PB+k}, v{PB+4+k}")
        for i in range(2, 8):
            for k in range(4): e(f"v_add_f32 v{32+k}, v{32+k}, v{PB+4*i+k}")
        for k in range(4): e(f"v_mov_b32 v{36+k}, v{32+k}")
        e("s_nop 0")
        for k in range(4): e(f"v_permlane32_swap_b32 v{36+k}, v{32+k}")
        for k in range(4): e(f"v_add_f32 v{32+k}, v{32+k}, v{36+k}")
        for k in range(4): e(f"v_mov_b32 v{36+k}, v{32+k}")
        e("s_nop 0")
        for k in range(4): e(f"v_permlane16_swap_b32 v{36+k}, v{32+k}")
        for k in range(4): e(f"v_add_f32 v{32+k}, v{32+k}, v{36+k}")
        e("v_cvt_pk_bf16_f32 v40, v32, v33"); e("v_cvt_pk_bf16_f32 v41, v34, v35")
        e("s_mov_b64 exec, 0xffff")
        e(f"buffer_store_short v40, v{hOUT}, {SRD_OUT}, s59 offen")
        e(f"buffer_store_short_d16_hi v40, v{hOUT}, {SRD_OUT}, s59 offen offset:16")
        e("s_mov_b64 exec, 0xfff")
        e(f"buffer_store_short v41, v{hOUT}, {SRD_OUT}, s59 offen offset:32")
        e(f"buffer_store_short_d16_hi v41, v{hOUT}, {SRD_OUT}, s59 offen offset:48")
        e(f"s_cmp_lg_u32 {sLID}, 0"); e("s_cbranch_scc1 L_noep")
        e("s_mov_b64 exec, 1")
        e(f"v_mov_b32 v42, s60"); e(f"v_mov_b32 v43, s61"); e(f"v_mov_b32 v44, 0"); e(f"s_mov_b32 {sT0}, {EPOCH_OFF:#x}")
        e(f"buffer_store_dwordx2 v[42:43], v44, {SRD_WS}, {sT0} offen sc1")
        lab("L_noep")
        e("s_mov_b64 exec, -1")
        lab("L_fin")
        if self.dbgspan:
            c("debug: dbg[0]=max(~start) dbg[1]=max(end of H0) dbg[2]=max(loop end), dbg[3]=max(loop begin)")
            e("s_memrealtime s[98:99]"); e("s_waitcnt vmcnt(0) lgkmcnt(0)")
            self.srd(52, 44, 45, 256)
            e("s_mov_b64 exec, 1")
            e("s_not_b32 s97, s100"); e("v_mov_b32 v0, s97"); e("v_mov_b32 v1, s98"); e("v_mov_b32 v2, 0")
            e(f"buffer_atomic_umax v0, v2, {SRD_DBG}, 0 offen sc1")
            e(f"buffer_atomic_umax v1, v2, {SRD_DBG}, 0 offen offset:4 sc1")
            e(f"s_cmp_ge_u32 {sW}, 4"); e("s_cbranch_scc1 L_dbgdone")
            e("v_mov_b32 v0, s90"); e("v_mov_b32 v1, s88")
            e(f"buffer_atomic_umax v0, v2, {SRD_DBG}, 0 offen offset:8 sc1")
            e(f"buffer_atomic_umax v1, v2, {SRD_DBG}, 0 offen offset:12 sc1")
            lab("L_dbgdone")
            e("s_waitcnt vmcnt(0)")
        if self.stamps:
            self.stamp(7)
            e("s_waitcnt vmcnt(0) lgkmcnt(0)")
            e(f"s_lshl_b32 {sT0}, {sWG}, 3"); e(f"s_add_u32 {sT0}, {sT0}, {sW}"); e(f"s_lshl_b32 {sT0}, {sT0}, 5"); e(f"s_add_u32 {sT0}, {sT0}, {STAMP_BASE:#x}")
            if self.bal or self.ldyn:
                e(f"s_cmp_lt_u32 {sW}, 4"); e("s_cbranch_scc0 L_non"); e(f"s_mov_b32 s96, {sN}"); lab("L_non")
            for i in range(8): e(f"v_mov_b32 v{i}, s{84+2*i}")
            e("v_mov_b32 v8, 0")
            e("s_mov_b64 exec, 1")
            e(f"buffer_store_dwordx4 v[0:3], v8, {SRD_WS}, {sT0} offen")
            e(f"buffer_store_dwordx4 v[4:7], v8, {SRD_WS}, {sT0} offen offset:16")
            e("s_waitcnt vmcnt(0)")
        lab("L_end")
        e("s_endpgm")
        L.append('.section .rodata,"a"'); L.append(".p2align 6"); L.append(f".amdhsa_kernel {NAME}_kernel")
        for d in ("next_free_vgpr 256", "next_free_sgpr 102", "accum_offset 128", "group_segment_fixed_size 0", "kernarg_size 64",
                  "user_sgpr_count 2", "user_sgpr_kernarg_segment_ptr 1", "system_sgpr_workgroup_id_x 1"):
            L.append("  .amdhsa_" + d)
        L.append(".end_amdhsa_kernel")
        return "\n".join(L) + "\n"

if __name__ == "__main__":
    import argparse
    ap = argparse.ArgumentParser()
    ap.add_argument("out"); ap.add_argument("--stamps", action="store_true"); ap.add_argument("--opt", default="{}")
    a = ap.parse_args()
    open(a.out, "w").write(Gen(stamps=a.stamps, **eval("dict(" + a.opt + ")" if not a.opt.startswith(("{", "dict")) else a.opt)).build())
```

```python
import sys, struct

NAME = "standalone__gqa_block_cached__sampling"
HDR = open("standalone__gqa_block_cached__sampling.s.ref").read().split("; Override")[0]

QB = 131072; QROW = 528
STB = QB + 8 * QROW
OB = STB + 256
OROW = 272
CNT = OB + 4 * OROW
WQS = 136704
RED = WQS + 16384
OWROW = 1040
LDS_BYTES = 163840
assert RED + 8192 <= LDS_BYTES

M1_SLICE = 2176
M2_BASE = 0x400000
QM_BASE = 0x600000
QF_BASE = 0x740000
CF_BASE = 0x760000
BAL_BASE = 0x7a0000
GC_BASE = 0x788000
EPOCH_OFF = 0x790000
TAG_C = 0x9E3779B9
STAMP_BASE = 0x800000
WS_BYTES = 0x1000000

sWG, sW, sKVH, sJ, sB = "s2", "s3", "s4", "s5", "s6"
sHW = "s7"
SRD_K, SRD_V, SRD_WQ, SRD_X, SRD_WO, SRD_WS = "s[8:11]", "s[12:15]", "s[16:19]", "s[20:23]", "s[24:27]", "s[28:31]"
SRD_OUT, SRD_DBG = "s[48:51]", "s[52:55]"
sKOFF, sVOFF = "s60", "s61"
sWB = "s62"
sKSLOT, sVSLOT = "s63", "s64"
sT = "s65"
sC, sNC = "s66", "s67"
sG = "s68"; sR = "s69"
sM1OUT, sM2OUT = "s70", "s71"
sT0, sT1, sT2, sT3, sT4, sT5 = "s72", "s73", "s74", "s75", "s76", "s77"
sSEL_LO, sSEL_HI = "s78", "s79"
sY = "s80"; sSPIN = "s81"; sTAG = "s82"; sLID = "s83"; sTL = "s59"
sN = "s56"; sGB = "s57"; sGC = "s58"; sSTAT = "s59"; sSTEP = "s57"
vA = 108; vZERO = 110
STAMPS = ["s[84:85]", "s[86:87]", "s[88:89]", "s[90:91]", "s[92:93]", "s[94:95]", "s[96:97]", "s[98:99]"]

vO = 0
vLANE, vN, vGQ, vTMPA = 64, 65, 66, 67
vDMA = 68; vKA = 72; vVA = 76; vS = 84; vP = 88; vM, vL = 90, 91; vAL = 92
vT = 94
vLIN16 = 104; vODUMP = 105; vT2A, vT2B = 106, 107
AQ, AK, AV = 0, 32, 64

C_LOG2E_16 = 1.4426950408889634 / 16.0
def fbits(x): return struct.unpack("<I", struct.pack("<f", x))[0]

class Gen:
    def __init__(self, stamps=False, flags="nt", spin=1 << 18, kwait=16, nocomp=False, notail=False, wopace=8, hprio=0, qsleep=2, pace=3, dbgmid=False, nowo=False, noclr=False, v0pre=True, wosame=False, wopf=True, vwait=24, rate=False, noqwait=False, hexit=False, order2=True, kwait2=24, dyn=False, n0=16, pairmap=True, bal=True, ta=4, tb=11, tc=21, nlo=24, quiet=0, dbgq=False, hop1=True, qdelay=True, pre0=2, ldyn=False, t0s=44, t1s=92, plo=108, xmap=1, dbgspan=False):
        self.dbgspan = dbgspan
        self.xmap = xmap
        self.ldyn = ldyn; self.t0s = t0s; self.t1s = t1s; self.plo = plo
        self.pre0 = pre0
        self.qdelay = qdelay
        self.hop1 = hop1
        self.dbgq = dbgq
        self.quiet = quiet
        self.bal = bal; self.ta = ta; self.tb = tb; self.tc = tc; self.nlo = nlo
        assert not (dyn and bal)
        self.dyn = dyn; self.n0 = n0; self.pairmap = pairmap
        self.order2 = order2; self.kwait2 = kwait2
        self.rate = rate; self.noqwait = noqwait; self.hexit = hexit
        self.vwait = vwait
        self.wopf = wopf
        self.wosame = wosame
        self.v0pre = v0pre
        self.dbgmid = dbgmid; self.nowo = nowo; self.noclr = noclr
        self.pace = pace
        self.qsleep = qsleep
        self.L = []; self.stamps = stamps; self.flags = flags; self.spin = spin; self.kwait = kwait
        self.nocomp = nocomp; self.notail = notail; self.wopace = wopace; self.hprio = hprio
    def e(self, s): self.L.append("  " + s)
    def lab(self, s): self.L.append(s + ":")
    def c(self, s): self.L.append("  ; " + s)
    def stamp(self, i):
        if self.stamps or (getattr(self, "dbgspan", False) and i in (2, 3)): self.e(f"s_memrealtime {STAMPS[i]}")
    def nop(self, n):
        while n > 0:
            k = min(n, 16); self.e(f"s_nop {k-1}"); n -= k
    def dma_half(self, srd, soff):
        for i in range(4):
            o = f" offset:{i*1024}" if i else ""
            self.e(f"buffer_load_dwordx4 v{vDMA+i}, {srd}, {soff} offen{o} {self.flags} lds")
    def dma_tile(self, srd, goff, slot):
        e = self.e
        e(f"s_mov_b32 m0, {slot}"); e(f"s_add_u32 {sT0}, {goff}, 16384")
        self.dma_half(srd, goff)
        e(f"s_add_u32 m0, {slot}, 4096"); e("s_nop 0")
        self.dma_half(srd, sT0)
    def dma_tile_static(self, isv, tile):
        e = self.e
        for half in range(2):
            e(f"s_add_u32 m0, {sWB}, {isv*16384 + tile*8192 + half*4096}")
            e(f"s_add_u32 {sT5}, {sKOFF}, {tile*32768 + half*16384}")
            self.dma_half(SRD_V if isv else SRD_K, sT5)
    def dma_half_static(self, hn):
        e = self.e
        tile, half, isv = hn >> 2, hn & 1, (hn >> 1) & 1
        if self.dyn:
            e(f"s_add_u32 m0, {sWB}, {isv*16384 + tile*8192 + half*4096}")
            e(f"s_add_u32 {sT5}, {sKOFF}, {tile*32768 + half*16384}")
        else:
            e(f"s_add_u32 {sT5}, {sKOFF}, {half*16384}")
            if tile: e(f"s_add_u32 {sT5}, {sT5}, {sSTEP}")
            e(f"s_add_u32 m0, {sWB}, {isv*16384 + tile*8192 + half*4096}"); e("s_nop 0")
        self.dma_half(SRD_V if isv else SRD_K, sT5)
    def read_k(self):
        for s in range(8):
            a, u = s >> 2, s & 3
            self.e(f"ds_read_b128 a[{AK+4*s}:{AK+4*s+3}], v{vKA+u}" + (f" offset:{a*256}" if a else ""))
    def read_v(self):
        for t in range(16):
            a, u = t >> 3, t & 7
            self.e(f"ds_read_b64_tr_b16 a[{AV+2*t}:{AV+2*t+1}], v{vVA+u}" + (f" offset:{a*256}" if a else ""))
    def srd(self, base, lo, hi, size):
        e = self.e
        e(f"s_mov_b32 s{base}, s{lo}"); e(f"s_and_b32 s{base+1}, s{hi}, 0xffff"); e(f"s_mov_b32 s{base+2}, {size:#x}"); e(f"s_mov_b32 s{base+3}, 0x20000")
    def spin_dec(self, label):
        e = self.e
        e(f"s_sub_u32 {sSPIN}, {sSPIN}, 1"); e(f"s_cmp_lg_u32 {sSPIN}, 0"); e(f"s_cbranch_scc1 {label}")

    def loop1(self):
        e, lab, c = self.e, self.lab, self.c
        lab("L_loop")
        if self.rate:
            for tt, si in ((8, 1), (16, 4), (24, 5)):
                e(f"s_cmp_lg_u32 {sT}, {tt}"); e(f"s_cbranch_scc1 L_rs{tt}"); e(f"s_memrealtime {STAMPS[si]}"); lab(f"L_rs{tt}")
        for s in range(8):
            if self.nocomp: break
            cc = "0" if s == 0 else f"v[{vS}:{vS+3}]"
            e(f"v_mfma_f32_16x16x32_bf16 v[{vS}:{vS+3}], a[{AK+4*s}:{AK+4*s+3}], a[{AQ+4*s}:{AQ+4*s+3}], {cc}")
        e(f"s_cmp_eq_u32 {sT}, 31"); e("s_cbranch_scc1 L_k31")
        e(f"s_waitcnt vmcnt({self.kwait})")
        self.read_k()
        e("s_waitcnt lgkmcnt(0)")
        e(f"s_cmp_ge_u32 {sT}, 29"); e("s_cbranch_scc1 L_kdone")
        self.dma_tile(SRD_K, sKOFF, sKSLOT)
        e(f"s_add_u32 {sKOFF}, {sKOFF}, 32768"); e(f"s_xor_b32 {sKSLOT}, {sKSLOT}, 8192")
        lab("L_kdone")
        for u in range(4): e(f"v_xor_b32 v{vKA+u}, 8192, v{vKA+u}")
        lab("L_soft")
        t0, t1, t2 = vT, vT+1, vT+2
        if self.nocomp: e("s_branch L_noresc")
        e(f"v_max3_f32 v{t0}, v{vS}, v{vS+1}, v{vS+2}")
        e(f"v_max_f32 v{t0}, v{t0}, v{vS+3}")
        e(f"v_mov_b32 v{t1}, v{t0}"); e("s_nop 1")
        e(f"v_permlane32_swap_b32 v{t1}, v{t0}")
        e(f"v_max_f32 v{t0}, v{t0}, v{t1}")
        e(f"v_mov_b32 v{t1}, v{t0}"); e("s_nop 1")
        e(f"v_permlane16_swap_b32 v{t1}, v{t0}")
        e(f"v_max3_f32 v{t0}, v{t0}, v{t1}, v{vM}")
        e(f"v_sub_f32 v{t1}, v{vM}, v{t0}")
        e(f"v_mul_f32 v{t1}, {sC}, v{t1}")
        e(f"v_mul_f32 v{t2}, {sNC}, v{t0}")
        e(f"v_exp_f32 v{vAL}, v{t1}")
        e(f"v_mov_b32 v{vM}, v{t0}")
        for r in range(4): e(f"v_fma_f32 v{vS+r}, v{vS+r}, {sC}, v{t2}")
        for r in range(4): e(f"v_exp_f32 v{vS+r}, v{vS+r}")
        e(f"v_cmp_neq_f32 vcc, 1.0, v{vAL}")
        e(f"v_add_f32 v{t0}, v{vS}, v{vS+1}"); e(f"v_add_f32 v{t1}, v{vS+2}, v{vS+3}")
        e(f"v_cvt_pk_bf16_f32 v{vP}, v{vS}, v{vS+1}"); e(f"v_cvt_pk_bf16_f32 v{vP+1}, v{vS+2}, v{vS+3}")
        e(f"v_add_f32 v{t0}, v{t0}, v{t1}"); e(f"v_fma_f32 v{vL}, v{vL}, v{vAL}, v{t0}")
        e("s_cbranch_vccz L_noresc")
        for i in range(32):
            e(f"v_pk_mul_f32 v[{vO+2*i}:{vO+2*i+1}], v[{vO+2*i}:{vO+2*i+1}], v[{vAL}:{vAL+1}] op_sel_hi:[1,0]")
        lab("L_noresc")
        c("V point: steady state vmcnt(24); near the end fewer ops are outstanding")
        if self.v0pre:
            e(f"s_cmp_eq_u32 {sT}, 0"); e("s_cbranch_scc1 L_pv")
        e(f"s_cmp_ge_u32 {sT}, 29"); e("s_cbranch_scc1 L_vlate")
        e(f"s_waitcnt vmcnt({self.vwait})")
        lab("L_vrd")
        self.read_v()
        e("s_waitcnt lgkmcnt(0)")
        e(f"s_cmp_ge_u32 {sT}, 30"); e("s_cbranch_scc1 L_vdone")
        self.dma_tile(SRD_V, sVOFF, sVSLOT)
        e(f"s_add_u32 {sVOFF}, {sVOFF}, 32768"); e(f"s_xor_b32 {sVSLOT}, {sVSLOT}, 8192")
        lab("L_vdone")
        for u in range(8): e(f"v_xor_b32 v{vVA+u}, 8192, v{vVA+u}")
        lab("L_pv")
        for t in range(16):
            if self.nocomp: break
            e(f"v_mfma_f32_16x16x16_bf16 v[{vO+4*t}:{vO+4*t+3}], a[{AV+2*t}:{AV+2*t+1}], v[{vP}:{vP+1}], v[{vO+4*t}:{vO+4*t+3}]")
        e(f"s_add_u32 {sT}, {sT}, 1"); e(f"s_cmp_lt_u32 {sT}, 32"); e("s_cbranch_scc1 L_loop")
        e("s_branch L_tail")
        lab("L_vlate")
        e(f"s_cmp_eq_u32 {sT}, 29"); e("s_cbranch_scc1 L_vrd")
        e(f"s_cmp_eq_u32 {sT}, 30"); e("s_cbranch_scc0 L_vlast")
        e("s_waitcnt vmcnt(8)"); e("s_branch L_vrd")
        lab("L_vlast")
        e("s_waitcnt vmcnt(0)"); e("s_branch L_vrd")
        lab("L_k31")
        self.nop(8)
        e("s_branch L_soft")


    def loop2(self):
        e, lab, c = self.e, self.lab, self.c
        dyn = self.dyn
        ld = self.ldyn
        lab("L_loop")
        if self.rate:
            for tt, si in ((8, 1), (16, 4), (24, 5)):
                e(f"s_cmp_lg_u32 {sT}, {tt}"); e(f"s_cbranch_scc1 L_rs{tt}"); e(f"s_memrealtime {STAMPS[si]}"); lab(f"L_rs{tt}")
        t0, t1, t2 = vT, vT+1, vT+2
        def cmpN(op, k):
            if dyn or self.bal or ld:
                e(f"s_sub_u32 {sT1}, {sN}, {k}"); e(f"s_cmp_{op}_u32 {sT}, {sT1}")
            else:
                e(f"s_cmp_{op}_u32 {sT}, {32-k}")
        if ld:
            c("grab next tile id (lane 0) and read limit/final early")
            cmpN("ge", 3); e("s_cbranch_scc1 L_nograb")
            e("s_mov_b64 exec, 1")
            e(f"ds_add_rtn_u32 v{vA}, v{vZERO}, v{vA+1}")
            e("s_mov_b64 exec, -1")
            lab("L_nograb")
        c("A: QK")
        for s in range(8):
            if self.nocomp: break
            cc = "0" if s == 0 else f"v[{vS}:{vS+3}]"
            e(f"v_mfma_f32_16x16x32_bf16 v[{vS}:{vS+3}], a[{AK+4*s}:{AK+4*s+3}], a[{AQ+4*s}:{AQ+4*s+3}], {cc}")
        c("B: K point")
        if self.bal and not ld:
            e(f"s_cmp_eq_u32 {sT}, {self.ta}"); e("s_cbranch_scc1 L_balst")
            e(f"s_cmp_eq_u32 {sT}, {self.tb}"); e("s_cbranch_scc1 L_balst")
            e(f"s_cmp_eq_u32 {sT}, {self.tc}"); e("s_cbranch_scc1 L_balget")
            lab("L_balback")
        cmpN("ge", 2); e("s_cbranch_scc1 L_klate")
        e(f"s_waitcnt vmcnt({self.kwait2})")
        lab("L_krd")
        self.read_k()
        if dyn:
            cmpN("ge", 3); e("s_cbranch_scc1 L_knoref")
            c("tile id for t+3 ; atomics run two iterations ahead (regs vA, vA+1 by parity of t)")
            e(f"s_cmp_ge_u32 {sT}, {self.n0-3}"); e("s_cbranch_scc1 L_dynid")
            e(f"s_mov_b32 {sT2}, {sSTAT}"); e(f"s_add_u32 {sSTAT}, {sSTAT}, 16")
            e(f"s_cmp_eq_u32 {sT}, {self.n0-5}"); e("s_cbranch_scc1 L_dynchk")
            e(f"s_cmp_eq_u32 {sT}, {self.n0-4}"); e("s_cbranch_scc1 L_atom")
            e("s_branch L_mkoff")
            lab("L_dynid")
            e(f"s_bitcmp1_b32 {sT}, 0"); e("s_cbranch_scc1 L_dynid1")
            e(f"v_readfirstlane_b32 {sT2}, v{vA}"); e("s_branch L_dynid2")
            lab("L_dynid1")
            e(f"v_readfirstlane_b32 {sT2}, v{vA+1}")
            lab("L_dynid2")
            e("s_nop 3")
            e(f"s_add_u32 {sT2}, {sT2}, {self.n0*16}")
            e(f"s_cmp_ge_u32 {sT2}, 512"); e("s_cbranch_scc1 L_exhaust")
            lab("L_atom")
            e("s_mov_b64 exec, 1")
            e(f"s_bitcmp1_b32 {sT}, 0"); e("s_cbranch_scc1 L_atom1")
            e(f"v_mov_b32 v{vA}, 1")
            e(f"buffer_atomic_add v{vA}, v{vZERO}, {SRD_WS}, {sGC} offen sc0 sc1"); e("s_branch L_atom2")
            lab("L_atom1")
            e(f"v_mov_b32 v{vA+1}, 1")
            e(f"buffer_atomic_add v{vA+1}, v{vZERO}, {SRD_WS}, {sGC} offen sc0 sc1")
            lab("L_atom2")
            e("s_mov_b64 exec, -1")
            lab("L_mkoff")
            e(f"s_lshr_b32 {sT3}, {sT2}, 2"); e(f"s_and_b32 {sT3}, {sT3}, 3"); e(f"s_lshl_b32 {sT3}, {sT3}, 20")
            e(f"s_lshr_b32 {sT4}, {sT2}, 4"); e(f"s_lshl_b32 {sT4}, {sT4}, 15"); e(f"s_add_u32 {sT3}, {sT3}, {sT4}")
            e(f"s_and_b32 {sT4}, {sT2}, 3"); e(f"s_lshl_b32 {sT4}, {sT4}, 12"); e(f"s_add_u32 {sT3}, {sT3}, {sT4}")
            e(f"s_add_u32 {sKOFF}, {sGB}, {sT3}")
            e("s_waitcnt lgkmcnt(0)")
            self.dma_tile(SRD_K, sKOFF, sKSLOT)
            e(f"s_xor_b32 {sKSLOT}, {sKSLOT}, 8192")
            e("s_branch L_kdone")
            lab("L_knoref")
            e("s_waitcnt lgkmcnt(0)")
        elif ld:
            e("s_waitcnt lgkmcnt(0)")
            cmpN("ge", 3); e("s_cbranch_scc1 L_kdone")
            e(f"v_readfirstlane_b32 {sT2}, v{vA}"); e("s_nop 3")
            e(f"s_cmp_ge_u32 {sT2}, {self.plo}"); e("s_cbranch_scc1 L_limchk")
            lab("L_tileok")
            e(f"s_xor_b32 {sT2}, {sT2}, {sSTAT}")
            e(f"s_lshr_b32 {sT3}, {sT2}, 2"); e(f"s_lshl_b32 {sT3}, {sT3}, 15"); e(f"s_and_b32 {sT2}, {sT2}, 3"); e(f"s_lshl_b32 {sT2}, {sT2}, 12")
            e(f"s_add_u32 {sKOFF}, {sGC}, {sT3}"); e(f"s_add_u32 {sKOFF}, {sKOFF}, {sT2}")
            self.dma_tile(SRD_K, sKOFF, sKSLOT)
            e(f"s_xor_b32 {sKSLOT}, {sKSLOT}, 8192")
        else:
            e("s_waitcnt lgkmcnt(0)")
            cmpN("ge", 3); e("s_cbranch_scc1 L_kdone")
            self.dma_tile(SRD_K, sKOFF, sKSLOT)
            e(f"s_add_u32 {sKOFF}, {sKOFF}, {sSTEP}"); e(f"s_xor_b32 {sKSLOT}, {sKSLOT}, 8192")
        lab("L_kdone")
        for u in range(4): e(f"v_xor_b32 v{vKA+u}, 8192, v{vKA+u}")
        lab("L_soft")
        c("C: softmax")
        if self.nocomp: e("s_branch L_noresc")
        e(f"v_max3_f32 v{t0}, v{vS}, v{vS+1}, v{vS+2}")
        e(f"v_max_f32 v{t0}, v{t0}, v{vS+3}")
        e(f"v_mov_b32 v{t1}, v{t0}"); e("s_nop 1")
        e(f"v_permlane32_swap_b32 v{t1}, v{t0}")
        e(f"v_max_f32 v{t0}, v{t0}, v{t1}")
        e(f"v_mov_b32 v{t1}, v{t0}"); e("s_nop 1")
        e(f"v_permlane16_swap_b32 v{t1}, v{t0}")
        e(f"v_max3_f32 v{t0}, v{t0}, v{t1}, v{vM}")
        e(f"v_sub_f32 v{t1}, v{vM}, v{t0}")
        e(f"v_mul_f32 v{t1}, {sC}, v{t1}")
        e(f"v_mul_f32 v{t2}, {sNC}, v{t0}")
        e(f"v_exp_f32 v{vAL}, v{t1}")
        e(f"v_mov_b32 v{vM}, v{t0}")
        for r in range(4): e(f"v_fma_f32 v{vS+r}, v{vS+r}, {sC}, v{t2}")
        for r in range(4): e(f"v_exp_f32 v{vS+r}, v{vS+r}")
        e(f"v_cmp_neq_f32 vcc, 1.0, v{vAL}")
        e(f"v_add_f32 v{t0}, v{vS}, v{vS+1}"); e(f"v_add_f32 v{t1}, v{vS+2}, v{vS+3}")
        e(f"v_cvt_pk_bf16_f32 v{vP}, v{vS}, v{vS+1}"); e(f"v_cvt_pk_bf16_f32 v{vP+1}, v{vS+2}, v{vS+3}")
        e(f"v_add_f32 v{t0}, v{t0}, v{t1}"); e(f"v_fma_f32 v{vL}, v{vL}, v{vAL}, v{t0}")
        e("s_cbranch_vccz L_noresc")
        for i in range(32):
            e(f"v_pk_mul_f32 v[{vO+2*i}:{vO+2*i+1}], v[{vO+2*i}:{vO+2*i+1}], v[{vAL}:{vAL+1}] op_sel_hi:[1,0]")
        lab("L_noresc")
        cmpN("eq", 1); e("s_cbranch_scc1 L_vjit")
        lab("L_pv")
        c("D: PV")
        for t in range(16):
            if self.nocomp: break
            e(f"v_mfma_f32_16x16x16_bf16 v[{vO+4*t}:{vO+4*t+3}], a[{AV+2*t}:{AV+2*t+1}], v[{vP}:{vP+1}], v[{vO+4*t}:{vO+4*t+3}]")
        c("E: V point")
        cmpN("ge", 3); e("s_cbranch_scc1 L_vlate")
        e(f"s_waitcnt vmcnt({self.vwait})")
        self.read_v()
        e("s_waitcnt lgkmcnt(0)")
        if dyn or ld:
            self.dma_tile(SRD_V, sKOFF, sVSLOT)
            e(f"s_xor_b32 {sVSLOT}, {sVSLOT}, 8192")
        else:
            self.dma_tile(SRD_V, sVOFF, sVSLOT)
            e(f"s_add_u32 {sVOFF}, {sVOFF}, {sSTEP}"); e(f"s_xor_b32 {sVSLOT}, {sVSLOT}, 8192")
        lab("L_vdone")
        for u in range(8): e(f"v_xor_b32 v{vVA+u}, 8192, v{vVA+u}")
        lab("L_next")
        e(f"s_add_u32 {sT}, {sT}, 1")
        if dyn or self.bal or ld: e(f"s_cmp_lt_u32 {sT}, {sN}")
        else: e(f"s_cmp_lt_u32 {sT}, 32")
        e("s_cbranch_scc1 L_loop")
        e("s_branch L_tail")
        lab("L_klate")
        cmpN("eq", 1); e("s_cbranch_scc1 L_k31")
        e("s_waitcnt vmcnt(8)"); e("s_branch L_krd")
        lab("L_k31")
        self.nop(8)
        e("s_branch L_soft")
        lab("L_vlate")
        cmpN("eq", 3); e("s_cbranch_scc0 L_next")
        e("s_waitcnt vmcnt(16)")
        self.read_v()
        e("s_waitcnt lgkmcnt(0)")
        e("s_branch L_vdone")
        lab("L_vjit")
        e("s_waitcnt vmcnt(0)")
        self.read_v()
        e("s_waitcnt lgkmcnt(0)")
        e("s_branch L_pv")
        if ld:
            lab("L_limchk")
            e(f"s_mov_b32 {sSPIN}, {self.spin}")
            e(f"v_mov_b32 v{t0}, {CNT+12}")
            lab("L_limchk1")
            e(f"ds_read2_b32 v[{t1+1}:{t1+2}], v{t0} offset0:0 offset1:1"); e("s_waitcnt lgkmcnt(0)")
            e(f"v_readfirstlane_b32 {sT3}, v{t1+2}"); e(f"v_readfirstlane_b32 {sT4}, v{t1+1}"); e("s_nop 3")
            e(f"s_cmp_lg_u32 {sT3}, 0"); e("s_cbranch_scc1 L_limfin")
            e("s_sleep 2")
            self.spin_dec("L_limchk1")
            lab("L_limfin")
            e(f"s_cmp_lt_u32 {sT2}, {sT4}"); e("s_cbranch_scc1 L_tileok")
            e(f"s_add_u32 {sN}, {sT}, 3")
            e("s_branch L_kdone")
        if self.bal and not ld:
            lab("L_balst")
            e(f"s_cmp_lg_u32 {sW}, 0"); e("s_cbranch_scc1 L_balback")
            e(f"s_memrealtime s[{sT2[1:]}:{sT3[1:]}]"); e("s_waitcnt lgkmcnt(0)")
            e(f"s_or_b32 {sT2}, {sT2}, 1")
            e(f"s_cmp_eq_u32 {sT}, {self.tb}"); e(f"s_cselect_b32 {sT3}, 4, 0"); e(f"s_add_u32 {sT3}, {sT3}, {CNT+8}")
            e(f"v_mov_b32 v{t0}, {sT3}"); e(f"v_mov_b32 v{t1}, {sT2}")
            e(f"ds_write_b32 v{t0}, v{t1}")
            e("s_branch L_balback")
            lab("L_balget")
            e(f"s_mov_b32 {sSPIN}, {self.spin}")
            e(f"v_mov_b32 v{t0}, {CNT+16}")
            lab("L_balget1")
            e(f"ds_read_b32 v{t1}, v{t0}"); e("s_waitcnt lgkmcnt(0)")
            e(f"v_readfirstlane_b32 {sN}, v{t1}"); e("s_nop 3")
            e(f"s_cmp_lg_u32 {sN}, 0"); e("s_cbranch_scc1 L_balback")
            e("s_sleep 4")
            self.spin_dec("L_balget1")
            e(f"s_mov_b32 {sN}, 32")
            e("s_branch L_balback")
        if dyn:
            lab("L_exhaust")
            e(f"s_add_u32 {sN}, {sT}, 3")
            e("s_branch L_knoref")
            lab("L_dynchk")
            e(f"s_mov_b32 {sSPIN}, {self.spin}")
            e(f"v_mov_b32 v{t0}, {CNT+8}")
            lab("L_dynchk1")
            e(f"ds_read_b32 v{t1}, v{t0}"); e("s_waitcnt lgkmcnt(0)")
            e(f"v_readfirstlane_b32 {sT3}, v{t1}"); e("s_nop 3")
            e(f"s_cmp_eq_u32 {sT3}, 1"); e("s_cbranch_scc1 L_atom")
            e("s_sleep 8")
            self.spin_dec("L_dynchk1")
            e("s_branch L_atom")

    def build(self):
        e, lab, c = self.e, self.lab, self.c
        L = self.L
        L.append(HDR.rstrip())
        L.append(f"; @launch grid=(256,1,1) block=(512,1,1) lds={LDS_BYTES}")
        L.append('.amdgcn_target "amdgcn-amd-amdhsa--gfx950"')
        L.append(".text"); L.append(f".globl {NAME}_kernel"); L.append(".p2align 8"); L.append(f".type {NAME}_kernel,@function")
        lab(f"{NAME}_kernel")
        e(f"s_cmp_ge_u32 {sWG}, 256"); e("s_cbranch_scc1 L_end")
        e("s_load_dwordx16 s[32:47], s[0:1], 0")
        self.stamp(0)
        if self.dbgspan: e("s_memrealtime s[100:101]")
        e(f"v_lshrrev_b32 v{vTMPA}, 6, v0")
        e(f"v_and_b32 v{vLANE}, 63, v0")
        e(f"s_and_b32 {sT0}, {sWG}, 7"); e(f"s_lshr_b32 {sT1}, {sWG}, 3")
        e(f"v_readfirstlane_b32 {sW}, v{vTMPA}")
        if self.pairmap and self.xmap == 3:
            c("pairs on XCDs x, x^3: kvh = 4*(x>>2) + 2*gray(x&3) + (y&1)")
            e(f"s_lshr_b32 {sT2}, {sT0}, 1"); e(f"s_xor_b32 {sT2}, {sT2}, {sT0}"); e(f"s_and_b32 {sT2}, {sT2}, 1"); e(f"s_lshl_b32 {sT2}, {sT2}, 1")
            e(f"s_and_b32 {sKVH}, {sT0}, 4"); e(f"s_add_u32 {sKVH}, {sKVH}, {sT2}"); e(f"s_and_b32 {sT2}, {sT1}, 1"); e(f"s_add_u32 {sKVH}, {sKVH}, {sT2}")
            e(f"s_and_b32 {sJ}, {sT0}, 1"); e(f"s_and_b32 {sT2}, {sT1}, 2"); e(f"s_add_u32 {sJ}, {sJ}, {sT2}")
            e(f"s_lshr_b32 {sB}, {sT1}, 2")
        elif self.pairmap and self.xmap == 5:
            c("pairs on XCDs x, x^5 : (0,5),(1,4),(2,7),(3,6): pair id = (x ^ (x&1)*5) >> 1 ... canonical even member e = x if even else x^5; kvh = (e & 6) + (y&1)")
            e(f"s_and_b32 {sT2}, {sT0}, 1"); e(f"s_mul_i32 {sT2}, {sT2}, 5"); e(f"s_xor_b32 {sT2}, {sT2}, {sT0}")
            e(f"s_and_b32 {sKVH}, {sT2}, 6"); e(f"s_and_b32 {sT2}, {sT1}, 1"); e(f"s_add_u32 {sKVH}, {sKVH}, {sT2}")
            e(f"s_and_b32 {sJ}, {sT0}, 1"); e(f"s_and_b32 {sT2}, {sT1}, 2"); e(f"s_add_u32 {sJ}, {sJ}, {sT2}")
            e(f"s_lshr_b32 {sB}, {sT1}, 2")
        elif self.pairmap:
            e(f"s_and_b32 {sKVH}, {sT0}, 6"); e(f"s_and_b32 {sT2}, {sT1}, 1"); e(f"s_add_u32 {sKVH}, {sKVH}, {sT2}")
            e(f"s_and_b32 {sJ}, {sT0}, 1"); e(f"s_and_b32 {sT2}, {sT1}, 2"); e(f"s_add_u32 {sJ}, {sJ}, {sT2}")
            e(f"s_lshr_b32 {sB}, {sT1}, 2")
        else:
            e(f"s_mov_b32 {sKVH}, {sT0}"); e(f"s_and_b32 {sJ}, {sT1}, 3"); e(f"s_lshr_b32 {sB}, {sT1}, 2")
        e(f"s_lshl_b32 {sY}, {sB}, 2"); e(f"s_add_u32 {sY}, {sY}, {sJ}")
        e(f"s_lshl_b32 {sLID}, {sY}, 3"); e(f"s_add_u32 {sLID}, {sLID}, {sKVH}")
        e(f"s_lshl_b32 {sG}, {sB}, 3"); e(f"s_add_u32 {sG}, {sG}, {sKVH}")
        e(f"v_and_b32 v{vN}, 15, v{vLANE}"); e(f"v_lshrrev_b32 v{vGQ}, 4, v{vLANE}")
        e(f"s_and_b32 {sHW}, {sW}, 3")
        e(f"s_lshl_b32 {sR}, {sKVH}, 2"); e(f"s_add_u32 {sR}, {sR}, {sJ}")
        e(f"s_cmp_ge_u32 {sW}, 4"); e("s_cbranch_scc1 L_helper")

        c("DMA voffsets")
        e(f"v_lshrrev_b32 v{vT}, 5, v{vLANE}"); e(f"v_and_b32 v{vT+1}, 31, v{vLANE}")
        e(f"v_lshlrev_b32 v{vT+2}, 9, v{vT}"); e(f"v_lshlrev_b32 v{vT+3}, 1, v{vT}")
        for i in range(4):
            e(f"v_xor_b32 v{vT+4}, {4*i}, v{vT+3}"); e(f"v_xor_b32 v{vT+4}, v{vT+4}, v{vT+1}")
            e(f"v_lshl_add_u32 v{vDMA+i}, v{vT+4}, 4, v{vT+2}")
        if self.bal:
            e(f"s_lshl_b32 {sKOFF}, {sG}, 22"); e(f"s_lshr_b32 {sT0}, {sJ}, 1"); e(f"s_lshl_b32 {sT0}, {sT0}, 21"); e(f"s_add_u32 {sKOFF}, {sKOFF}, {sT0}")
            e(f"s_and_b32 {sT1}, {sJ}, 1"); e(f"s_mul_i32 {sT0}, {sT1}, {63*32768}"); e(f"s_add_u32 {sKOFF}, {sKOFF}, {sT0}")
            e(f"s_mul_i32 {sT1}, {sT1}, -65536"); e(f"s_add_u32 {sSTEP}, {sT1}, 32768")
            e(f"s_mov_b32 {sN}, 100000")
        else:
            e(f"s_lshl_b32 {sKOFF}, {sG}, 22"); e(f"s_lshl_b32 {sT0}, {sJ}, 20"); e(f"s_add_u32 {sKOFF}, {sKOFF}, {sT0}")
            e(f"s_mov_b32 {sSTEP}, 32768") if not self.dyn else None
        e(f"s_lshl_b32 {sT0}, {sW}, 12"); e(f"s_add_u32 {sKOFF}, {sKOFF}, {sT0}")
        e(f"s_lshl_b32 {sWB}, {sW}, 15")
        e("s_waitcnt lgkmcnt(0)")
        self.srd(8, 34, 35, 0x10000000); self.srd(12, 36, 37, 0x10000000)
        for hn in range(self.pre0): self.dma_half_static(hn)
        e("s_barrier")
        first = self.quiet if self.quiet else self.pace
        for hn in range(self.pre0, first): self.dma_half_static(hn)
        self.srd(28, 46, 47, WS_BYTES)
        c("K/V LDS read addresses")
        e(f"v_and_b32 v{vT}, 7, v{vN}"); e(f"v_lshlrev_b32 v{vT}, 1, v{vT}")
        e(f"v_lshlrev_b32 v{vT+1}, 9, v{vN}"); e(f"v_add_u32 v{vT+1}, {sWB}, v{vT+1}")
        for u in range(4):
            e(f"v_add_u32 v{vT+2}, {4*u}, v{vGQ}"); e(f"v_xor_b32 v{vT+2}, v{vT+2}, v{vT}"); e(f"v_lshl_add_u32 v{vKA+u}, v{vT+2}, 4, v{vT+1}")
        e(f"v_lshrrev_b32 v{vT}, 2, v{vN}"); e(f"v_lshl_add_u32 v{vT}, v{vGQ}, 2, v{vT}")
        e(f"v_and_b32 v{vT+1}, 7, v{vT}"); e(f"v_lshlrev_b32 v{vT+2}, 9, v{vT}")
        e(f"v_and_b32 v{vT+3}, 3, v{vN}"); e(f"v_lshl_add_u32 v{vT+2}, v{vT+3}, 3, v{vT+2}")
        e(f"s_add_u32 {sT0}, {sWB}, 16384"); e(f"v_add_u32 v{vT+2}, {sT0}, v{vT+2}")
        for u in range(8):
            e(f"v_xor_b32 v{vT+3}, {u}, v{vT+1}"); e(f"v_lshl_add_u32 v{vVA+u}, v{vT+3}, 5, v{vT+2}")
        c("init O, m, l, consts")
        for i in range(64): e(f"v_mov_b32 v{vO+i}, 0")
        e(f"v_mov_b32 v{vM}, 0xff7fffff"); e(f"v_mov_b32 v{vL}, 0")
        e(f"s_mov_b32 {sC}, {fbits(C_LOG2E_16):#x}"); e(f"s_mov_b32 {sNC}, {fbits(-C_LOG2E_16):#x}")
        e(f"v_lshlrev_b32 v{vLIN16}, 4, v{vLANE}")
        e(f"s_lshl_b32 {sT0}, {sG}, 2"); e(f"s_add_u32 {sT0}, {sT0}, {sW}"); e(f"s_lshl_b32 {sT0}, {sT0}, 2"); e(f"s_add_u32 {sT0}, {sT0}, {sJ}")
        e(f"s_mul_i32 {sM1OUT}, {sT0}, {M1_SLICE}")
        if self.dyn:
            e(f"s_mov_b32 {sN}, 100000"); e(f"s_lshl_b32 {sGB}, {sG}, 22")
            e(f"s_lshl_b32 {sGC}, {sG}, 7"); e(f"s_add_u32 {sGC}, {sGC}, {GC_BASE:#x}")
            e(f"s_lshl_b32 {sSTAT}, {sJ}, 2"); e(f"s_add_u32 {sSTAT}, {sSTAT}, {sW}"); e(f"s_add_u32 {sSTAT}, {sSTAT}, 48")
            e(f"v_mov_b32 v{vZERO}, 0")
        if self.ldyn:
            e(f"s_lshl_b32 {sGC}, {sG}, 22"); e(f"s_lshr_b32 {sT0}, {sJ}, 1"); e(f"s_lshl_b32 {sT0}, {sT0}, 21"); e(f"s_add_u32 {sGC}, {sGC}, {sT0}")
            e(f"s_and_b32 {sSTAT}, {sJ}, 1"); e(f"s_mul_i32 {sSTAT}, {sSTAT}, 255")
            e(f"v_mov_b32 v{vA+1}, 1"); e(f"v_mov_b32 v{vZERO}, {CNT+8}")
        c("Q frag read address")
        e(f"s_movk_i32 {sT1}, {QROW}")
        e(f"v_and_b32 v{vT+5}, 7, v{vN}"); e(f"v_mul_lo_u32 v{vT+5}, v{vT+5}, {sT1}"); e(f"v_lshl_add_u32 v{vT+5}, v{vGQ}, 4, v{vT+5}"); e(f"v_add_u32 v{vT+5}, {QB}, v{vT+5}")
        c("paced fill of halves: K0a K0b V0a V0b K1a K1b V1a V1b, then K2 (slot A after reading K0)")
        P = self.pace
        if self.quiet:
            e("s_barrier")
            for hn in range(max(self.quiet, self.pre0), P): self.dma_half_static(hn)
        for hn in range(max(P, self.quiet, self.pre0), 8):
            e(f"s_waitcnt vmcnt({4*(P-1)})")
            self.dma_half_static(hn)
            if hn == max(P, 2) + 1 - (0 if P <= 2 else 0) and False: pass
        c("K0 landed")
        e("s_waitcnt vmcnt(24)")
        self.read_k()
        if self.dyn:
            e(f"s_add_u32 {sKOFF}, {sKOFF}, 65536")
        else:
            e(f"s_add_u32 {sKOFF}, {sKOFF}, {sSTEP}"); e(f"s_add_u32 {sKOFF}, {sKOFF}, {sSTEP}")
        e(f"s_mov_b32 {sVOFF}, {sKOFF}")
        e(f"s_mov_b32 {sKSLOT}, {sWB}"); e(f"s_add_u32 {sVSLOT}, {sWB}, 16384")
        e(f"s_add_u32 {sT4}, {sKOFF}, 16384")
        e(f"s_waitcnt vmcnt({4*(P-1)}) lgkmcnt(0)")
        e(f"s_mov_b32 m0, {sKSLOT}"); e("s_nop 0")
        self.dma_half(SRD_K, sKOFF)
        e(f"s_waitcnt vmcnt({4*(P-1)})")
        e(f"s_add_u32 m0, {sKSLOT}, 4096"); e("s_nop 0")
        self.dma_half(SRD_K, sT4)
        e(f"s_add_u32 {sKOFF}, {sKOFF}, {32768 if self.dyn else sSTEP}"); e(f"s_xor_b32 {sKSLOT}, {sKSLOT}, 8192")
        for u in range(4): e(f"v_xor_b32 v{vKA+u}, 8192, v{vKA+u}")
        if self.v0pre:
            c("V0 -> regs, refill V2")
            e("s_waitcnt vmcnt(24)")
            self.read_v()
            e(f"s_add_u32 {sT4}, {sVOFF}, 16384")
            e(f"s_waitcnt vmcnt({4*(P-1)}) lgkmcnt(0)")
            e(f"s_mov_b32 m0, {sVSLOT}"); e("s_nop 0")
            self.dma_half(SRD_V, sVOFF)
            e(f"s_waitcnt vmcnt({4*(P-1)})")
            e(f"s_add_u32 m0, {sVSLOT}, 4096"); e("s_nop 0")
            self.dma_half(SRD_V, sT4)
            e(f"s_add_u32 {sVOFF}, {sVOFF}, {32768 if self.dyn else sSTEP}"); e(f"s_xor_b32 {sVSLOT}, {sVSLOT}, 8192")
            for u in range(8): e(f"v_xor_b32 v{vVA+u}, 8192, v{vVA+u}")
        if not self.rate: self.stamp(1)
        e("s_barrier")
        for s in range(8):
            e(f"ds_read_b128 a[{AQ+4*s}:{AQ+4*s+3}], v{vT+5}" + (f" offset:{s*64}" if s else ""))
        e(f"s_mov_b32 {sT}, 0")
        e("s_waitcnt lgkmcnt(0)")
        self.stamp(2)

        if self.order2:
            self.loop2()
        else:
            self.loop1()
        lab("L_tail")
        t0, t1, t2 = vT, vT+1, vT+2
        self.stamp(3)
        e(f"v_mov_b32 v{t1}, v{vL}"); e("s_nop 1")
        e(f"v_permlane32_swap_b32 v{t1}, v{vL}"); e(f"v_add_f32 v{vL}, v{vL}, v{t1}")
        e(f"v_mov_b32 v{t1}, v{vL}"); e("s_nop 1")
        e(f"v_permlane16_swap_b32 v{t1}, v{vL}"); e(f"v_add_f32 v{vL}, v{vL}, v{t1}")
        e(f"s_movk_i32 {sT1}, {OWROW}"); e(f"v_mul_lo_u32 v{vODUMP}, v{vN}, {sT1}")
        e(f"v_lshl_add_u32 v{vODUMP}, v{vGQ}, 4, v{vODUMP}"); e(f"v_add_u32 v{vODUMP}, {sWB}, v{vODUMP}")
        e(f"s_lshl_b32 {sT0}, {sW}, 6"); e(f"s_add_u32 {sT0}, {sT0}, {STB}")
        e(f"v_lshlrev_b32 v{t2}, 3, v{vN}"); e(f"v_add_u32 v{t2}, {sT0}, v{t2}")
        e("s_mov_b32 exec_lo, 0x00ff00ff"); e("s_mov_b32 exec_hi, 0x00ff00ff")
        for t in range(16):
            e(f"ds_write_b128 v{vODUMP}, v[{vO+4*t}:{vO+4*t+3}]" + (f" offset:{t*64}" if t else ""))
        e("s_mov_b64 exec, 0xff")
        e(f"ds_write_b64 v{t2}, v[{vM}:{vM+1}]")
        e("s_mov_b64 exec, -1")
        e(f"v_and_b32 v{vT}, 3, v{vLANE}"); e(f"v_lshrrev_b32 v{vT+1}, 2, v{vLANE}")
        e(f"s_lshr_b32 {sT0}, {sW}, 1"); e(f"s_lshl_b32 {sT0}, {sT0}, 2")
        e(f"v_add_u32 v{vT}, {sT0}, v{vT}")
        e(f"v_mul_lo_u32 v{vT2A}, v{vT}, {sT1}"); e(f"v_lshl_add_u32 v{vT2A}, v{vT+1}, 5, v{vT2A}")
        e(f"s_and_b32 {sT0}, {sW}, 1"); e(f"s_lshl_b32 {sT0}, {sT0}, 9"); e(f"v_add_u32 v{vT2A}, {sT0}, v{vT2A}")
        e(f"v_add_u32 v{vT2B}, 65536, v{vT2A}")
        e(f"v_lshlrev_b32 v{vT+2}, 3, v{vT}"); e(f"v_add_u32 v{vT+2}, {STB}, v{vT+2}")
        e("s_waitcnt lgkmcnt(0)"); e("s_barrier")
        if not self.rate: self.stamp(4)
        for w in range(4): e(f"ds_read_b64 v[{2*w}:{2*w+1}], v{vT+2} offset:{w*64}")
        for w in range(4):
            for u in range(2):
                a = vT2A if w < 2 else vT2B
                o = (w & 1) * 32768 + u * 16
                e(f"ds_read_b128 v[{8+8*w+4*u}:{8+8*w+4*u+3}], v{a}" + (f" offset:{o}" if o else ""))
        e("s_waitcnt lgkmcnt(8)")
        e("v_max3_f32 v40, v0, v2, v4"); e("v_max_f32 v40, v40, v6")
        for w in range(4): e(f"v_sub_f32 v{44+w}, v{2*w}, v40")
        for w in range(4): e(f"v_mul_f32 v{44+w}, {sC}, v{44+w}")
        for w in range(4): e(f"v_exp_f32 v{44+w}, v{44+w}")
        e("s_nop 0")
        e("v_mul_f32 v41, v44, v1"); e("v_fmac_f32 v41, v45, v3"); e("v_fmac_f32 v41, v46, v5"); e("v_fmac_f32 v41, v47, v7")
        e("s_waitcnt lgkmcnt(0)")
        for k in range(8): e(f"v_mul_f32 v{48+k}, v44, v{8+k}")
        for w in range(1, 4):
            for k in range(8): e(f"v_fmac_f32 v{48+k}, v{44+w}, v{8+8*w+k}")
        e(f"buffer_store_dwordx4 v[48:51], v{vLIN16}, {SRD_WS}, {sM1OUT} offen sc1")
        e(f"buffer_store_dwordx4 v[52:55], v{vLIN16}, {SRD_WS}, {sM1OUT} offen offset:1024 sc1")
        e(f"v_lshlrev_b32 v{vT}, 3, v{vLANE}")
        e("s_mov_b64 exec, 0xf")
        e(f"buffer_store_dwordx2 v[40:41], v{vT}, {SRD_WS}, {sM1OUT} offen offset:2048 sc1")
        e("s_mov_b64 exec, -1")
        if not self.rate: self.stamp(5)
        e("s_branch L_fin")

        lab("L_helper")
        if self.hexit:
            e("s_waitcnt lgkmcnt(0)"); self.srd(28, 46, 47, WS_BYTES)
            e("s_barrier"); e("s_barrier"); e("s_barrier")
            if self.quiet: e("s_barrier")
            e("s_branch L_fin")
        if self.hprio: e(f"s_setprio {self.hprio}")
        c("wq DMA voffset: (l>>1)*8192 + (l&1)*16 + (kvh*512 + 16y)*2 ; x voffset: n*896 + g*16")
        hX = 0
        hA = 32
        hD = 48
        e(f"v_lshrrev_b32 v{vT}, 1, v{vLANE}"); e(f"v_lshlrev_b32 v{vT}, 13, v{vT}")
        e(f"v_and_b32 v{vT+1}, 1, v{vLANE}"); e(f"v_lshl_add_u32 v{vT}, v{vT+1}, 4, v{vT}")
        e(f"s_lshl_b32 {sT0}, {sKVH}, 10"); e(f"s_lshl_b32 {sT1}, {sY}, 5"); e(f"s_add_u32 {sT0}, {sT0}, {sT1}")
        e(f"v_add_u32 v{vDMA}, {sT0}, v{vT}")
        e(f"s_movk_i32 {sT1}, 896"); e(f"v_mul_lo_u32 v{vDMA+1}, v{vN}, {sT1}"); e(f"v_lshl_add_u32 v{vDMA+1}, v{vGQ}, 4, v{vDMA+1}")
        e(f"s_lshl_b32 {sWB}, {sHW}, 12"); e(f"s_add_u32 {sWB}, {sWB}, {WQS}")
        c("H0 zeroes the LDS counters")
        e(f"v_mov_b32 v{vT+2}, {CNT}")
        for i in range(4): e(f"v_mov_b32 v{vT+4+i}, 0")
        e(f"ds_write_b128 v{vT+2}, v[{vT+4}:{vT+7}] offset:16")
        if self.ldyn:
            e(f"v_mov_b32 v{vT+6}, 12"); e(f"v_mov_b32 v{vT+7}, {self.plo}")
        e(f"ds_write_b128 v{vT+2}, v[{vT+4}:{vT+7}]")
        e("s_waitcnt lgkmcnt(0)")
        if self.dbgq: self.stamp(2)
        e(f"s_add_u32 s56, s46, {EPOCH_OFF:#x}"); e("s_addc_u32 s57, s47, 0")
        e(f"s_load_dwordx2 s[60:61], s[56:57], 0")
        self.srd(16, 38, 39, 3670016); self.srd(20, 32, 33, 28672)
        e(f"s_lshl_b32 {sT2}, {sHW}, 18")
        e(f"s_lshl_b32 {sT3}, {sHW}, 6")
        for idx in range(4):
            if idx == 3:
                e(f"s_cmp_ge_u32 {sHW}, 2"); e("s_cbranch_scc1 L_hq_issued")
            e(f"s_add_u32 m0, {sWB}, {idx*1024}")
            e(f"s_add_u32 {sT4}, {sT3}, 14336")
            e(f"buffer_load_dwordx4 v{vDMA}, {SRD_WQ}, {sT2} offen lds")
            e(f"buffer_load_dwordx4 v[{hX+8*idx}:{hX+8*idx+3}], v{vDMA+1}, {SRD_X}, {sT3} offen")
            e(f"buffer_load_dwordx4 v[{hX+8*idx+4}:{hX+8*idx+7}], v{vDMA+1}, {SRD_X}, {sT4} offen")
            if idx < 3:
                e(f"s_add_u32 {sT2}, {sT2}, {4*262144}"); e(f"s_add_u32 {sT3}, {sT3}, 256")
        lab("L_hq_issued")
        if self.dbgq: self.stamp(3)
        e("s_barrier")
        if self.dbgq: self.stamp(4)
        self.srd(28, 46, 47, WS_BYTES); self.srd(24, 40, 41, 3670016)
        e("s_mov_b32 s34, s42"); e("s_mov_b32 s35, s43")
        c("tr-read address: wb + (8g + (i>>2))*32 + (i&3)*8  (+128 for second half, +1024*idx)")
        e(f"v_lshrrev_b32 v{vT}, 2, v{vN}"); e(f"v_lshl_add_u32 v{vT}, v{vGQ}, 3, v{vT}"); e(f"v_lshlrev_b32 v{vT}, 5, v{vT}")
        e(f"v_and_b32 v{vT+1}, 3, v{vN}"); e(f"v_lshl_add_u32 v{vT}, v{vT+1}, 3, v{vT}"); e(f"v_add_u32 v{vT}, {sWB}, v{vT}")
        for i in range(8): e(f"v_mov_b32 v{hD+i}, 0")
        c("partial write address: RED + hw*2048 + n*64 + g*16 (+1024 for h=1)")
        e(f"s_lshl_b32 {sT0}, {sHW}, 11"); e(f"s_add_u32 {sT0}, {sT0}, {RED}")
        e(f"v_lshlrev_b32 v{vT+2}, 6, v{vN}"); e(f"v_lshl_add_u32 v{vT+2}, v{vGQ}, 4, v{vT+2}"); e(f"v_add_u32 v{vT+2}, {sT0}, v{vT+2}")
        e("s_waitcnt vmcnt(0)")
        self.stamp(1)
        for idx in range(4):
            if idx == 3:
                e(f"s_cmp_ge_u32 {sHW}, 2"); e("s_cbranch_scc1 L_hq_mm")
            e(f"ds_read_b64_tr_b16 v[{hA+4*idx}:{hA+4*idx+1}], v{vT} offset:{idx*1024}")
            e(f"ds_read_b64_tr_b16 v[{hA+4*idx+2}:{hA+4*idx+3}], v{vT} offset:{idx*1024+128}")
            e("s_waitcnt lgkmcnt(0)")
            for h in range(2):
                e(f"v_mfma_f32_16x16x32_bf16 v[{hD+4*h}:{hD+4*h+3}], v[{hA+4*idx}:{hA+4*idx+3}], v[{hX+8*idx+4*h}:{hX+8*idx+4*h+3}], v[{hD+4*h}:{hD+4*h+3}]")
        lab("L_hq_mm")
        self.nop(8)
        e(f"ds_write_b128 v{vT+2}, v[{hD}:{hD+3}]"); e(f"ds_write_b128 v{vT+2}, v[{hD+4}:{hD+7}] offset:1024")
        e(f"v_mov_b32 v{vT+3}, {CNT}"); e(f"v_mov_b32 v{vT+4}, 1")
        e("s_waitcnt lgkmcnt(0)")
        e("s_mov_b64 exec, 1"); e(f"ds_add_u32 v{vT+3}, v{vT+4}"); e("s_mov_b64 exec, -1")
        c("reduce read address: RED + rho*64 + cp*8, rho = 8hw + (l>>3), cp = l&7")
        e(f"v_lshrrev_b32 v{vT}, 3, v{vLANE}"); e(f"s_lshl_b32 {sT0}, {sHW}, 3"); e(f"v_add_u32 v{vT}, {sT0}, v{vT}")
        e(f"v_and_b32 v{vT+1}, 7, v{vLANE}")
        e(f"v_lshlrev_b32 v{vT+2}, 6, v{vT}"); e(f"v_lshl_add_u32 v{vT+2}, v{vT+1}, 3, v{vT+2}"); e(f"v_add_u32 v{vT+2}, {RED}, v{vT+2}")
        if self.hop1:
            c("launch tag: E' = E + C (64 bit); TL = low 16 bits << 16, sTAG = bits 16..47")
            e(f"s_add_u32 s60, s60, 0x7f4a7c15"); e(f"s_addc_u32 s61, s61, 0x9e3779b9")
            e(f"s_lshl_b32 {sTL}, s60, 16"); e(f"s_lshr_b32 {sTAG}, s60, 16"); e(f"s_lshl_b32 {sT1}, s61, 16"); e(f"s_or_b32 {sTAG}, {sTAG}, {sT1}")
            c("publish address: QM + ((kvh*8 + b)*32 + y)*512 + q*128 + cp*16 ; b = rho>>2, q = rho&3")
            e(f"v_lshrrev_b32 v{vT+4}, 2, v{vT}"); e(f"v_lshlrev_b32 v{vT+4}, 14, v{vT+4}")
            e(f"v_and_b32 v{vT+5}, 3, v{vT}"); e(f"v_lshl_add_u32 v{vT+4}, v{vT+5}, 7, v{vT+4}"); e(f"v_lshl_add_u32 v{vT+4}, v{vT+1}, 4, v{vT+4}")
            e(f"s_lshl_b32 {sT0}, {sKVH}, 17"); e(f"s_lshl_b32 {sT1}, {sY}, 9"); e(f"s_add_u32 {sT0}, {sT0}, {sT1}"); e(f"s_add_u32 {sT0}, {sT0}, {QM_BASE:#x}")
            e(f"s_mov_b32 {sSPIN}, {self.spin}")
            lab("L_hs1")
            e(f"ds_read_b32 v{vT+6}, v{vT+3}"); e("s_waitcnt lgkmcnt(0)")
            e(f"v_readfirstlane_b32 {sT1}, v{vT+6}"); e("s_nop 3")
            e(f"s_cmp_ge_u32 {sT1}, 4"); e("s_cbranch_scc1 L_hs1ok")
            self.spin_dec("L_hs1")
            lab("L_hs1ok")
            for w in range(4): e(f"ds_read_b64 v[{2*w}:{2*w+1}], v{vT+2} offset:{w*2048}")
            e("s_waitcnt lgkmcnt(0)")
            e("v_add_f32 v0, v0, v2"); e("v_add_f32 v1, v1, v3"); e("v_add_f32 v4, v4, v6"); e("v_add_f32 v5, v5, v7")
            e("v_add_f32 v0, v0, v4"); e("v_add_f32 v1, v1, v5")
            e("v_cvt_pk_bf16_f32 v0, v0, v1")
            c("granules {tl|val, tag}")
            e(f"v_and_b32 v4, 0xffff, v0"); e(f"v_lshrrev_b32 v6, 16, v0")
            e(f"v_or_b32 v4, {sTL}, v4"); e(f"v_or_b32 v6, {sTL}, v6"); e(f"v_mov_b32 v5, {sTAG}"); e(f"v_mov_b32 v7, {sTAG}")
            e(f"buffer_store_dwordx4 v[4:7], v{vT+4}, {SRD_WS}, {sT0} offen sc1")
            self.stamp(2) if not self.dbgq else None
            if self.quiet: e("s_barrier")
            e(f"v_lshlrev_b32 v{vLIN16}, 4, v{vLANE}")
            c("poll own 4 KB: QM + (kvh*8+b)*16384 + hw*4096 + i*1024 + l*16")
            e(f"s_lshl_b32 {sT0}, {sKVH}, 3"); e(f"s_add_u32 {sT0}, {sT0}, {sB}"); e(f"s_lshl_b32 {sT0}, {sT0}, 14"); e(f"s_lshl_b32 {sT1}, {sHW}, 12")
            e(f"s_add_u32 {sT0}, {sT0}, {sT1}"); e(f"s_add_u32 {sT0}, {sT0}, {QM_BASE:#x}")
            c("LDS write address: QB + (4h+q)*528 + (128*(hw&1) + 16yy + 2cp)*2 ; yy = 2i + (l>>5), q=(l&31)>>3, cp=l&7, h=hw>>1")
            e(f"v_bfe_u32 v{vT}, v{vLANE}, 3, 2")
            e(f"s_lshr_b32 {sT1}, {sHW}, 1"); e(f"s_lshl_b32 {sT1}, {sT1}, 2"); e(f"v_add_u32 v{vT}, {sT1}, v{vT}")
            e(f"s_movk_i32 {sT1}, {QROW}"); e(f"v_mul_lo_u32 v{vT}, v{vT}, {sT1}")
            e(f"v_lshrrev_b32 v{vT+1}, 5, v{vLANE}"); e(f"v_lshl_add_u32 v{vT}, v{vT+1}, 5, v{vT}")
            e(f"v_and_b32 v{vT+1}, 7, v{vLANE}"); e(f"v_lshl_add_u32 v{vT}, v{vT+1}, 2, v{vT}")
            e(f"s_and_b32 {sT1}, {sHW}, 1"); e(f"s_lshl_b32 {sT1}, {sT1}, 8"); e(f"s_add_u32 {sT1}, {sT1}, {QB}"); e(f"v_add_u32 v{vT}, {sT1}, v{vT}")
            e(f"s_mov_b32 {sSPIN}, {self.spin}"); e(f"s_mov_b32 {sT2}, 0xffff0000"); e(f"s_mov_b32 {sT3}, 0x05040100")
            if self.qdelay: e(f"s_waitcnt vmcnt(0)")
            lab("L_hq_poll")
            for i in range(4):
                e(f"buffer_load_dwordx4 v[{8+4*i}:{8+4*i+3}], v{vLIN16}, {SRD_WS}, {sT0} offen" + (f" offset:{i*1024}" if i else "") + " sc1")
            e("s_waitcnt vmcnt(0)")
            for i in range(4):
                b = 8 + 4*i
                e(f"v_and_b32 v{24+2*i}, {sT2}, v{b}"); e(f"v_and_b32 v{25+2*i}, {sT2}, v{b+2}")
                e(f"v_xor_b32 v{24+2*i}, {sTL}, v{24+2*i}"); e(f"v_xor_b32 v{25+2*i}, {sTL}, v{25+2*i}")
                e(f"v_xor_b32 v{32+2*i}, {sTAG}, v{b+1}"); e(f"v_xor_b32 v{33+2*i}, {sTAG}, v{b+3}")
            e("v_or3_b32 v24, v24, v25, v26"); e("v_or3_b32 v27, v27, v28, v29"); e("v_or3_b32 v30, v30, v31, v32"); e("v_or3_b32 v33, v33, v34, v35")
            e("v_or3_b32 v36, v36, v37, v38"); e("v_or3_b32 v24, v24, v27, v30"); e("v_or3_b32 v33, v33, v36, v39"); e("v_or_b32 v24, v24, v33")
            e("v_cmp_ne_u32 vcc, 0, v24"); e("s_nop 1"); e("s_cbranch_vccz L_hq_ok")
            self.spin_dec("L_hq_poll")
            lab("L_hq_ok")
            if not self.dbgq: self.stamp(3)
            for i in range(4):
                b = 8 + 4*i
                e(f"v_perm_b32 v{24+i}, v{b+2}, v{b}, {sT3}")
            for i in range(4):
                e(f"ds_write_b32 v{vT}, v{24+i}" + (f" offset:{i*64}" if i else ""))
            e("s_waitcnt lgkmcnt(0)")
            if not self.dbgq: self.stamp(4)
        else:
            c("publish address: QM + ((kvh*8 + b)*32 + y)*128 + q*32 + cp*4 ; b = rho>>2, q = rho&3")
            e(f"v_lshrrev_b32 v{vT+4}, 2, v{vT}"); e(f"v_lshlrev_b32 v{vT+4}, 12, v{vT+4}")
            e(f"v_and_b32 v{vT+5}, 3, v{vT}"); e(f"v_lshl_add_u32 v{vT+4}, v{vT+5}, 5, v{vT+4}"); e(f"v_lshl_add_u32 v{vT+4}, v{vT+1}, 2, v{vT+4}")
            e(f"s_lshl_b32 {sT0}, {sKVH}, 15"); e(f"s_lshl_b32 {sT1}, {sY}, 7"); e(f"s_add_u32 {sT0}, {sT0}, {sT1}"); e(f"s_add_u32 {sT0}, {sT0}, {QM_BASE:#x}")
            e(f"s_mov_b32 {sSPIN}, {self.spin}")
            lab("L_hs1")
            e(f"ds_read_b32 v{vT+6}, v{vT+3}"); e("s_waitcnt lgkmcnt(0)")
            e(f"v_readfirstlane_b32 {sT1}, v{vT+6}"); e("s_nop 3")
            e(f"s_cmp_ge_u32 {sT1}, 4"); e("s_cbranch_scc1 L_hs1ok")
            self.spin_dec("L_hs1")
            lab("L_hs1ok")
            for w in range(4): e(f"ds_read_b64 v[{2*w}:{2*w+1}], v{vT+2} offset:{w*2048}")
            e("s_waitcnt lgkmcnt(0)")
            e("v_add_f32 v0, v0, v2"); e("v_add_f32 v1, v1, v3"); e("v_add_f32 v4, v4, v6"); e("v_add_f32 v5, v5, v7")
            e("v_add_f32 v0, v0, v4"); e("v_add_f32 v1, v1, v5")
            e("v_cvt_pk_bf16_f32 v0, v0, v1")
            e(f"buffer_store_dword v0, v{vT+4}, {SRD_WS}, {sT0} offen sc1")
            e("s_waitcnt vmcnt(0)")
            if not self.dbgq: self.stamp(2)
            c("last helper wave to finish signals: flag dword QF[kvh][y] := tag")
            e(f"v_mov_b32 v{vT+4}, 1"); e(f"v_mov_b32 v{vT+3}, {CNT+4}")
            e("s_mov_b64 exec, 1")
            e(f"ds_add_rtn_u32 v{vT+6}, v{vT+3}, v{vT+4}"); e("s_waitcnt lgkmcnt(0)")
            e(f"s_add_u32 {sTAG}, {sTAG}, {TAG_C:#x}")
            e(f"v_readfirstlane_b32 {sT1}, v{vT+6}"); e("s_nop 3")
            c("flag store: lane y' (0..31) writes QF[consumer = y'*8+kvh][y] ; consumer line = (y'*8+kvh)*128")
            e(f"s_cmp_eq_u32 {sT1}, 3"); e("s_cbranch_scc0 L_hnoflag")
            e("s_mov_b32 exec_lo, -1"); e("s_mov_b32 exec_hi, 0")
            e(f"v_lshlrev_b32 v{vT+5}, 10, v{vLANE}"); e(f"v_mov_b32 v{vT+4}, {sTAG}")
            e(f"s_lshl_b32 {sT4}, {sKVH}, 7"); e(f"s_lshl_b32 {sT5}, {sY}, 2"); e(f"s_add_u32 {sT4}, {sT4}, {sT5}"); e(f"s_add_u32 {sT4}, {sT4}, {QF_BASE:#x}")
            e(f"buffer_store_dword v{vT+4}, v{vT+5}, {SRD_WS}, {sT4} offen sc1")
            lab("L_hnoflag")
            e("s_mov_b64 exec, -1")
            if self.quiet: e("s_barrier")
            e(f"v_lshlrev_b32 v{vLIN16}, 4, v{vLANE}")
            e(f"s_cmp_lg_u32 {sHW}, 0"); e("s_cbranch_scc1 L_hq_done")
            c("H0: poll own flag line via scalar loads")
            e(f"s_lshl_b32 {sT4}, {sLID}, 7"); e(f"s_add_u32 {sT4}, {sT4}, {QF_BASE:#x}")
            e(f"s_add_u32 s32, s46, {sT4}"); e("s_addc_u32 s33, s47, 0")
            e(f"s_mov_b32 {sSPIN}, {self.spin}")
            lab("L_hq_poll")
            PR = (8, 48)
            for k, r in enumerate(PR): e(f"s_load_dwordx16 s[{r}:{r+15}], s[32:33], {64*k} glc")
            e("s_waitcnt lgkmcnt(0)")
            for k, r in enumerate(PR):
                for i in range(16):
                    e(f"s_xor_b32 s{r+i}, s{r+i}, {sTAG}")
                    if k or i: e(f"s_or_b32 s8, s8, s{r+i}")
            e("s_cmp_eq_u32 s8, 0"); e("s_cbranch_scc1 L_hq_ok")
            e(f"s_sleep {self.qsleep}")
            self.spin_dec("L_hq_poll")
            lab("L_hq_ok")
            if not self.dbgq: self.stamp(3)
            c("fetch Q (4 KB): QM + (kvh*8+b)*4096 + i*1024 + l*16")
            e(f"s_lshl_b32 {sT0}, {sKVH}, 3"); e(f"s_add_u32 {sT0}, {sT0}, {sB}"); e(f"s_lshl_b32 {sT0}, {sT0}, 12"); e(f"s_add_u32 {sT0}, {sT0}, {QM_BASE:#x}")
            for i in range(4):
                e(f"buffer_load_dwordx4 v[{4*i}:{4*i+3}], v{vLIN16}, {SRD_WS}, {sT0} offen" + (f" offset:{i*1024}" if i else "") + " sc1")
            c("LDS write address: QB + (4h+q)*528 + (128*(i&1) + 16yy + 8half)*2 ; yy=l>>3, q=(l>>1)&3, half=l&1, h=i>>1")
            e(f"v_lshrrev_b32 v{vT}, 1, v{vLANE}"); e(f"v_and_b32 v{vT}, 3, v{vT}")
            e(f"s_movk_i32 {sT1}, {QROW}"); e(f"v_mul_lo_u32 v{vT}, v{vT}, {sT1}")
            e(f"v_lshrrev_b32 v{vT+1}, 3, v{vLANE}"); e(f"v_lshl_add_u32 v{vT}, v{vT+1}, 5, v{vT}")
            e(f"v_and_b32 v{vT+1}, 1, v{vLANE}"); e(f"v_lshl_add_u32 v{vT}, v{vT+1}, 4, v{vT}")
            e(f"v_add_u32 v{vT}, {QB}, v{vT}")
            e("s_waitcnt vmcnt(0)")
            for i in range(4):
                o = (i >> 1) * 4 * QROW + (i & 1) * 256
                e(f"ds_write_b128 v{vT}, v[{4*i}:{4*i+3}]" + (f" offset:{o}" if o else ""))
            e("s_waitcnt lgkmcnt(0)")
            if not self.dbgq: self.stamp(4)
        lab("L_hq_done")
        e("s_barrier")
        self.srd(48, 34, 35, 28672)
        if self.wopf:
            c("L2 prefetch of this WG's 1/8 share of the wo quarter: rows r*128 + 16b .. +16 (14336 B contiguous); wave hw: 4KB pieces")
            e(f"s_lshl_b32 {sT0}, {sR}, 7"); e(f"s_lshl_b32 {sT1}, {sB}, 4"); e(f"s_add_u32 {sT0}, {sT0}, {sT1}"); e(f"s_mul_i32 {sT0}, {sT0}, 896")
            e(f"s_lshl_b32 {sT1}, {sHW}, 12"); e(f"s_add_u32 {sT0}, {sT0}, {sT1}")
            for i in range(4):
                e(f"buffer_load_dwordx4 v[{8+4*i}:{8+4*i+3}], v{vLIN16}, {SRD_WO}, {sT0} offen" + (f" offset:{i*1024}" if i else ""))
        c("clears: M1[g][recv=hw][sender=j] (2176B) and M2[b][r][hw] (2048B)")
        e(f"s_lshl_b32 {sT0}, {sG}, 2"); e(f"s_add_u32 {sT0}, {sT0}, {sHW}"); e(f"s_lshl_b32 {sT0}, {sT0}, 2"); e(f"s_add_u32 {sT0}, {sT0}, {sJ}")
        e(f"s_mul_i32 {sM1OUT}, {sT0}, {M1_SLICE}")
        e(f"s_lshl_b32 {sT0}, {sB}, 5"); e(f"s_add_u32 {sT0}, {sT0}, {sR}"); e(f"s_lshl_b32 {sT0}, {sT0}, 13"); e(f"s_lshl_b32 {sT1}, {sHW}, 11")
        e(f"s_add_u32 {sM2OUT}, {sT0}, {sT1}"); e(f"s_add_u32 {sM2OUT}, {sM2OUT}, {M2_BASE:#x}")
        for i in range(4): e(f"v_mov_b32 v{i}, -1")
        e(f"buffer_store_dwordx4 v[0:3], v{vLIN16}, {SRD_WS}, {sM1OUT} offen sc1")
        e(f"buffer_store_dwordx4 v[0:3], v{vLIN16}, {SRD_WS}, {sM1OUT} offen offset:1024 sc1")
        e(f"buffer_store_dwordx4 v[0:3], v{vLIN16}, {SRD_WS}, {sM2OUT} offen sc1")
        e(f"buffer_store_dwordx4 v[0:3], v{vLIN16}, {SRD_WS}, {sM2OUT} offen offset:1024 sc1")
        e("s_mov_b64 exec, 0xff")
        e(f"buffer_store_dwordx4 v[0:3], v{vLIN16}, {SRD_WS}, {sM1OUT} offen offset:2048 sc1")
        if self.dyn:
            c("group counter := 0 (j==0, hw==0)")
            e(f"s_or_b32 {sT0}, {sJ}, {sHW}"); e(f"s_cmp_lg_u32 {sT0}, 0"); e("s_cbranch_scc1 L_hnogc")
            e("s_mov_b64 exec, 1"); e(f"v_mov_b32 v4, 0"); e(f"s_lshl_b32 {sT0}, {sG}, 7"); e(f"s_add_u32 {sT0}, {sT0}, {GC_BASE:#x}")
            e(f"buffer_store_dword v4, v4, {SRD_WS}, {sT0} offen sc1")
            lab("L_hnogc")
        e("s_mov_b64 exec, -1")
        e("s_waitcnt vmcnt(0)")
        if self.dbgmid: self.stamp(1)
        c("last helper wave signals clears done: lane r' writes CF[consumer wg' = (r'>>2) + 32b + 8(r'&3)][r] := tag")
        e(f"v_mov_b32 v{vT+4}, 1"); e(f"v_mov_b32 v{vT+3}, {CNT+4}")
        e("s_mov_b64 exec, 1")
        e(f"ds_add_rtn_u32 v{vT+6}, v{vT+3}, v{vT+4}"); e("s_waitcnt lgkmcnt(0)")
        e(f"v_readfirstlane_b32 {sT1}, v{vT+6}"); e("s_nop 3")
        e("s_mov_b64 exec, -1")
        e(f"s_cmp_eq_u32 {sT1}, {3 if self.hop1 else 7}"); e("s_cbranch_scc0 L_hnoflag2")
        e(f"v_lshrrev_b32 v{vT+5}, 2, v{vLANE}"); e(f"v_and_b32 v{vT+6}, 3, v{vLANE}"); e(f"v_lshl_add_u32 v{vT+5}, v{vT+6}, 3, v{vT+5}")
        e(f"v_lshlrev_b32 v{vT+5}, 7, v{vT+5}"); e(f"v_mov_b32 v{vT+4}, {sTAG}")
        e(f"s_lshl_b32 {sT4}, {sB}, 12"); e(f"s_lshl_b32 {sT5}, {sR}, 2"); e(f"s_add_u32 {sT4}, {sT4}, {sT5}"); e(f"s_add_u32 {sT4}, {sT4}, {CF_BASE:#x}")
        e("s_mov_b32 exec_lo, -1"); e("s_mov_b32 exec_hi, 0")
        e(f"buffer_store_dword v{vT+4}, v{vT+5}, {SRD_WS}, {sT4} offen sc1")
        lab("L_hnoflag2")
        e("s_mov_b64 exec, -1")
        c("wo: load, transpose, park in AGPRs a[0:127]")
        e(f"s_mov_b32 {sSEL_LO}, 0x05040100"); e(f"s_mov_b32 {sSEL_HI}, 0x07060302")
        e(f"s_lshl_b32 {sT0}, {sR}, 7")
        if self.wosame: e(f"s_mov_b32 {sT0}, 0")
        e(f"v_lshlrev_b32 v{vT}, 3, v{vGQ}"); e(f"v_add_u32 v{vT}, {sT0}, v{vT}")
        e(f"s_movk_i32 {sT1}, 896"); e(f"v_mul_lo_u32 v{vT}, v{vT}, {sT1}")
        e(f"s_mul_i32 {sT0}, {sHW}, 224"); e(f"v_lshl_add_u32 v{vT}, v{vN}, 4, v{vT}"); e(f"v_add_u32 v{vT}, {sT0}, v{vT}")
        for ks in range(4):
            if self.nowo: break
            kk = 0 if self.wosame else ks
            e(f"s_mov_b32 {sT0}, {kk*32*896}"); e(f"s_mov_b32 {sT1}, {kk*32*896 + 4*896}")
            for i in range(8):
                so = sT0 if i < 4 else sT1
                o = (i & 3) * 896
                e(f"buffer_load_dwordx4 v[{4*i}:{4*i+3}], v{vT}, {SRD_WO}, {so} offen" + (f" offset:{o}" if o else ""))
                if self.wopace < 8 and (i + 1) % self.wopace == 0: e("s_waitcnt vmcnt(0)")
            e("s_waitcnt vmcnt(0)")
            for j in range(8):
                u = j >> 1; sel = sSEL_HI if (j & 1) else sSEL_LO
                for p in range(4):
                    e(f"v_perm_b32 v{32+4*j+p}, v{4*(2*p+1)+u}, v{4*(2*p)+u}, {sel}")
            for k in range(32): e(f"v_accvgpr_write_b32 a{32*ks+k}, v{32+k}")
        if self.dbgmid: self.stamp(2)
        c("wait until all WGs of batch b have cleared their outboxes: dword at kvh*32+4b == 0x01010101 for all kvh")
        e(f"s_cmp_lg_u32 {sHW}, 0"); e("s_cbranch_scc1 L_hclrok")
        e(f"s_lshl_b32 {sT0}, {sLID}, 7"); e(f"s_add_u32 {sT0}, {sT0}, {CF_BASE:#x}")
        e(f"v_and_b32 v{vT+1}, 31, v{vLANE}"); e(f"v_lshlrev_b32 v{vT+1}, 2, v{vT+1}")
        e(f"s_mov_b32 {sSPIN}, {self.spin}")
        lab("L_hclr")
        e(f"buffer_load_dword v{vT+2}, v{vT+1}, {SRD_WS}, {sT0} offen sc1"); e("s_waitcnt vmcnt(0)")
        e(f"v_cmp_ne_u32 vcc, {sTAG}, v{vT+2}"); e("s_nop 1"); e("s_cbranch_vccz L_hclrok")
        e("s_sleep 16")
        self.spin_dec("L_hclr")
        lab("L_hclrok")
        if self.dyn:
            e(f"s_cmp_lg_u32 {sHW}, 0"); e("s_cbranch_scc1 L_hnodyn")
            e(f"v_mov_b32 v{vT+1}, {CNT+8}"); e(f"v_mov_b32 v{vT+2}, 1"); e(f"ds_write_b32 v{vT+1}, v{vT+2}")
            lab("L_hnodyn")
        if self.dbgmid: self.stamp(3)
        if self.ldyn:
            c("H0: late balance exchange with partner (lid ^ 8). LDS: CNT+8 tile counter, CNT+12 limit, CNT+16 final")
            e(f"s_cmp_lg_u32 {sHW}, 0"); e("s_cbranch_scc1 L_hbaldone")
            e(f"v_mov_b32 v{vT}, {CNT+8}"); e(f"s_mov_b32 {sSPIN}, {self.spin}")
            lab("L_hb0")
            e(f"ds_read_b32 v0, v{vT}"); e("s_waitcnt lgkmcnt(0)")
            e(f"v_readfirstlane_b32 {sT0}, v0"); e("s_nop 3")
            e(f"s_cmp_ge_u32 {sT0}, {self.t0s}"); e("s_cbranch_scc1 L_hb0ok")
            e("s_sleep 32"); self.spin_dec("L_hb0")
            lab("L_hb0ok")
            e("s_memrealtime s[8:9]"); e("s_waitcnt lgkmcnt(0)")
            e(f"s_lshl_b32 {sT1}, {sLID}, 7"); e(f"s_add_u32 {sT1}, {sT1}, {BAL_BASE:#x}")
            e(f"s_add_u32 s10, s46, {sT1}"); e("s_addc_u32 s11, s47, 0")
            e(f"s_mov_b32 {sSPIN}, {self.spin}")
            lab("L_hb1")
            e(f"ds_read_b32 v0, v{vT}"); e("s_load_dwordx8 s[12:19], s[10:11], 0 glc"); e("s_waitcnt lgkmcnt(0)")
            e(f"v_readfirstlane_b32 {sT2}, v0"); e("s_nop 3")
            e(f"s_cmp_ge_u32 {sT2}, {self.t1s}"); e("s_cbranch_scc1 L_hb1ok")
            e(f"s_cmp_eq_u32 s17, {sTAG}"); e("s_cbranch_scc1 L_hb1ok")
            e("s_sleep 12"); self.spin_dec("L_hb1")
            lab("L_hb1ok")
            e("s_memrealtime s[20:21]"); e("s_waitcnt lgkmcnt(0)")
            c("publish {T0|T1<<16, tag, tau0, tag} {tau1, tag}")
            e(f"s_lshl_b32 {sT3}, {sT2}, 16"); e(f"s_or_b32 {sT3}, {sT3}, {sT0}")
            e(f"v_mov_b32 v4, {sT3}"); e(f"v_mov_b32 v5, {sTAG}"); e("v_mov_b32 v6, s8"); e(f"v_mov_b32 v7, {sTAG}"); e("v_mov_b32 v8, s20"); e(f"v_mov_b32 v9, {sTAG}"); e("v_mov_b32 v10, 0")
            e(f"s_xor_b32 {sT1}, {sLID}, 8"); e(f"s_lshl_b32 {sT1}, {sT1}, 7"); e(f"s_add_u32 {sT1}, {sT1}, {BAL_BASE:#x}")
            e("s_mov_b64 exec, 1")
            e(f"buffer_store_dwordx4 v[4:7], v10, {SRD_WS}, {sT1} offen sc1")
            e(f"buffer_store_dwordx2 v[8:9], v10, {SRD_WS}, {sT1} offen offset:16 sc1")
            e(f"s_mov_b32 {sSPIN}, {self.spin}")
            lab("L_hb2")
            e("s_load_dwordx8 s[12:19], s[10:11], 0 glc"); e("s_waitcnt lgkmcnt(0)")
            e(f"s_xor_b32 s22, s13, {sTAG}"); e(f"s_xor_b32 s23, s15, {sTAG}"); e("s_or_b32 s22, s22, s23"); e(f"s_xor_b32 s23, s17, {sTAG}"); e("s_or_b32 s22, s22, s23")
            e("s_cmp_eq_u32 s22, 0"); e("s_cbranch_scc1 L_hb2ok")
            e("s_sleep 4"); self.spin_dec("L_hb2")
            e("v_mov_b32 v20, 128"); e("s_branch L_hb3")
            lab("L_hb2ok")
            c("own: sT3 = T0|T1<<16, s8 tau0, s20 tau1 ; partner: s12 = T0|T1<<16, s14 tau0, s16 tau1 ; put A in (s12a..), role 1 swaps")
            e(f"s_and_b32 {sT1}, {sJ}, 1"); e(f"s_cmp_eq_u32 {sT1}, 0")
            e(f"s_cselect_b32 s22, {sT3}, s12"); e("s_cselect_b32 s23, s8, s14"); e("s_cselect_b32 s9, s20, s16")
            e(f"s_cselect_b32 s12, s12, {sT3}"); e("s_cselect_b32 s14, s14, s8"); e("s_cselect_b32 s16, s16, s20")
            c("rA = (T1A-T0A)/(tau1A-tau0A) ; nA = (TA1*rB' ...)  solve tauA + (n-TA)/rA = tauB + (256-n-TB)/rB")
            e("s_lshr_b32 s13, s22, 16"); e("s_and_b32 s22, s22, 0xffff")
            e("s_lshr_b32 s15, s12, 16"); e("s_and_b32 s12, s12, 0xffff")
            e("s_sub_u32 s22, s13, s22"); e("s_sub_u32 s23, s9, s23")
            e("s_sub_u32 s12, s15, s12"); e("s_sub_u32 s14, s16, s14")
            e("s_sub_u32 s16, s16, s9")
            e("v_cvt_f32_u32 v0, s22"); e("v_cvt_f32_u32 v1, s23"); e("v_cvt_f32_u32 v2, s12"); e("v_cvt_f32_u32 v3, s14")
            e("v_cvt_f32_i32 v4, s16"); e("v_cvt_f32_u32 v5, s13"); e("v_cvt_f32_u32 v6, s15")
            c("pA = dtauA/dTA (time per tile), pB = dtauB/dTB ; n = (delta + TA*pA + (256 - TB)*pB) / (pA + pB)")
            e("v_rcp_f32 v0, v0"); e("v_rcp_f32 v2, v2"); e("s_nop 0")
            e("v_mul_f32 v1, v1, v0"); e("v_mul_f32 v3, v3, v2")
            e(f"v_sub_f32 v6, {fbits(256.0):#x}, v6")
            e("v_fmac_f32 v4, v5, v1"); e("v_fmac_f32 v4, v6, v3")
            e("v_add_f32 v6, v1, v3"); e("v_rcp_f32 v6, v6"); e("s_nop 0")
            e("v_mul_f32 v5, v4, v6"); e("v_add_f32 v5, 0.5, v5"); e("v_cvt_i32_f32 v20, v5")
            e(f"v_max_i32 v20, {self.plo}, v20"); e(f"v_min_i32 v20, {256-self.plo}, v20")
            e(f"s_cmp_eq_u32 {sT1}, 0"); e(f"s_cbranch_scc1 L_hb3")
            e(f"v_sub_u32 v20, 256, v20")
            lab("L_hb3")
            e("v_mov_b32 v21, 1"); e(f"v_mov_b32 v22, {CNT+12}")
            e("ds_write_b32 v22, v20"); e("s_waitcnt lgkmcnt(0)"); e("ds_write_b32 v22, v21 offset:4")
            e("s_mov_b64 exec, -1")
            lab("L_hbaldone")
        elif self.bal:
            c("H0: balance exchange with partner (lid ^ 8)")
            e(f"s_cmp_lg_u32 {sHW}, 0"); e("s_cbranch_scc1 L_hbaldone")
            e(f"v_mov_b32 v{vT}, {CNT+8}"); e(f"s_mov_b32 {sSPIN}, {self.spin}")
            lab("L_hbal1")
            e(f"ds_read_b64 v[0:1], v{vT}"); e("s_waitcnt lgkmcnt(0)")
            e(f"v_readfirstlane_b32 {sT0}, v1"); e("s_nop 3")
            e(f"s_cmp_lg_u32 {sT0}, 0"); e("s_cbranch_scc1 L_hbal1ok")
            e("s_sleep 32")
            self.spin_dec("L_hbal1")
            lab("L_hbal1ok")
            c("v0 = a (time at ta), v1 = c (time at tb): publish {a, tag, c, tag}")
            e(f"v_mov_b32 v4, v0"); e(f"v_mov_b32 v5, {sTAG}"); e(f"v_mov_b32 v6, v1"); e(f"v_mov_b32 v7, {sTAG}"); e("v_mov_b32 v8, 0")
            e(f"s_xor_b32 {sT0}, {sLID}, 8"); e(f"s_lshl_b32 {sT0}, {sT0}, 7"); e(f"s_add_u32 {sT0}, {sT0}, {BAL_BASE:#x}")
            e("s_mov_b64 exec, 1")
            e(f"buffer_store_dwordx4 v[4:7], v8, {SRD_WS}, {sT0} offen sc1")
            e(f"s_lshl_b32 {sT0}, {sLID}, 7"); e(f"s_add_u32 {sT0}, {sT0}, {BAL_BASE:#x}")
            e(f"s_mov_b32 {sSPIN}, {self.spin}")
            lab("L_hbal2")
            e(f"buffer_load_dwordx4 v[12:15], v8, {SRD_WS}, {sT0} offen sc1"); e("s_waitcnt vmcnt(0)")
            e(f"v_xor_b32 v16, {sTAG}, v13"); e(f"v_xor_b32 v17, {sTAG}, v15"); e("v_or_b32 v16, v16, v17")
            e("s_nop 0"); e(f"v_readfirstlane_b32 {sT1}, v16"); e("s_nop 3")
            e(f"s_cmp_eq_u32 {sT1}, 0"); e("s_cbranch_scc1 L_hbal2ok")
            e("s_sleep 16")
            self.spin_dec("L_hbal2")
            c("timeout: both sides cannot agree -> cannot happen in a healthy run; use N = 32")
            e("v_mov_b32 v20, 32"); e("s_branch L_hbal3")
            lab("L_hbal2ok")
            c("A = role 0, B = role 1: (aA,cA) in v[0:1] / (aB,cB) in v12,v14 for role 0; swapped for role 1")
            e(f"s_and_b32 {sT1}, {sJ}, 1"); e(f"s_cmp_eq_u32 {sT1}, 0")
            e("s_cbranch_scc1 L_hbalA")
            e("v_mov_b32 v18, v0"); e("v_mov_b32 v19, v1"); e("v_mov_b32 v0, v12"); e("v_mov_b32 v1, v14"); e("v_mov_b32 v12, v18"); e("v_mov_b32 v14, v19")
            lab("L_hbalA")
            e("v_sub_u32 v2, v1, v0"); e("v_sub_u32 v3, v14, v12"); e("v_sub_u32 v4, v14, v1")
            e("v_cvt_f32_i32 v2, v2"); e("v_cvt_f32_i32 v3, v3"); e("v_cvt_f32_i32 v4, v4")
            nint = self.tb - self.ta
            e(f"v_mul_f32 v5, {fbits(float(nint)):#x}, v4")
            e(f"v_mov_b32 v6, {fbits(float(64-self.tb)):#x}"); e("v_fmac_f32 v5, v6, v3")
            e(f"v_mov_b32 v6, {fbits(float(self.tb)):#x}"); e("v_fmac_f32 v5, v6, v2")
            e("v_add_f32 v6, v2, v3"); e("v_rcp_f32 v6, v6"); e("s_nop 0")
            e("v_mul_f32 v5, v5, v6"); e("v_add_f32 v5, 0.5, v5"); e("v_cvt_i32_f32 v20, v5")
            e(f"v_max_i32 v20, {self.nlo}, v20"); e(f"v_min_i32 v20, {64-self.nlo}, v20")
            e(f"s_cbranch_scc1 L_hbal3")
            e("v_sub_u32 v20, 64, v20")
            lab("L_hbal3")
            e(f"v_mov_b32 v21, {CNT+16}"); e("ds_write_b32 v21, v20")
            e("s_mov_b64 exec, -1")
            lab("L_hbaldone")
        e(f"s_mov_b32 {sC}, {fbits(C_LOG2E_16):#x}")
        c("precompute tail addresses")
        e(f"s_lshl_b32 {sT0}, {sG}, 2"); e(f"s_add_u32 {sT0}, {sT0}, {sJ}"); e(f"s_mul_i32 {sT0}, {sT0}, {4*M1_SLICE}")
        e(f"s_add_u32 {sT1}, {sT0}, {M1_SLICE}"); e(f"s_add_u32 {sT2}, {sT0}, {2*M1_SLICE}"); e(f"s_add_u32 {sT3}, {sT0}, {3*M1_SLICE}")
        hST = 108
        e(f"v_and_b32 v{hST}, 3, v{vLANE}"); e(f"v_lshlrev_b32 v{hST}, 3, v{hST}")
        hOW, hOR, hYS, hP2, hOUT = 109, 110, 111, 112, 113
        e(f"v_and_b32 v{hOW}, 3, v{vLANE}"); e(f"s_movk_i32 {sT4}, {OROW}"); e(f"v_mul_lo_u32 v{hOW}, v{hOW}, {sT4}")
        e(f"v_lshrrev_b32 v{vT}, 2, v{vLANE}"); e(f"v_lshl_add_u32 v{hOW}, v{vT}, 4, v{hOW}"); e(f"v_add_u32 v{hOW}, {OB}, v{hOW}")
        e(f"v_and_b32 v{hOR}, 3, v{vN}"); e(f"v_mul_lo_u32 v{hOR}, v{hOR}, {sT4}"); e(f"v_lshl_add_u32 v{hOR}, v{vGQ}, 4, v{hOR}"); e(f"v_add_u32 v{hOR}, {OB}, v{hOR}")
        e(f"v_lshlrev_b32 v{hYS}, 6, v{vGQ}"); e(f"v_lshl_add_u32 v{hYS}, v{vN}, 4, v{hYS}")
        e(f"v_lshlrev_b32 v{hP2}, 16, v{vGQ}"); e(f"v_lshl_add_u32 v{hP2}, v{vN}, 4, v{hP2}")
        e(f"v_and_b32 v{hOUT}, 3, v{vN}"); e(f"s_lshl_b32 {sT4}, {sB}, 2"); e(f"v_add_u32 v{hOUT}, {sT4}, v{hOUT}")
        e(f"s_movk_i32 {sT4}, 896"); e(f"v_mul_lo_u32 v{hOUT}, v{hOUT}, {sT4}")
        e(f"v_lshrrev_b32 v{vT}, 2, v{vN}"); e(f"v_lshl_add_u32 v{hOUT}, v{vT}, 6, v{hOUT}")
        e(f"s_lshl_b32 s58, {sB}, 18"); e(f"s_lshr_b32 {sT4}, {sR}, 3"); e(f"s_lshl_b32 {sT4}, {sT4}, 11"); e(f"s_add_u32 s58, s58, {sT4}")
        e(f"s_and_b32 {sT4}, {sR}, 7"); e(f"s_lshl_b32 {sT4}, {sT4}, 8"); e(f"s_add_u32 s58, s58, {sT4}"); e(f"s_add_u32 s58, s58, {M2_BASE:#x}")
        e(f"s_lshr_b32 s59, {sR}, 3"); e(f"s_mul_i32 s59, s59, 224"); e(f"s_and_b32 {sT4}, {sR}, 7"); e(f"s_lshl_b32 {sT4}, {sT4}, 1"); e(f"s_add_u32 s59, s59, {sT4}")
        self.stamp(5)
        e("s_barrier")
        if self.notail: e("s_branch L_fin")
        e(f"s_cmp_lg_u32 {sHW}, 0"); e("s_cbranch_scc1 L_t3done")
        e(f"s_mov_b32 {sSPIN}, {self.spin}")
        PB = 0
        lab("L_poll1")
        for jj, so in enumerate((sT0, sT1, sT2, sT3)):
            e(f"buffer_load_dwordx4 v[{PB+8*jj}:{PB+8*jj+3}], v{vLIN16}, {SRD_WS}, {so} offen sc1")
            e(f"buffer_load_dwordx4 v[{PB+8*jj+4}:{PB+8*jj+7}], v{vLIN16}, {SRD_WS}, {so} offen offset:1024 sc1")
            e(f"buffer_load_dwordx2 v[{PB+32+2*jj}:{PB+32+2*jj+1}], v{hST}, {SRD_WS}, {so} offen offset:2048 sc1")
        e("s_waitcnt vmcnt(0)")
        mx = vT + 1
        e(f"v_max3_u32 v{mx}, v{PB}, v{PB+1}, v{PB+2}")
        for k in range(3, 39, 2): e(f"v_max3_u32 v{mx}, v{mx}, v{PB+k}, v{PB+k+1}")
        e(f"v_max_u32 v{mx}, v{mx}, v{PB+39}")
        e(f"v_cmp_eq_u32 vcc, -1, v{mx}"); e("s_nop 1"); e("s_cbranch_vccz L_poll1ok")
        self.spin_dec("L_poll1")
        lab("L_poll1ok")
        ST = PB + 32; a0 = vT + 2; F = vT + 4
        e(f"v_max3_f32 v{a0}, v{ST}, v{ST+2}, v{ST+4}"); e(f"v_max_f32 v{a0}, v{a0}, v{ST+6}")
        for w in range(4): e(f"v_sub_f32 v{F+w}, v{ST+2*w}, v{a0}")
        for w in range(4): e(f"v_mul_f32 v{F+w}, {sC}, v{F+w}")
        for w in range(4): e(f"v_exp_f32 v{F+w}, v{F+w}")
        e("s_nop 0")
        e(f"v_mul_f32 v{a0}, v{F}, v{ST+1}")
        for w in range(1, 4): e(f"v_fmac_f32 v{a0}, v{F+w}, v{ST+2*w+1}")
        e(f"v_rcp_f32 v{a0}, v{a0}"); e("s_nop 0")
        for w in range(4): e(f"v_mul_f32 v{F+w}, v{F+w}, v{a0}")
        ACC = ST
        for k in range(8): e(f"v_mul_f32 v{ACC+k}, v{F}, v{PB+k}")
        for w in range(1, 4):
            for k in range(8): e(f"v_fmac_f32 v{ACC+k}, v{F+w}, v{PB+8*w+k}")
        for p in range(4): e(f"v_cvt_pk_bf16_f32 v{PB+p}, v{ACC+2*p}, v{ACC+2*p+1}")
        e(f"ds_write_b128 v{hOW}, v[{PB}:{PB+3}]")
        lab("L_t3done")
        e("s_waitcnt lgkmcnt(0)"); e("s_barrier")
        self.stamp(6)
        BF = 64 + 48 - 64 + 40
        BF = 40
        for ks in range(4):
            e(f"ds_read_b128 v[{BF+4*ks}:{BF+4*ks+3}], v{hOR}" + (f" offset:{ks*64}" if ks else ""))
        YA = 0
        e("s_waitcnt lgkmcnt(0)")
        for ks in range(4):
            for j in range(8):
                A = 32*ks + 4*j
                cc = "0" if ks == 0 else f"v[{YA+4*j}:{YA+4*j+3}]"
                e(f"v_mfma_f32_16x16x32_bf16 v[{YA+4*j}:{YA+4*j+3}], a[{A}:{A+3}], v[{BF+4*ks}:{BF+4*ks+3}], {cc}")
        e("s_mov_b32 exec_lo, 0x000f000f"); e("s_mov_b32 exec_hi, 0x000f000f")
        self.nop(6)
        for j in range(8):
            e(f"buffer_store_dwordx4 v[{YA+4*j}:{YA+4*j+3}], v{hYS}, {SRD_WS}, {sM2OUT} offen offset:{j*256} sc1")
        e("s_mov_b64 exec, -1")
        e(f"s_cmp_lg_u32 {sHW}, 0"); e("s_cbranch_scc1 L_fin")
        e(f"s_mov_b32 {sSPIN}, {self.spin}")
        PB = 64
        lab("L_poll2")
        for i in range(8):
            if i == 0: so = "s58"
            else:
                e(f"s_add_u32 {sT1}, s58, {i*8192}"); so = sT1
            e(f"buffer_load_dwordx4 v[{PB+4*i}:{PB+4*i+3}], v{hP2}, {SRD_WS}, {so} offen sc1")
        e("s_waitcnt vmcnt(0)")
        mx = 60
        e(f"v_max3_u32 v{mx}, v{PB}, v{PB+1}, v{PB+2}")
        for k in range(3, 31, 2): e(f"v_max3_u32 v{mx}, v{mx}, v{PB+k}, v{PB+k+1}")
        e(f"v_max_u32 v{mx}, v{mx}, v{PB+31}")
        e(f"v_cmp_eq_u32 vcc, -1, v{mx}"); e("s_nop 1"); e("s_cbranch_vccz L_poll2ok")
        self.spin_dec("L_poll2")
        lab("L_poll2ok")
        for k in range(4): e(f"v_add_f32 v{32+k}, v{PB+k}, v{PB+4+k}")
        for i in range(2, 8):
            for k in range(4): e(f"v_add_f32 v{32+k}, v{32+k}, v{PB+4*i+k}")
        for k in range(4): e(f"v_mov_b32 v{36+k}, v{32+k}")
        e("s_nop 0")
        for k in range(4): e(f"v_permlane32_swap_b32 v{36+k}, v{32+k}")
        for k in range(4): e(f"v_add_f32 v{32+k}, v{32+k}, v{36+k}")
        for k in range(4): e(f"v_mov_b32 v{36+k}, v{32+k}")
        e("s_nop 0")
        for k in range(4): e(f"v_permlane16_swap_b32 v{36+k}, v{32+k}")
        for k in range(4): e(f"v_add_f32 v{32+k}, v{32+k}, v{36+k}")
        e("v_cvt_pk_bf16_f32 v40, v32, v33"); e("v_cvt_pk_bf16_f32 v41, v34, v35")
        e("s_mov_b64 exec, 0xffff")
        e(f"buffer_store_short v40, v{hOUT}, {SRD_OUT}, s59 offen")
        e(f"buffer_store_short_d16_hi v40, v{hOUT}, {SRD_OUT}, s59 offen offset:16")
        e("s_mov_b64 exec, 0xfff")
        e(f"buffer_store_short v41, v{hOUT}, {SRD_OUT}, s59 offen offset:32")
        e(f"buffer_store_short_d16_hi v41, v{hOUT}, {SRD_OUT}, s59 offen offset:48")
        e(f"s_cmp_lg_u32 {sLID}, 0"); e("s_cbranch_scc1 L_noep")
        e("s_mov_b64 exec, 1")
        e(f"v_mov_b32 v42, s60"); e(f"v_mov_b32 v43, s61"); e(f"v_mov_b32 v44, 0"); e(f"s_mov_b32 {sT0}, {EPOCH_OFF:#x}")
        e(f"buffer_store_dwordx2 v[42:43], v44, {SRD_WS}, {sT0} offen sc1")
        lab("L_noep")
        e("s_mov_b64 exec, -1")
        lab("L_fin")
        if self.dbgspan:
            c("debug: WGs 0,85,170,255 -> dwords 4k..: start, loop begin, loop end (S0), fin (H0)")
            e("s_memrealtime s[98:99]"); e("s_waitcnt vmcnt(0) lgkmcnt(0)")
            e(f"s_mul_i32 s97, {sWG}, 3"); e("s_mul_hi_u32 s96, s97, 0x1010102"); e("s_mul_i32 s95, s96, 255"); e("s_cmp_lg_u32 s95, s97"); e("s_cbranch_scc1 L_dbgdone")
            self.srd(52, 44, 45, 256)
            e(f"s_mul_i32 s96, {sWG}, 3"); e("s_lshr_b32 s96, s96, 8"); e(f"s_cmp_eq_u32 {sWG}, 0"); e("s_cselect_b32 s96, 0, s96")
            e(f"s_mul_hi_u32 s96, {sWG}, 0x3030304")
            e("s_lshl_b32 s96, s96, 4")
            e("s_mov_b64 exec, 1"); e("v_mov_b32 v2, 0")
            e(f"s_cmp_eq_u32 {sW}, 4"); e("s_cbranch_scc1 L_dbgh")
            e(f"s_cmp_eq_u32 {sW}, 0"); e("s_cbranch_scc0 L_dbgdone")
            e("v_mov_b32 v4, s100"); e("v_mov_b32 v5, s88"); e("v_mov_b32 v6, s90")
            e(f"buffer_store_dwordx3 v[4:6], v2, {SRD_DBG}, s96 offen sc1"); e("s_branch L_dbgdone")
            lab("L_dbgh")
            e("v_mov_b32 v4, s98")
            e(f"buffer_store_dword v4, v2, {SRD_DBG}, s96 offen offset:12 sc1")
            lab("L_dbgdone")
            e("s_waitcnt vmcnt(0)")
        if self.stamps:
            self.stamp(7)
            e("s_waitcnt vmcnt(0) lgkmcnt(0)")
            e(f"s_lshl_b32 {sT0}, {sWG}, 3"); e(f"s_add_u32 {sT0}, {sT0}, {sW}"); e(f"s_lshl_b32 {sT0}, {sT0}, 5"); e(f"s_add_u32 {sT0}, {sT0}, {STAMP_BASE:#x}")
            if self.bal or self.ldyn:
                e(f"s_cmp_lt_u32 {sW}, 4"); e("s_cbranch_scc0 L_non"); e(f"s_mov_b32 s96, {sN}"); lab("L_non")
            for i in range(8): e(f"v_mov_b32 v{i}, s{84+2*i}")
            e("v_mov_b32 v8, 0")
            e("s_mov_b64 exec, 1")
            e(f"buffer_store_dwordx4 v[0:3], v8, {SRD_WS}, {sT0} offen")
            e(f"buffer_store_dwordx4 v[4:7], v8, {SRD_WS}, {sT0} offen offset:16")
            e("s_waitcnt vmcnt(0)")
        lab("L_end")
        e("s_endpgm")
        L.append('.section .rodata,"a"'); L.append(".p2align 6"); L.append(f".amdhsa_kernel {NAME}_kernel")
        for d in ("next_free_vgpr 256", "next_free_sgpr 102", "accum_offset 128", "group_segment_fixed_size 0", "kernarg_size 64",
                  "user_sgpr_count 2", "user_sgpr_kernarg_segment_ptr 1", "system_sgpr_workgroup_id_x 1"):
            L.append("  .amdhsa_" + d)
        L.append(".end_amdhsa_kernel")
        return "\n".join(L) + "\n"

if __name__ == "__main__":
    import argparse
    ap = argparse.ArgumentParser()
    ap.add_argument("out"); ap.add_argument("--stamps", action="store_true"); ap.add_argument("--opt", default="{}")
    a = ap.parse_args()
    open(a.out, "w").write(Gen(stamps=a.stamps, **eval("dict(" + a.opt + ")" if not a.opt.startswith(("{", "dict")) else a.opt)).build())
```

```python
import sys, struct

NAME = "standalone__gqa_block_cached__sampling"
HDR = open("standalone__gqa_block_cached__sampling.s.ref").read().split("; Override")[0]

QB = 131072; QROW = 528
STB = QB + 8 * QROW
OB = STB + 256
OROW = 272
CNT = OB + 4 * OROW
WQS = 136704
RED = WQS + 16384
OWROW = 1040
LDS_BYTES = 163840
assert RED + 8192 <= LDS_BYTES

M1_SLICE = 2176
M2_BASE = 0x400000
QM_BASE = 0x600000
QF_BASE = 0x740000
CF_BASE = 0x760000
BAL_BASE = 0x7a0000
GC_BASE = 0x788000
EPOCH_OFF = 0x790000
TAG_C = 0x9E3779B9
STAMP_BASE = 0x800000
WS_BYTES = 0x1000000

sWG, sW, sKVH, sJ, sB = "s2", "s3", "s4", "s5", "s6"
sHW = "s7"
SRD_K, SRD_V, SRD_WQ, SRD_X, SRD_WO, SRD_WS = "s[8:11]", "s[12:15]", "s[16:19]", "s[20:23]", "s[24:27]", "s[28:31]"
SRD_OUT, SRD_DBG = "s[48:51]", "s[52:55]"
sKOFF, sVOFF = "s60", "s61"
sWB = "s62"
sKSLOT, sVSLOT = "s63", "s64"
sT = "s65"
sC, sNC = "s66", "s67"
sG = "s68"; sR = "s69"
sM1OUT, sM2OUT = "s70", "s71"
sT0, sT1, sT2, sT3, sT4, sT5 = "s72", "s73", "s74", "s75", "s76", "s77"
sSEL_LO, sSEL_HI = "s78", "s79"
sY = "s80"; sSPIN = "s81"; sTAG = "s82"; sLID = "s83"; sTL = "s59"
sN = "s56"; sGB = "s57"; sGC = "s58"; sSTAT = "s59"; sSTEP = "s57"; sPLO = "s55"
vA = 108; vZERO = 110
hWO = 114; sWOM = "s63"
STAMPS = ["s[84:85]", "s[86:87]", "s[88:89]", "s[90:91]", "s[92:93]", "s[94:95]", "s[96:97]", "s[98:99]"]

vO = 0
vLANE, vN, vGQ, vTMPA = 64, 65, 66, 67
vDMA = 68; vKA = 72; vVA = 76; vS = 84; vP = 88; vM, vL = 90, 91; vAL = 92
vT = 94
vLIN16 = 104; vODUMP = 105; vT2A, vT2B = 106, 107
AQ, AK, AV = 0, 32, 64

C_LOG2E_16 = 1.4426950408889634 / 16.0
def fbits(x): return struct.unpack("<I", struct.pack("<f", x))[0]

class Gen:
    def __init__(self, stamps=False, flags="nt", spin=1 << 18, kwait=16, nocomp=False, notail=False, wopace=8, hprio=0, qsleep=2, pace=3, dbgmid=False, nowo=False, noclr=False, v0pre=True, wosame=False, wopf=True, vwait=24, rate=False, noqwait=False, hexit=False, order2=True, kwait2=24, dyn=False, n0=16, pairmap=True, bal=True, ta=4, tb=11, tc=21, nlo=24, quiet=0, dbgq=False, hop1=True, qdelay=True, pre0=2, ldyn=False, t0s=44, t1s=92, plo=108, xmap=1, dbgspan=False, qcontig=False, nox=False, nowq=False, wo128=True, wolate=False, pflate=0, ploB=None, tmarg=8, rounds2=False, delta=6, tmarg2=6):
        self.rounds2 = rounds2; self.delta = delta; self.tmarg2 = tmarg2
        self.ploA = plo; self.ploB = ploB if ploB else plo; self.tmarg = tmarg; self.asym = ploB is not None
        self.pflate = pflate
        self.wolate = wolate
        self.wo128 = wo128
        self.nox = nox; self.nowq = nowq
        self.qcontig = qcontig
        self.dbgspan = dbgspan
        self.xmap = xmap
        self.ldyn = ldyn; self.t0s = t0s; self.t1s = t1s; self.plo = plo
        self.pre0 = pre0
        self.qdelay = qdelay
        self.hop1 = hop1
        self.dbgq = dbgq
        self.quiet = quiet
        self.bal = bal; self.ta = ta; self.tb = tb; self.tc = tc; self.nlo = nlo
        assert not (dyn and bal)
        self.dyn = dyn; self.n0 = n0; self.pairmap = pairmap
        self.order2 = order2; self.kwait2 = kwait2
        self.rate = rate; self.noqwait = noqwait; self.hexit = hexit
        self.vwait = vwait
        self.wopf = wopf
        self.wosame = wosame
        self.v0pre = v0pre
        self.dbgmid = dbgmid; self.nowo = nowo; self.noclr = noclr
        self.pace = pace
        self.qsleep = qsleep
        self.L = []; self.stamps = stamps; self.flags = flags; self.spin = spin; self.kwait = kwait
        self.nocomp = nocomp; self.notail = notail; self.wopace = wopace; self.hprio = hprio
    def e(self, s): self.L.append("  " + s)
    def lab(self, s): self.L.append(s + ":")
    def c(self, s): self.L.append("  ; " + s)
    def stamp(self, i):
        if self.stamps or (getattr(self, "dbgspan", False) and i in (2, 3)): self.e(f"s_memrealtime {STAMPS[i]}")
    def nop(self, n):
        while n > 0:
            k = min(n, 16); self.e(f"s_nop {k-1}"); n -= k
    def dma_half(self, srd, soff):
        for i in range(4):
            o = f" offset:{i*1024}" if i else ""
            self.e(f"buffer_load_dwordx4 v{vDMA+i}, {srd}, {soff} offen{o} {self.flags} lds")
    def dma_tile(self, srd, goff, slot):
        e = self.e
        e(f"s_mov_b32 m0, {slot}"); e(f"s_add_u32 {sT0}, {goff}, 16384")
        self.dma_half(srd, goff)
        e(f"s_add_u32 m0, {slot}, 4096"); e("s_nop 0")
        self.dma_half(srd, sT0)
    def dma_tile_static(self, isv, tile):
        e = self.e
        for half in range(2):
            e(f"s_add_u32 m0, {sWB}, {isv*16384 + tile*8192 + half*4096}")
            e(f"s_add_u32 {sT5}, {sKOFF}, {tile*32768 + half*16384}")
            self.dma_half(SRD_V if isv else SRD_K, sT5)
    def dma_half_static(self, hn):
        e = self.e
        tile, half, isv = hn >> 2, hn & 1, (hn >> 1) & 1
        if self.dyn:
            e(f"s_add_u32 m0, {sWB}, {isv*16384 + tile*8192 + half*4096}")
            e(f"s_add_u32 {sT5}, {sKOFF}, {tile*32768 + half*16384}")
        else:
            e(f"s_add_u32 {sT5}, {sKOFF}, {half*16384}")
            if tile: e(f"s_add_u32 {sT5}, {sT5}, {sSTEP}")
            e(f"s_add_u32 m0, {sWB}, {isv*16384 + tile*8192 + half*4096}"); e("s_nop 0")
        self.dma_half(SRD_V if isv else SRD_K, sT5)
    def read_k(self):
        for s in range(8):
            a, u = s >> 2, s & 3
            self.e(f"ds_read_b128 a[{AK+4*s}:{AK+4*s+3}], v{vKA+u}" + (f" offset:{a*256}" if a else ""))
    def read_v(self):
        for t in range(16):
            a, u = t >> 3, t & 7
            self.e(f"ds_read_b64_tr_b16 a[{AV+2*t}:{AV+2*t+1}], v{vVA+u}" + (f" offset:{a*256}" if a else ""))
    def srd(self, base, lo, hi, size):
        e = self.e
        e(f"s_mov_b32 s{base}, s{lo}"); e(f"s_and_b32 s{base+1}, s{hi}, 0xffff"); e(f"s_mov_b32 s{base+2}, {size:#x}"); e(f"s_mov_b32 s{base+3}, 0x20000")
    def spin_dec(self, label):
        e = self.e
        e(f"s_sub_u32 {sSPIN}, {sSPIN}, 1"); e(f"s_cmp_lg_u32 {sSPIN}, 0"); e(f"s_cbranch_scc1 {label}")

    def loop1(self):
        e, lab, c = self.e, self.lab, self.c
        lab("L_loop")
        if self.rate:
            for tt, si in ((8, 1), (16, 4), (24, 5)):
                e(f"s_cmp_lg_u32 {sT}, {tt}"); e(f"s_cbranch_scc1 L_rs{tt}"); e(f"s_memrealtime {STAMPS[si]}"); lab(f"L_rs{tt}")
        for s in range(8):
            if self.nocomp: break
            cc = "0" if s == 0 else f"v[{vS}:{vS+3}]"
            e(f"v_mfma_f32_16x16x32_bf16 v[{vS}:{vS+3}], a[{AK+4*s}:{AK+4*s+3}], a[{AQ+4*s}:{AQ+4*s+3}], {cc}")
        e(f"s_cmp_eq_u32 {sT}, 31"); e("s_cbranch_scc1 L_k31")
        e(f"s_waitcnt vmcnt({self.kwait})")
        self.read_k()
        e("s_waitcnt lgkmcnt(0)")
        e(f"s_cmp_ge_u32 {sT}, 29"); e("s_cbranch_scc1 L_kdone")
        self.dma_tile(SRD_K, sKOFF, sKSLOT)
        e(f"s_add_u32 {sKOFF}, {sKOFF}, 32768"); e(f"s_xor_b32 {sKSLOT}, {sKSLOT}, 8192")
        lab("L_kdone")
        for u in range(4): e(f"v_xor_b32 v{vKA+u}, 8192, v{vKA+u}")
        lab("L_soft")
        t0, t1, t2 = vT, vT+1, vT+2
        if self.nocomp: e("s_branch L_noresc")
        e(f"v_max3_f32 v{t0}, v{vS}, v{vS+1}, v{vS+2}")
        e(f"v_max_f32 v{t0}, v{t0}, v{vS+3}")
        e(f"v_mov_b32 v{t1}, v{t0}"); e("s_nop 1")
        e(f"v_permlane32_swap_b32 v{t1}, v{t0}")
        e(f"v_max_f32 v{t0}, v{t0}, v{t1}")
        e(f"v_mov_b32 v{t1}, v{t0}"); e("s_nop 1")
        e(f"v_permlane16_swap_b32 v{t1}, v{t0}")
        e(f"v_max3_f32 v{t0}, v{t0}, v{t1}, v{vM}")
        e(f"v_sub_f32 v{t1}, v{vM}, v{t0}")
        e(f"v_mul_f32 v{t1}, {sC}, v{t1}")
        e(f"v_mul_f32 v{t2}, {sNC}, v{t0}")
        e(f"v_exp_f32 v{vAL}, v{t1}")
        e(f"v_mov_b32 v{vM}, v{t0}")
        for r in range(4): e(f"v_fma_f32 v{vS+r}, v{vS+r}, {sC}, v{t2}")
        for r in range(4): e(f"v_exp_f32 v{vS+r}, v{vS+r}")
        e(f"v_cmp_neq_f32 vcc, 1.0, v{vAL}")
        e(f"v_add_f32 v{t0}, v{vS}, v{vS+1}"); e(f"v_add_f32 v{t1}, v{vS+2}, v{vS+3}")
        e(f"v_cvt_pk_bf16_f32 v{vP}, v{vS}, v{vS+1}"); e(f"v_cvt_pk_bf16_f32 v{vP+1}, v{vS+2}, v{vS+3}")
        e(f"v_add_f32 v{t0}, v{t0}, v{t1}"); e(f"v_fma_f32 v{vL}, v{vL}, v{vAL}, v{t0}")
        e("s_cbranch_vccz L_noresc")
        for i in range(32):
            e(f"v_pk_mul_f32 v[{vO+2*i}:{vO+2*i+1}], v[{vO+2*i}:{vO+2*i+1}], v[{vAL}:{vAL+1}] op_sel_hi:[1,0]")
        lab("L_noresc")
        c("V point: steady state vmcnt(24); near the end fewer ops are outstanding")
        if self.v0pre:
            e(f"s_cmp_eq_u32 {sT}, 0"); e("s_cbranch_scc1 L_pv")
        e(f"s_cmp_ge_u32 {sT}, 29"); e("s_cbranch_scc1 L_vlate")
        e(f"s_waitcnt vmcnt({self.vwait})")
        lab("L_vrd")
        self.read_v()
        e("s_waitcnt lgkmcnt(0)")
        e(f"s_cmp_ge_u32 {sT}, 30"); e("s_cbranch_scc1 L_vdone")
        self.dma_tile(SRD_V, sVOFF, sVSLOT)
        e(f"s_add_u32 {sVOFF}, {sVOFF}, 32768"); e(f"s_xor_b32 {sVSLOT}, {sVSLOT}, 8192")
        lab("L_vdone")
        for u in range(8): e(f"v_xor_b32 v{vVA+u}, 8192, v{vVA+u}")
        lab("L_pv")
        for t in range(16):
            if self.nocomp: break
            e(f"v_mfma_f32_16x16x16_bf16 v[{vO+4*t}:{vO+4*t+3}], a[{AV+2*t}:{AV+2*t+1}], v[{vP}:{vP+1}], v[{vO+4*t}:{vO+4*t+3}]")
        e(f"s_add_u32 {sT}, {sT}, 1"); e(f"s_cmp_lt_u32 {sT}, 32"); e("s_cbranch_scc1 L_loop")
        e("s_branch L_tail")
        lab("L_vlate")
        e(f"s_cmp_eq_u32 {sT}, 29"); e("s_cbranch_scc1 L_vrd")
        e(f"s_cmp_eq_u32 {sT}, 30"); e("s_cbranch_scc0 L_vlast")
        e("s_waitcnt vmcnt(8)"); e("s_branch L_vrd")
        lab("L_vlast")
        e("s_waitcnt vmcnt(0)"); e("s_branch L_vrd")
        lab("L_k31")
        self.nop(8)
        e("s_branch L_soft")


    def loop2(self):
        e, lab, c = self.e, self.lab, self.c
        dyn = self.dyn
        ld = self.ldyn
        lab("L_loop")
        if self.rate:
            for tt, si in ((8, 1), (16, 4), (24, 5)):
                e(f"s_cmp_lg_u32 {sT}, {tt}"); e(f"s_cbranch_scc1 L_rs{tt}"); e(f"s_memrealtime {STAMPS[si]}"); lab(f"L_rs{tt}")
        t0, t1, t2 = vT, vT+1, vT+2
        def cmpN(op, k):
            if dyn or self.bal or ld:
                e(f"s_sub_u32 {sT1}, {sN}, {k}"); e(f"s_cmp_{op}_u32 {sT}, {sT1}")
            else:
                e(f"s_cmp_{op}_u32 {sT}, {32-k}")
        if ld:
            c("grab next tile id (lane 0) and read limit/final early")
            cmpN("ge", 3); e("s_cbranch_scc1 L_nograb")
            e("s_mov_b64 exec, 1")
            e(f"ds_add_rtn_u32 v{vA}, v{vZERO}, v{vA+1}")
            e("s_mov_b64 exec, -1")
            lab("L_nograb")
        c("A: QK")
        for s in range(8):
            if self.nocomp: break
            cc = "0" if s == 0 else f"v[{vS}:{vS+3}]"
            e(f"v_mfma_f32_16x16x32_bf16 v[{vS}:{vS+3}], a[{AK+4*s}:{AK+4*s+3}], a[{AQ+4*s}:{AQ+4*s+3}], {cc}")
        c("B: K point")
        if self.bal and not ld:
            e(f"s_cmp_eq_u32 {sT}, {self.ta}"); e("s_cbranch_scc1 L_balst")
            e(f"s_cmp_eq_u32 {sT}, {self.tb}"); e("s_cbranch_scc1 L_balst")
            e(f"s_cmp_eq_u32 {sT}, {self.tc}"); e("s_cbranch_scc1 L_balget")
            lab("L_balback")
        cmpN("ge", 2); e("s_cbranch_scc1 L_klate")
        e(f"s_waitcnt vmcnt({self.kwait2})")
        lab("L_krd")
        self.read_k()
        if dyn:
            cmpN("ge", 3); e("s_cbranch_scc1 L_knoref")
            c("tile id for t+3 ; atomics run two iterations ahead (regs vA, vA+1 by parity of t)")
            e(f"s_cmp_ge_u32 {sT}, {self.n0-3}"); e("s_cbranch_scc1 L_dynid")
            e(f"s_mov_b32 {sT2}, {sSTAT}"); e(f"s_add_u32 {sSTAT}, {sSTAT}, 16")
            e(f"s_cmp_eq_u32 {sT}, {self.n0-5}"); e("s_cbranch_scc1 L_dynchk")
            e(f"s_cmp_eq_u32 {sT}, {self.n0-4}"); e("s_cbranch_scc1 L_atom")
            e("s_branch L_mkoff")
            lab("L_dynid")
            e(f"s_bitcmp1_b32 {sT}, 0"); e("s_cbranch_scc1 L_dynid1")
            e(f"v_readfirstlane_b32 {sT2}, v{vA}"); e("s_branch L_dynid2")
            lab("L_dynid1")
            e(f"v_readfirstlane_b32 {sT2}, v{vA+1}")
            lab("L_dynid2")
            e("s_nop 3")
            e(f"s_add_u32 {sT2}, {sT2}, {self.n0*16}")
            e(f"s_cmp_ge_u32 {sT2}, 512"); e("s_cbranch_scc1 L_exhaust")
            lab("L_atom")
            e("s_mov_b64 exec, 1")
            e(f"s_bitcmp1_b32 {sT}, 0"); e("s_cbranch_scc1 L_atom1")
            e(f"v_mov_b32 v{vA}, 1")
            e(f"buffer_atomic_add v{vA}, v{vZERO}, {SRD_WS}, {sGC} offen sc0 sc1"); e("s_branch L_atom2")
            lab("L_atom1")
            e(f"v_mov_b32 v{vA+1}, 1")
            e(f"buffer_atomic_add v{vA+1}, v{vZERO}, {SRD_WS}, {sGC} offen sc0 sc1")
            lab("L_atom2")
            e("s_mov_b64 exec, -1")
            lab("L_mkoff")
            e(f"s_lshr_b32 {sT3}, {sT2}, 2"); e(f"s_and_b32 {sT3}, {sT3}, 3"); e(f"s_lshl_b32 {sT3}, {sT3}, 20")
            e(f"s_lshr_b32 {sT4}, {sT2}, 4"); e(f"s_lshl_b32 {sT4}, {sT4}, 15"); e(f"s_add_u32 {sT3}, {sT3}, {sT4}")
            e(f"s_and_b32 {sT4}, {sT2}, 3"); e(f"s_lshl_b32 {sT4}, {sT4}, 12"); e(f"s_add_u32 {sT3}, {sT3}, {sT4}")
            e(f"s_add_u32 {sKOFF}, {sGB}, {sT3}")
            e("s_waitcnt lgkmcnt(0)")
            self.dma_tile(SRD_K, sKOFF, sKSLOT)
            e(f"s_xor_b32 {sKSLOT}, {sKSLOT}, 8192")
            e("s_branch L_kdone")
            lab("L_knoref")
            e("s_waitcnt lgkmcnt(0)")
        elif ld:
            e("s_waitcnt lgkmcnt(0)")
            cmpN("ge", 3); e("s_cbranch_scc1 L_kdone")
            e(f"v_readfirstlane_b32 {sT2}, v{vA}"); e("s_nop 3")
            e(f"s_cmp_ge_u32 {sT2}, {sPLO}"); e("s_cbranch_scc1 L_limchk")
            lab("L_tileok")
            e(f"s_xor_b32 {sT2}, {sT2}, {sSTAT}")
            e(f"s_lshr_b32 {sT3}, {sT2}, 2"); e(f"s_lshl_b32 {sT3}, {sT3}, 15"); e(f"s_and_b32 {sT2}, {sT2}, 3"); e(f"s_lshl_b32 {sT2}, {sT2}, 12")
            e(f"s_add_u32 {sKOFF}, {sGC}, {sT3}"); e(f"s_add_u32 {sKOFF}, {sKOFF}, {sT2}")
            self.dma_tile(SRD_K, sKOFF, sKSLOT)
            e(f"s_xor_b32 {sKSLOT}, {sKSLOT}, 8192")
        else:
            e("s_waitcnt lgkmcnt(0)")
            cmpN("ge", 3); e("s_cbranch_scc1 L_kdone")
            self.dma_tile(SRD_K, sKOFF, sKSLOT)
            e(f"s_add_u32 {sKOFF}, {sKOFF}, {sSTEP}"); e(f"s_xor_b32 {sKSLOT}, {sKSLOT}, 8192")
        lab("L_kdone")
        for u in range(4): e(f"v_xor_b32 v{vKA+u}, 8192, v{vKA+u}")
        lab("L_soft")
        c("C: softmax")
        if self.nocomp: e("s_branch L_noresc")
        e(f"v_max3_f32 v{t0}, v{vS}, v{vS+1}, v{vS+2}")
        e(f"v_max_f32 v{t0}, v{t0}, v{vS+3}")
        e(f"v_mov_b32 v{t1}, v{t0}"); e("s_nop 1")
        e(f"v_permlane32_swap_b32 v{t1}, v{t0}")
        e(f"v_max_f32 v{t0}, v{t0}, v{t1}")
        e(f"v_mov_b32 v{t1}, v{t0}"); e("s_nop 1")
        e(f"v_permlane16_swap_b32 v{t1}, v{t0}")
        e(f"v_max3_f32 v{t0}, v{t0}, v{t1}, v{vM}")
        e(f"v_sub_f32 v{t1}, v{vM}, v{t0}")
        e(f"v_mul_f32 v{t1}, {sC}, v{t1}")
        e(f"v_mul_f32 v{t2}, {sNC}, v{t0}")
        e(f"v_exp_f32 v{vAL}, v{t1}")
        e(f"v_mov_b32 v{vM}, v{t0}")
        for r in range(4): e(f"v_fma_f32 v{vS+r}, v{vS+r}, {sC}, v{t2}")
        for r in range(4): e(f"v_exp_f32 v{vS+r}, v{vS+r}")
        e(f"v_cmp_neq_f32 vcc, 1.0, v{vAL}")
        e(f"v_add_f32 v{t0}, v{vS}, v{vS+1}"); e(f"v_add_f32 v{t1}, v{vS+2}, v{vS+3}")
        e(f"v_cvt_pk_bf16_f32 v{vP}, v{vS}, v{vS+1}"); e(f"v_cvt_pk_bf16_f32 v{vP+1}, v{vS+2}, v{vS+3}")
        e(f"v_add_f32 v{t0}, v{t0}, v{t1}"); e(f"v_fma_f32 v{vL}, v{vL}, v{vAL}, v{t0}")
        e("s_cbranch_vccz L_noresc")
        for i in range(32):
            e(f"v_pk_mul_f32 v[{vO+2*i}:{vO+2*i+1}], v[{vO+2*i}:{vO+2*i+1}], v[{vAL}:{vAL+1}] op_sel_hi:[1,0]")
        lab("L_noresc")
        cmpN("eq", 1); e("s_cbranch_scc1 L_vjit")
        lab("L_pv")
        c("D: PV")
        for t in range(16):
            if self.nocomp: break
            e(f"v_mfma_f32_16x16x16_bf16 v[{vO+4*t}:{vO+4*t+3}], a[{AV+2*t}:{AV+2*t+1}], v[{vP}:{vP+1}], v[{vO+4*t}:{vO+4*t+3}]")
        c("E: V point")
        cmpN("ge", 3); e("s_cbranch_scc1 L_vlate")
        e(f"s_waitcnt vmcnt({self.vwait})")
        self.read_v()
        e("s_waitcnt lgkmcnt(0)")
        if dyn or ld:
            self.dma_tile(SRD_V, sKOFF, sVSLOT)
            e(f"s_xor_b32 {sVSLOT}, {sVSLOT}, 8192")
        else:
            self.dma_tile(SRD_V, sVOFF, sVSLOT)
            e(f"s_add_u32 {sVOFF}, {sVOFF}, {sSTEP}"); e(f"s_xor_b32 {sVSLOT}, {sVSLOT}, 8192")
        lab("L_vdone")
        for u in range(8): e(f"v_xor_b32 v{vVA+u}, 8192, v{vVA+u}")
        lab("L_next")
        e(f"s_add_u32 {sT}, {sT}, 1")
        if dyn or self.bal or ld: e(f"s_cmp_lt_u32 {sT}, {sN}")
        else: e(f"s_cmp_lt_u32 {sT}, 32")
        e("s_cbranch_scc1 L_loop")
        e("s_branch L_tail")
        lab("L_klate")
        cmpN("eq", 1); e("s_cbranch_scc1 L_k31")
        e("s_waitcnt vmcnt(8)"); e("s_branch L_krd")
        lab("L_k31")
        self.nop(8)
        e("s_branch L_soft")
        lab("L_vlate")
        cmpN("eq", 3); e("s_cbranch_scc0 L_next")
        if self.wolate:
            e(f"v_mov_b32 v{t0}, {CNT+20}"); e(f"v_mov_b32 v{t1}, 1"); e("s_mov_b64 exec, 1"); e(f"ds_add_u32 v{t0}, v{t1}"); e("s_mov_b64 exec, -1")
        e("s_waitcnt vmcnt(16)")
        self.read_v()
        e("s_waitcnt lgkmcnt(0)")
        e("s_branch L_vdone")
        lab("L_vjit")
        e("s_waitcnt vmcnt(0)")
        self.read_v()
        e("s_waitcnt lgkmcnt(0)")
        e("s_branch L_pv")
        if ld:
            lab("L_limchk")
            e(f"s_mov_b32 {sSPIN}, {self.spin}")
            e(f"v_mov_b32 v{t0}, {CNT+12}")
            lab("L_limchk1")
            e(f"ds_read2_b32 v[{t1+1}:{t1+2}], v{t0} offset0:0 offset1:1"); e("s_waitcnt lgkmcnt(0)")
            e(f"v_readfirstlane_b32 {sT3}, v{t1+2}"); e(f"v_readfirstlane_b32 {sT4}, v{t1+1}"); e("s_nop 3")
            e(f"s_mov_b32 {sPLO}, {sT4}")
            e(f"s_cmp_lt_u32 {sT2}, {sT4}"); e("s_cbranch_scc1 L_tileok")
            e(f"s_cmp_lg_u32 {sT3}, 0"); e("s_cbranch_scc1 L_limfin")
            e("s_sleep 2")
            self.spin_dec("L_limchk1")
            lab("L_limfin")
            e(f"s_add_u32 {sN}, {sT}, 3")
            e("s_branch L_kdone")
        if self.bal and not ld:
            lab("L_balst")
            e(f"s_cmp_lg_u32 {sW}, 0"); e("s_cbranch_scc1 L_balback")
            e(f"s_memrealtime s[{sT2[1:]}:{sT3[1:]}]"); e("s_waitcnt lgkmcnt(0)")
            e(f"s_or_b32 {sT2}, {sT2}, 1")
            e(f"s_cmp_eq_u32 {sT}, {self.tb}"); e(f"s_cselect_b32 {sT3}, 4, 0"); e(f"s_add_u32 {sT3}, {sT3}, {CNT+8}")
            e(f"v_mov_b32 v{t0}, {sT3}"); e(f"v_mov_b32 v{t1}, {sT2}")
            e(f"ds_write_b32 v{t0}, v{t1}")
            e("s_branch L_balback")
            lab("L_balget")
            e(f"s_mov_b32 {sSPIN}, {self.spin}")
            e(f"v_mov_b32 v{t0}, {CNT+16}")
            lab("L_balget1")
            e(f"ds_read_b32 v{t1}, v{t0}"); e("s_waitcnt lgkmcnt(0)")
            e(f"v_readfirstlane_b32 {sN}, v{t1}"); e("s_nop 3")
            e(f"s_cmp_lg_u32 {sN}, 0"); e("s_cbranch_scc1 L_balback")
            e("s_sleep 4")
            self.spin_dec("L_balget1")
            e(f"s_mov_b32 {sN}, 32")
            e("s_branch L_balback")
        if dyn:
            lab("L_exhaust")
            e(f"s_add_u32 {sN}, {sT}, 3")
            e("s_branch L_knoref")
            lab("L_dynchk")
            e(f"s_mov_b32 {sSPIN}, {self.spin}")
            e(f"v_mov_b32 v{t0}, {CNT+8}")
            lab("L_dynchk1")
            e(f"ds_read_b32 v{t1}, v{t0}"); e("s_waitcnt lgkmcnt(0)")
            e(f"v_readfirstlane_b32 {sT3}, v{t1}"); e("s_nop 3")
            e(f"s_cmp_eq_u32 {sT3}, 1"); e("s_cbranch_scc1 L_atom")
            e("s_sleep 8")
            self.spin_dec("L_dynchk1")
            e("s_branch L_atom")

    def t3(self, hST, hOW, so4, lin16):
        e, lab, c = self.e, self.lab, self.c
        e(f"s_mov_b32 {sSPIN}, {self.spin}")
        PB = 0
        lab("L_poll1")
        for jj, so in enumerate(so4):
            e(f"buffer_load_dwordx4 v[{PB+8*jj}:{PB+8*jj+3}], v{lin16}, {SRD_WS}, {so} offen sc1")
            e(f"buffer_load_dwordx4 v[{PB+8*jj+4}:{PB+8*jj+7}], v{lin16}, {SRD_WS}, {so} offen offset:1024 sc1")
            e(f"buffer_load_dwordx2 v[{PB+32+2*jj}:{PB+32+2*jj+1}], v{hST}, {SRD_WS}, {so} offen offset:2048 sc1")
        e("s_waitcnt vmcnt(0)")
        mx = vT + 1
        e(f"v_max3_u32 v{mx}, v{PB}, v{PB+1}, v{PB+2}")
        for k in range(3, 39, 2): e(f"v_max3_u32 v{mx}, v{mx}, v{PB+k}, v{PB+k+1}")
        e(f"v_max_u32 v{mx}, v{mx}, v{PB+39}")
        e(f"v_cmp_eq_u32 vcc, -1, v{mx}"); e("s_nop 1"); e("s_cbranch_vccz L_poll1ok")
        self.spin_dec("L_poll1")
        lab("L_poll1ok")
        ST = PB + 32; a0 = vT + 2; F = vT + 4
        e(f"v_max3_f32 v{a0}, v{ST}, v{ST+2}, v{ST+4}"); e(f"v_max_f32 v{a0}, v{a0}, v{ST+6}")
        for w in range(4): e(f"v_sub_f32 v{F+w}, v{ST+2*w}, v{a0}")
        for w in range(4): e(f"v_mul_f32 v{F+w}, {sC}, v{F+w}")
        for w in range(4): e(f"v_exp_f32 v{F+w}, v{F+w}")
        e("s_nop 0")
        e(f"v_mul_f32 v{a0}, v{F}, v{ST+1}")
        for w in range(1, 4): e(f"v_fmac_f32 v{a0}, v{F+w}, v{ST+2*w+1}")
        e(f"v_rcp_f32 v{a0}, v{a0}"); e("s_nop 0")
        for w in range(4): e(f"v_mul_f32 v{F+w}, v{F+w}, v{a0}")
        ACC = ST
        for k in range(8): e(f"v_mul_f32 v{ACC+k}, v{F}, v{PB+k}")
        for w in range(1, 4):
            for k in range(8): e(f"v_fmac_f32 v{ACC+k}, v{F+w}, v{PB+8*w+k}")
        for p in range(4): e(f"v_cvt_pk_bf16_f32 v{PB+p}, v{ACC+2*p}, v{ACC+2*p+1}")
        e(f"ds_write_b128 v{hOW}, v[{PB}:{PB+3}]")

    def byrole(self, dst, a, b):
        e = self.e
        e(f"s_and_b32 {dst}, {sJ}, 1"); e(f"s_mul_i32 {dst}, {dst}, {b - a}"); e(f"s_add_u32 {dst}, {dst}, {a}")

    def lds_spin(self, label, addr_v, tmp_v, cmp_op, val, sleep):
        e, lab = self.e, self.lab
        e(f"s_mov_b32 {sSPIN}, {self.spin}")
        lab(label)
        e(f"ds_read_b32 v{tmp_v}, v{addr_v}"); e("s_waitcnt lgkmcnt(0)")
        e(f"v_readfirstlane_b32 {sT5}, v{tmp_v}"); e("s_nop 3")
        e(f"s_cmp_{cmp_op}_u32 {sT5}, {val}"); e(f"s_cbranch_scc1 {label}_ok")
        if sleep: e(f"s_sleep {sleep}")
        self.spin_dec(label)
        lab(label + "_ok")

    def wo_pipeline(self):
        e = self.e
        def issue(ks, R):
            e(f"s_mov_b32 {sT4}, {ks*32*896}"); e(f"s_mov_b32 {sT5}, {ks*32*896 + 4*896}")
            e(f"s_mov_b32 exec_lo, {sWOM}"); e(f"s_mov_b32 exec_hi, {sWOM}")
            for i in range(8):
                so = sT4 if i < 4 else sT5
                o = (i & 3) * 896
                e(f"buffer_load_dwordx4 v[{R+4*i}:{R+4*i+3}], v{hWO}, {SRD_WO}, {so} offen" + (f" offset:{o}" if o else ""))
            e("s_mov_b64 exec, -1")
        def proc(ks, R):
            TMP = 116
            n = 0
            for j in range(8):
                u = j >> 1; sel = sSEL_HI if (j & 1) else sSEL_LO
                for p in range(4):
                    tmp = TMP + (n % 8); n += 1
                    e(f"v_perm_b32 v{tmp}, v{R+4*(2*p+1)+u}, v{R+4*(2*p)+u}, {sel}")
                for p in range(4):
                    tmp = TMP + ((n - 4 + p) % 8)
                    e(f"v_accvgpr_write_b32 a{32*ks+4*j+p}, v{tmp}")
        for i in range(32, 64): e(f"v_mov_b32 v{i}, 0")
        issue(0, 0); issue(1, 32)
        e("s_waitcnt vmcnt(8)"); proc(0, 0); issue(2, 0)
        e("s_waitcnt vmcnt(8)"); proc(1, 32); issue(3, 32)
        e("s_waitcnt vmcnt(8)"); proc(2, 0)
        e("s_waitcnt vmcnt(0)"); proc(3, 32)

    def build(self):
        e, lab, c = self.e, self.lab, self.c
        L = self.L
        L.append(HDR.rstrip())
        L.append(f"; @launch grid=(256,1,1) block=(512,1,1) lds={LDS_BYTES}")
        L.append('.amdgcn_target "amdgcn-amd-amdhsa--gfx950"')
        L.append(".text"); L.append(f".globl {NAME}_kernel"); L.append(".p2align 8"); L.append(f".type {NAME}_kernel,@function")
        lab(f"{NAME}_kernel")
        e(f"s_cmp_ge_u32 {sWG}, 256"); e("s_cbranch_scc1 L_end")
        e("s_load_dwordx16 s[32:47], s[0:1], 0")
        self.stamp(0)
        if self.dbgspan: e("s_memrealtime s[100:101]")
        e(f"v_lshrrev_b32 v{vTMPA}, 6, v0")
        e(f"v_and_b32 v{vLANE}, 63, v0")
        e(f"s_and_b32 {sT0}, {sWG}, 7"); e(f"s_lshr_b32 {sT1}, {sWG}, 3")
        e(f"v_readfirstlane_b32 {sW}, v{vTMPA}")
        if self.pairmap and self.xmap == 3:
            c("pairs on XCDs x, x^3: kvh = 4*(x>>2) + 2*gray(x&3) + (y&1)")
            e(f"s_lshr_b32 {sT2}, {sT0}, 1"); e(f"s_xor_b32 {sT2}, {sT2}, {sT0}"); e(f"s_and_b32 {sT2}, {sT2}, 1"); e(f"s_lshl_b32 {sT2}, {sT2}, 1")
            e(f"s_and_b32 {sKVH}, {sT0}, 4"); e(f"s_add_u32 {sKVH}, {sKVH}, {sT2}"); e(f"s_and_b32 {sT2}, {sT1}, 1"); e(f"s_add_u32 {sKVH}, {sKVH}, {sT2}")
            e(f"s_and_b32 {sJ}, {sT0}, 1"); e(f"s_and_b32 {sT2}, {sT1}, 2"); e(f"s_add_u32 {sJ}, {sJ}, {sT2}")
            e(f"s_lshr_b32 {sB}, {sT1}, 2")
        elif self.pairmap and self.xmap == 5:
            c("pairs on XCDs x, x^5 : (0,5),(1,4),(2,7),(3,6): pair id = (x ^ (x&1)*5) >> 1 ... canonical even member e = x if even else x^5; kvh = (e & 6) + (y&1)")
            e(f"s_and_b32 {sT2}, {sT0}, 1"); e(f"s_mul_i32 {sT2}, {sT2}, 5"); e(f"s_xor_b32 {sT2}, {sT2}, {sT0}")
            e(f"s_and_b32 {sKVH}, {sT2}, 6"); e(f"s_and_b32 {sT2}, {sT1}, 1"); e(f"s_add_u32 {sKVH}, {sKVH}, {sT2}")
            e(f"s_and_b32 {sJ}, {sT0}, 1"); e(f"s_and_b32 {sT2}, {sT1}, 2"); e(f"s_add_u32 {sJ}, {sJ}, {sT2}")
            e(f"s_lshr_b32 {sB}, {sT1}, 2")
        elif self.pairmap:
            e(f"s_and_b32 {sKVH}, {sT0}, 6"); e(f"s_and_b32 {sT2}, {sT1}, 1"); e(f"s_add_u32 {sKVH}, {sKVH}, {sT2}")
            e(f"s_and_b32 {sJ}, {sT0}, 1"); e(f"s_and_b32 {sT2}, {sT1}, 2"); e(f"s_add_u32 {sJ}, {sJ}, {sT2}")
            e(f"s_lshr_b32 {sB}, {sT1}, 2")
        else:
            e(f"s_mov_b32 {sKVH}, {sT0}"); e(f"s_and_b32 {sJ}, {sT1}, 3"); e(f"s_lshr_b32 {sB}, {sT1}, 2")
        e(f"s_lshl_b32 {sY}, {sB}, 2"); e(f"s_add_u32 {sY}, {sY}, {sJ}")
        e(f"s_lshl_b32 {sLID}, {sY}, 3"); e(f"s_add_u32 {sLID}, {sLID}, {sKVH}")
        e(f"s_lshl_b32 {sG}, {sB}, 3"); e(f"s_add_u32 {sG}, {sG}, {sKVH}")
        e(f"v_and_b32 v{vN}, 15, v{vLANE}"); e(f"v_lshrrev_b32 v{vGQ}, 4, v{vLANE}")
        e(f"s_and_b32 {sHW}, {sW}, 3")
        e(f"s_lshl_b32 {sR}, {sKVH}, 2"); e(f"s_add_u32 {sR}, {sR}, {sJ}")
        e(f"s_cmp_ge_u32 {sW}, 4"); e("s_cbranch_scc1 L_helper")

        c("DMA voffsets")
        e(f"v_lshrrev_b32 v{vT}, 5, v{vLANE}"); e(f"v_and_b32 v{vT+1}, 31, v{vLANE}")
        e(f"v_lshlrev_b32 v{vT+2}, 9, v{vT}"); e(f"v_lshlrev_b32 v{vT+3}, 1, v{vT}")
        for i in range(4):
            e(f"v_xor_b32 v{vT+4}, {4*i}, v{vT+3}"); e(f"v_xor_b32 v{vT+4}, v{vT+4}, v{vT+1}")
            e(f"v_lshl_add_u32 v{vDMA+i}, v{vT+4}, 4, v{vT+2}")
        if self.bal:
            e(f"s_lshl_b32 {sKOFF}, {sG}, 22"); e(f"s_lshr_b32 {sT0}, {sJ}, 1"); e(f"s_lshl_b32 {sT0}, {sT0}, 21"); e(f"s_add_u32 {sKOFF}, {sKOFF}, {sT0}")
            e(f"s_and_b32 {sT1}, {sJ}, 1"); e(f"s_mul_i32 {sT0}, {sT1}, {63*32768}"); e(f"s_add_u32 {sKOFF}, {sKOFF}, {sT0}")
            e(f"s_mul_i32 {sT1}, {sT1}, -65536"); e(f"s_add_u32 {sSTEP}, {sT1}, 32768")
            e(f"s_mov_b32 {sN}, 100000")
        else:
            e(f"s_lshl_b32 {sKOFF}, {sG}, 22"); e(f"s_lshl_b32 {sT0}, {sJ}, 20"); e(f"s_add_u32 {sKOFF}, {sKOFF}, {sT0}")
            e(f"s_mov_b32 {sSTEP}, 32768") if not self.dyn else None
        e(f"s_lshl_b32 {sT0}, {sW}, 12"); e(f"s_add_u32 {sKOFF}, {sKOFF}, {sT0}")
        e(f"s_lshl_b32 {sWB}, {sW}, 15")
        e("s_waitcnt lgkmcnt(0)")
        self.srd(8, 34, 35, 0x10000000); self.srd(12, 36, 37, 0x10000000)
        for hn in range(self.pre0): self.dma_half_static(hn)
        e("s_barrier")
        first = self.quiet if self.quiet else self.pace
        for hn in range(self.pre0, first): self.dma_half_static(hn)
        self.srd(28, 46, 47, WS_BYTES)
        c("K/V LDS read addresses")
        e(f"v_and_b32 v{vT}, 7, v{vN}"); e(f"v_lshlrev_b32 v{vT}, 1, v{vT}")
        e(f"v_lshlrev_b32 v{vT+1}, 9, v{vN}"); e(f"v_add_u32 v{vT+1}, {sWB}, v{vT+1}")
        for u in range(4):
            e(f"v_add_u32 v{vT+2}, {4*u}, v{vGQ}"); e(f"v_xor_b32 v{vT+2}, v{vT+2}, v{vT}"); e(f"v_lshl_add_u32 v{vKA+u}, v{vT+2}, 4, v{vT+1}")
        e(f"v_lshrrev_b32 v{vT}, 2, v{vN}"); e(f"v_lshl_add_u32 v{vT}, v{vGQ}, 2, v{vT}")
        e(f"v_and_b32 v{vT+1}, 7, v{vT}"); e(f"v_lshlrev_b32 v{vT+2}, 9, v{vT}")
        e(f"v_and_b32 v{vT+3}, 3, v{vN}"); e(f"v_lshl_add_u32 v{vT+2}, v{vT+3}, 3, v{vT+2}")
        e(f"s_add_u32 {sT0}, {sWB}, 16384"); e(f"v_add_u32 v{vT+2}, {sT0}, v{vT+2}")
        for u in range(8):
            e(f"v_xor_b32 v{vT+3}, {u}, v{vT+1}"); e(f"v_lshl_add_u32 v{vVA+u}, v{vT+3}, 5, v{vT+2}")
        c("init O, m, l, consts")
        for i in range(64): e(f"v_mov_b32 v{vO+i}, 0")
        e(f"v_mov_b32 v{vM}, 0xff7fffff"); e(f"v_mov_b32 v{vL}, 0")
        e(f"s_mov_b32 {sC}, {fbits(C_LOG2E_16):#x}"); e(f"s_mov_b32 {sNC}, {fbits(-C_LOG2E_16):#x}")
        e(f"v_lshlrev_b32 v{vLIN16}, 4, v{vLANE}")
        e(f"s_lshl_b32 {sT0}, {sG}, 2"); e(f"s_add_u32 {sT0}, {sT0}, {sW}"); e(f"s_lshl_b32 {sT0}, {sT0}, 2"); e(f"s_add_u32 {sT0}, {sT0}, {sJ}")
        e(f"s_mul_i32 {sM1OUT}, {sT0}, {M1_SLICE}")
        if self.dyn:
            e(f"s_mov_b32 {sN}, 100000"); e(f"s_lshl_b32 {sGB}, {sG}, 22")
            e(f"s_lshl_b32 {sGC}, {sG}, 7"); e(f"s_add_u32 {sGC}, {sGC}, {GC_BASE:#x}")
            e(f"s_lshl_b32 {sSTAT}, {sJ}, 2"); e(f"s_add_u32 {sSTAT}, {sSTAT}, {sW}"); e(f"s_add_u32 {sSTAT}, {sSTAT}, 48")
            e(f"v_mov_b32 v{vZERO}, 0")
        if self.ldyn:
            e(f"s_lshl_b32 {sGC}, {sG}, 22"); e(f"s_lshr_b32 {sT0}, {sJ}, 1"); e(f"s_lshl_b32 {sT0}, {sT0}, 21"); e(f"s_add_u32 {sGC}, {sGC}, {sT0}")
            e(f"s_and_b32 {sSTAT}, {sJ}, 1"); e(f"s_mul_i32 {sSTAT}, {sSTAT}, 255")
            e(f"v_mov_b32 v{vA+1}, 1"); e(f"v_mov_b32 v{vZERO}, {CNT+8}")
            self.byrole(sPLO, self.ploA, self.ploB)
        c("Q frag read address")
        e(f"s_movk_i32 {sT1}, {QROW}")
        e(f"v_and_b32 v{vT+5}, 7, v{vN}"); e(f"v_mul_lo_u32 v{vT+5}, v{vT+5}, {sT1}"); e(f"v_lshl_add_u32 v{vT+5}, v{vGQ}, 4, v{vT+5}"); e(f"v_add_u32 v{vT+5}, {QB}, v{vT+5}")
        c("paced fill of halves: K0a K0b V0a V0b K1a K1b V1a V1b, then K2 (slot A after reading K0)")
        P = self.pace
        if self.quiet:
            e("s_barrier")
            for hn in range(max(self.quiet, self.pre0), P): self.dma_half_static(hn)
        for hn in range(max(P, self.quiet, self.pre0), 8):
            e(f"s_waitcnt vmcnt({4*(P-1)})")
            self.dma_half_static(hn)
            if hn == max(P, 2) + 1 - (0 if P <= 2 else 0) and False: pass
        c("K0 landed")
        e("s_waitcnt vmcnt(24)")
        self.read_k()
        if self.dyn:
            e(f"s_add_u32 {sKOFF}, {sKOFF}, 65536")
        else:
            e(f"s_add_u32 {sKOFF}, {sKOFF}, {sSTEP}"); e(f"s_add_u32 {sKOFF}, {sKOFF}, {sSTEP}")
        e(f"s_mov_b32 {sVOFF}, {sKOFF}")
        e(f"s_mov_b32 {sKSLOT}, {sWB}"); e(f"s_add_u32 {sVSLOT}, {sWB}, 16384")
        e(f"s_add_u32 {sT4}, {sKOFF}, 16384")
        e(f"s_waitcnt vmcnt({4*(P-1)}) lgkmcnt(0)")
        e(f"s_mov_b32 m0, {sKSLOT}"); e("s_nop 0")
        self.dma_half(SRD_K, sKOFF)
        e(f"s_waitcnt vmcnt({4*(P-1)})")
        e(f"s_add_u32 m0, {sKSLOT}, 4096"); e("s_nop 0")
        self.dma_half(SRD_K, sT4)
        e(f"s_add_u32 {sKOFF}, {sKOFF}, {32768 if self.dyn else sSTEP}"); e(f"s_xor_b32 {sKSLOT}, {sKSLOT}, 8192")
        for u in range(4): e(f"v_xor_b32 v{vKA+u}, 8192, v{vKA+u}")
        if self.v0pre:
            c("V0 -> regs, refill V2")
            e("s_waitcnt vmcnt(24)")
            self.read_v()
            e(f"s_add_u32 {sT4}, {sVOFF}, 16384")
            e(f"s_waitcnt vmcnt({4*(P-1)}) lgkmcnt(0)")
            e(f"s_mov_b32 m0, {sVSLOT}"); e("s_nop 0")
            self.dma_half(SRD_V, sVOFF)
            e(f"s_waitcnt vmcnt({4*(P-1)})")
            e(f"s_add_u32 m0, {sVSLOT}, 4096"); e("s_nop 0")
            self.dma_half(SRD_V, sT4)
            e(f"s_add_u32 {sVOFF}, {sVOFF}, {32768 if self.dyn else sSTEP}"); e(f"s_xor_b32 {sVSLOT}, {sVSLOT}, 8192")
            for u in range(8): e(f"v_xor_b32 v{vVA+u}, 8192, v{vVA+u}")
        if not self.rate: self.stamp(1)
        e("s_barrier")
        for s in range(8):
            e(f"ds_read_b128 a[{AQ+4*s}:{AQ+4*s+3}], v{vT+5}" + (f" offset:{s*64}" if s else ""))
        e(f"s_mov_b32 {sT}, 0")
        e("s_waitcnt lgkmcnt(0)")
        self.stamp(2)

        if self.order2:
            self.loop2()
        else:
            self.loop1()
        lab("L_tail")
        t0, t1, t2 = vT, vT+1, vT+2
        self.stamp(3)
        e(f"v_mov_b32 v{t1}, v{vL}"); e("s_nop 1")
        e(f"v_permlane32_swap_b32 v{t1}, v{vL}"); e(f"v_add_f32 v{vL}, v{vL}, v{t1}")
        e(f"v_mov_b32 v{t1}, v{vL}"); e("s_nop 1")
        e(f"v_permlane16_swap_b32 v{t1}, v{vL}"); e(f"v_add_f32 v{vL}, v{vL}, v{t1}")
        e(f"s_movk_i32 {sT1}, {OWROW}"); e(f"v_mul_lo_u32 v{vODUMP}, v{vN}, {sT1}")
        e(f"v_lshl_add_u32 v{vODUMP}, v{vGQ}, 4, v{vODUMP}"); e(f"v_add_u32 v{vODUMP}, {sWB}, v{vODUMP}")
        e(f"s_lshl_b32 {sT0}, {sW}, 6"); e(f"s_add_u32 {sT0}, {sT0}, {STB}")
        e(f"v_lshlrev_b32 v{t2}, 3, v{vN}"); e(f"v_add_u32 v{t2}, {sT0}, v{t2}")
        e("s_mov_b32 exec_lo, 0x00ff00ff"); e("s_mov_b32 exec_hi, 0x00ff00ff")
        for t in range(16):
            e(f"ds_write_b128 v{vODUMP}, v[{vO+4*t}:{vO+4*t+3}]" + (f" offset:{t*64}" if t else ""))
        e("s_mov_b64 exec, 0xff")
        e(f"ds_write_b64 v{t2}, v[{vM}:{vM+1}]")
        e("s_mov_b64 exec, -1")
        e(f"v_and_b32 v{vT}, 3, v{vLANE}"); e(f"v_lshrrev_b32 v{vT+1}, 2, v{vLANE}")
        e(f"s_lshr_b32 {sT0}, {sW}, 1"); e(f"s_lshl_b32 {sT0}, {sT0}, 2")
        e(f"v_add_u32 v{vT}, {sT0}, v{vT}")
        e(f"v_mul_lo_u32 v{vT2A}, v{vT}, {sT1}"); e(f"v_lshl_add_u32 v{vT2A}, v{vT+1}, 5, v{vT2A}")
        e(f"s_and_b32 {sT0}, {sW}, 1"); e(f"s_lshl_b32 {sT0}, {sT0}, 9"); e(f"v_add_u32 v{vT2A}, {sT0}, v{vT2A}")
        e(f"v_add_u32 v{vT2B}, 65536, v{vT2A}")
        e(f"v_lshlrev_b32 v{vT+2}, 3, v{vT}"); e(f"v_add_u32 v{vT+2}, {STB}, v{vT+2}")
        if self.wolate:
            e("s_waitcnt lgkmcnt(0)")
            e(f"v_mov_b32 v{vT+3}, {CNT+24}"); e(f"v_mov_b32 v{vT+4}, 1"); e("s_mov_b64 exec, 1"); e(f"ds_add_u32 v{vT+3}, v{vT+4}"); e("s_mov_b64 exec, -1")
            self.lds_spin("L_sb2", vT+3, vT+4, "ge", 4, 0)
        else:
            e("s_waitcnt lgkmcnt(0)"); e("s_barrier")
        if not self.rate: self.stamp(4)
        for w in range(4): e(f"ds_read_b64 v[{2*w}:{2*w+1}], v{vT+2} offset:{w*64}")
        for w in range(4):
            for u in range(2):
                a = vT2A if w < 2 else vT2B
                o = (w & 1) * 32768 + u * 16
                e(f"ds_read_b128 v[{8+8*w+4*u}:{8+8*w+4*u+3}], v{a}" + (f" offset:{o}" if o else ""))
        e("s_waitcnt lgkmcnt(8)")
        e("v_max3_f32 v40, v0, v2, v4"); e("v_max_f32 v40, v40, v6")
        for w in range(4): e(f"v_sub_f32 v{44+w}, v{2*w}, v40")
        for w in range(4): e(f"v_mul_f32 v{44+w}, {sC}, v{44+w}")
        for w in range(4): e(f"v_exp_f32 v{44+w}, v{44+w}")
        e("s_nop 0")
        e("v_mul_f32 v41, v44, v1"); e("v_fmac_f32 v41, v45, v3"); e("v_fmac_f32 v41, v46, v5"); e("v_fmac_f32 v41, v47, v7")
        e("s_waitcnt lgkmcnt(0)")
        for k in range(8): e(f"v_mul_f32 v{48+k}, v44, v{8+k}")
        for w in range(1, 4):
            for k in range(8): e(f"v_fmac_f32 v{48+k}, v{44+w}, v{8+8*w+k}")
        e(f"buffer_store_dwordx4 v[48:51], v{vLIN16}, {SRD_WS}, {sM1OUT} offen sc1")
        e(f"buffer_store_dwordx4 v[52:55], v{vLIN16}, {SRD_WS}, {sM1OUT} offen offset:1024 sc1")
        e(f"v_lshlrev_b32 v{vT}, 3, v{vLANE}")
        e("s_mov_b64 exec, 0xf")
        e(f"buffer_store_dwordx2 v[40:41], v{vT}, {SRD_WS}, {sM1OUT} offen offset:2048 sc1")
        e("s_mov_b64 exec, -1")
        if not self.rate: self.stamp(5)
        if self.wolate:
            e(f"s_cmp_lg_u32 {sW}, 0"); e("s_cbranch_scc1 L_fin")
            c("S0: hop 1 (T3)")
            e(f"s_lshl_b32 {sT0}, {sG}, 2"); e(f"s_add_u32 {sT0}, {sT0}, {sJ}"); e(f"s_mul_i32 {sT0}, {sT0}, {4*M1_SLICE}")
            e(f"s_add_u32 {sT1}, {sT0}, {M1_SLICE}"); e(f"s_add_u32 {sT2}, {sT0}, {2*M1_SLICE}"); e(f"s_add_u32 {sT3}, {sT0}, {3*M1_SLICE}")
            e(f"v_and_b32 v112, 3, v{vLANE}"); e(f"v_lshlrev_b32 v112, 3, v112")
            e(f"v_and_b32 v113, 3, v{vLANE}"); e(f"s_movk_i32 {sT4}, {OROW}"); e(f"v_mul_lo_u32 v113, v113, {sT4}")
            e(f"v_lshrrev_b32 v{vT}, 2, v{vLANE}"); e(f"v_lshl_add_u32 v113, v{vT}, 4, v113"); e(f"v_add_u32 v113, {OB}, v113")
            e(f"v_mov_b32 v{vT+1}, {CNT+28}")
            self.lds_spin("L_scf", vT+1, vT+2, "ge", 1, 4)
            self.t3(112, 113, (sT0, sT1, sT2, sT3), vLIN16)
            e("s_waitcnt lgkmcnt(0)"); e("s_barrier")
        e("s_branch L_fin")

        lab("L_helper")
        if self.hexit:
            e("s_waitcnt lgkmcnt(0)"); self.srd(28, 46, 47, WS_BYTES)
            e("s_barrier"); e("s_barrier"); e("s_barrier")
            if self.quiet: e("s_barrier")
            e("s_branch L_fin")
        if self.hprio: e(f"s_setprio {self.hprio}")
        c("wq DMA voffset: (l>>1)*8192 + (l&1)*16 + (kvh*512 + 16y)*2 ; x voffset: n*896 + g*16")
        hX = 0
        hA = 32
        hD = 48
        e(f"v_lshrrev_b32 v{vT}, 1, v{vLANE}"); e(f"v_lshlrev_b32 v{vT}, 13, v{vT}")
        e(f"v_and_b32 v{vT+1}, 1, v{vLANE}"); e(f"v_lshl_add_u32 v{vT}, v{vT+1}, 4, v{vT}")
        e(f"s_lshl_b32 {sT0}, {sKVH}, 10"); e(f"s_lshl_b32 {sT1}, {sY}, 5"); e(f"s_add_u32 {sT0}, {sT0}, {sT1}")
        e(f"v_add_u32 v{vDMA}, {sT0}, v{vT}")
        e(f"s_movk_i32 {sT1}, 896"); e(f"v_mul_lo_u32 v{vDMA+1}, v{vN}, {sT1}"); e(f"v_lshl_add_u32 v{vDMA+1}, v{vGQ}, 4, v{vDMA+1}")
        e(f"s_lshl_b32 {sWB}, {sHW}, 12"); e(f"s_add_u32 {sWB}, {sWB}, {WQS}")
        c("H0 zeroes the LDS counters")
        e(f"v_mov_b32 v{vT+2}, {CNT}")
        for i in range(4): e(f"v_mov_b32 v{vT+4+i}, 0")
        e(f"ds_write_b128 v{vT+2}, v[{vT+4}:{vT+7}] offset:16")
        if self.ldyn:
            self.byrole(sT3, self.ploA, self.ploB)
            e(f"v_mov_b32 v{vT+6}, 12"); e(f"v_mov_b32 v{vT+7}, {sT3}")
        e(f"ds_write_b128 v{vT+2}, v[{vT+4}:{vT+7}]")
        e("s_waitcnt lgkmcnt(0)")
        if self.dbgq: self.stamp(2)
        e(f"s_add_u32 s56, s46, {EPOCH_OFF:#x}"); e("s_addc_u32 s57, s47, 0")
        e(f"s_load_dwordx2 s[60:61], s[56:57], 0")
        self.srd(16, 38, 39, 3670016); self.srd(20, 32, 33, 28672)
        if self.qcontig:
            e(f"s_lshl_b32 {sT2}, {sHW}, 20"); e(f"s_lshl_b32 {sT3}, {sHW}, 8")
        else:
            e(f"s_lshl_b32 {sT2}, {sHW}, 18")
            e(f"s_lshl_b32 {sT3}, {sHW}, 6")
        for idx in range(4):
            if idx == 2 and self.qcontig:
                e(f"s_cmp_eq_u32 {sHW}, 3"); e("s_cbranch_scc1 L_hq_issued")
            if idx == 3 and not self.qcontig:
                e(f"s_cmp_ge_u32 {sHW}, 2"); e("s_cbranch_scc1 L_hq_issued")
            e(f"s_add_u32 m0, {sWB}, {idx*1024}")
            e(f"s_add_u32 {sT4}, {sT3}, 14336")
            if not self.nowq: e(f"buffer_load_dwordx4 v{vDMA}, {SRD_WQ}, {sT2} offen lds")
            if not self.nox:
                e(f"buffer_load_dwordx4 v[{hX+8*idx}:{hX+8*idx+3}], v{vDMA+1}, {SRD_X}, {sT3} offen")
                e(f"buffer_load_dwordx4 v[{hX+8*idx+4}:{hX+8*idx+7}], v{vDMA+1}, {SRD_X}, {sT4} offen")
            if idx < 3:
                if self.qcontig:
                    e(f"s_add_u32 {sT2}, {sT2}, 262144"); e(f"s_add_u32 {sT3}, {sT3}, 64")
                else:
                    e(f"s_add_u32 {sT2}, {sT2}, {4*262144}"); e(f"s_add_u32 {sT3}, {sT3}, 256")
        lab("L_hq_issued")
        if self.dbgq: self.stamp(3)
        e("s_barrier")
        if self.dbgq: self.stamp(4)
        self.srd(28, 46, 47, WS_BYTES); self.srd(24, 40, 41, 3670016)
        e("s_mov_b32 s34, s42"); e("s_mov_b32 s35, s43")
        c("tr-read address: wb + (8g + (i>>2))*32 + (i&3)*8  (+128 for second half, +1024*idx)")
        e(f"v_lshrrev_b32 v{vT}, 2, v{vN}"); e(f"v_lshl_add_u32 v{vT}, v{vGQ}, 3, v{vT}"); e(f"v_lshlrev_b32 v{vT}, 5, v{vT}")
        e(f"v_and_b32 v{vT+1}, 3, v{vN}"); e(f"v_lshl_add_u32 v{vT}, v{vT+1}, 3, v{vT}"); e(f"v_add_u32 v{vT}, {sWB}, v{vT}")
        for i in range(8): e(f"v_mov_b32 v{hD+i}, 0")
        c("partial write address: RED + hw*2048 + n*64 + g*16 (+1024 for h=1)")
        e(f"s_lshl_b32 {sT0}, {sHW}, 11"); e(f"s_add_u32 {sT0}, {sT0}, {RED}")
        e(f"v_lshlrev_b32 v{vT+2}, 6, v{vN}"); e(f"v_lshl_add_u32 v{vT+2}, v{vGQ}, 4, v{vT+2}"); e(f"v_add_u32 v{vT+2}, {sT0}, v{vT+2}")
        e("s_waitcnt vmcnt(0)")
        self.stamp(1)
        for idx in range(4):
            if idx == 2 and self.qcontig:
                e(f"s_cmp_eq_u32 {sHW}, 3"); e("s_cbranch_scc1 L_hq_mm")
            if idx == 3 and not self.qcontig:
                e(f"s_cmp_ge_u32 {sHW}, 2"); e("s_cbranch_scc1 L_hq_mm")
            e(f"ds_read_b64_tr_b16 v[{hA+4*idx}:{hA+4*idx+1}], v{vT} offset:{idx*1024}")
            e(f"ds_read_b64_tr_b16 v[{hA+4*idx+2}:{hA+4*idx+3}], v{vT} offset:{idx*1024+128}")
            e("s_waitcnt lgkmcnt(0)")
            for h in range(2):
                e(f"v_mfma_f32_16x16x32_bf16 v[{hD+4*h}:{hD+4*h+3}], v[{hA+4*idx}:{hA+4*idx+3}], v[{hX+8*idx+4*h}:{hX+8*idx+4*h+3}], v[{hD+4*h}:{hD+4*h+3}]")
        lab("L_hq_mm")
        self.nop(8)
        e(f"ds_write_b128 v{vT+2}, v[{hD}:{hD+3}]"); e(f"ds_write_b128 v{vT+2}, v[{hD+4}:{hD+7}] offset:1024")
        e(f"v_mov_b32 v{vT+3}, {CNT}"); e(f"v_mov_b32 v{vT+4}, 1")
        e("s_waitcnt lgkmcnt(0)")
        e("s_mov_b64 exec, 1"); e(f"ds_add_u32 v{vT+3}, v{vT+4}"); e("s_mov_b64 exec, -1")
        c("reduce read address: RED + rho*64 + cp*8, rho = 8hw + (l>>3), cp = l&7")
        e(f"v_lshrrev_b32 v{vT}, 3, v{vLANE}"); e(f"s_lshl_b32 {sT0}, {sHW}, 3"); e(f"v_add_u32 v{vT}, {sT0}, v{vT}")
        e(f"v_and_b32 v{vT+1}, 7, v{vLANE}")
        e(f"v_lshlrev_b32 v{vT+2}, 6, v{vT}"); e(f"v_lshl_add_u32 v{vT+2}, v{vT+1}, 3, v{vT+2}"); e(f"v_add_u32 v{vT+2}, {RED}, v{vT+2}")
        if self.hop1:
            c("launch tag: E' = E + C (64 bit); TL = low 16 bits << 16, sTAG = bits 16..47")
            e(f"s_add_u32 s60, s60, 0x7f4a7c15"); e(f"s_addc_u32 s61, s61, 0x9e3779b9")
            e(f"s_lshl_b32 {sTL}, s60, 16"); e(f"s_lshr_b32 {sTAG}, s60, 16"); e(f"s_lshl_b32 {sT1}, s61, 16"); e(f"s_or_b32 {sTAG}, {sTAG}, {sT1}")
            c("publish address: QM + ((kvh*8 + b)*32 + y)*512 + q*128 + cp*16 ; b = rho>>2, q = rho&3")
            e(f"v_lshrrev_b32 v{vT+4}, 2, v{vT}"); e(f"v_lshlrev_b32 v{vT+4}, 14, v{vT+4}")
            e(f"v_and_b32 v{vT+5}, 3, v{vT}"); e(f"v_lshl_add_u32 v{vT+4}, v{vT+5}, 7, v{vT+4}"); e(f"v_lshl_add_u32 v{vT+4}, v{vT+1}, 4, v{vT+4}")
            e(f"s_lshl_b32 {sT0}, {sKVH}, 17"); e(f"s_lshl_b32 {sT1}, {sY}, 9"); e(f"s_add_u32 {sT0}, {sT0}, {sT1}"); e(f"s_add_u32 {sT0}, {sT0}, {QM_BASE:#x}")
            e(f"s_mov_b32 {sSPIN}, {self.spin}")
            lab("L_hs1")
            e(f"ds_read_b32 v{vT+6}, v{vT+3}"); e("s_waitcnt lgkmcnt(0)")
            e(f"v_readfirstlane_b32 {sT1}, v{vT+6}"); e("s_nop 3")
            e(f"s_cmp_ge_u32 {sT1}, 4"); e("s_cbranch_scc1 L_hs1ok")
            self.spin_dec("L_hs1")
            lab("L_hs1ok")
            for w in range(4): e(f"ds_read_b64 v[{2*w}:{2*w+1}], v{vT+2} offset:{w*2048}")
            e("s_waitcnt lgkmcnt(0)")
            e("v_add_f32 v0, v0, v2"); e("v_add_f32 v1, v1, v3"); e("v_add_f32 v4, v4, v6"); e("v_add_f32 v5, v5, v7")
            e("v_add_f32 v0, v0, v4"); e("v_add_f32 v1, v1, v5")
            e("v_cvt_pk_bf16_f32 v0, v0, v1")
            c("granules {tl|val, tag}")
            e(f"v_and_b32 v4, 0xffff, v0"); e(f"v_lshrrev_b32 v6, 16, v0")
            e(f"v_or_b32 v4, {sTL}, v4"); e(f"v_or_b32 v6, {sTL}, v6"); e(f"v_mov_b32 v5, {sTAG}"); e(f"v_mov_b32 v7, {sTAG}")
            e(f"buffer_store_dwordx4 v[4:7], v{vT+4}, {SRD_WS}, {sT0} offen sc1")
            self.stamp(2) if not self.dbgq else None
            if self.quiet: e("s_barrier")
            e(f"v_lshlrev_b32 v{vLIN16}, 4, v{vLANE}")
            c("poll own 4 KB: QM + (kvh*8+b)*16384 + hw*4096 + i*1024 + l*16")
            e(f"s_lshl_b32 {sT0}, {sKVH}, 3"); e(f"s_add_u32 {sT0}, {sT0}, {sB}"); e(f"s_lshl_b32 {sT0}, {sT0}, 14"); e(f"s_lshl_b32 {sT1}, {sHW}, 12")
            e(f"s_add_u32 {sT0}, {sT0}, {sT1}"); e(f"s_add_u32 {sT0}, {sT0}, {QM_BASE:#x}")
            c("LDS write address: QB + (4h+q)*528 + (128*(hw&1) + 16yy + 2cp)*2 ; yy = 2i + (l>>5), q=(l&31)>>3, cp=l&7, h=hw>>1")
            e(f"v_bfe_u32 v{vT}, v{vLANE}, 3, 2")
            e(f"s_lshr_b32 {sT1}, {sHW}, 1"); e(f"s_lshl_b32 {sT1}, {sT1}, 2"); e(f"v_add_u32 v{vT}, {sT1}, v{vT}")
            e(f"s_movk_i32 {sT1}, {QROW}"); e(f"v_mul_lo_u32 v{vT}, v{vT}, {sT1}")
            e(f"v_lshrrev_b32 v{vT+1}, 5, v{vLANE}"); e(f"v_lshl_add_u32 v{vT}, v{vT+1}, 5, v{vT}")
            e(f"v_and_b32 v{vT+1}, 7, v{vLANE}"); e(f"v_lshl_add_u32 v{vT}, v{vT+1}, 2, v{vT}")
            e(f"s_and_b32 {sT1}, {sHW}, 1"); e(f"s_lshl_b32 {sT1}, {sT1}, 8"); e(f"s_add_u32 {sT1}, {sT1}, {QB}"); e(f"v_add_u32 v{vT}, {sT1}, v{vT}")
            e(f"s_mov_b32 {sSPIN}, {self.spin}"); e(f"s_mov_b32 {sT2}, 0xffff0000"); e(f"s_mov_b32 {sT3}, 0x05040100")
            if self.qdelay: e(f"s_waitcnt vmcnt(0)")
            lab("L_hq_poll")
            for i in range(4):
                e(f"buffer_load_dwordx4 v[{8+4*i}:{8+4*i+3}], v{vLIN16}, {SRD_WS}, {sT0} offen" + (f" offset:{i*1024}" if i else "") + " sc1")
            e("s_waitcnt vmcnt(0)")
            for i in range(4):
                b = 8 + 4*i
                e(f"v_and_b32 v{24+2*i}, {sT2}, v{b}"); e(f"v_and_b32 v{25+2*i}, {sT2}, v{b+2}")
                e(f"v_xor_b32 v{24+2*i}, {sTL}, v{24+2*i}"); e(f"v_xor_b32 v{25+2*i}, {sTL}, v{25+2*i}")
                e(f"v_xor_b32 v{32+2*i}, {sTAG}, v{b+1}"); e(f"v_xor_b32 v{33+2*i}, {sTAG}, v{b+3}")
            e("v_or3_b32 v24, v24, v25, v26"); e("v_or3_b32 v27, v27, v28, v29"); e("v_or3_b32 v30, v30, v31, v32"); e("v_or3_b32 v33, v33, v34, v35")
            e("v_or3_b32 v36, v36, v37, v38"); e("v_or3_b32 v24, v24, v27, v30"); e("v_or3_b32 v33, v33, v36, v39"); e("v_or_b32 v24, v24, v33")
            e("v_cmp_ne_u32 vcc, 0, v24"); e("s_nop 1"); e("s_cbranch_vccz L_hq_ok")
            self.spin_dec("L_hq_poll")
            lab("L_hq_ok")
            if not self.dbgq: self.stamp(3)
            for i in range(4):
                b = 8 + 4*i
                e(f"v_perm_b32 v{24+i}, v{b+2}, v{b}, {sT3}")
            for i in range(4):
                e(f"ds_write_b32 v{vT}, v{24+i}" + (f" offset:{i*64}" if i else ""))
            e("s_waitcnt lgkmcnt(0)")
            if not self.dbgq: self.stamp(4)
        else:
            c("publish address: QM + ((kvh*8 + b)*32 + y)*128 + q*32 + cp*4 ; b = rho>>2, q = rho&3")
            e(f"v_lshrrev_b32 v{vT+4}, 2, v{vT}"); e(f"v_lshlrev_b32 v{vT+4}, 12, v{vT+4}")
            e(f"v_and_b32 v{vT+5}, 3, v{vT}"); e(f"v_lshl_add_u32 v{vT+4}, v{vT+5}, 5, v{vT+4}"); e(f"v_lshl_add_u32 v{vT+4}, v{vT+1}, 2, v{vT+4}")
            e(f"s_lshl_b32 {sT0}, {sKVH}, 15"); e(f"s_lshl_b32 {sT1}, {sY}, 7"); e(f"s_add_u32 {sT0}, {sT0}, {sT1}"); e(f"s_add_u32 {sT0}, {sT0}, {QM_BASE:#x}")
            e(f"s_mov_b32 {sSPIN}, {self.spin}")
            lab("L_hs1")
            e(f"ds_read_b32 v{vT+6}, v{vT+3}"); e("s_waitcnt lgkmcnt(0)")
            e(f"v_readfirstlane_b32 {sT1}, v{vT+6}"); e("s_nop 3")
            e(f"s_cmp_ge_u32 {sT1}, 4"); e("s_cbranch_scc1 L_hs1ok")
            self.spin_dec("L_hs1")
            lab("L_hs1ok")
            for w in range(4): e(f"ds_read_b64 v[{2*w}:{2*w+1}], v{vT+2} offset:{w*2048}")
            e("s_waitcnt lgkmcnt(0)")
            e("v_add_f32 v0, v0, v2"); e("v_add_f32 v1, v1, v3"); e("v_add_f32 v4, v4, v6"); e("v_add_f32 v5, v5, v7")
            e("v_add_f32 v0, v0, v4"); e("v_add_f32 v1, v1, v5")
            e("v_cvt_pk_bf16_f32 v0, v0, v1")
            e(f"buffer_store_dword v0, v{vT+4}, {SRD_WS}, {sT0} offen sc1")
            e("s_waitcnt vmcnt(0)")
            if not self.dbgq: self.stamp(2)
            c("last helper wave to finish signals: flag dword QF[kvh][y] := tag")
            e(f"v_mov_b32 v{vT+4}, 1"); e(f"v_mov_b32 v{vT+3}, {CNT+4}")
            e("s_mov_b64 exec, 1")
            e(f"ds_add_rtn_u32 v{vT+6}, v{vT+3}, v{vT+4}"); e("s_waitcnt lgkmcnt(0)")
            e(f"s_add_u32 {sTAG}, {sTAG}, {TAG_C:#x}")
            e(f"v_readfirstlane_b32 {sT1}, v{vT+6}"); e("s_nop 3")
            c("flag store: lane y' (0..31) writes QF[consumer = y'*8+kvh][y] ; consumer line = (y'*8+kvh)*128")
            e(f"s_cmp_eq_u32 {sT1}, 3"); e("s_cbranch_scc0 L_hnoflag")
            e("s_mov_b32 exec_lo, -1"); e("s_mov_b32 exec_hi, 0")
            e(f"v_lshlrev_b32 v{vT+5}, 10, v{vLANE}"); e(f"v_mov_b32 v{vT+4}, {sTAG}")
            e(f"s_lshl_b32 {sT4}, {sKVH}, 7"); e(f"s_lshl_b32 {sT5}, {sY}, 2"); e(f"s_add_u32 {sT4}, {sT4}, {sT5}"); e(f"s_add_u32 {sT4}, {sT4}, {QF_BASE:#x}")
            e(f"buffer_store_dword v{vT+4}, v{vT+5}, {SRD_WS}, {sT4} offen sc1")
            lab("L_hnoflag")
            e("s_mov_b64 exec, -1")
            if self.quiet: e("s_barrier")
            e(f"v_lshlrev_b32 v{vLIN16}, 4, v{vLANE}")
            e(f"s_cmp_lg_u32 {sHW}, 0"); e("s_cbranch_scc1 L_hq_done")
            c("H0: poll own flag line via scalar loads")
            e(f"s_lshl_b32 {sT4}, {sLID}, 7"); e(f"s_add_u32 {sT4}, {sT4}, {QF_BASE:#x}")
            e(f"s_add_u32 s32, s46, {sT4}"); e("s_addc_u32 s33, s47, 0")
            e(f"s_mov_b32 {sSPIN}, {self.spin}")
            lab("L_hq_poll")
            PR = (8, 48)
            for k, r in enumerate(PR): e(f"s_load_dwordx16 s[{r}:{r+15}], s[32:33], {64*k} glc")
            e("s_waitcnt lgkmcnt(0)")
            for k, r in enumerate(PR):
                for i in range(16):
                    e(f"s_xor_b32 s{r+i}, s{r+i}, {sTAG}")
                    if k or i: e(f"s_or_b32 s8, s8, s{r+i}")
            e("s_cmp_eq_u32 s8, 0"); e("s_cbranch_scc1 L_hq_ok")
            e(f"s_sleep {self.qsleep}")
            self.spin_dec("L_hq_poll")
            lab("L_hq_ok")
            if not self.dbgq: self.stamp(3)
            c("fetch Q (4 KB): QM + (kvh*8+b)*4096 + i*1024 + l*16")
            e(f"s_lshl_b32 {sT0}, {sKVH}, 3"); e(f"s_add_u32 {sT0}, {sT0}, {sB}"); e(f"s_lshl_b32 {sT0}, {sT0}, 12"); e(f"s_add_u32 {sT0}, {sT0}, {QM_BASE:#x}")
            for i in range(4):
                e(f"buffer_load_dwordx4 v[{4*i}:{4*i+3}], v{vLIN16}, {SRD_WS}, {sT0} offen" + (f" offset:{i*1024}" if i else "") + " sc1")
            c("LDS write address: QB + (4h+q)*528 + (128*(i&1) + 16yy + 8half)*2 ; yy=l>>3, q=(l>>1)&3, half=l&1, h=i>>1")
            e(f"v_lshrrev_b32 v{vT}, 1, v{vLANE}"); e(f"v_and_b32 v{vT}, 3, v{vT}")
            e(f"s_movk_i32 {sT1}, {QROW}"); e(f"v_mul_lo_u32 v{vT}, v{vT}, {sT1}")
            e(f"v_lshrrev_b32 v{vT+1}, 3, v{vLANE}"); e(f"v_lshl_add_u32 v{vT}, v{vT+1}, 5, v{vT}")
            e(f"v_and_b32 v{vT+1}, 1, v{vLANE}"); e(f"v_lshl_add_u32 v{vT}, v{vT+1}, 4, v{vT}")
            e(f"v_add_u32 v{vT}, {QB}, v{vT}")
            e("s_waitcnt vmcnt(0)")
            for i in range(4):
                o = (i >> 1) * 4 * QROW + (i & 1) * 256
                e(f"ds_write_b128 v{vT}, v[{4*i}:{4*i+3}]" + (f" offset:{o}" if o else ""))
            e("s_waitcnt lgkmcnt(0)")
            if not self.dbgq: self.stamp(4)
        lab("L_hq_done")
        e("s_barrier")
        self.srd(48, 34, 35, 28672)
        if self.wopf and not self.pflate:
            c("L2 prefetch of this WG's 1/8 share of the wo quarter: rows r*128 + 16b .. +16 (14336 B contiguous); wave hw: 4KB pieces")
            e(f"s_lshl_b32 {sT0}, {sR}, 7"); e(f"s_lshl_b32 {sT1}, {sB}, 4"); e(f"s_add_u32 {sT0}, {sT0}, {sT1}"); e(f"s_mul_i32 {sT0}, {sT0}, 896")
            e(f"s_lshl_b32 {sT1}, {sHW}, 12"); e(f"s_add_u32 {sT0}, {sT0}, {sT1}")
            for i in range(4):
                e(f"buffer_load_dwordx4 v[{8+4*i}:{8+4*i+3}], v{vLIN16}, {SRD_WO}, {sT0} offen" + (f" offset:{i*1024}" if i else ""))
        c("clears: M1[g][recv=hw][sender=j] (2176B) and M2[b][r][hw] (2048B)")
        e(f"s_lshl_b32 {sT0}, {sG}, 2"); e(f"s_add_u32 {sT0}, {sT0}, {sHW}"); e(f"s_lshl_b32 {sT0}, {sT0}, 2"); e(f"s_add_u32 {sT0}, {sT0}, {sJ}")
        e(f"s_mul_i32 {sM1OUT}, {sT0}, {M1_SLICE}")
        e(f"s_lshl_b32 {sT0}, {sB}, 5"); e(f"s_add_u32 {sT0}, {sT0}, {sR}"); e(f"s_lshl_b32 {sT0}, {sT0}, 13"); e(f"s_lshl_b32 {sT1}, {sHW}, 11")
        e(f"s_add_u32 {sM2OUT}, {sT0}, {sT1}"); e(f"s_add_u32 {sM2OUT}, {sM2OUT}, {M2_BASE:#x}")
        for i in range(4): e(f"v_mov_b32 v{i}, -1")
        if not self.noclr:
            e(f"buffer_store_dwordx4 v[0:3], v{vLIN16}, {SRD_WS}, {sM1OUT} offen sc1")
            e(f"buffer_store_dwordx4 v[0:3], v{vLIN16}, {SRD_WS}, {sM1OUT} offen offset:1024 sc1")
            e(f"buffer_store_dwordx4 v[0:3], v{vLIN16}, {SRD_WS}, {sM2OUT} offen sc1")
            e(f"buffer_store_dwordx4 v[0:3], v{vLIN16}, {SRD_WS}, {sM2OUT} offen offset:1024 sc1")
        e("s_mov_b64 exec, 0xff")
        e(f"buffer_store_dwordx4 v[0:3], v{vLIN16}, {SRD_WS}, {sM1OUT} offen offset:2048 sc1")
        if self.dyn:
            c("group counter := 0 (j==0, hw==0)")
            e(f"s_or_b32 {sT0}, {sJ}, {sHW}"); e(f"s_cmp_lg_u32 {sT0}, 0"); e("s_cbranch_scc1 L_hnogc")
            e("s_mov_b64 exec, 1"); e(f"v_mov_b32 v4, 0"); e(f"s_lshl_b32 {sT0}, {sG}, 7"); e(f"s_add_u32 {sT0}, {sT0}, {GC_BASE:#x}")
            e(f"buffer_store_dword v4, v4, {SRD_WS}, {sT0} offen sc1")
            lab("L_hnogc")
        e("s_mov_b64 exec, -1")
        e("s_waitcnt vmcnt(0)")
        if self.dbgmid: self.stamp(1)
        c("last helper wave signals clears done: lane r' writes CF[consumer wg' = (r'>>2) + 32b + 8(r'&3)][r] := tag")
        e(f"v_mov_b32 v{vT+4}, 1"); e(f"v_mov_b32 v{vT+3}, {CNT+4}")
        e("s_mov_b64 exec, 1")
        e(f"ds_add_rtn_u32 v{vT+6}, v{vT+3}, v{vT+4}"); e("s_waitcnt lgkmcnt(0)")
        e(f"v_readfirstlane_b32 {sT1}, v{vT+6}"); e("s_nop 3")
        e("s_mov_b64 exec, -1")
        e(f"s_cmp_eq_u32 {sT1}, {3 if self.hop1 else 7}"); e("s_cbranch_scc0 L_hnoflag2")
        e(f"v_lshrrev_b32 v{vT+5}, 2, v{vLANE}"); e(f"v_and_b32 v{vT+6}, 3, v{vLANE}"); e(f"v_lshl_add_u32 v{vT+5}, v{vT+6}, 3, v{vT+5}")
        e(f"v_lshlrev_b32 v{vT+5}, 7, v{vT+5}"); e(f"v_mov_b32 v{vT+4}, {sTAG}")
        e(f"s_lshl_b32 {sT4}, {sB}, 12"); e(f"s_lshl_b32 {sT5}, {sR}, 2"); e(f"s_add_u32 {sT4}, {sT4}, {sT5}"); e(f"s_add_u32 {sT4}, {sT4}, {CF_BASE:#x}")
        e("s_mov_b32 exec_lo, -1"); e("s_mov_b32 exec_hi, 0")
        e(f"buffer_store_dword v{vT+4}, v{vT+5}, {SRD_WS}, {sT4} offen sc1")
        lab("L_hnoflag2")
        e("s_mov_b64 exec, -1")
        c("wo: load, transpose, park in AGPRs a[0:127]")
        e(f"s_mov_b32 {sSEL_LO}, 0x05040100"); e(f"s_mov_b32 {sSEL_HI}, 0x07060302")
        e(f"s_lshl_b32 {sT0}, {sR}, 7")
        if self.wosame: e(f"s_mov_b32 {sT0}, 0")
        e(f"v_lshlrev_b32 v{vT}, 3, v{vGQ}"); e(f"v_add_u32 v{vT}, {sT0}, v{vT}")
        e(f"s_movk_i32 {sT1}, 896"); e(f"v_mul_lo_u32 v{vT}, v{vT}, {sT1}")
        e(f"s_mul_i32 {sT0}, {sHW}, {256 if self.wo128 else 224}"); e(f"v_lshl_add_u32 v{vT}, v{vN}, 4, v{vT}"); e(f"v_add_u32 v{vT}, {sT0}, v{vT}")
        if self.wo128:
            c("wave 3 owns only 64 columns: lanes m>=8 stay zero")
            for i in range(32): e(f"v_mov_b32 v{i}, 0")
            e(f"s_cmp_eq_u32 {sHW}, 3"); e(f"s_cselect_b32 {sT2}, 0x00ff00ff, -1")
        if self.wolate:
            e(f"v_mov_b32 v{hWO}, v{vT}"); e(f"s_mov_b32 {sWOM}, {sT2}")
        for ks in range(4):
            if self.nowo or self.wolate: break
            kk = 0 if self.wosame else ks
            e(f"s_mov_b32 {sT0}, {kk*32*896}"); e(f"s_mov_b32 {sT1}, {kk*32*896 + 4*896}")
            if self.wo128: e(f"s_mov_b32 exec_lo, {sT2}"); e(f"s_mov_b32 exec_hi, {sT2}")
            for i in range(8):
                so = sT0 if i < 4 else sT1
                o = (i & 3) * 896
                e(f"buffer_load_dwordx4 v[{4*i}:{4*i+3}], v{vT}, {SRD_WO}, {so} offen" + (f" offset:{o}" if o else ""))
                if self.wopace < 8 and (i + 1) % self.wopace == 0: e("s_waitcnt vmcnt(0)")
            if self.wo128: e("s_mov_b64 exec, -1")
            e("s_waitcnt vmcnt(0)")
            for j in range(8):
                u = j >> 1; sel = sSEL_HI if (j & 1) else sSEL_LO
                for p in range(4):
                    e(f"v_perm_b32 v{32+4*j+p}, v{4*(2*p+1)+u}, v{4*(2*p)+u}, {sel}")
            for k in range(32): e(f"v_accvgpr_write_b32 a{32*ks+k}, v{32+k}")
        if self.dbgmid: self.stamp(2)
        c("wait until all WGs of batch b have cleared their outboxes: dword at kvh*32+4b == 0x01010101 for all kvh")
        e(f"s_cmp_lg_u32 {sHW}, 0"); e("s_cbranch_scc1 L_hclrok")
        e(f"s_lshl_b32 {sT0}, {sLID}, 7"); e(f"s_add_u32 {sT0}, {sT0}, {CF_BASE:#x}")
        e(f"v_and_b32 v{vT+1}, 31, v{vLANE}"); e(f"v_lshlrev_b32 v{vT+1}, 2, v{vT+1}")
        e(f"s_mov_b32 {sSPIN}, {self.spin}")
        lab("L_hclr")
        e(f"buffer_load_dword v{vT+2}, v{vT+1}, {SRD_WS}, {sT0} offen sc1"); e("s_waitcnt vmcnt(0)")
        e(f"v_cmp_ne_u32 vcc, {sTAG}, v{vT+2}"); e("s_nop 1"); e("s_cbranch_vccz L_hclrok")
        e("s_sleep 16")
        self.spin_dec("L_hclr")
        lab("L_hclrok")
        if self.wolate:
            e(f"s_cmp_lg_u32 {sHW}, 0"); e("s_cbranch_scc1 L_hnocf")
            e(f"v_mov_b32 v{vT+1}, {CNT+28}"); e(f"v_mov_b32 v{vT+2}, 1"); e(f"ds_write_b32 v{vT+1}, v{vT+2}")
            lab("L_hnocf")
        if self.dyn:
            e(f"s_cmp_lg_u32 {sHW}, 0"); e("s_cbranch_scc1 L_hnodyn")
            e(f"v_mov_b32 v{vT+1}, {CNT+8}"); e(f"v_mov_b32 v{vT+2}, 1"); e(f"ds_write_b32 v{vT+1}, v{vT+2}")
            lab("L_hnodyn")
        if self.dbgmid: self.stamp(3)
        if self.ldyn:
            c("H0: late balance exchange with partner (lid ^ 8). LDS: CNT+8 tile counter, CNT+12 limit, CNT+16 final")
            e(f"s_cmp_lg_u32 {sHW}, 0"); e("s_cbranch_scc1 L_hbaldone")
            e(f"v_mov_b32 v{vT}, {CNT+8}"); e(f"s_mov_b32 {sSPIN}, {self.spin}")
            lab("L_hb0")
            e(f"ds_read_b32 v0, v{vT}"); e("s_waitcnt lgkmcnt(0)")
            e(f"v_readfirstlane_b32 {sT0}, v0"); e("s_nop 3")
            e(f"s_cmp_ge_u32 {sT0}, {self.t0s}"); e("s_cbranch_scc1 L_hb0ok")
            e("s_sleep 32"); self.spin_dec("L_hb0")
            lab("L_hb0ok")
            e("s_memrealtime s[8:9]"); e("s_waitcnt lgkmcnt(0)")
            e(f"s_lshl_b32 {sT1}, {sLID}, 7"); e(f"s_add_u32 {sT1}, {sT1}, {BAL_BASE:#x}")
            e(f"s_add_u32 s10, s46, {sT1}"); e("s_addc_u32 s11, s47, 0")
            if self.asym: self.byrole(sT4, self.ploA - self.tmarg, self.ploB - self.tmarg)
            else: e(f"s_mov_b32 {sT4}, {self.t1s}")
            c("s64 = clamp lo for nA, s65 = clamp hi for nA, s66 = round, s67 = partner mailbox offset")
            e(f"s_mov_b32 s64, {self.ploA}"); e(f"s_mov_b32 s65, {256-self.ploB}"); e("s_mov_b32 s66, 0")
            e(f"s_xor_b32 s67, {sLID}, 8"); e("s_lshl_b32 s67, s67, 7"); e(f"s_add_u32 s67, s67, {BAL_BASE:#x}")
            lab("L_hbround")
            e(f"s_mov_b32 {sSPIN}, {self.spin}")
            lab("L_hb1")
            e(f"ds_read_b32 v0, v{vT}"); e("s_load_dwordx8 s[12:19], s[10:11], 0 glc"); e("s_waitcnt lgkmcnt(0)")
            e(f"v_readfirstlane_b32 {sT2}, v0"); e("s_nop 3")
            e(f"s_cmp_ge_u32 {sT2}, {sT4}"); e("s_cbranch_scc1 L_hb1ok")
            e(f"s_cmp_eq_u32 s17, {sTAG}"); e("s_cbranch_scc1 L_hb1ok")
            e("s_sleep 12"); self.spin_dec("L_hb1")
            lab("L_hb1ok")
            e("s_memrealtime s[20:21]"); e("s_waitcnt lgkmcnt(0)")
            c("publish {T0|T1<<16, tag, tau0, tag} {tau1, tag}")
            e(f"s_lshl_b32 {sT3}, {sT2}, 16"); e(f"s_or_b32 {sT3}, {sT3}, {sT0}")
            e(f"v_mov_b32 v4, {sT3}"); e(f"v_mov_b32 v5, {sTAG}"); e("v_mov_b32 v6, s8"); e(f"v_mov_b32 v7, {sTAG}"); e("v_mov_b32 v8, s20"); e(f"v_mov_b32 v9, {sTAG}"); e("v_mov_b32 v10, 0")
            e("s_mov_b64 exec, 1")
            e(f"buffer_store_dwordx4 v[4:7], v10, {SRD_WS}, s67 offen sc1")
            e(f"buffer_store_dwordx2 v[8:9], v10, {SRD_WS}, s67 offen offset:16 sc1")
            e(f"s_mov_b32 {sSPIN}, {self.spin}")
            lab("L_hb2")
            e("s_load_dwordx8 s[12:19], s[10:11], 0 glc"); e("s_waitcnt lgkmcnt(0)")
            e(f"s_xor_b32 s22, s13, {sTAG}"); e(f"s_xor_b32 s23, s15, {sTAG}"); e("s_or_b32 s22, s22, s23"); e(f"s_xor_b32 s23, s17, {sTAG}"); e("s_or_b32 s22, s22, s23")
            e("s_cmp_eq_u32 s22, 0"); e("s_cbranch_scc1 L_hb2ok")
            e("s_sleep 4"); self.spin_dec("L_hb2")
            e("v_mov_b32 v20, s64"); e("s_mov_b32 s66, 1"); e("s_branch L_hbn")
            lab("L_hb2ok")
            e(f"s_and_b32 {sT1}, {sJ}, 1"); e(f"s_cmp_eq_u32 {sT1}, 0")
            e(f"s_cselect_b32 s22, {sT3}, s12"); e("s_cselect_b32 s23, s8, s14"); e("s_cselect_b32 s9, s20, s16")
            e(f"s_cselect_b32 s12, s12, {sT3}"); e("s_cselect_b32 s14, s14, s8"); e("s_cselect_b32 s16, s16, s20")
            e("s_lshr_b32 s13, s22, 16"); e("s_and_b32 s22, s22, 0xffff")
            e("s_lshr_b32 s15, s12, 16"); e("s_and_b32 s12, s12, 0xffff")
            e("s_sub_u32 s22, s13, s22"); e("s_sub_u32 s23, s9, s23")
            e("s_sub_u32 s12, s15, s12"); e("s_sub_u32 s14, s16, s14")
            e("s_sub_u32 s16, s16, s9")
            e("v_cvt_f32_u32 v0, s22"); e("v_cvt_f32_u32 v1, s23"); e("v_cvt_f32_u32 v2, s12"); e("v_cvt_f32_u32 v3, s14")
            e("v_cvt_f32_i32 v4, s16"); e("v_cvt_f32_u32 v5, s13"); e("v_cvt_f32_u32 v6, s15")
            c("pA = dtauA/dTA (time per tile), pB = dtauB/dTB ; n = (delta + TA*pA + (256 - TB)*pB) / (pA + pB)")
            e("v_rcp_f32 v0, v0"); e("v_rcp_f32 v2, v2"); e("s_nop 0")
            e("v_mul_f32 v1, v1, v0"); e("v_mul_f32 v3, v3, v2")
            e(f"v_sub_f32 v6, {fbits(256.0):#x}, v6")
            e("v_fmac_f32 v4, v5, v1"); e("v_fmac_f32 v4, v6, v3")
            e("v_add_f32 v6, v1, v3"); e("v_rcp_f32 v6, v6"); e("s_nop 0")
            e("v_mul_f32 v5, v4, v6"); e("v_add_f32 v5, 0.5, v5"); e("v_cvt_i32_f32 v20, v5")
            e("v_max_i32 v20, s64, v20"); e("v_min_i32 v20, s65, v20")
            lab("L_hbn")
            e("s_nop 0"); e(f"v_readfirstlane_b32 s22, v20"); e("s_nop 3")
            e(f"v_mov_b32 v22, {CNT+12}")
            if self.rounds2:
                e("s_cmp_lg_u32 s66, 0"); e("s_cbranch_scc1 L_hbfinal")
                c("round 1: provisional limits pA = max(ploA, nA - delta), pB = max(ploB, 256 - nA - delta)")
                e(f"s_sub_u32 s23, s22, {self.delta}"); e("s_max_i32 s64, s64, s23")
                e(f"s_sub_u32 s23, {256 - self.delta}, s22"); e(f"s_max_i32 s23, s23, {self.ploB}")
                e("s_sub_u32 s65, 256, s23")
                e(f"s_and_b32 {sT1}, {sJ}, 1"); e(f"s_cmp_eq_u32 {sT1}, 0"); e("s_cselect_b32 s23, s64, s23")
                e("v_mov_b32 v21, s23"); e("ds_write_b32 v22, v21")
                e(f"s_sub_u32 {sT4}, s23, {self.tmarg2}")
                e("s_mov_b32 s8, s20"); e(f"s_mov_b32 {sT0}, {sT2}")
                e("s_add_u32 s10, s10, 32"); e("s_addc_u32 s11, s11, 0"); e("s_add_u32 s67, s67, 32")
                e("s_mov_b32 s66, 1"); e("s_mov_b64 exec, -1")
                e("s_branch L_hbround")
                lab("L_hbfinal")
            e(f"s_and_b32 {sT1}, {sJ}, 1"); e(f"s_cmp_eq_u32 {sT1}, 0"); e("s_cbranch_scc1 L_hb3")
            e("s_sub_u32 s22, 256, s22")
            lab("L_hb3")
            e("v_mov_b32 v20, s22"); e("v_mov_b32 v21, 1")
            e("ds_write_b32 v22, v20"); e("s_waitcnt lgkmcnt(0)"); e("ds_write_b32 v22, v21 offset:4")
            e("s_mov_b64 exec, -1")
            lab("L_hbaldone")
        elif self.bal:
            c("H0: balance exchange with partner (lid ^ 8)")
            e(f"s_cmp_lg_u32 {sHW}, 0"); e("s_cbranch_scc1 L_hbaldone")
            e(f"v_mov_b32 v{vT}, {CNT+8}"); e(f"s_mov_b32 {sSPIN}, {self.spin}")
            lab("L_hbal1")
            e(f"ds_read_b64 v[0:1], v{vT}"); e("s_waitcnt lgkmcnt(0)")
            e(f"v_readfirstlane_b32 {sT0}, v1"); e("s_nop 3")
            e(f"s_cmp_lg_u32 {sT0}, 0"); e("s_cbranch_scc1 L_hbal1ok")
            e("s_sleep 32")
            self.spin_dec("L_hbal1")
            lab("L_hbal1ok")
            c("v0 = a (time at ta), v1 = c (time at tb): publish {a, tag, c, tag}")
            e(f"v_mov_b32 v4, v0"); e(f"v_mov_b32 v5, {sTAG}"); e(f"v_mov_b32 v6, v1"); e(f"v_mov_b32 v7, {sTAG}"); e("v_mov_b32 v8, 0")
            e(f"s_xor_b32 {sT0}, {sLID}, 8"); e(f"s_lshl_b32 {sT0}, {sT0}, 7"); e(f"s_add_u32 {sT0}, {sT0}, {BAL_BASE:#x}")
            e("s_mov_b64 exec, 1")
            e(f"buffer_store_dwordx4 v[4:7], v8, {SRD_WS}, {sT0} offen sc1")
            e(f"s_lshl_b32 {sT0}, {sLID}, 7"); e(f"s_add_u32 {sT0}, {sT0}, {BAL_BASE:#x}")
            e(f"s_mov_b32 {sSPIN}, {self.spin}")
            lab("L_hbal2")
            e(f"buffer_load_dwordx4 v[12:15], v8, {SRD_WS}, {sT0} offen sc1"); e("s_waitcnt vmcnt(0)")
            e(f"v_xor_b32 v16, {sTAG}, v13"); e(f"v_xor_b32 v17, {sTAG}, v15"); e("v_or_b32 v16, v16, v17")
            e("s_nop 0"); e(f"v_readfirstlane_b32 {sT1}, v16"); e("s_nop 3")
            e(f"s_cmp_eq_u32 {sT1}, 0"); e("s_cbranch_scc1 L_hbal2ok")
            e("s_sleep 16")
            self.spin_dec("L_hbal2")
            c("timeout: both sides cannot agree -> cannot happen in a healthy run; use N = 32")
            e("v_mov_b32 v20, 32"); e("s_branch L_hbal3")
            lab("L_hbal2ok")
            c("A = role 0, B = role 1: (aA,cA) in v[0:1] / (aB,cB) in v12,v14 for role 0; swapped for role 1")
            e(f"s_and_b32 {sT1}, {sJ}, 1"); e(f"s_cmp_eq_u32 {sT1}, 0")
            e("s_cbranch_scc1 L_hbalA")
            e("v_mov_b32 v18, v0"); e("v_mov_b32 v19, v1"); e("v_mov_b32 v0, v12"); e("v_mov_b32 v1, v14"); e("v_mov_b32 v12, v18"); e("v_mov_b32 v14, v19")
            lab("L_hbalA")
            e("v_sub_u32 v2, v1, v0"); e("v_sub_u32 v3, v14, v12"); e("v_sub_u32 v4, v14, v1")
            e("v_cvt_f32_i32 v2, v2"); e("v_cvt_f32_i32 v3, v3"); e("v_cvt_f32_i32 v4, v4")
            nint = self.tb - self.ta
            e(f"v_mul_f32 v5, {fbits(float(nint)):#x}, v4")
            e(f"v_mov_b32 v6, {fbits(float(64-self.tb)):#x}"); e("v_fmac_f32 v5, v6, v3")
            e(f"v_mov_b32 v6, {fbits(float(self.tb)):#x}"); e("v_fmac_f32 v5, v6, v2")
            e("v_add_f32 v6, v2, v3"); e("v_rcp_f32 v6, v6"); e("s_nop 0")
            e("v_mul_f32 v5, v5, v6"); e("v_add_f32 v5, 0.5, v5"); e("v_cvt_i32_f32 v20, v5")
            e(f"v_max_i32 v20, {self.nlo}, v20"); e(f"v_min_i32 v20, {64-self.nlo}, v20")
            e(f"s_cbranch_scc1 L_hbal3")
            e("v_sub_u32 v20, 64, v20")
            lab("L_hbal3")
            e(f"v_mov_b32 v21, {CNT+16}"); e("ds_write_b32 v21, v20")
            e("s_mov_b64 exec, -1")
            lab("L_hbaldone")
        e(f"s_mov_b32 {sC}, {fbits(C_LOG2E_16):#x}")
        c("precompute tail addresses")
        e(f"s_lshl_b32 {sT0}, {sG}, 2"); e(f"s_add_u32 {sT0}, {sT0}, {sJ}"); e(f"s_mul_i32 {sT0}, {sT0}, {4*M1_SLICE}")
        e(f"s_add_u32 {sT1}, {sT0}, {M1_SLICE}"); e(f"s_add_u32 {sT2}, {sT0}, {2*M1_SLICE}"); e(f"s_add_u32 {sT3}, {sT0}, {3*M1_SLICE}")
        hST = 108
        e(f"v_and_b32 v{hST}, 3, v{vLANE}"); e(f"v_lshlrev_b32 v{hST}, 3, v{hST}")
        hOW, hOR, hYS, hP2, hOUT = 109, 110, 111, 112, 113
        e(f"v_and_b32 v{hOW}, 3, v{vLANE}"); e(f"s_movk_i32 {sT4}, {OROW}"); e(f"v_mul_lo_u32 v{hOW}, v{hOW}, {sT4}")
        e(f"v_lshrrev_b32 v{vT}, 2, v{vLANE}"); e(f"v_lshl_add_u32 v{hOW}, v{vT}, 4, v{hOW}"); e(f"v_add_u32 v{hOW}, {OB}, v{hOW}")
        e(f"v_and_b32 v{hOR}, 3, v{vN}"); e(f"v_mul_lo_u32 v{hOR}, v{hOR}, {sT4}"); e(f"v_lshl_add_u32 v{hOR}, v{vGQ}, 4, v{hOR}"); e(f"v_add_u32 v{hOR}, {OB}, v{hOR}")
        e(f"v_lshlrev_b32 v{hYS}, 6, v{vGQ}"); e(f"v_lshl_add_u32 v{hYS}, v{vN}, 4, v{hYS}")
        e(f"v_lshlrev_b32 v{hP2}, 16, v{vGQ}"); e(f"v_lshl_add_u32 v{hP2}, v{vN}, 4, v{hP2}")
        e(f"v_and_b32 v{hOUT}, 3, v{vN}"); e(f"s_lshl_b32 {sT4}, {sB}, 2"); e(f"v_add_u32 v{hOUT}, {sT4}, v{hOUT}")
        e(f"s_movk_i32 {sT4}, 896"); e(f"v_mul_lo_u32 v{hOUT}, v{hOUT}, {sT4}")
        e(f"v_lshrrev_b32 v{vT}, 2, v{vN}"); e(f"v_lshl_add_u32 v{hOUT}, v{vT}, 6, v{hOUT}")
        e(f"s_lshl_b32 s58, {sB}, 18"); e(f"s_lshr_b32 {sT4}, {sR}, 3"); e(f"s_lshl_b32 {sT4}, {sT4}, 11"); e(f"s_add_u32 s58, s58, {sT4}")
        e(f"s_and_b32 {sT4}, {sR}, 7"); e(f"s_lshl_b32 {sT4}, {sT4}, 8"); e(f"s_add_u32 s58, s58, {sT4}"); e(f"s_add_u32 s58, s58, {M2_BASE:#x}")
        e(f"s_lshr_b32 s59, {sR}, 3"); e(f"s_mul_i32 s59, s59, {256 if self.wo128 else 224}"); e(f"s_and_b32 {sT4}, {sR}, 7"); e(f"s_lshl_b32 {sT4}, {sT4}, 1"); e(f"s_add_u32 s59, s59, {sT4}")
        self.stamp(5)
        if not self.wolate:
            e("s_barrier")
            if self.notail: e("s_branch L_fin")
            e(f"s_cmp_lg_u32 {sHW}, 0"); e("s_cbranch_scc1 L_t3done")
            self.t3(hST, hOW, (sT0, sT1, sT2, sT3), vLIN16)
        else:
            if self.pflate:
                c("late L2 prefetch of this WG's 1/8 share: when the tile counter is within pflate tiles of the limit")
                e(f"v_mov_b32 v{vT+1}, {CNT+8}"); e(f"s_mov_b32 {sSPIN}, {self.spin}")
                lab("L_hpf")
                e(f"ds_read_b32 v{vT+2}, v{vT+1}"); e(f"ds_read2_b32 v[{vT+4}:{vT+5}], v{vT+1} offset0:1 offset1:2"); e("s_waitcnt lgkmcnt(0)")
                e(f"v_readfirstlane_b32 {sT4}, v{vT+2}"); e(f"v_readfirstlane_b32 {sT5}, v{vT+4}"); e(f"v_readfirstlane_b32 s64, v{vT+5}"); e("s_nop 3")
                e(f"s_add_u32 {sT4}, {sT4}, {self.pflate}")
                e(f"s_cmp_ge_u32 {sT4}, {sT5}"); e(f"s_cselect_b32 {sT4}, s64, 0"); e(f"s_cmp_lg_u32 {sT4}, 0"); e("s_cbranch_scc1 L_hpf_ok")
                e("s_sleep 16"); self.spin_dec("L_hpf")
                lab("L_hpf_ok")
                e(f"s_lshl_b32 {sT4}, {sR}, 7"); e(f"s_lshl_b32 {sT5}, {sB}, 4"); e(f"s_add_u32 {sT4}, {sT4}, {sT5}"); e(f"s_mul_i32 {sT4}, {sT4}, 896")
                e(f"s_lshl_b32 {sT5}, {sHW}, 12"); e(f"s_add_u32 {sT4}, {sT4}, {sT5}")
                for i in range(4):
                    e(f"buffer_load_dwordx4 v[{68+4*i}:{68+4*i+3}], v{vLIN16}, {SRD_WO}, {sT4} offen" + (f" offset:{i*1024}" if i else ""))
            c("wait until all streamers have issued their last DMA, then load wo (L2 hits) behind them")
            e(f"v_mov_b32 v{vT+1}, {CNT+20}")
            self.lds_spin("L_hiss", vT+1, vT+2, "ge", 4, 8)
            self.wo_pipeline()
        lab("L_t3done")
        e("s_waitcnt lgkmcnt(0)"); e("s_barrier")
        self.stamp(6)
        BF = 64 + 48 - 64 + 40
        BF = 40
        for ks in range(4):
            e(f"ds_read_b128 v[{BF+4*ks}:{BF+4*ks+3}], v{hOR}" + (f" offset:{ks*64}" if ks else ""))
        YA = 0
        e("s_waitcnt lgkmcnt(0)")
        for ks in range(4):
            for j in range(8):
                A = 32*ks + 4*j
                cc = "0" if ks == 0 else f"v[{YA+4*j}:{YA+4*j+3}]"
                e(f"v_mfma_f32_16x16x32_bf16 v[{YA+4*j}:{YA+4*j+3}], a[{A}:{A+3}], v[{BF+4*ks}:{BF+4*ks+3}], {cc}")
        e("s_mov_b32 exec_lo, 0x000f000f"); e("s_mov_b32 exec_hi, 0x000f000f")
        self.nop(6)
        for j in range(8):
            e(f"buffer_store_dwordx4 v[{YA+4*j}:{YA+4*j+3}], v{hYS}, {SRD_WS}, {sM2OUT} offen offset:{j*256} sc1")
        e("s_mov_b64 exec, -1")
        e(f"s_cmp_lg_u32 {sHW}, 0"); e("s_cbranch_scc1 L_fin")
        e(f"s_mov_b32 {sSPIN}, {self.spin}")
        PB = 64
        lab("L_poll2")
        for i in range(8):
            if i == 0: so = "s58"
            else:
                e(f"s_add_u32 {sT1}, s58, {i*8192}"); so = sT1
            e(f"buffer_load_dwordx4 v[{PB+4*i}:{PB+4*i+3}], v{hP2}, {SRD_WS}, {so} offen sc1")
        e("s_waitcnt vmcnt(0)")
        mx = 60
        e(f"v_max3_u32 v{mx}, v{PB}, v{PB+1}, v{PB+2}")
        for k in range(3, 31, 2): e(f"v_max3_u32 v{mx}, v{mx}, v{PB+k}, v{PB+k+1}")
        e(f"v_max_u32 v{mx}, v{mx}, v{PB+31}")
        e(f"v_cmp_eq_u32 vcc, -1, v{mx}"); e("s_nop 1"); e("s_cbranch_vccz L_poll2ok")
        self.spin_dec("L_poll2")
        lab("L_poll2ok")
        for k in range(4): e(f"v_add_f32 v{32+k}, v{PB+k}, v{PB+4+k}")
        for i in range(2, 8):
            for k in range(4): e(f"v_add_f32 v{32+k}, v{32+k}, v{PB+4*i+k}")
        for k in range(4): e(f"v_mov_b32 v{36+k}, v{32+k}")
        e("s_nop 0")
        for k in range(4): e(f"v_permlane32_swap_b32 v{36+k}, v{32+k}")
        for k in range(4): e(f"v_add_f32 v{32+k}, v{32+k}, v{36+k}")
        for k in range(4): e(f"v_mov_b32 v{36+k}, v{32+k}")
        e("s_nop 0")
        for k in range(4): e(f"v_permlane16_swap_b32 v{36+k}, v{32+k}")
        for k in range(4): e(f"v_add_f32 v{32+k}, v{32+k}, v{36+k}")
        e("v_cvt_pk_bf16_f32 v40, v32, v33"); e("v_cvt_pk_bf16_f32 v41, v34, v35")
        if self.wo128:
            e(f"s_cmp_ge_u32 {sR}, 24"); e(f"s_cselect_b32 {sT1}, 0xff, -1"); e(f"s_and_b32 exec_lo, {sT1}, 0xffff"); e("s_mov_b32 exec_hi, 0")
        else:
            e("s_mov_b64 exec, 0xffff")
        e(f"buffer_store_short v40, v{hOUT}, {SRD_OUT}, s59 offen")
        e(f"buffer_store_short_d16_hi v40, v{hOUT}, {SRD_OUT}, s59 offen offset:16")
        if not self.wo128: e("s_mov_b64 exec, 0xfff")
        e(f"buffer_store_short v41, v{hOUT}, {SRD_OUT}, s59 offen offset:32")
        e(f"buffer_store_short_d16_hi v41, v{hOUT}, {SRD_OUT}, s59 offen offset:48")
        e(f"s_cmp_lg_u32 {sLID}, 0"); e("s_cbranch_scc1 L_noep")
        e("s_mov_b64 exec, 1")
        e(f"v_mov_b32 v42, s60"); e(f"v_mov_b32 v43, s61"); e(f"v_mov_b32 v44, 0"); e(f"s_mov_b32 {sT0}, {EPOCH_OFF:#x}")
        e(f"buffer_store_dwordx2 v[42:43], v44, {SRD_WS}, {sT0} offen sc1")
        lab("L_noep")
        e("s_mov_b64 exec, -1")
        lab("L_fin")
        if self.dbgspan:
            c("debug: WGs 0,85,170,255 -> dwords 4k..: start, loop begin, loop end (S0), fin (H0)")
            e("s_memrealtime s[98:99]"); e("s_waitcnt vmcnt(0) lgkmcnt(0)")
            e(f"s_mul_i32 s97, {sWG}, 3"); e("s_mul_hi_u32 s96, s97, 0x1010102"); e("s_mul_i32 s95, s96, 255"); e("s_cmp_lg_u32 s95, s97"); e("s_cbranch_scc1 L_dbgdone")
            self.srd(52, 44, 45, 256)
            e(f"s_mul_i32 s96, {sWG}, 3"); e("s_lshr_b32 s96, s96, 8"); e(f"s_cmp_eq_u32 {sWG}, 0"); e("s_cselect_b32 s96, 0, s96")
            e(f"s_mul_hi_u32 s96, {sWG}, 0x3030304")
            e("s_lshl_b32 s96, s96, 4")
            e("s_mov_b64 exec, 1"); e("v_mov_b32 v2, 0")
            e(f"s_cmp_eq_u32 {sW}, 4"); e("s_cbranch_scc1 L_dbgh")
            e(f"s_cmp_eq_u32 {sW}, 0"); e("s_cbranch_scc0 L_dbgdone")
            e("v_mov_b32 v4, s100"); e("v_mov_b32 v5, s88"); e("v_mov_b32 v6, s90")
            e(f"buffer_store_dwordx3 v[4:6], v2, {SRD_DBG}, s96 offen sc1"); e("s_branch L_dbgdone")
            lab("L_dbgh")
            e("v_mov_b32 v4, s98")
            e(f"buffer_store_dword v4, v2, {SRD_DBG}, s96 offen offset:12 sc1")
            lab("L_dbgdone")
            e("s_waitcnt vmcnt(0)")
        if self.stamps:
            self.stamp(7)
            e("s_waitcnt vmcnt(0) lgkmcnt(0)")
            e(f"s_lshl_b32 {sT0}, {sWG}, 3"); e(f"s_add_u32 {sT0}, {sT0}, {sW}"); e(f"s_lshl_b32 {sT0}, {sT0}, 5"); e(f"s_add_u32 {sT0}, {sT0}, {STAMP_BASE:#x}")
            if self.bal or self.ldyn:
                e(f"s_cmp_lt_u32 {sW}, 4"); e("s_cbranch_scc0 L_non"); e(f"s_mov_b32 s96, {sN}"); lab("L_non")
            for i in range(8): e(f"v_mov_b32 v{i}, s{84+2*i}")
            e("v_mov_b32 v8, 0")
            e("s_mov_b64 exec, 1")
            e(f"buffer_store_dwordx4 v[0:3], v8, {SRD_WS}, {sT0} offen")
            e(f"buffer_store_dwordx4 v[4:7], v8, {SRD_WS}, {sT0} offen offset:16")
            e("s_waitcnt vmcnt(0)")
        lab("L_end")
        e("s_endpgm")
        L.append('.section .rodata,"a"'); L.append(".p2align 6"); L.append(f".amdhsa_kernel {NAME}_kernel")
        for d in ("next_free_vgpr 256", "next_free_sgpr 102", "accum_offset 128", "group_segment_fixed_size 0", "kernarg_size 64",
                  "user_sgpr_count 2", "user_sgpr_kernarg_segment_ptr 1", "system_sgpr_workgroup_id_x 1"):
            L.append("  .amdhsa_" + d)
        L.append(".end_amdhsa_kernel")
        return "\n".join(L) + "\n"

if __name__ == "__main__":
    import argparse
    ap = argparse.ArgumentParser()
    ap.add_argument("out"); ap.add_argument("--stamps", action="store_true"); ap.add_argument("--opt", default="{}")
    a = ap.parse_args()
    open(a.out, "w").write(Gen(stamps=a.stamps, **eval("dict(" + a.opt + ")" if not a.opt.startswith(("{", "dict")) else a.opt)).build())
```

```python
import sys, struct

NAME = "standalone__gqa_block_cached__sampling"
HDR = open("standalone__gqa_block_cached__sampling.s.ref").read().split("; Override")[0]

QB = 131072; QROW = 528
STB = QB + 8 * QROW
OB = STB + 256
OROW = 272
CNT = OB + 4 * OROW
WQS = 136704
RED = WQS + 16384
OWROW = 1040
LDS_BYTES = 163840
assert RED + 8192 <= LDS_BYTES

M1_SLICE = 2176
M2_BASE = 0x400000
QM_BASE = 0x600000
QF_BASE = 0x740000
CF_BASE = 0x760000
BAL_BASE = 0x7a0000
GC_BASE = 0x788000
EPOCH_OFF = 0x790000
TAG_C = 0x9E3779B9
STAMP_BASE = 0x800000
WS_BYTES = 0x1000000

sWG, sW, sKVH, sJ, sB = "s2", "s3", "s4", "s5", "s6"
sHW = "s7"
SRD_K, SRD_V, SRD_WQ, SRD_X, SRD_WO, SRD_WS = "s[8:11]", "s[12:15]", "s[16:19]", "s[20:23]", "s[24:27]", "s[28:31]"
SRD_OUT, SRD_DBG = "s[48:51]", "s[52:55]"
sKOFF, sVOFF = "s60", "s61"
sWB = "s62"
sKSLOT, sVSLOT = "s63", "s64"
sT = "s65"
sC, sNC = "s66", "s67"
sG = "s68"; sR = "s69"
sM1OUT, sM2OUT = "s70", "s71"
sT0, sT1, sT2, sT3, sT4, sT5 = "s72", "s73", "s74", "s75", "s76", "s77"
sSEL_LO, sSEL_HI = "s78", "s79"
sY = "s80"; sSPIN = "s81"; sTAG = "s82"; sLID = "s83"; sTL = "s59"
sN = "s56"; sGB = "s57"; sGC = "s58"; sSTAT = "s59"; sSTEP = "s57"; sPLO = "s55"
vA = 108; vZERO = 110
hWO = 114; sWOM = "s63"
STAMPS = ["s[84:85]", "s[86:87]", "s[88:89]", "s[90:91]", "s[92:93]", "s[94:95]", "s[96:97]", "s[98:99]"]

vO = 0
vLANE, vN, vGQ, vTMPA = 64, 65, 66, 67
vDMA = 68; vKA = 72; vVA = 76; vS = 84; vP = 88; vM, vL = 90, 91; vAL = 92
vT = 94
vLIN16 = 104; vODUMP = 105; vT2A, vT2B = 106, 107
AQ, AK, AV = 0, 32, 64

C_LOG2E_16 = 1.4426950408889634 / 16.0
def fbits(x): return struct.unpack("<I", struct.pack("<f", x))[0]

class Gen:
    def __init__(self, stamps=False, flags="nt", spin=1 << 18, kwait=16, nocomp=False, notail=False, wopace=8, hprio=0, qsleep=2, pace=3, dbgmid=False, nowo=False, noclr=False, v0pre=True, wosame=False, wopf=True, vwait=24, rate=False, noqwait=False, hexit=False, order2=True, kwait2=24, dyn=False, n0=16, pairmap=True, bal=True, ta=4, tb=11, tc=21, nlo=24, quiet=0, dbgq=False, hop1=True, qdelay=True, pre0=2, ldyn=False, t0s=44, t1s=92, plo=108, xmap=1, dbgspan=False, qcontig=False, nox=False, nowq=False, wo128=True, wolate=False, pflate=0, ploB=None, tmarg=8, rounds2=False, delta=6, tmarg2=6, kflags=None, vflags=None):
        self.kflags = kflags; self.vflags = vflags
        self.rounds2 = rounds2; self.delta = delta; self.tmarg2 = tmarg2
        self.ploA = plo; self.ploB = ploB if ploB else plo; self.tmarg = tmarg; self.asym = ploB is not None
        self.pflate = pflate
        self.wolate = wolate
        self.wo128 = wo128
        self.nox = nox; self.nowq = nowq
        self.qcontig = qcontig
        self.dbgspan = dbgspan
        self.xmap = xmap
        self.ldyn = ldyn; self.t0s = t0s; self.t1s = t1s; self.plo = plo
        self.pre0 = pre0
        self.qdelay = qdelay
        self.hop1 = hop1
        self.dbgq = dbgq
        self.quiet = quiet
        self.bal = bal; self.ta = ta; self.tb = tb; self.tc = tc; self.nlo = nlo
        assert not (dyn and bal)
        self.dyn = dyn; self.n0 = n0; self.pairmap = pairmap
        self.order2 = order2; self.kwait2 = kwait2
        self.rate = rate; self.noqwait = noqwait; self.hexit = hexit
        self.vwait = vwait
        self.wopf = wopf
        self.wosame = wosame
        self.v0pre = v0pre
        self.dbgmid = dbgmid; self.nowo = nowo; self.noclr = noclr
        self.pace = pace
        self.qsleep = qsleep
        self.L = []; self.stamps = stamps; self.flags = flags; self.spin = spin; self.kwait = kwait
        self.nocomp = nocomp; self.notail = notail; self.wopace = wopace; self.hprio = hprio
    def e(self, s): self.L.append("  " + s)
    def lab(self, s): self.L.append(s + ":")
    def c(self, s): self.L.append("  ; " + s)
    def stamp(self, i):
        if self.stamps or (getattr(self, "dbgspan", False) and i in (2, 3)): self.e(f"s_memrealtime {STAMPS[i]}")
    def nop(self, n):
        while n > 0:
            k = min(n, 16); self.e(f"s_nop {k-1}"); n -= k
    def dma_half(self, srd, soff):
        fl = self.flags
        if srd == SRD_K and self.kflags is not None: fl = self.kflags
        if srd == SRD_V and self.vflags is not None: fl = self.vflags
        for i in range(4):
            o = f" offset:{i*1024}" if i else ""
            self.e(f"buffer_load_dwordx4 v{vDMA+i}, {srd}, {soff} offen{o} {fl} lds")
    def dma_tile(self, srd, goff, slot):
        e = self.e
        e(f"s_mov_b32 m0, {slot}"); e(f"s_add_u32 {sT0}, {goff}, 16384")
        self.dma_half(srd, goff)
        e(f"s_add_u32 m0, {slot}, 4096"); e("s_nop 0")
        self.dma_half(srd, sT0)
    def dma_tile_static(self, isv, tile):
        e = self.e
        for half in range(2):
            e(f"s_add_u32 m0, {sWB}, {isv*16384 + tile*8192 + half*4096}")
            e(f"s_add_u32 {sT5}, {sKOFF}, {tile*32768 + half*16384}")
            self.dma_half(SRD_V if isv else SRD_K, sT5)
    def dma_half_static(self, hn):
        e = self.e
        tile, half, isv = hn >> 2, hn & 1, (hn >> 1) & 1
        if self.dyn:
            e(f"s_add_u32 m0, {sWB}, {isv*16384 + tile*8192 + half*4096}")
            e(f"s_add_u32 {sT5}, {sKOFF}, {tile*32768 + half*16384}")
        else:
            e(f"s_add_u32 {sT5}, {sKOFF}, {half*16384}")
            if tile: e(f"s_add_u32 {sT5}, {sT5}, {sSTEP}")
            e(f"s_add_u32 m0, {sWB}, {isv*16384 + tile*8192 + half*4096}"); e("s_nop 0")
        self.dma_half(SRD_V if isv else SRD_K, sT5)
    def read_k(self):
        for s in range(8):
            a, u = s >> 2, s & 3
            self.e(f"ds_read_b128 a[{AK+4*s}:{AK+4*s+3}], v{vKA+u}" + (f" offset:{a*256}" if a else ""))
    def read_v(self):
        for t in range(16):
            a, u = t >> 3, t & 7
            self.e(f"ds_read_b64_tr_b16 a[{AV+2*t}:{AV+2*t+1}], v{vVA+u}" + (f" offset:{a*256}" if a else ""))
    def srd(self, base, lo, hi, size):
        e = self.e
        e(f"s_mov_b32 s{base}, s{lo}"); e(f"s_and_b32 s{base+1}, s{hi}, 0xffff"); e(f"s_mov_b32 s{base+2}, {size:#x}"); e(f"s_mov_b32 s{base+3}, 0x20000")
    def spin_dec(self, label):
        e = self.e
        e(f"s_sub_u32 {sSPIN}, {sSPIN}, 1"); e(f"s_cmp_lg_u32 {sSPIN}, 0"); e(f"s_cbranch_scc1 {label}")

    def loop1(self):
        e, lab, c = self.e, self.lab, self.c
        lab("L_loop")
        if self.rate:
            for tt, si in ((8, 1), (16, 4), (24, 5)):
                e(f"s_cmp_lg_u32 {sT}, {tt}"); e(f"s_cbranch_scc1 L_rs{tt}"); e(f"s_memrealtime {STAMPS[si]}"); lab(f"L_rs{tt}")
        for s in range(8):
            if self.nocomp: break
            cc = "0" if s == 0 else f"v[{vS}:{vS+3}]"
            e(f"v_mfma_f32_16x16x32_bf16 v[{vS}:{vS+3}], a[{AK+4*s}:{AK+4*s+3}], a[{AQ+4*s}:{AQ+4*s+3}], {cc}")
        e(f"s_cmp_eq_u32 {sT}, 31"); e("s_cbranch_scc1 L_k31")
        e(f"s_waitcnt vmcnt({self.kwait})")
        self.read_k()
        e("s_waitcnt lgkmcnt(0)")
        e(f"s_cmp_ge_u32 {sT}, 29"); e("s_cbranch_scc1 L_kdone")
        self.dma_tile(SRD_K, sKOFF, sKSLOT)
        e(f"s_add_u32 {sKOFF}, {sKOFF}, 32768"); e(f"s_xor_b32 {sKSLOT}, {sKSLOT}, 8192")
        lab("L_kdone")
        for u in range(4): e(f"v_xor_b32 v{vKA+u}, 8192, v{vKA+u}")
        lab("L_soft")
        t0, t1, t2 = vT, vT+1, vT+2
        if self.nocomp: e("s_branch L_noresc")
        e(f"v_max3_f32 v{t0}, v{vS}, v{vS+1}, v{vS+2}")
        e(f"v_max_f32 v{t0}, v{t0}, v{vS+3}")
        e(f"v_mov_b32 v{t1}, v{t0}"); e("s_nop 1")
        e(f"v_permlane32_swap_b32 v{t1}, v{t0}")
        e(f"v_max_f32 v{t0}, v{t0}, v{t1}")
        e(f"v_mov_b32 v{t1}, v{t0}"); e("s_nop 1")
        e(f"v_permlane16_swap_b32 v{t1}, v{t0}")
        e(f"v_max3_f32 v{t0}, v{t0}, v{t1}, v{vM}")
        e(f"v_sub_f32 v{t1}, v{vM}, v{t0}")
        e(f"v_mul_f32 v{t1}, {sC}, v{t1}")
        e(f"v_mul_f32 v{t2}, {sNC}, v{t0}")
        e(f"v_exp_f32 v{vAL}, v{t1}")
        e(f"v_mov_b32 v{vM}, v{t0}")
        for r in range(4): e(f"v_fma_f32 v{vS+r}, v{vS+r}, {sC}, v{t2}")
        for r in range(4): e(f"v_exp_f32 v{vS+r}, v{vS+r}")
        e(f"v_cmp_neq_f32 vcc, 1.0, v{vAL}")
        e(f"v_add_f32 v{t0}, v{vS}, v{vS+1}"); e(f"v_add_f32 v{t1}, v{vS+2}, v{vS+3}")
        e(f"v_cvt_pk_bf16_f32 v{vP}, v{vS}, v{vS+1}"); e(f"v_cvt_pk_bf16_f32 v{vP+1}, v{vS+2}, v{vS+3}")
        e(f"v_add_f32 v{t0}, v{t0}, v{t1}"); e(f"v_fma_f32 v{vL}, v{vL}, v{vAL}, v{t0}")
        e("s_cbranch_vccz L_noresc")
        for i in range(32):
            e(f"v_pk_mul_f32 v[{vO+2*i}:{vO+2*i+1}], v[{vO+2*i}:{vO+2*i+1}], v[{vAL}:{vAL+1}] op_sel_hi:[1,0]")
        lab("L_noresc")
        c("V point: steady state vmcnt(24); near the end fewer ops are outstanding")
        if self.v0pre:
            e(f"s_cmp_eq_u32 {sT}, 0"); e("s_cbranch_scc1 L_pv")
        e(f"s_cmp_ge_u32 {sT}, 29"); e("s_cbranch_scc1 L_vlate")
        e(f"s_waitcnt vmcnt({self.vwait})")
        lab("L_vrd")
        self.read_v()
        e("s_waitcnt lgkmcnt(0)")
        e(f"s_cmp_ge_u32 {sT}, 30"); e("s_cbranch_scc1 L_vdone")
        self.dma_tile(SRD_V, sVOFF, sVSLOT)
        e(f"s_add_u32 {sVOFF}, {sVOFF}, 32768"); e(f"s_xor_b32 {sVSLOT}, {sVSLOT}, 8192")
        lab("L_vdone")
        for u in range(8): e(f"v_xor_b32 v{vVA+u}, 8192, v{vVA+u}")
        lab("L_pv")
        for t in range(16):
            if self.nocomp: break
            e(f"v_mfma_f32_16x16x16_bf16 v[{vO+4*t}:{vO+4*t+3}], a[{AV+2*t}:{AV+2*t+1}], v[{vP}:{vP+1}], v[{vO+4*t}:{vO+4*t+3}]")
        e(f"s_add_u32 {sT}, {sT}, 1"); e(f"s_cmp_lt_u32 {sT}, 32"); e("s_cbranch_scc1 L_loop")
        e("s_branch L_tail")
        lab("L_vlate")
        e(f"s_cmp_eq_u32 {sT}, 29"); e("s_cbranch_scc1 L_vrd")
        e(f"s_cmp_eq_u32 {sT}, 30"); e("s_cbranch_scc0 L_vlast")
        e("s_waitcnt vmcnt(8)"); e("s_branch L_vrd")
        lab("L_vlast")
        e("s_waitcnt vmcnt(0)"); e("s_branch L_vrd")
        lab("L_k31")
        self.nop(8)
        e("s_branch L_soft")


    def loop2(self):
        e, lab, c = self.e, self.lab, self.c
        dyn = self.dyn
        ld = self.ldyn
        lab("L_loop")
        if self.rate:
            for tt, si in ((8, 1), (16, 4), (24, 5)):
                e(f"s_cmp_lg_u32 {sT}, {tt}"); e(f"s_cbranch_scc1 L_rs{tt}"); e(f"s_memrealtime {STAMPS[si]}"); lab(f"L_rs{tt}")
        t0, t1, t2 = vT, vT+1, vT+2
        def cmpN(op, k):
            if dyn or self.bal or ld:
                e(f"s_sub_u32 {sT1}, {sN}, {k}"); e(f"s_cmp_{op}_u32 {sT}, {sT1}")
            else:
                e(f"s_cmp_{op}_u32 {sT}, {32-k}")
        if ld:
            c("grab next tile id (lane 0) and read limit/final early")
            cmpN("ge", 3); e("s_cbranch_scc1 L_nograb")
            e("s_mov_b64 exec, 1")
            e(f"ds_add_rtn_u32 v{vA}, v{vZERO}, v{vA+1}")
            e("s_mov_b64 exec, -1")
            lab("L_nograb")
        c("A: QK")
        for s in range(8):
            if self.nocomp: break
            cc = "0" if s == 0 else f"v[{vS}:{vS+3}]"
            e(f"v_mfma_f32_16x16x32_bf16 v[{vS}:{vS+3}], a[{AK+4*s}:{AK+4*s+3}], a[{AQ+4*s}:{AQ+4*s+3}], {cc}")
        c("B: K point")
        if self.bal and not ld:
            e(f"s_cmp_eq_u32 {sT}, {self.ta}"); e("s_cbranch_scc1 L_balst")
            e(f"s_cmp_eq_u32 {sT}, {self.tb}"); e("s_cbranch_scc1 L_balst")
            e(f"s_cmp_eq_u32 {sT}, {self.tc}"); e("s_cbranch_scc1 L_balget")
            lab("L_balback")
        cmpN("ge", 2); e("s_cbranch_scc1 L_klate")
        e(f"s_waitcnt vmcnt({self.kwait2})")
        lab("L_krd")
        self.read_k()
        if dyn:
            cmpN("ge", 3); e("s_cbranch_scc1 L_knoref")
            c("tile id for t+3 ; atomics run two iterations ahead (regs vA, vA+1 by parity of t)")
            e(f"s_cmp_ge_u32 {sT}, {self.n0-3}"); e("s_cbranch_scc1 L_dynid")
            e(f"s_mov_b32 {sT2}, {sSTAT}"); e(f"s_add_u32 {sSTAT}, {sSTAT}, 16")
            e(f"s_cmp_eq_u32 {sT}, {self.n0-5}"); e("s_cbranch_scc1 L_dynchk")
            e(f"s_cmp_eq_u32 {sT}, {self.n0-4}"); e("s_cbranch_scc1 L_atom")
            e("s_branch L_mkoff")
            lab("L_dynid")
            e(f"s_bitcmp1_b32 {sT}, 0"); e("s_cbranch_scc1 L_dynid1")
            e(f"v_readfirstlane_b32 {sT2}, v{vA}"); e("s_branch L_dynid2")
            lab("L_dynid1")
            e(f"v_readfirstlane_b32 {sT2}, v{vA+1}")
            lab("L_dynid2")
            e("s_nop 3")
            e(f"s_add_u32 {sT2}, {sT2}, {self.n0*16}")
            e(f"s_cmp_ge_u32 {sT2}, 512"); e("s_cbranch_scc1 L_exhaust")
            lab("L_atom")
            e("s_mov_b64 exec, 1")
            e(f"s_bitcmp1_b32 {sT}, 0"); e("s_cbranch_scc1 L_atom1")
            e(f"v_mov_b32 v{vA}, 1")
            e(f"buffer_atomic_add v{vA}, v{vZERO}, {SRD_WS}, {sGC} offen sc0 sc1"); e("s_branch L_atom2")
            lab("L_atom1")
            e(f"v_mov_b32 v{vA+1}, 1")
            e(f"buffer_atomic_add v{vA+1}, v{vZERO}, {SRD_WS}, {sGC} offen sc0 sc1")
            lab("L_atom2")
            e("s_mov_b64 exec, -1")
            lab("L_mkoff")
            e(f"s_lshr_b32 {sT3}, {sT2}, 2"); e(f"s_and_b32 {sT3}, {sT3}, 3"); e(f"s_lshl_b32 {sT3}, {sT3}, 20")
            e(f"s_lshr_b32 {sT4}, {sT2}, 4"); e(f"s_lshl_b32 {sT4}, {sT4}, 15"); e(f"s_add_u32 {sT3}, {sT3}, {sT4}")
            e(f"s_and_b32 {sT4}, {sT2}, 3"); e(f"s_lshl_b32 {sT4}, {sT4}, 12"); e(f"s_add_u32 {sT3}, {sT3}, {sT4}")
            e(f"s_add_u32 {sKOFF}, {sGB}, {sT3}")
            e("s_waitcnt lgkmcnt(0)")
            self.dma_tile(SRD_K, sKOFF, sKSLOT)
            e(f"s_xor_b32 {sKSLOT}, {sKSLOT}, 8192")
            e("s_branch L_kdone")
            lab("L_knoref")
            e("s_waitcnt lgkmcnt(0)")
        elif ld:
            e("s_waitcnt lgkmcnt(0)")
            cmpN("ge", 3); e("s_cbranch_scc1 L_kdone")
            e(f"v_readfirstlane_b32 {sT2}, v{vA}"); e("s_nop 3")
            e(f"s_cmp_ge_u32 {sT2}, {sPLO}"); e("s_cbranch_scc1 L_limchk")
            lab("L_tileok")
            e(f"s_xor_b32 {sT2}, {sT2}, {sSTAT}")
            e(f"s_lshr_b32 {sT3}, {sT2}, 2"); e(f"s_lshl_b32 {sT3}, {sT3}, 15"); e(f"s_and_b32 {sT2}, {sT2}, 3"); e(f"s_lshl_b32 {sT2}, {sT2}, 12")
            e(f"s_add_u32 {sKOFF}, {sGC}, {sT3}"); e(f"s_add_u32 {sKOFF}, {sKOFF}, {sT2}")
            self.dma_tile(SRD_K, sKOFF, sKSLOT)
            e(f"s_xor_b32 {sKSLOT}, {sKSLOT}, 8192")
        else:
            e("s_waitcnt lgkmcnt(0)")
            cmpN("ge", 3); e("s_cbranch_scc1 L_kdone")
            self.dma_tile(SRD_K, sKOFF, sKSLOT)
            e(f"s_add_u32 {sKOFF}, {sKOFF}, {sSTEP}"); e(f"s_xor_b32 {sKSLOT}, {sKSLOT}, 8192")
        lab("L_kdone")
        for u in range(4): e(f"v_xor_b32 v{vKA+u}, 8192, v{vKA+u}")
        lab("L_soft")
        c("C: softmax")
        if self.nocomp: e("s_branch L_noresc")
        e(f"v_max3_f32 v{t0}, v{vS}, v{vS+1}, v{vS+2}")
        e(f"v_max_f32 v{t0}, v{t0}, v{vS+3}")
        e(f"v_mov_b32 v{t1}, v{t0}"); e("s_nop 1")
        e(f"v_permlane32_swap_b32 v{t1}, v{t0}")
        e(f"v_max_f32 v{t0}, v{t0}, v{t1}")
        e(f"v_mov_b32 v{t1}, v{t0}"); e("s_nop 1")
        e(f"v_permlane16_swap_b32 v{t1}, v{t0}")
        e(f"v_max3_f32 v{t0}, v{t0}, v{t1}, v{vM}")
        e(f"v_sub_f32 v{t1}, v{vM}, v{t0}")
        e(f"v_mul_f32 v{t1}, {sC}, v{t1}")
        e(f"v_mul_f32 v{t2}, {sNC}, v{t0}")
        e(f"v_exp_f32 v{vAL}, v{t1}")
        e(f"v_mov_b32 v{vM}, v{t0}")
        for r in range(4): e(f"v_fma_f32 v{vS+r}, v{vS+r}, {sC}, v{t2}")
        for r in range(4): e(f"v_exp_f32 v{vS+r}, v{vS+r}")
        e(f"v_cmp_neq_f32 vcc, 1.0, v{vAL}")
        e(f"v_add_f32 v{t0}, v{vS}, v{vS+1}"); e(f"v_add_f32 v{t1}, v{vS+2}, v{vS+3}")
        e(f"v_cvt_pk_bf16_f32 v{vP}, v{vS}, v{vS+1}"); e(f"v_cvt_pk_bf16_f32 v{vP+1}, v{vS+2}, v{vS+3}")
        e(f"v_add_f32 v{t0}, v{t0}, v{t1}"); e(f"v_fma_f32 v{vL}, v{vL}, v{vAL}, v{t0}")
        e("s_cbranch_vccz L_noresc")
        for i in range(32):
            e(f"v_pk_mul_f32 v[{vO+2*i}:{vO+2*i+1}], v[{vO+2*i}:{vO+2*i+1}], v[{vAL}:{vAL+1}] op_sel_hi:[1,0]")
        lab("L_noresc")
        cmpN("eq", 1); e("s_cbranch_scc1 L_vjit")
        lab("L_pv")
        c("D: PV")
        for t in range(16):
            if self.nocomp: break
            e(f"v_mfma_f32_16x16x16_bf16 v[{vO+4*t}:{vO+4*t+3}], a[{AV+2*t}:{AV+2*t+1}], v[{vP}:{vP+1}], v[{vO+4*t}:{vO+4*t+3}]")
        c("E: V point")
        cmpN("ge", 3); e("s_cbranch_scc1 L_vlate")
        e(f"s_waitcnt vmcnt({self.vwait})")
        self.read_v()
        e("s_waitcnt lgkmcnt(0)")
        if dyn or ld:
            self.dma_tile(SRD_V, sKOFF, sVSLOT)
            e(f"s_xor_b32 {sVSLOT}, {sVSLOT}, 8192")
        else:
            self.dma_tile(SRD_V, sVOFF, sVSLOT)
            e(f"s_add_u32 {sVOFF}, {sVOFF}, {sSTEP}"); e(f"s_xor_b32 {sVSLOT}, {sVSLOT}, 8192")
        lab("L_vdone")
        for u in range(8): e(f"v_xor_b32 v{vVA+u}, 8192, v{vVA+u}")
        lab("L_next")
        e(f"s_add_u32 {sT}, {sT}, 1")
        if dyn or self.bal or ld: e(f"s_cmp_lt_u32 {sT}, {sN}")
        else: e(f"s_cmp_lt_u32 {sT}, 32")
        e("s_cbranch_scc1 L_loop")
        e("s_branch L_tail")
        lab("L_klate")
        cmpN("eq", 1); e("s_cbranch_scc1 L_k31")
        e("s_waitcnt vmcnt(8)"); e("s_branch L_krd")
        lab("L_k31")
        self.nop(8)
        e("s_branch L_soft")
        lab("L_vlate")
        cmpN("eq", 3); e("s_cbranch_scc0 L_next")
        if self.wolate:
            e(f"v_mov_b32 v{t0}, {CNT+20}"); e(f"v_mov_b32 v{t1}, 1"); e("s_mov_b64 exec, 1"); e(f"ds_add_u32 v{t0}, v{t1}"); e("s_mov_b64 exec, -1")
        e("s_waitcnt vmcnt(16)")
        self.read_v()
        e("s_waitcnt lgkmcnt(0)")
        e("s_branch L_vdone")
        lab("L_vjit")
        e("s_waitcnt vmcnt(0)")
        self.read_v()
        e("s_waitcnt lgkmcnt(0)")
        e("s_branch L_pv")
        if ld:
            lab("L_limchk")
            e(f"s_mov_b32 {sSPIN}, {self.spin}")
            e(f"v_mov_b32 v{t0}, {CNT+12}")
            lab("L_limchk1")
            e(f"ds_read2_b32 v[{t1+1}:{t1+2}], v{t0} offset0:0 offset1:1"); e("s_waitcnt lgkmcnt(0)")
            e(f"v_readfirstlane_b32 {sT3}, v{t1+2}"); e(f"v_readfirstlane_b32 {sT4}, v{t1+1}"); e("s_nop 3")
            e(f"s_mov_b32 {sPLO}, {sT4}")
            e(f"s_cmp_lt_u32 {sT2}, {sT4}"); e("s_cbranch_scc1 L_tileok")
            e(f"s_cmp_lg_u32 {sT3}, 0"); e("s_cbranch_scc1 L_limfin")
            e("s_sleep 2")
            self.spin_dec("L_limchk1")
            lab("L_limfin")
            e(f"s_add_u32 {sN}, {sT}, 3")
            e("s_branch L_kdone")
        if self.bal and not ld:
            lab("L_balst")
            e(f"s_cmp_lg_u32 {sW}, 0"); e("s_cbranch_scc1 L_balback")
            e(f"s_memrealtime s[{sT2[1:]}:{sT3[1:]}]"); e("s_waitcnt lgkmcnt(0)")
            e(f"s_or_b32 {sT2}, {sT2}, 1")
            e(f"s_cmp_eq_u32 {sT}, {self.tb}"); e(f"s_cselect_b32 {sT3}, 4, 0"); e(f"s_add_u32 {sT3}, {sT3}, {CNT+8}")
            e(f"v_mov_b32 v{t0}, {sT3}"); e(f"v_mov_b32 v{t1}, {sT2}")
            e(f"ds_write_b32 v{t0}, v{t1}")
            e("s_branch L_balback")
            lab("L_balget")
            e(f"s_mov_b32 {sSPIN}, {self.spin}")
            e(f"v_mov_b32 v{t0}, {CNT+16}")
            lab("L_balget1")
            e(f"ds_read_b32 v{t1}, v{t0}"); e("s_waitcnt lgkmcnt(0)")
            e(f"v_readfirstlane_b32 {sN}, v{t1}"); e("s_nop 3")
            e(f"s_cmp_lg_u32 {sN}, 0"); e("s_cbranch_scc1 L_balback")
            e("s_sleep 4")
            self.spin_dec("L_balget1")
            e(f"s_mov_b32 {sN}, 32")
            e("s_branch L_balback")
        if dyn:
            lab("L_exhaust")
            e(f"s_add_u32 {sN}, {sT}, 3")
            e("s_branch L_knoref")
            lab("L_dynchk")
            e(f"s_mov_b32 {sSPIN}, {self.spin}")
            e(f"v_mov_b32 v{t0}, {CNT+8}")
            lab("L_dynchk1")
            e(f"ds_read_b32 v{t1}, v{t0}"); e("s_waitcnt lgkmcnt(0)")
            e(f"v_readfirstlane_b32 {sT3}, v{t1}"); e("s_nop 3")
            e(f"s_cmp_eq_u32 {sT3}, 1"); e("s_cbranch_scc1 L_atom")
            e("s_sleep 8")
            self.spin_dec("L_dynchk1")
            e("s_branch L_atom")

    def t3(self, hST, hOW, so4, lin16):
        e, lab, c = self.e, self.lab, self.c
        e(f"s_mov_b32 {sSPIN}, {self.spin}")
        PB = 0
        lab("L_poll1")
        for jj, so in enumerate(so4):
            e(f"buffer_load_dwordx4 v[{PB+8*jj}:{PB+8*jj+3}], v{lin16}, {SRD_WS}, {so} offen sc1")
            e(f"buffer_load_dwordx4 v[{PB+8*jj+4}:{PB+8*jj+7}], v{lin16}, {SRD_WS}, {so} offen offset:1024 sc1")
            e(f"buffer_load_dwordx2 v[{PB+32+2*jj}:{PB+32+2*jj+1}], v{hST}, {SRD_WS}, {so} offen offset:2048 sc1")
        e("s_waitcnt vmcnt(0)")
        mx = vT + 1
        e(f"v_max3_u32 v{mx}, v{PB}, v{PB+1}, v{PB+2}")
        for k in range(3, 39, 2): e(f"v_max3_u32 v{mx}, v{mx}, v{PB+k}, v{PB+k+1}")
        e(f"v_max_u32 v{mx}, v{mx}, v{PB+39}")
        e(f"v_cmp_eq_u32 vcc, -1, v{mx}"); e("s_nop 1"); e("s_cbranch_vccz L_poll1ok")
        self.spin_dec("L_poll1")
        lab("L_poll1ok")
        ST = PB + 32; a0 = vT + 2; F = vT + 4
        e(f"v_max3_f32 v{a0}, v{ST}, v{ST+2}, v{ST+4}"); e(f"v_max_f32 v{a0}, v{a0}, v{ST+6}")
        for w in range(4): e(f"v_sub_f32 v{F+w}, v{ST+2*w}, v{a0}")
        for w in range(4): e(f"v_mul_f32 v{F+w}, {sC}, v{F+w}")
        for w in range(4): e(f"v_exp_f32 v{F+w}, v{F+w}")
        e("s_nop 0")
        e(f"v_mul_f32 v{a0}, v{F}, v{ST+1}")
        for w in range(1, 4): e(f"v_fmac_f32 v{a0}, v{F+w}, v{ST+2*w+1}")
        e(f"v_rcp_f32 v{a0}, v{a0}"); e("s_nop 0")
        for w in range(4): e(f"v_mul_f32 v{F+w}, v{F+w}, v{a0}")
        ACC = ST
        for k in range(8): e(f"v_mul_f32 v{ACC+k}, v{F}, v{PB+k}")
        for w in range(1, 4):
            for k in range(8): e(f"v_fmac_f32 v{ACC+k}, v{F+w}, v{PB+8*w+k}")
        for p in range(4): e(f"v_cvt_pk_bf16_f32 v{PB+p}, v{ACC+2*p}, v{ACC+2*p+1}")
        e(f"ds_write_b128 v{hOW}, v[{PB}:{PB+3}]")

    def byrole(self, dst, a, b):
        e = self.e
        e(f"s_and_b32 {dst}, {sJ}, 1"); e(f"s_mul_i32 {dst}, {dst}, {b - a}"); e(f"s_add_u32 {dst}, {dst}, {a}")

    def lds_spin(self, label, addr_v, tmp_v, cmp_op, val, sleep):
        e, lab = self.e, self.lab
        e(f"s_mov_b32 {sSPIN}, {self.spin}")
        lab(label)
        e(f"ds_read_b32 v{tmp_v}, v{addr_v}"); e("s_waitcnt lgkmcnt(0)")
        e(f"v_readfirstlane_b32 {sT5}, v{tmp_v}"); e("s_nop 3")
        e(f"s_cmp_{cmp_op}_u32 {sT5}, {val}"); e(f"s_cbranch_scc1 {label}_ok")
        if sleep: e(f"s_sleep {sleep}")
        self.spin_dec(label)
        lab(label + "_ok")

    def wo_pipeline(self):
        e = self.e
        def issue(ks, R):
            e(f"s_mov_b32 {sT4}, {ks*32*896}"); e(f"s_mov_b32 {sT5}, {ks*32*896 + 4*896}")
            e(f"s_mov_b32 exec_lo, {sWOM}"); e(f"s_mov_b32 exec_hi, {sWOM}")
            for i in range(8):
                so = sT4 if i < 4 else sT5
                o = (i & 3) * 896
                e(f"buffer_load_dwordx4 v[{R+4*i}:{R+4*i+3}], v{hWO}, {SRD_WO}, {so} offen" + (f" offset:{o}" if o else ""))
            e("s_mov_b64 exec, -1")
        def proc(ks, R):
            TMP = 116
            n = 0
            for j in range(8):
                u = j >> 1; sel = sSEL_HI if (j & 1) else sSEL_LO
                for p in range(4):
                    tmp = TMP + (n % 8); n += 1
                    e(f"v_perm_b32 v{tmp}, v{R+4*(2*p+1)+u}, v{R+4*(2*p)+u}, {sel}")
                for p in range(4):
                    tmp = TMP + ((n - 4 + p) % 8)
                    e(f"v_accvgpr_write_b32 a{32*ks+4*j+p}, v{tmp}")
        for i in range(32, 64): e(f"v_mov_b32 v{i}, 0")
        issue(0, 0); issue(1, 32)
        e("s_waitcnt vmcnt(8)"); proc(0, 0); issue(2, 0)
        e("s_waitcnt vmcnt(8)"); proc(1, 32); issue(3, 32)
        e("s_waitcnt vmcnt(8)"); proc(2, 0)
        e("s_waitcnt vmcnt(0)"); proc(3, 32)

    def build(self):
        e, lab, c = self.e, self.lab, self.c
        L = self.L
        L.append(HDR.rstrip())
        L.append(f"; @launch grid=(256,1,1) block=(512,1,1) lds={LDS_BYTES}")
        L.append('.amdgcn_target "amdgcn-amd-amdhsa--gfx950"')
        L.append(".text"); L.append(f".globl {NAME}_kernel"); L.append(".p2align 8"); L.append(f".type {NAME}_kernel,@function")
        lab(f"{NAME}_kernel")
        e(f"s_cmp_ge_u32 {sWG}, 256"); e("s_cbranch_scc1 L_end")
        e("s_load_dwordx16 s[32:47], s[0:1], 0")
        self.stamp(0)
        if self.dbgspan: e("s_memrealtime s[100:101]")
        e(f"v_lshrrev_b32 v{vTMPA}, 6, v0")
        e(f"v_and_b32 v{vLANE}, 63, v0")
        e(f"s_and_b32 {sT0}, {sWG}, 7"); e(f"s_lshr_b32 {sT1}, {sWG}, 3")
        e(f"v_readfirstlane_b32 {sW}, v{vTMPA}")
        if self.pairmap and self.xmap == 3:
            c("pairs on XCDs x, x^3: kvh = 4*(x>>2) + 2*gray(x&3) + (y&1)")
            e(f"s_lshr_b32 {sT2}, {sT0}, 1"); e(f"s_xor_b32 {sT2}, {sT2}, {sT0}"); e(f"s_and_b32 {sT2}, {sT2}, 1"); e(f"s_lshl_b32 {sT2}, {sT2}, 1")
            e(f"s_and_b32 {sKVH}, {sT0}, 4"); e(f"s_add_u32 {sKVH}, {sKVH}, {sT2}"); e(f"s_and_b32 {sT2}, {sT1}, 1"); e(f"s_add_u32 {sKVH}, {sKVH}, {sT2}")
            e(f"s_and_b32 {sJ}, {sT0}, 1"); e(f"s_and_b32 {sT2}, {sT1}, 2"); e(f"s_add_u32 {sJ}, {sJ}, {sT2}")
            e(f"s_lshr_b32 {sB}, {sT1}, 2")
        elif self.pairmap and self.xmap == 5:
            c("pairs on XCDs x, x^5 : (0,5),(1,4),(2,7),(3,6): pair id = (x ^ (x&1)*5) >> 1 ... canonical even member e = x if even else x^5; kvh = (e & 6) + (y&1)")
            e(f"s_and_b32 {sT2}, {sT0}, 1"); e(f"s_mul_i32 {sT2}, {sT2}, 5"); e(f"s_xor_b32 {sT2}, {sT2}, {sT0}")
            e(f"s_and_b32 {sKVH}, {sT2}, 6"); e(f"s_and_b32 {sT2}, {sT1}, 1"); e(f"s_add_u32 {sKVH}, {sKVH}, {sT2}")
            e(f"s_and_b32 {sJ}, {sT0}, 1"); e(f"s_and_b32 {sT2}, {sT1}, 2"); e(f"s_add_u32 {sJ}, {sJ}, {sT2}")
            e(f"s_lshr_b32 {sB}, {sT1}, 2")
        elif self.pairmap:
            e(f"s_and_b32 {sKVH}, {sT0}, 6"); e(f"s_and_b32 {sT2}, {sT1}, 1"); e(f"s_add_u32 {sKVH}, {sKVH}, {sT2}")
            e(f"s_and_b32 {sJ}, {sT0}, 1"); e(f"s_and_b32 {sT2}, {sT1}, 2"); e(f"s_add_u32 {sJ}, {sJ}, {sT2}")
            e(f"s_lshr_b32 {sB}, {sT1}, 2")
        else:
            e(f"s_mov_b32 {sKVH}, {sT0}"); e(f"s_and_b32 {sJ}, {sT1}, 3"); e(f"s_lshr_b32 {sB}, {sT1}, 2")
        e(f"s_lshl_b32 {sY}, {sB}, 2"); e(f"s_add_u32 {sY}, {sY}, {sJ}")
        e(f"s_lshl_b32 {sLID}, {sY}, 3"); e(f"s_add_u32 {sLID}, {sLID}, {sKVH}")
        e(f"s_lshl_b32 {sG}, {sB}, 3"); e(f"s_add_u32 {sG}, {sG}, {sKVH}")
        e(f"v_and_b32 v{vN}, 15, v{vLANE}"); e(f"v_lshrrev_b32 v{vGQ}, 4, v{vLANE}")
        e(f"s_and_b32 {sHW}, {sW}, 3")
        e(f"s_lshl_b32 {sR}, {sKVH}, 2"); e(f"s_add_u32 {sR}, {sR}, {sJ}")
        e(f"s_cmp_ge_u32 {sW}, 4"); e("s_cbranch_scc1 L_helper")

        c("DMA voffsets")
        e(f"v_lshrrev_b32 v{vT}, 5, v{vLANE}"); e(f"v_and_b32 v{vT+1}, 31, v{vLANE}")
        e(f"v_lshlrev_b32 v{vT+2}, 9, v{vT}"); e(f"v_lshlrev_b32 v{vT+3}, 1, v{vT}")
        for i in range(4):
            e(f"v_xor_b32 v{vT+4}, {4*i}, v{vT+3}"); e(f"v_xor_b32 v{vT+4}, v{vT+4}, v{vT+1}")
            e(f"v_lshl_add_u32 v{vDMA+i}, v{vT+4}, 4, v{vT+2}")
        if self.bal:
            e(f"s_lshl_b32 {sKOFF}, {sG}, 22"); e(f"s_lshr_b32 {sT0}, {sJ}, 1"); e(f"s_lshl_b32 {sT0}, {sT0}, 21"); e(f"s_add_u32 {sKOFF}, {sKOFF}, {sT0}")
            e(f"s_and_b32 {sT1}, {sJ}, 1"); e(f"s_mul_i32 {sT0}, {sT1}, {63*32768}"); e(f"s_add_u32 {sKOFF}, {sKOFF}, {sT0}")
            e(f"s_mul_i32 {sT1}, {sT1}, -65536"); e(f"s_add_u32 {sSTEP}, {sT1}, 32768")
            e(f"s_mov_b32 {sN}, 100000")
        else:
            e(f"s_lshl_b32 {sKOFF}, {sG}, 22"); e(f"s_lshl_b32 {sT0}, {sJ}, 20"); e(f"s_add_u32 {sKOFF}, {sKOFF}, {sT0}")
            e(f"s_mov_b32 {sSTEP}, 32768") if not self.dyn else None
        e(f"s_lshl_b32 {sT0}, {sW}, 12"); e(f"s_add_u32 {sKOFF}, {sKOFF}, {sT0}")
        e(f"s_lshl_b32 {sWB}, {sW}, 15")
        e("s_waitcnt lgkmcnt(0)")
        self.srd(8, 34, 35, 0x10000000); self.srd(12, 36, 37, 0x10000000)
        for hn in range(self.pre0): self.dma_half_static(hn)
        e("s_barrier")
        first = self.quiet if self.quiet else self.pace
        for hn in range(self.pre0, first): self.dma_half_static(hn)
        self.srd(28, 46, 47, WS_BYTES)
        c("K/V LDS read addresses")
        e(f"v_and_b32 v{vT}, 7, v{vN}"); e(f"v_lshlrev_b32 v{vT}, 1, v{vT}")
        e(f"v_lshlrev_b32 v{vT+1}, 9, v{vN}"); e(f"v_add_u32 v{vT+1}, {sWB}, v{vT+1}")
        for u in range(4):
            e(f"v_add_u32 v{vT+2}, {4*u}, v{vGQ}"); e(f"v_xor_b32 v{vT+2}, v{vT+2}, v{vT}"); e(f"v_lshl_add_u32 v{vKA+u}, v{vT+2}, 4, v{vT+1}")
        e(f"v_lshrrev_b32 v{vT}, 2, v{vN}"); e(f"v_lshl_add_u32 v{vT}, v{vGQ}, 2, v{vT}")
        e(f"v_and_b32 v{vT+1}, 7, v{vT}"); e(f"v_lshlrev_b32 v{vT+2}, 9, v{vT}")
        e(f"v_and_b32 v{vT+3}, 3, v{vN}"); e(f"v_lshl_add_u32 v{vT+2}, v{vT+3}, 3, v{vT+2}")
        e(f"s_add_u32 {sT0}, {sWB}, 16384"); e(f"v_add_u32 v{vT+2}, {sT0}, v{vT+2}")
        for u in range(8):
            e(f"v_xor_b32 v{vT+3}, {u}, v{vT+1}"); e(f"v_lshl_add_u32 v{vVA+u}, v{vT+3}, 5, v{vT+2}")
        c("init O, m, l, consts")
        for i in range(64): e(f"v_mov_b32 v{vO+i}, 0")
        e(f"v_mov_b32 v{vM}, 0xff7fffff"); e(f"v_mov_b32 v{vL}, 0")
        e(f"s_mov_b32 {sC}, {fbits(C_LOG2E_16):#x}"); e(f"s_mov_b32 {sNC}, {fbits(-C_LOG2E_16):#x}")
        e(f"v_lshlrev_b32 v{vLIN16}, 4, v{vLANE}")
        e(f"s_lshl_b32 {sT0}, {sG}, 2"); e(f"s_add_u32 {sT0}, {sT0}, {sW}"); e(f"s_lshl_b32 {sT0}, {sT0}, 2"); e(f"s_add_u32 {sT0}, {sT0}, {sJ}")
        e(f"s_mul_i32 {sM1OUT}, {sT0}, {M1_SLICE}")
        if self.dyn:
            e(f"s_mov_b32 {sN}, 100000"); e(f"s_lshl_b32 {sGB}, {sG}, 22")
            e(f"s_lshl_b32 {sGC}, {sG}, 7"); e(f"s_add_u32 {sGC}, {sGC}, {GC_BASE:#x}")
            e(f"s_lshl_b32 {sSTAT}, {sJ}, 2"); e(f"s_add_u32 {sSTAT}, {sSTAT}, {sW}"); e(f"s_add_u32 {sSTAT}, {sSTAT}, 48")
            e(f"v_mov_b32 v{vZERO}, 0")
        if self.ldyn:
            e(f"s_lshl_b32 {sGC}, {sG}, 22"); e(f"s_lshr_b32 {sT0}, {sJ}, 1"); e(f"s_lshl_b32 {sT0}, {sT0}, 21"); e(f"s_add_u32 {sGC}, {sGC}, {sT0}")
            e(f"s_and_b32 {sSTAT}, {sJ}, 1"); e(f"s_mul_i32 {sSTAT}, {sSTAT}, 255")
            e(f"v_mov_b32 v{vA+1}, 1"); e(f"v_mov_b32 v{vZERO}, {CNT+8}")
            self.byrole(sPLO, self.ploA, self.ploB)
        c("Q frag read address")
        e(f"s_movk_i32 {sT1}, {QROW}")
        e(f"v_and_b32 v{vT+5}, 7, v{vN}"); e(f"v_mul_lo_u32 v{vT+5}, v{vT+5}, {sT1}"); e(f"v_lshl_add_u32 v{vT+5}, v{vGQ}, 4, v{vT+5}"); e(f"v_add_u32 v{vT+5}, {QB}, v{vT+5}")
        c("paced fill of halves: K0a K0b V0a V0b K1a K1b V1a V1b, then K2 (slot A after reading K0)")
        P = self.pace
        if self.quiet:
            e("s_barrier")
            for hn in range(max(self.quiet, self.pre0), P): self.dma_half_static(hn)
        for hn in range(max(P, self.quiet, self.pre0), 8):
            e(f"s_waitcnt vmcnt({4*(P-1)})")
            self.dma_half_static(hn)
            if hn == max(P, 2) + 1 - (0 if P <= 2 else 0) and False: pass
        c("K0 landed")
        e("s_waitcnt vmcnt(24)")
        self.read_k()
        if self.dyn:
            e(f"s_add_u32 {sKOFF}, {sKOFF}, 65536")
        else:
            e(f"s_add_u32 {sKOFF}, {sKOFF}, {sSTEP}"); e(f"s_add_u32 {sKOFF}, {sKOFF}, {sSTEP}")
        e(f"s_mov_b32 {sVOFF}, {sKOFF}")
        e(f"s_mov_b32 {sKSLOT}, {sWB}"); e(f"s_add_u32 {sVSLOT}, {sWB}, 16384")
        e(f"s_add_u32 {sT4}, {sKOFF}, 16384")
        e(f"s_waitcnt vmcnt({4*(P-1)}) lgkmcnt(0)")
        e(f"s_mov_b32 m0, {sKSLOT}"); e("s_nop 0")
        self.dma_half(SRD_K, sKOFF)
        e(f"s_waitcnt vmcnt({4*(P-1)})")
        e(f"s_add_u32 m0, {sKSLOT}, 4096"); e("s_nop 0")
        self.dma_half(SRD_K, sT4)
        e(f"s_add_u32 {sKOFF}, {sKOFF}, {32768 if self.dyn else sSTEP}"); e(f"s_xor_b32 {sKSLOT}, {sKSLOT}, 8192")
        for u in range(4): e(f"v_xor_b32 v{vKA+u}, 8192, v{vKA+u}")
        if self.v0pre:
            c("V0 -> regs, refill V2")
            e("s_waitcnt vmcnt(24)")
            self.read_v()
            e(f"s_add_u32 {sT4}, {sVOFF}, 16384")
            e(f"s_waitcnt vmcnt({4*(P-1)}) lgkmcnt(0)")
            e(f"s_mov_b32 m0, {sVSLOT}"); e("s_nop 0")
            self.dma_half(SRD_V, sVOFF)
            e(f"s_waitcnt vmcnt({4*(P-1)})")
            e(f"s_add_u32 m0, {sVSLOT}, 4096"); e("s_nop 0")
            self.dma_half(SRD_V, sT4)
            e(f"s_add_u32 {sVOFF}, {sVOFF}, {32768 if self.dyn else sSTEP}"); e(f"s_xor_b32 {sVSLOT}, {sVSLOT}, 8192")
            for u in range(8): e(f"v_xor_b32 v{vVA+u}, 8192, v{vVA+u}")
        if not self.rate: self.stamp(1)
        e("s_barrier")
        for s in range(8):
            e(f"ds_read_b128 a[{AQ+4*s}:{AQ+4*s+3}], v{vT+5}" + (f" offset:{s*64}" if s else ""))
        e(f"s_mov_b32 {sT}, 0")
        e("s_waitcnt lgkmcnt(0)")
        self.stamp(2)

        if self.order2:
            self.loop2()
        else:
            self.loop1()
        lab("L_tail")
        t0, t1, t2 = vT, vT+1, vT+2
        self.stamp(3)
        e(f"v_mov_b32 v{t1}, v{vL}"); e("s_nop 1")
        e(f"v_permlane32_swap_b32 v{t1}, v{vL}"); e(f"v_add_f32 v{vL}, v{vL}, v{t1}")
        e(f"v_mov_b32 v{t1}, v{vL}"); e("s_nop 1")
        e(f"v_permlane16_swap_b32 v{t1}, v{vL}"); e(f"v_add_f32 v{vL}, v{vL}, v{t1}")
        e(f"s_movk_i32 {sT1}, {OWROW}"); e(f"v_mul_lo_u32 v{vODUMP}, v{vN}, {sT1}")
        e(f"v_lshl_add_u32 v{vODUMP}, v{vGQ}, 4, v{vODUMP}"); e(f"v_add_u32 v{vODUMP}, {sWB}, v{vODUMP}")
        e(f"s_lshl_b32 {sT0}, {sW}, 6"); e(f"s_add_u32 {sT0}, {sT0}, {STB}")
        e(f"v_lshlrev_b32 v{t2}, 3, v{vN}"); e(f"v_add_u32 v{t2}, {sT0}, v{t2}")
        e("s_mov_b32 exec_lo, 0x00ff00ff"); e("s_mov_b32 exec_hi, 0x00ff00ff")
        for t in range(16):
            e(f"ds_write_b128 v{vODUMP}, v[{vO+4*t}:{vO+4*t+3}]" + (f" offset:{t*64}" if t else ""))
        e("s_mov_b64 exec, 0xff")
        e(f"ds_write_b64 v{t2}, v[{vM}:{vM+1}]")
        e("s_mov_b64 exec, -1")
        e(f"v_and_b32 v{vT}, 3, v{vLANE}"); e(f"v_lshrrev_b32 v{vT+1}, 2, v{vLANE}")
        e(f"s_lshr_b32 {sT0}, {sW}, 1"); e(f"s_lshl_b32 {sT0}, {sT0}, 2")
        e(f"v_add_u32 v{vT}, {sT0}, v{vT}")
        e(f"v_mul_lo_u32 v{vT2A}, v{vT}, {sT1}"); e(f"v_lshl_add_u32 v{vT2A}, v{vT+1}, 5, v{vT2A}")
        e(f"s_and_b32 {sT0}, {sW}, 1"); e(f"s_lshl_b32 {sT0}, {sT0}, 9"); e(f"v_add_u32 v{vT2A}, {sT0}, v{vT2A}")
        e(f"v_add_u32 v{vT2B}, 65536, v{vT2A}")
        e(f"v_lshlrev_b32 v{vT+2}, 3, v{vT}"); e(f"v_add_u32 v{vT+2}, {STB}, v{vT+2}")
        if self.wolate:
            e("s_waitcnt lgkmcnt(0)")
            e(f"v_mov_b32 v{vT+3}, {CNT+24}"); e(f"v_mov_b32 v{vT+4}, 1"); e("s_mov_b64 exec, 1"); e(f"ds_add_u32 v{vT+3}, v{vT+4}"); e("s_mov_b64 exec, -1")
            self.lds_spin("L_sb2", vT+3, vT+4, "ge", 4, 0)
        else:
            e("s_waitcnt lgkmcnt(0)"); e("s_barrier")
        if not self.rate: self.stamp(4)
        for w in range(4): e(f"ds_read_b64 v[{2*w}:{2*w+1}], v{vT+2} offset:{w*64}")
        for w in range(4):
            for u in range(2):
                a = vT2A if w < 2 else vT2B
                o = (w & 1) * 32768 + u * 16
                e(f"ds_read_b128 v[{8+8*w+4*u}:{8+8*w+4*u+3}], v{a}" + (f" offset:{o}" if o else ""))
        e("s_waitcnt lgkmcnt(8)")
        e("v_max3_f32 v40, v0, v2, v4"); e("v_max_f32 v40, v40, v6")
        for w in range(4): e(f"v_sub_f32 v{44+w}, v{2*w}, v40")
        for w in range(4): e(f"v_mul_f32 v{44+w}, {sC}, v{44+w}")
        for w in range(4): e(f"v_exp_f32 v{44+w}, v{44+w}")
        e("s_nop 0")
        e("v_mul_f32 v41, v44, v1"); e("v_fmac_f32 v41, v45, v3"); e("v_fmac_f32 v41, v46, v5"); e("v_fmac_f32 v41, v47, v7")
        e("s_waitcnt lgkmcnt(0)")
        for k in range(8): e(f"v_mul_f32 v{48+k}, v44, v{8+k}")
        for w in range(1, 4):
            for k in range(8): e(f"v_fmac_f32 v{48+k}, v{44+w}, v{8+8*w+k}")
        e(f"buffer_store_dwordx4 v[48:51], v{vLIN16}, {SRD_WS}, {sM1OUT} offen sc1")
        e(f"buffer_store_dwordx4 v[52:55], v{vLIN16}, {SRD_WS}, {sM1OUT} offen offset:1024 sc1")
        e(f"v_lshlrev_b32 v{vT}, 3, v{vLANE}")
        e("s_mov_b64 exec, 0xf")
        e(f"buffer_store_dwordx2 v[40:41], v{vT}, {SRD_WS}, {sM1OUT} offen offset:2048 sc1")
        e("s_mov_b64 exec, -1")
        if not self.rate: self.stamp(5)
        if self.wolate:
            e(f"s_cmp_lg_u32 {sW}, 0"); e("s_cbranch_scc1 L_fin")
            c("S0: hop 1 (T3)")
            e(f"s_lshl_b32 {sT0}, {sG}, 2"); e(f"s_add_u32 {sT0}, {sT0}, {sJ}"); e(f"s_mul_i32 {sT0}, {sT0}, {4*M1_SLICE}")
            e(f"s_add_u32 {sT1}, {sT0}, {M1_SLICE}"); e(f"s_add_u32 {sT2}, {sT0}, {2*M1_SLICE}"); e(f"s_add_u32 {sT3}, {sT0}, {3*M1_SLICE}")
            e(f"v_and_b32 v112, 3, v{vLANE}"); e(f"v_lshlrev_b32 v112, 3, v112")
            e(f"v_and_b32 v113, 3, v{vLANE}"); e(f"s_movk_i32 {sT4}, {OROW}"); e(f"v_mul_lo_u32 v113, v113, {sT4}")
            e(f"v_lshrrev_b32 v{vT}, 2, v{vLANE}"); e(f"v_lshl_add_u32 v113, v{vT}, 4, v113"); e(f"v_add_u32 v113, {OB}, v113")
            e(f"v_mov_b32 v{vT+1}, {CNT+28}")
            self.lds_spin("L_scf", vT+1, vT+2, "ge", 1, 4)
            self.t3(112, 113, (sT0, sT1, sT2, sT3), vLIN16)
            e("s_waitcnt lgkmcnt(0)"); e("s_barrier")
        e("s_branch L_fin")

        lab("L_helper")
        if self.hexit:
            e("s_waitcnt lgkmcnt(0)"); self.srd(28, 46, 47, WS_BYTES)
            e("s_barrier"); e("s_barrier"); e("s_barrier")
            if self.quiet: e("s_barrier")
            e("s_branch L_fin")
        if self.hprio: e(f"s_setprio {self.hprio}")
        c("wq DMA voffset: (l>>1)*8192 + (l&1)*16 + (kvh*512 + 16y)*2 ; x voffset: n*896 + g*16")
        hX = 0
        hA = 32
        hD = 48
        e(f"v_lshrrev_b32 v{vT}, 1, v{vLANE}"); e(f"v_lshlrev_b32 v{vT}, 13, v{vT}")
        e(f"v_and_b32 v{vT+1}, 1, v{vLANE}"); e(f"v_lshl_add_u32 v{vT}, v{vT+1}, 4, v{vT}")
        e(f"s_lshl_b32 {sT0}, {sKVH}, 10"); e(f"s_lshl_b32 {sT1}, {sY}, 5"); e(f"s_add_u32 {sT0}, {sT0}, {sT1}")
        e(f"v_add_u32 v{vDMA}, {sT0}, v{vT}")
        e(f"s_movk_i32 {sT1}, 896"); e(f"v_mul_lo_u32 v{vDMA+1}, v{vN}, {sT1}"); e(f"v_lshl_add_u32 v{vDMA+1}, v{vGQ}, 4, v{vDMA+1}")
        e(f"s_lshl_b32 {sWB}, {sHW}, 12"); e(f"s_add_u32 {sWB}, {sWB}, {WQS}")
        c("H0 zeroes the LDS counters")
        e(f"v_mov_b32 v{vT+2}, {CNT}")
        for i in range(4): e(f"v_mov_b32 v{vT+4+i}, 0")
        e(f"ds_write_b128 v{vT+2}, v[{vT+4}:{vT+7}] offset:16")
        if self.ldyn:
            self.byrole(sT3, self.ploA, self.ploB)
            e(f"v_mov_b32 v{vT+6}, 12"); e(f"v_mov_b32 v{vT+7}, {sT3}")
        e(f"ds_write_b128 v{vT+2}, v[{vT+4}:{vT+7}]")
        e("s_waitcnt lgkmcnt(0)")
        if self.dbgq: self.stamp(2)
        e(f"s_add_u32 s56, s46, {EPOCH_OFF:#x}"); e("s_addc_u32 s57, s47, 0")
        e(f"s_load_dwordx2 s[60:61], s[56:57], 0")
        self.srd(16, 38, 39, 3670016); self.srd(20, 32, 33, 28672)
        if self.qcontig:
            e(f"s_lshl_b32 {sT2}, {sHW}, 20"); e(f"s_lshl_b32 {sT3}, {sHW}, 8")
        else:
            e(f"s_lshl_b32 {sT2}, {sHW}, 18")
            e(f"s_lshl_b32 {sT3}, {sHW}, 6")
        for idx in range(4):
            if idx == 2 and self.qcontig:
                e(f"s_cmp_eq_u32 {sHW}, 3"); e("s_cbranch_scc1 L_hq_issued")
            if idx == 3 and not self.qcontig:
                e(f"s_cmp_ge_u32 {sHW}, 2"); e("s_cbranch_scc1 L_hq_issued")
            e(f"s_add_u32 m0, {sWB}, {idx*1024}")
            e(f"s_add_u32 {sT4}, {sT3}, 14336")
            if not self.nowq: e(f"buffer_load_dwordx4 v{vDMA}, {SRD_WQ}, {sT2} offen lds")
            if not self.nox:
                e(f"buffer_load_dwordx4 v[{hX+8*idx}:{hX+8*idx+3}], v{vDMA+1}, {SRD_X}, {sT3} offen")
                e(f"buffer_load_dwordx4 v[{hX+8*idx+4}:{hX+8*idx+7}], v{vDMA+1}, {SRD_X}, {sT4} offen")
            if idx < 3:
                if self.qcontig:
                    e(f"s_add_u32 {sT2}, {sT2}, 262144"); e(f"s_add_u32 {sT3}, {sT3}, 64")
                else:
                    e(f"s_add_u32 {sT2}, {sT2}, {4*262144}"); e(f"s_add_u32 {sT3}, {sT3}, 256")
        lab("L_hq_issued")
        if self.dbgq: self.stamp(3)
        e("s_barrier")
        if self.dbgq: self.stamp(4)
        self.srd(28, 46, 47, WS_BYTES); self.srd(24, 40, 41, 3670016)
        e("s_mov_b32 s34, s42"); e("s_mov_b32 s35, s43")
        c("tr-read address: wb + (8g + (i>>2))*32 + (i&3)*8  (+128 for second half, +1024*idx)")
        e(f"v_lshrrev_b32 v{vT}, 2, v{vN}"); e(f"v_lshl_add_u32 v{vT}, v{vGQ}, 3, v{vT}"); e(f"v_lshlrev_b32 v{vT}, 5, v{vT}")
        e(f"v_and_b32 v{vT+1}, 3, v{vN}"); e(f"v_lshl_add_u32 v{vT}, v{vT+1}, 3, v{vT}"); e(f"v_add_u32 v{vT}, {sWB}, v{vT}")
        for i in range(8): e(f"v_mov_b32 v{hD+i}, 0")
        c("partial write address: RED + hw*2048 + n*64 + g*16 (+1024 for h=1)")
        e(f"s_lshl_b32 {sT0}, {sHW}, 11"); e(f"s_add_u32 {sT0}, {sT0}, {RED}")
        e(f"v_lshlrev_b32 v{vT+2}, 6, v{vN}"); e(f"v_lshl_add_u32 v{vT+2}, v{vGQ}, 4, v{vT+2}"); e(f"v_add_u32 v{vT+2}, {sT0}, v{vT+2}")
        e("s_waitcnt vmcnt(0)")
        self.stamp(1)
        for idx in range(4):
            if idx == 2 and self.qcontig:
                e(f"s_cmp_eq_u32 {sHW}, 3"); e("s_cbranch_scc1 L_hq_mm")
            if idx == 3 and not self.qcontig:
                e(f"s_cmp_ge_u32 {sHW}, 2"); e("s_cbranch_scc1 L_hq_mm")
            e(f"ds_read_b64_tr_b16 v[{hA+4*idx}:{hA+4*idx+1}], v{vT} offset:{idx*1024}")
            e(f"ds_read_b64_tr_b16 v[{hA+4*idx+2}:{hA+4*idx+3}], v{vT} offset:{idx*1024+128}")
            e("s_waitcnt lgkmcnt(0)")
            for h in range(2):
                e(f"v_mfma_f32_16x16x32_bf16 v[{hD+4*h}:{hD+4*h+3}], v[{hA+4*idx}:{hA+4*idx+3}], v[{hX+8*idx+4*h}:{hX+8*idx+4*h+3}], v[{hD+4*h}:{hD+4*h+3}]")
        lab("L_hq_mm")
        self.nop(8)
        e(f"ds_write_b128 v{vT+2}, v[{hD}:{hD+3}]"); e(f"ds_write_b128 v{vT+2}, v[{hD+4}:{hD+7}] offset:1024")
        e(f"v_mov_b32 v{vT+3}, {CNT}"); e(f"v_mov_b32 v{vT+4}, 1")
        e("s_waitcnt lgkmcnt(0)")
        e("s_mov_b64 exec, 1"); e(f"ds_add_u32 v{vT+3}, v{vT+4}"); e("s_mov_b64 exec, -1")
        c("reduce read address: RED + rho*64 + cp*8, rho = 8hw + (l>>3), cp = l&7")
        e(f"v_lshrrev_b32 v{vT}, 3, v{vLANE}"); e(f"s_lshl_b32 {sT0}, {sHW}, 3"); e(f"v_add_u32 v{vT}, {sT0}, v{vT}")
        e(f"v_and_b32 v{vT+1}, 7, v{vLANE}")
        e(f"v_lshlrev_b32 v{vT+2}, 6, v{vT}"); e(f"v_lshl_add_u32 v{vT+2}, v{vT+1}, 3, v{vT+2}"); e(f"v_add_u32 v{vT+2}, {RED}, v{vT+2}")
        if self.hop1:
            c("launch tag: E' = E + C (64 bit); TL = low 16 bits << 16, sTAG = bits 16..47")
            e(f"s_add_u32 s60, s60, 0x7f4a7c15"); e(f"s_addc_u32 s61, s61, 0x9e3779b9")
            e(f"s_lshl_b32 {sTL}, s60, 16"); e(f"s_lshr_b32 {sTAG}, s60, 16"); e(f"s_lshl_b32 {sT1}, s61, 16"); e(f"s_or_b32 {sTAG}, {sTAG}, {sT1}")
            c("publish address: QM + ((kvh*8 + b)*32 + y)*512 + q*128 + cp*16 ; b = rho>>2, q = rho&3")
            e(f"v_lshrrev_b32 v{vT+4}, 2, v{vT}"); e(f"v_lshlrev_b32 v{vT+4}, 14, v{vT+4}")
            e(f"v_and_b32 v{vT+5}, 3, v{vT}"); e(f"v_lshl_add_u32 v{vT+4}, v{vT+5}, 7, v{vT+4}"); e(f"v_lshl_add_u32 v{vT+4}, v{vT+1}, 4, v{vT+4}")
            e(f"s_lshl_b32 {sT0}, {sKVH}, 17"); e(f"s_lshl_b32 {sT1}, {sY}, 9"); e(f"s_add_u32 {sT0}, {sT0}, {sT1}"); e(f"s_add_u32 {sT0}, {sT0}, {QM_BASE:#x}")
            e(f"s_mov_b32 {sSPIN}, {self.spin}")
            lab("L_hs1")
            e(f"ds_read_b32 v{vT+6}, v{vT+3}"); e("s_waitcnt lgkmcnt(0)")
            e(f"v_readfirstlane_b32 {sT1}, v{vT+6}"); e("s_nop 3")
            e(f"s_cmp_ge_u32 {sT1}, 4"); e("s_cbranch_scc1 L_hs1ok")
            self.spin_dec("L_hs1")
            lab("L_hs1ok")
            for w in range(4): e(f"ds_read_b64 v[{2*w}:{2*w+1}], v{vT+2} offset:{w*2048}")
            e("s_waitcnt lgkmcnt(0)")
            e("v_add_f32 v0, v0, v2"); e("v_add_f32 v1, v1, v3"); e("v_add_f32 v4, v4, v6"); e("v_add_f32 v5, v5, v7")
            e("v_add_f32 v0, v0, v4"); e("v_add_f32 v1, v1, v5")
            e("v_cvt_pk_bf16_f32 v0, v0, v1")
            c("granules {tl|val, tag}")
            e(f"v_and_b32 v4, 0xffff, v0"); e(f"v_lshrrev_b32 v6, 16, v0")
            e(f"v_or_b32 v4, {sTL}, v4"); e(f"v_or_b32 v6, {sTL}, v6"); e(f"v_mov_b32 v5, {sTAG}"); e(f"v_mov_b32 v7, {sTAG}")
            e(f"buffer_store_dwordx4 v[4:7], v{vT+4}, {SRD_WS}, {sT0} offen sc1")
            self.stamp(2) if not self.dbgq else None
            if self.quiet: e("s_barrier")
            e(f"v_lshlrev_b32 v{vLIN16}, 4, v{vLANE}")
            c("poll own 4 KB: QM + (kvh*8+b)*16384 + hw*4096 + i*1024 + l*16")
            e(f"s_lshl_b32 {sT0}, {sKVH}, 3"); e(f"s_add_u32 {sT0}, {sT0}, {sB}"); e(f"s_lshl_b32 {sT0}, {sT0}, 14"); e(f"s_lshl_b32 {sT1}, {sHW}, 12")
            e(f"s_add_u32 {sT0}, {sT0}, {sT1}"); e(f"s_add_u32 {sT0}, {sT0}, {QM_BASE:#x}")
            c("LDS write address: QB + (4h+q)*528 + (128*(hw&1) + 16yy + 2cp)*2 ; yy = 2i + (l>>5), q=(l&31)>>3, cp=l&7, h=hw>>1")
            e(f"v_bfe_u32 v{vT}, v{vLANE}, 3, 2")
            e(f"s_lshr_b32 {sT1}, {sHW}, 1"); e(f"s_lshl_b32 {sT1}, {sT1}, 2"); e(f"v_add_u32 v{vT}, {sT1}, v{vT}")
            e(f"s_movk_i32 {sT1}, {QROW}"); e(f"v_mul_lo_u32 v{vT}, v{vT}, {sT1}")
            e(f"v_lshrrev_b32 v{vT+1}, 5, v{vLANE}"); e(f"v_lshl_add_u32 v{vT}, v{vT+1}, 5, v{vT}")
            e(f"v_and_b32 v{vT+1}, 7, v{vLANE}"); e(f"v_lshl_add_u32 v{vT}, v{vT+1}, 2, v{vT}")
            e(f"s_and_b32 {sT1}, {sHW}, 1"); e(f"s_lshl_b32 {sT1}, {sT1}, 8"); e(f"s_add_u32 {sT1}, {sT1}, {QB}"); e(f"v_add_u32 v{vT}, {sT1}, v{vT}")
            e(f"s_mov_b32 {sSPIN}, {self.spin}"); e(f"s_mov_b32 {sT2}, 0xffff0000"); e(f"s_mov_b32 {sT3}, 0x05040100")
            if self.qdelay: e(f"s_waitcnt vmcnt(0)")
            lab("L_hq_poll")
            for i in range(4):
                e(f"buffer_load_dwordx4 v[{8+4*i}:{8+4*i+3}], v{vLIN16}, {SRD_WS}, {sT0} offen" + (f" offset:{i*1024}" if i else "") + " sc1")
            e("s_waitcnt vmcnt(0)")
            for i in range(4):
                b = 8 + 4*i
                e(f"v_and_b32 v{24+2*i}, {sT2}, v{b}"); e(f"v_and_b32 v{25+2*i}, {sT2}, v{b+2}")
                e(f"v_xor_b32 v{24+2*i}, {sTL}, v{24+2*i}"); e(f"v_xor_b32 v{25+2*i}, {sTL}, v{25+2*i}")
                e(f"v_xor_b32 v{32+2*i}, {sTAG}, v{b+1}"); e(f"v_xor_b32 v{33+2*i}, {sTAG}, v{b+3}")
            e("v_or3_b32 v24, v24, v25, v26"); e("v_or3_b32 v27, v27, v28, v29"); e("v_or3_b32 v30, v30, v31, v32"); e("v_or3_b32 v33, v33, v34, v35")
            e("v_or3_b32 v36, v36, v37, v38"); e("v_or3_b32 v24, v24, v27, v30"); e("v_or3_b32 v33, v33, v36, v39"); e("v_or_b32 v24, v24, v33")
            e("v_cmp_ne_u32 vcc, 0, v24"); e("s_nop 1"); e("s_cbranch_vccz L_hq_ok")
            self.spin_dec("L_hq_poll")
            lab("L_hq_ok")
            if not self.dbgq: self.stamp(3)
            for i in range(4):
                b = 8 + 4*i
                e(f"v_perm_b32 v{24+i}, v{b+2}, v{b}, {sT3}")
            for i in range(4):
                e(f"ds_write_b32 v{vT}, v{24+i}" + (f" offset:{i*64}" if i else ""))
            e("s_waitcnt lgkmcnt(0)")
            if not self.dbgq: self.stamp(4)
        else:
            c("publish address: QM + ((kvh*8 + b)*32 + y)*128 + q*32 + cp*4 ; b = rho>>2, q = rho&3")
            e(f"v_lshrrev_b32 v{vT+4}, 2, v{vT}"); e(f"v_lshlrev_b32 v{vT+4}, 12, v{vT+4}")
            e(f"v_and_b32 v{vT+5}, 3, v{vT}"); e(f"v_lshl_add_u32 v{vT+4}, v{vT+5}, 5, v{vT+4}"); e(f"v_lshl_add_u32 v{vT+4}, v{vT+1}, 2, v{vT+4}")
            e(f"s_lshl_b32 {sT0}, {sKVH}, 15"); e(f"s_lshl_b32 {sT1}, {sY}, 7"); e(f"s_add_u32 {sT0}, {sT0}, {sT1}"); e(f"s_add_u32 {sT0}, {sT0}, {QM_BASE:#x}")
            e(f"s_mov_b32 {sSPIN}, {self.spin}")
            lab("L_hs1")
            e(f"ds_read_b32 v{vT+6}, v{vT+3}"); e("s_waitcnt lgkmcnt(0)")
            e(f"v_readfirstlane_b32 {sT1}, v{vT+6}"); e("s_nop 3")
            e(f"s_cmp_ge_u32 {sT1}, 4"); e("s_cbranch_scc1 L_hs1ok")
            self.spin_dec("L_hs1")
            lab("L_hs1ok")
            for w in range(4): e(f"ds_read_b64 v[{2*w}:{2*w+1}], v{vT+2} offset:{w*2048}")
            e("s_waitcnt lgkmcnt(0)")
            e("v_add_f32 v0, v0, v2"); e("v_add_f32 v1, v1, v3"); e("v_add_f32 v4, v4, v6"); e("v_add_f32 v5, v5, v7")
            e("v_add_f32 v0, v0, v4"); e("v_add_f32 v1, v1, v5")
            e("v_cvt_pk_bf16_f32 v0, v0, v1")
            e(f"buffer_store_dword v0, v{vT+4}, {SRD_WS}, {sT0} offen sc1")
            e("s_waitcnt vmcnt(0)")
            if not self.dbgq: self.stamp(2)
            c("last helper wave to finish signals: flag dword QF[kvh][y] := tag")
            e(f"v_mov_b32 v{vT+4}, 1"); e(f"v_mov_b32 v{vT+3}, {CNT+4}")
            e("s_mov_b64 exec, 1")
            e(f"ds_add_rtn_u32 v{vT+6}, v{vT+3}, v{vT+4}"); e("s_waitcnt lgkmcnt(0)")
            e(f"s_add_u32 {sTAG}, {sTAG}, {TAG_C:#x}")
            e(f"v_readfirstlane_b32 {sT1}, v{vT+6}"); e("s_nop 3")
            c("flag store: lane y' (0..31) writes QF[consumer = y'*8+kvh][y] ; consumer line = (y'*8+kvh)*128")
            e(f"s_cmp_eq_u32 {sT1}, 3"); e("s_cbranch_scc0 L_hnoflag")
            e("s_mov_b32 exec_lo, -1"); e("s_mov_b32 exec_hi, 0")
            e(f"v_lshlrev_b32 v{vT+5}, 10, v{vLANE}"); e(f"v_mov_b32 v{vT+4}, {sTAG}")
            e(f"s_lshl_b32 {sT4}, {sKVH}, 7"); e(f"s_lshl_b32 {sT5}, {sY}, 2"); e(f"s_add_u32 {sT4}, {sT4}, {sT5}"); e(f"s_add_u32 {sT4}, {sT4}, {QF_BASE:#x}")
            e(f"buffer_store_dword v{vT+4}, v{vT+5}, {SRD_WS}, {sT4} offen sc1")
            lab("L_hnoflag")
            e("s_mov_b64 exec, -1")
            if self.quiet: e("s_barrier")
            e(f"v_lshlrev_b32 v{vLIN16}, 4, v{vLANE}")
            e(f"s_cmp_lg_u32 {sHW}, 0"); e("s_cbranch_scc1 L_hq_done")
            c("H0: poll own flag line via scalar loads")
            e(f"s_lshl_b32 {sT4}, {sLID}, 7"); e(f"s_add_u32 {sT4}, {sT4}, {QF_BASE:#x}")
            e(f"s_add_u32 s32, s46, {sT4}"); e("s_addc_u32 s33, s47, 0")
            e(f"s_mov_b32 {sSPIN}, {self.spin}")
            lab("L_hq_poll")
            PR = (8, 48)
            for k, r in enumerate(PR): e(f"s_load_dwordx16 s[{r}:{r+15}], s[32:33], {64*k} glc")
            e("s_waitcnt lgkmcnt(0)")
            for k, r in enumerate(PR):
                for i in range(16):
                    e(f"s_xor_b32 s{r+i}, s{r+i}, {sTAG}")
                    if k or i: e(f"s_or_b32 s8, s8, s{r+i}")
            e("s_cmp_eq_u32 s8, 0"); e("s_cbranch_scc1 L_hq_ok")
            e(f"s_sleep {self.qsleep}")
            self.spin_dec("L_hq_poll")
            lab("L_hq_ok")
            if not self.dbgq: self.stamp(3)
            c("fetch Q (4 KB): QM + (kvh*8+b)*4096 + i*1024 + l*16")
            e(f"s_lshl_b32 {sT0}, {sKVH}, 3"); e(f"s_add_u32 {sT0}, {sT0}, {sB}"); e(f"s_lshl_b32 {sT0}, {sT0}, 12"); e(f"s_add_u32 {sT0}, {sT0}, {QM_BASE:#x}")
            for i in range(4):
                e(f"buffer_load_dwordx4 v[{4*i}:{4*i+3}], v{vLIN16}, {SRD_WS}, {sT0} offen" + (f" offset:{i*1024}" if i else "") + " sc1")
            c("LDS write address: QB + (4h+q)*528 + (128*(i&1) + 16yy + 8half)*2 ; yy=l>>3, q=(l>>1)&3, half=l&1, h=i>>1")
            e(f"v_lshrrev_b32 v{vT}, 1, v{vLANE}"); e(f"v_and_b32 v{vT}, 3, v{vT}")
            e(f"s_movk_i32 {sT1}, {QROW}"); e(f"v_mul_lo_u32 v{vT}, v{vT}, {sT1}")
            e(f"v_lshrrev_b32 v{vT+1}, 3, v{vLANE}"); e(f"v_lshl_add_u32 v{vT}, v{vT+1}, 5, v{vT}")
            e(f"v_and_b32 v{vT+1}, 1, v{vLANE}"); e(f"v_lshl_add_u32 v{vT}, v{vT+1}, 4, v{vT}")
            e(f"v_add_u32 v{vT}, {QB}, v{vT}")
            e("s_waitcnt vmcnt(0)")
            for i in range(4):
                o = (i >> 1) * 4 * QROW + (i & 1) * 256
                e(f"ds_write_b128 v{vT}, v[{4*i}:{4*i+3}]" + (f" offset:{o}" if o else ""))
            e("s_waitcnt lgkmcnt(0)")
            if not self.dbgq: self.stamp(4)
        lab("L_hq_done")
        e("s_barrier")
        self.srd(48, 34, 35, 28672)
        if self.wopf and not self.pflate:
            c("L2 prefetch of this WG's 1/8 share of the wo quarter: rows r*128 + 16b .. +16 (14336 B contiguous); wave hw: 4KB pieces")
            e(f"s_lshl_b32 {sT0}, {sR}, 7"); e(f"s_lshl_b32 {sT1}, {sB}, 4"); e(f"s_add_u32 {sT0}, {sT0}, {sT1}"); e(f"s_mul_i32 {sT0}, {sT0}, 896")
            e(f"s_lshl_b32 {sT1}, {sHW}, 12"); e(f"s_add_u32 {sT0}, {sT0}, {sT1}")
            for i in range(4):
                e(f"buffer_load_dwordx4 v[{8+4*i}:{8+4*i+3}], v{vLIN16}, {SRD_WO}, {sT0} offen" + (f" offset:{i*1024}" if i else ""))
        c("clears: M1[g][recv=hw][sender=j] (2176B) and M2[b][r][hw] (2048B)")
        e(f"s_lshl_b32 {sT0}, {sG}, 2"); e(f"s_add_u32 {sT0}, {sT0}, {sHW}"); e(f"s_lshl_b32 {sT0}, {sT0}, 2"); e(f"s_add_u32 {sT0}, {sT0}, {sJ}")
        e(f"s_mul_i32 {sM1OUT}, {sT0}, {M1_SLICE}")
        e(f"s_lshl_b32 {sT0}, {sB}, 5"); e(f"s_add_u32 {sT0}, {sT0}, {sR}"); e(f"s_lshl_b32 {sT0}, {sT0}, 13"); e(f"s_lshl_b32 {sT1}, {sHW}, 11")
        e(f"s_add_u32 {sM2OUT}, {sT0}, {sT1}"); e(f"s_add_u32 {sM2OUT}, {sM2OUT}, {M2_BASE:#x}")
        for i in range(4): e(f"v_mov_b32 v{i}, -1")
        if not self.noclr:
            e(f"buffer_store_dwordx4 v[0:3], v{vLIN16}, {SRD_WS}, {sM1OUT} offen sc1")
            e(f"buffer_store_dwordx4 v[0:3], v{vLIN16}, {SRD_WS}, {sM1OUT} offen offset:1024 sc1")
            e(f"buffer_store_dwordx4 v[0:3], v{vLIN16}, {SRD_WS}, {sM2OUT} offen sc1")
            e(f"buffer_store_dwordx4 v[0:3], v{vLIN16}, {SRD_WS}, {sM2OUT} offen offset:1024 sc1")
        e("s_mov_b64 exec, 0xff")
        e(f"buffer_store_dwordx4 v[0:3], v{vLIN16}, {SRD_WS}, {sM1OUT} offen offset:2048 sc1")
        if self.dyn:
            c("group counter := 0 (j==0, hw==0)")
            e(f"s_or_b32 {sT0}, {sJ}, {sHW}"); e(f"s_cmp_lg_u32 {sT0}, 0"); e("s_cbranch_scc1 L_hnogc")
            e("s_mov_b64 exec, 1"); e(f"v_mov_b32 v4, 0"); e(f"s_lshl_b32 {sT0}, {sG}, 7"); e(f"s_add_u32 {sT0}, {sT0}, {GC_BASE:#x}")
            e(f"buffer_store_dword v4, v4, {SRD_WS}, {sT0} offen sc1")
            lab("L_hnogc")
        e("s_mov_b64 exec, -1")
        e("s_waitcnt vmcnt(0)")
        if self.dbgmid: self.stamp(1)
        c("last helper wave signals clears done: lane r' writes CF[consumer wg' = (r'>>2) + 32b + 8(r'&3)][r] := tag")
        e(f"v_mov_b32 v{vT+4}, 1"); e(f"v_mov_b32 v{vT+3}, {CNT+4}")
        e("s_mov_b64 exec, 1")
        e(f"ds_add_rtn_u32 v{vT+6}, v{vT+3}, v{vT+4}"); e("s_waitcnt lgkmcnt(0)")
        e(f"v_readfirstlane_b32 {sT1}, v{vT+6}"); e("s_nop 3")
        e("s_mov_b64 exec, -1")
        e(f"s_cmp_eq_u32 {sT1}, {3 if self.hop1 else 7}"); e("s_cbranch_scc0 L_hnoflag2")
        e(f"v_lshrrev_b32 v{vT+5}, 2, v{vLANE}"); e(f"v_and_b32 v{vT+6}, 3, v{vLANE}"); e(f"v_lshl_add_u32 v{vT+5}, v{vT+6}, 3, v{vT+5}")
        e(f"v_lshlrev_b32 v{vT+5}, 7, v{vT+5}"); e(f"v_mov_b32 v{vT+4}, {sTAG}")
        e(f"s_lshl_b32 {sT4}, {sB}, 12"); e(f"s_lshl_b32 {sT5}, {sR}, 2"); e(f"s_add_u32 {sT4}, {sT4}, {sT5}"); e(f"s_add_u32 {sT4}, {sT4}, {CF_BASE:#x}")
        e("s_mov_b32 exec_lo, -1"); e("s_mov_b32 exec_hi, 0")
        e(f"buffer_store_dword v{vT+4}, v{vT+5}, {SRD_WS}, {sT4} offen sc1")
        lab("L_hnoflag2")
        e("s_mov_b64 exec, -1")
        c("wo: load, transpose, park in AGPRs a[0:127]")
        e(f"s_mov_b32 {sSEL_LO}, 0x05040100"); e(f"s_mov_b32 {sSEL_HI}, 0x07060302")
        e(f"s_lshl_b32 {sT0}, {sR}, 7")
        if self.wosame: e(f"s_mov_b32 {sT0}, 0")
        e(f"v_lshlrev_b32 v{vT}, 3, v{vGQ}"); e(f"v_add_u32 v{vT}, {sT0}, v{vT}")
        e(f"s_movk_i32 {sT1}, 896"); e(f"v_mul_lo_u32 v{vT}, v{vT}, {sT1}")
        e(f"s_mul_i32 {sT0}, {sHW}, {256 if self.wo128 else 224}"); e(f"v_lshl_add_u32 v{vT}, v{vN}, 4, v{vT}"); e(f"v_add_u32 v{vT}, {sT0}, v{vT}")
        if self.wo128:
            c("wave 3 owns only 64 columns: lanes m>=8 stay zero")
            for i in range(32): e(f"v_mov_b32 v{i}, 0")
            e(f"s_cmp_eq_u32 {sHW}, 3"); e(f"s_cselect_b32 {sT2}, 0x00ff00ff, -1")
        if self.wolate:
            e(f"v_mov_b32 v{hWO}, v{vT}"); e(f"s_mov_b32 {sWOM}, {sT2}")
        for ks in range(4):
            if self.nowo or self.wolate: break
            kk = 0 if self.wosame else ks
            e(f"s_mov_b32 {sT0}, {kk*32*896}"); e(f"s_mov_b32 {sT1}, {kk*32*896 + 4*896}")
            if self.wo128: e(f"s_mov_b32 exec_lo, {sT2}"); e(f"s_mov_b32 exec_hi, {sT2}")
            for i in range(8):
                so = sT0 if i < 4 else sT1
                o = (i & 3) * 896
                e(f"buffer_load_dwordx4 v[{4*i}:{4*i+3}], v{vT}, {SRD_WO}, {so} offen" + (f" offset:{o}" if o else ""))
                if self.wopace < 8 and (i + 1) % self.wopace == 0: e("s_waitcnt vmcnt(0)")
            if self.wo128: e("s_mov_b64 exec, -1")
            e("s_waitcnt vmcnt(0)")
            for j in range(8):
                u = j >> 1; sel = sSEL_HI if (j & 1) else sSEL_LO
                for p in range(4):
                    e(f"v_perm_b32 v{32+4*j+p}, v{4*(2*p+1)+u}, v{4*(2*p)+u}, {sel}")
            for k in range(32): e(f"v_accvgpr_write_b32 a{32*ks+k}, v{32+k}")
        if self.dbgmid: self.stamp(2)
        c("wait until all WGs of batch b have cleared their outboxes: dword at kvh*32+4b == 0x01010101 for all kvh")
        e(f"s_cmp_lg_u32 {sHW}, 0"); e("s_cbranch_scc1 L_hclrok")
        e(f"s_lshl_b32 {sT0}, {sLID}, 7"); e(f"s_add_u32 {sT0}, {sT0}, {CF_BASE:#x}")
        e(f"v_and_b32 v{vT+1}, 31, v{vLANE}"); e(f"v_lshlrev_b32 v{vT+1}, 2, v{vT+1}")
        e(f"s_mov_b32 {sSPIN}, {self.spin}")
        lab("L_hclr")
        e(f"buffer_load_dword v{vT+2}, v{vT+1}, {SRD_WS}, {sT0} offen sc1"); e("s_waitcnt vmcnt(0)")
        e(f"v_cmp_ne_u32 vcc, {sTAG}, v{vT+2}"); e("s_nop 1"); e("s_cbranch_vccz L_hclrok")
        e("s_sleep 16")
        self.spin_dec("L_hclr")
        lab("L_hclrok")
        if self.wolate:
            e(f"s_cmp_lg_u32 {sHW}, 0"); e("s_cbranch_scc1 L_hnocf")
            e(f"v_mov_b32 v{vT+1}, {CNT+28}"); e(f"v_mov_b32 v{vT+2}, 1"); e(f"ds_write_b32 v{vT+1}, v{vT+2}")
            lab("L_hnocf")
        if self.dyn:
            e(f"s_cmp_lg_u32 {sHW}, 0"); e("s_cbranch_scc1 L_hnodyn")
            e(f"v_mov_b32 v{vT+1}, {CNT+8}"); e(f"v_mov_b32 v{vT+2}, 1"); e(f"ds_write_b32 v{vT+1}, v{vT+2}")
            lab("L_hnodyn")
        if self.dbgmid: self.stamp(3)
        if self.ldyn:
            c("H0: late balance exchange with partner (lid ^ 8). LDS: CNT+8 tile counter, CNT+12 limit, CNT+16 final")
            e(f"s_cmp_lg_u32 {sHW}, 0"); e("s_cbranch_scc1 L_hbaldone")
            e(f"v_mov_b32 v{vT}, {CNT+8}"); e(f"s_mov_b32 {sSPIN}, {self.spin}")
            lab("L_hb0")
            e(f"ds_read_b32 v0, v{vT}"); e("s_waitcnt lgkmcnt(0)")
            e(f"v_readfirstlane_b32 {sT0}, v0"); e("s_nop 3")
            e(f"s_cmp_ge_u32 {sT0}, {self.t0s}"); e("s_cbranch_scc1 L_hb0ok")
            e("s_sleep 32"); self.spin_dec("L_hb0")
            lab("L_hb0ok")
            e("s_memrealtime s[8:9]"); e("s_waitcnt lgkmcnt(0)")
            e(f"s_lshl_b32 {sT1}, {sLID}, 7"); e(f"s_add_u32 {sT1}, {sT1}, {BAL_BASE:#x}")
            e(f"s_add_u32 s10, s46, {sT1}"); e("s_addc_u32 s11, s47, 0")
            if self.asym: self.byrole(sT4, self.ploA - self.tmarg, self.ploB - self.tmarg)
            else: e(f"s_mov_b32 {sT4}, {self.t1s}")
            c("s64 = clamp lo for nA, s65 = clamp hi for nA, s66 = round, s67 = partner mailbox offset")
            e(f"s_mov_b32 s64, {self.ploA}"); e(f"s_mov_b32 s65, {256-self.ploB}"); e("s_mov_b32 s66, 0")
            e(f"s_xor_b32 s67, {sLID}, 8"); e("s_lshl_b32 s67, s67, 7"); e(f"s_add_u32 s67, s67, {BAL_BASE:#x}")
            lab("L_hbround")
            e(f"s_mov_b32 {sSPIN}, {self.spin}")
            lab("L_hb1")
            e(f"ds_read_b32 v0, v{vT}"); e("s_load_dwordx8 s[12:19], s[10:11], 0 glc"); e("s_waitcnt lgkmcnt(0)")
            e(f"v_readfirstlane_b32 {sT2}, v0"); e("s_nop 3")
            e(f"s_cmp_ge_u32 {sT2}, {sT4}"); e("s_cbranch_scc1 L_hb1ok")
            e(f"s_cmp_eq_u32 s17, {sTAG}"); e("s_cbranch_scc1 L_hb1ok")
            e("s_sleep 12"); self.spin_dec("L_hb1")
            lab("L_hb1ok")
            e("s_memrealtime s[20:21]"); e("s_waitcnt lgkmcnt(0)")
            c("publish {T0|T1<<16, tag, tau0, tag} {tau1, tag}")
            e(f"s_lshl_b32 {sT3}, {sT2}, 16"); e(f"s_or_b32 {sT3}, {sT3}, {sT0}")
            e(f"v_mov_b32 v4, {sT3}"); e(f"v_mov_b32 v5, {sTAG}"); e("v_mov_b32 v6, s8"); e(f"v_mov_b32 v7, {sTAG}"); e("v_mov_b32 v8, s20"); e(f"v_mov_b32 v9, {sTAG}"); e("v_mov_b32 v10, 0")
            e("s_mov_b64 exec, 1")
            e(f"buffer_store_dwordx4 v[4:7], v10, {SRD_WS}, s67 offen sc1")
            e(f"buffer_store_dwordx2 v[8:9], v10, {SRD_WS}, s67 offen offset:16 sc1")
            e(f"s_mov_b32 {sSPIN}, {self.spin}")
            lab("L_hb2")
            e("s_load_dwordx8 s[12:19], s[10:11], 0 glc"); e("s_waitcnt lgkmcnt(0)")
            e(f"s_xor_b32 s22, s13, {sTAG}"); e(f"s_xor_b32 s23, s15, {sTAG}"); e("s_or_b32 s22, s22, s23"); e(f"s_xor_b32 s23, s17, {sTAG}"); e("s_or_b32 s22, s22, s23")
            e("s_cmp_eq_u32 s22, 0"); e("s_cbranch_scc1 L_hb2ok")
            e("s_sleep 4"); self.spin_dec("L_hb2")
            e("v_mov_b32 v20, s64"); e("s_mov_b32 s66, 1"); e("s_branch L_hbn")
            lab("L_hb2ok")
            e(f"s_and_b32 {sT1}, {sJ}, 1"); e(f"s_cmp_eq_u32 {sT1}, 0")
            e(f"s_cselect_b32 s22, {sT3}, s12"); e("s_cselect_b32 s23, s8, s14"); e("s_cselect_b32 s9, s20, s16")
            e(f"s_cselect_b32 s12, s12, {sT3}"); e("s_cselect_b32 s14, s14, s8"); e("s_cselect_b32 s16, s16, s20")
            e("s_lshr_b32 s13, s22, 16"); e("s_and_b32 s22, s22, 0xffff")
            e("s_lshr_b32 s15, s12, 16"); e("s_and_b32 s12, s12, 0xffff")
            e("s_sub_u32 s22, s13, s22"); e("s_sub_u32 s23, s9, s23")
            e("s_sub_u32 s12, s15, s12"); e("s_sub_u32 s14, s16, s14")
            e("s_sub_u32 s16, s16, s9")
            e("v_cvt_f32_u32 v0, s22"); e("v_cvt_f32_u32 v1, s23"); e("v_cvt_f32_u32 v2, s12"); e("v_cvt_f32_u32 v3, s14")
            e("v_cvt_f32_i32 v4, s16"); e("v_cvt_f32_u32 v5, s13"); e("v_cvt_f32_u32 v6, s15")
            c("pA = dtauA/dTA (time per tile), pB = dtauB/dTB ; n = (delta + TA*pA + (256 - TB)*pB) / (pA + pB)")
            e("v_rcp_f32 v0, v0"); e("v_rcp_f32 v2, v2"); e("s_nop 0")
            e("v_mul_f32 v1, v1, v0"); e("v_mul_f32 v3, v3, v2")
            e(f"v_sub_f32 v6, {fbits(256.0):#x}, v6")
            e("v_fmac_f32 v4, v5, v1"); e("v_fmac_f32 v4, v6, v3")
            e("v_add_f32 v6, v1, v3"); e("v_rcp_f32 v6, v6"); e("s_nop 0")
            e("v_mul_f32 v5, v4, v6"); e("v_add_f32 v5, 0.5, v5"); e("v_cvt_i32_f32 v20, v5")
            e("v_max_i32 v20, s64, v20"); e("v_min_i32 v20, s65, v20")
            lab("L_hbn")
            e("s_nop 0"); e(f"v_readfirstlane_b32 s22, v20"); e("s_nop 3")
            e(f"v_mov_b32 v22, {CNT+12}")
            if self.rounds2:
                e("s_cmp_lg_u32 s66, 0"); e("s_cbranch_scc1 L_hbfinal")
                c("round 1: provisional limits pA = max(ploA, nA - delta), pB = max(ploB, 256 - nA - delta)")
                e(f"s_sub_u32 s23, s22, {self.delta}"); e("s_max_i32 s64, s64, s23")
                e(f"s_sub_u32 s23, {256 - self.delta}, s22"); e(f"s_max_i32 s23, s23, {self.ploB}")
                e("s_sub_u32 s65, 256, s23")
                e(f"s_and_b32 {sT1}, {sJ}, 1"); e(f"s_cmp_eq_u32 {sT1}, 0"); e("s_cselect_b32 s23, s64, s23")
                e("v_mov_b32 v21, s23"); e("ds_write_b32 v22, v21")
                e(f"s_sub_u32 {sT4}, s23, {self.tmarg2}")
                e("s_mov_b32 s8, s20"); e(f"s_mov_b32 {sT0}, {sT2}")
                e("s_add_u32 s10, s10, 32"); e("s_addc_u32 s11, s11, 0"); e("s_add_u32 s67, s67, 32")
                e("s_mov_b32 s66, 1"); e("s_mov_b64 exec, -1")
                e("s_branch L_hbround")
                lab("L_hbfinal")
            e(f"s_and_b32 {sT1}, {sJ}, 1"); e(f"s_cmp_eq_u32 {sT1}, 0"); e("s_cbranch_scc1 L_hb3")
            e("s_sub_u32 s22, 256, s22")
            lab("L_hb3")
            e("v_mov_b32 v20, s22"); e("v_mov_b32 v21, 1")
            e("ds_write_b32 v22, v20"); e("s_waitcnt lgkmcnt(0)"); e("ds_write_b32 v22, v21 offset:4")
            e("s_mov_b64 exec, -1")
            lab("L_hbaldone")
        elif self.bal:
            c("H0: balance exchange with partner (lid ^ 8)")
            e(f"s_cmp_lg_u32 {sHW}, 0"); e("s_cbranch_scc1 L_hbaldone")
            e(f"v_mov_b32 v{vT}, {CNT+8}"); e(f"s_mov_b32 {sSPIN}, {self.spin}")
            lab("L_hbal1")
            e(f"ds_read_b64 v[0:1], v{vT}"); e("s_waitcnt lgkmcnt(0)")
            e(f"v_readfirstlane_b32 {sT0}, v1"); e("s_nop 3")
            e(f"s_cmp_lg_u32 {sT0}, 0"); e("s_cbranch_scc1 L_hbal1ok")
            e("s_sleep 32")
            self.spin_dec("L_hbal1")
            lab("L_hbal1ok")
            c("v0 = a (time at ta), v1 = c (time at tb): publish {a, tag, c, tag}")
            e(f"v_mov_b32 v4, v0"); e(f"v_mov_b32 v5, {sTAG}"); e(f"v_mov_b32 v6, v1"); e(f"v_mov_b32 v7, {sTAG}"); e("v_mov_b32 v8, 0")
            e(f"s_xor_b32 {sT0}, {sLID}, 8"); e(f"s_lshl_b32 {sT0}, {sT0}, 7"); e(f"s_add_u32 {sT0}, {sT0}, {BAL_BASE:#x}")
            e("s_mov_b64 exec, 1")
            e(f"buffer_store_dwordx4 v[4:7], v8, {SRD_WS}, {sT0} offen sc1")
            e(f"s_lshl_b32 {sT0}, {sLID}, 7"); e(f"s_add_u32 {sT0}, {sT0}, {BAL_BASE:#x}")
            e(f"s_mov_b32 {sSPIN}, {self.spin}")
            lab("L_hbal2")
            e(f"buffer_load_dwordx4 v[12:15], v8, {SRD_WS}, {sT0} offen sc1"); e("s_waitcnt vmcnt(0)")
            e(f"v_xor_b32 v16, {sTAG}, v13"); e(f"v_xor_b32 v17, {sTAG}, v15"); e("v_or_b32 v16, v16, v17")
            e("s_nop 0"); e(f"v_readfirstlane_b32 {sT1}, v16"); e("s_nop 3")
            e(f"s_cmp_eq_u32 {sT1}, 0"); e("s_cbranch_scc1 L_hbal2ok")
            e("s_sleep 16")
            self.spin_dec("L_hbal2")
            c("timeout: both sides cannot agree -> cannot happen in a healthy run; use N = 32")
            e("v_mov_b32 v20, 32"); e("s_branch L_hbal3")
            lab("L_hbal2ok")
            c("A = role 0, B = role 1: (aA,cA) in v[0:1] / (aB,cB) in v12,v14 for role 0; swapped for role 1")
            e(f"s_and_b32 {sT1}, {sJ}, 1"); e(f"s_cmp_eq_u32 {sT1}, 0")
            e("s_cbranch_scc1 L_hbalA")
            e("v_mov_b32 v18, v0"); e("v_mov_b32 v19, v1"); e("v_mov_b32 v0, v12"); e("v_mov_b32 v1, v14"); e("v_mov_b32 v12, v18"); e("v_mov_b32 v14, v19")
            lab("L_hbalA")
            e("v_sub_u32 v2, v1, v0"); e("v_sub_u32 v3, v14, v12"); e("v_sub_u32 v4, v14, v1")
            e("v_cvt_f32_i32 v2, v2"); e("v_cvt_f32_i32 v3, v3"); e("v_cvt_f32_i32 v4, v4")
            nint = self.tb - self.ta
            e(f"v_mul_f32 v5, {fbits(float(nint)):#x}, v4")
            e(f"v_mov_b32 v6, {fbits(float(64-self.tb)):#x}"); e("v_fmac_f32 v5, v6, v3")
            e(f"v_mov_b32 v6, {fbits(float(self.tb)):#x}"); e("v_fmac_f32 v5, v6, v2")
            e("v_add_f32 v6, v2, v3"); e("v_rcp_f32 v6, v6"); e("s_nop 0")
            e("v_mul_f32 v5, v5, v6"); e("v_add_f32 v5, 0.5, v5"); e("v_cvt_i32_f32 v20, v5")
            e(f"v_max_i32 v20, {self.nlo}, v20"); e(f"v_min_i32 v20, {64-self.nlo}, v20")
            e(f"s_cbranch_scc1 L_hbal3")
            e("v_sub_u32 v20, 64, v20")
            lab("L_hbal3")
            e(f"v_mov_b32 v21, {CNT+16}"); e("ds_write_b32 v21, v20")
            e("s_mov_b64 exec, -1")
            lab("L_hbaldone")
        e(f"s_mov_b32 {sC}, {fbits(C_LOG2E_16):#x}")
        c("precompute tail addresses")
        e(f"s_lshl_b32 {sT0}, {sG}, 2"); e(f"s_add_u32 {sT0}, {sT0}, {sJ}"); e(f"s_mul_i32 {sT0}, {sT0}, {4*M1_SLICE}")
        e(f"s_add_u32 {sT1}, {sT0}, {M1_SLICE}"); e(f"s_add_u32 {sT2}, {sT0}, {2*M1_SLICE}"); e(f"s_add_u32 {sT3}, {sT0}, {3*M1_SLICE}")
        hST = 108
        e(f"v_and_b32 v{hST}, 3, v{vLANE}"); e(f"v_lshlrev_b32 v{hST}, 3, v{hST}")
        hOW, hOR, hYS, hP2, hOUT = 109, 110, 111, 112, 113
        e(f"v_and_b32 v{hOW}, 3, v{vLANE}"); e(f"s_movk_i32 {sT4}, {OROW}"); e(f"v_mul_lo_u32 v{hOW}, v{hOW}, {sT4}")
        e(f"v_lshrrev_b32 v{vT}, 2, v{vLANE}"); e(f"v_lshl_add_u32 v{hOW}, v{vT}, 4, v{hOW}"); e(f"v_add_u32 v{hOW}, {OB}, v{hOW}")
        e(f"v_and_b32 v{hOR}, 3, v{vN}"); e(f"v_mul_lo_u32 v{hOR}, v{hOR}, {sT4}"); e(f"v_lshl_add_u32 v{hOR}, v{vGQ}, 4, v{hOR}"); e(f"v_add_u32 v{hOR}, {OB}, v{hOR}")
        e(f"v_lshlrev_b32 v{hYS}, 6, v{vGQ}"); e(f"v_lshl_add_u32 v{hYS}, v{vN}, 4, v{hYS}")
        e(f"v_lshlrev_b32 v{hP2}, 16, v{vGQ}"); e(f"v_lshl_add_u32 v{hP2}, v{vN}, 4, v{hP2}")
        e(f"v_and_b32 v{hOUT}, 3, v{vN}"); e(f"s_lshl_b32 {sT4}, {sB}, 2"); e(f"v_add_u32 v{hOUT}, {sT4}, v{hOUT}")
        e(f"s_movk_i32 {sT4}, 896"); e(f"v_mul_lo_u32 v{hOUT}, v{hOUT}, {sT4}")
        e(f"v_lshrrev_b32 v{vT}, 2, v{vN}"); e(f"v_lshl_add_u32 v{hOUT}, v{vT}, 6, v{hOUT}")
        e(f"s_lshl_b32 s58, {sB}, 18"); e(f"s_lshr_b32 {sT4}, {sR}, 3"); e(f"s_lshl_b32 {sT4}, {sT4}, 11"); e(f"s_add_u32 s58, s58, {sT4}")
        e(f"s_and_b32 {sT4}, {sR}, 7"); e(f"s_lshl_b32 {sT4}, {sT4}, 8"); e(f"s_add_u32 s58, s58, {sT4}"); e(f"s_add_u32 s58, s58, {M2_BASE:#x}")
        e(f"s_lshr_b32 s59, {sR}, 3"); e(f"s_mul_i32 s59, s59, {256 if self.wo128 else 224}"); e(f"s_and_b32 {sT4}, {sR}, 7"); e(f"s_lshl_b32 {sT4}, {sT4}, 1"); e(f"s_add_u32 s59, s59, {sT4}")
        self.stamp(5)
        if not self.wolate:
            e("s_barrier")
            if self.notail: e("s_branch L_fin")
            e(f"s_cmp_lg_u32 {sHW}, 0"); e("s_cbranch_scc1 L_t3done")
            self.t3(hST, hOW, (sT0, sT1, sT2, sT3), vLIN16)
        else:
            if self.pflate:
                c("late L2 prefetch of this WG's 1/8 share: when the tile counter is within pflate tiles of the limit")
                e(f"v_mov_b32 v{vT+1}, {CNT+8}"); e(f"s_mov_b32 {sSPIN}, {self.spin}")
                lab("L_hpf")
                e(f"ds_read_b32 v{vT+2}, v{vT+1}"); e(f"ds_read2_b32 v[{vT+4}:{vT+5}], v{vT+1} offset0:1 offset1:2"); e("s_waitcnt lgkmcnt(0)")
                e(f"v_readfirstlane_b32 {sT4}, v{vT+2}"); e(f"v_readfirstlane_b32 {sT5}, v{vT+4}"); e(f"v_readfirstlane_b32 s64, v{vT+5}"); e("s_nop 3")
                e(f"s_add_u32 {sT4}, {sT4}, {self.pflate}")
                e(f"s_cmp_ge_u32 {sT4}, {sT5}"); e(f"s_cselect_b32 {sT4}, s64, 0"); e(f"s_cmp_lg_u32 {sT4}, 0"); e("s_cbranch_scc1 L_hpf_ok")
                e("s_sleep 16"); self.spin_dec("L_hpf")
                lab("L_hpf_ok")
                e(f"s_lshl_b32 {sT4}, {sR}, 7"); e(f"s_lshl_b32 {sT5}, {sB}, 4"); e(f"s_add_u32 {sT4}, {sT4}, {sT5}"); e(f"s_mul_i32 {sT4}, {sT4}, 896")
                e(f"s_lshl_b32 {sT5}, {sHW}, 12"); e(f"s_add_u32 {sT4}, {sT4}, {sT5}")
                for i in range(4):
                    e(f"buffer_load_dwordx4 v[{68+4*i}:{68+4*i+3}], v{vLIN16}, {SRD_WO}, {sT4} offen" + (f" offset:{i*1024}" if i else ""))
            c("wait until all streamers have issued their last DMA, then load wo (L2 hits) behind them")
            e(f"v_mov_b32 v{vT+1}, {CNT+20}")
            self.lds_spin("L_hiss", vT+1, vT+2, "ge", 4, 8)
            self.wo_pipeline()
        lab("L_t3done")
        e("s_waitcnt lgkmcnt(0)"); e("s_barrier")
        self.stamp(6)
        BF = 64 + 48 - 64 + 40
        BF = 40
        for ks in range(4):
            e(f"ds_read_b128 v[{BF+4*ks}:{BF+4*ks+3}], v{hOR}" + (f" offset:{ks*64}" if ks else ""))
        YA = 0
        e("s_waitcnt lgkmcnt(0)")
        for ks in range(4):
            for j in range(8):
                A = 32*ks + 4*j
                cc = "0" if ks == 0 else f"v[{YA+4*j}:{YA+4*j+3}]"
                e(f"v_mfma_f32_16x16x32_bf16 v[{YA+4*j}:{YA+4*j+3}], a[{A}:{A+3}], v[{BF+4*ks}:{BF+4*ks+3}], {cc}")
        e("s_mov_b32 exec_lo, 0x000f000f"); e("s_mov_b32 exec_hi, 0x000f000f")
        self.nop(6)
        for j in range(8):
            e(f"buffer_store_dwordx4 v[{YA+4*j}:{YA+4*j+3}], v{hYS}, {SRD_WS}, {sM2OUT} offen offset:{j*256} sc1")
        e("s_mov_b64 exec, -1")
        e(f"s_cmp_lg_u32 {sHW}, 0"); e("s_cbranch_scc1 L_fin")
        e(f"s_mov_b32 {sSPIN}, {self.spin}")
        PB = 64
        lab("L_poll2")
        for i in range(8):
            if i == 0: so = "s58"
            else:
                e(f"s_add_u32 {sT1}, s58, {i*8192}"); so = sT1
            e(f"buffer_load_dwordx4 v[{PB+4*i}:{PB+4*i+3}], v{hP2}, {SRD_WS}, {so} offen sc1")
        e("s_waitcnt vmcnt(0)")
        mx = 60
        e(f"v_max3_u32 v{mx}, v{PB}, v{PB+1}, v{PB+2}")
        for k in range(3, 31, 2): e(f"v_max3_u32 v{mx}, v{mx}, v{PB+k}, v{PB+k+1}")
        e(f"v_max_u32 v{mx}, v{mx}, v{PB+31}")
        e(f"v_cmp_eq_u32 vcc, -1, v{mx}"); e("s_nop 1"); e("s_cbranch_vccz L_poll2ok")
        self.spin_dec("L_poll2")
        lab("L_poll2ok")
        for k in range(4): e(f"v_add_f32 v{32+k}, v{PB+k}, v{PB+4+k}")
        for i in range(2, 8):
            for k in range(4): e(f"v_add_f32 v{32+k}, v{32+k}, v{PB+4*i+k}")
        for k in range(4): e(f"v_mov_b32 v{36+k}, v{32+k}")
        e("s_nop 0")
        for k in range(4): e(f"v_permlane32_swap_b32 v{36+k}, v{32+k}")
        for k in range(4): e(f"v_add_f32 v{32+k}, v{32+k}, v{36+k}")
        for k in range(4): e(f"v_mov_b32 v{36+k}, v{32+k}")
        e("s_nop 0")
        for k in range(4): e(f"v_permlane16_swap_b32 v{36+k}, v{32+k}")
        for k in range(4): e(f"v_add_f32 v{32+k}, v{32+k}, v{36+k}")
        e("v_cvt_pk_bf16_f32 v40, v32, v33"); e("v_cvt_pk_bf16_f32 v41, v34, v35")
        if self.wo128:
            e(f"s_cmp_ge_u32 {sR}, 24"); e(f"s_cselect_b32 {sT1}, 0xff, -1"); e(f"s_and_b32 exec_lo, {sT1}, 0xffff"); e("s_mov_b32 exec_hi, 0")
        else:
            e("s_mov_b64 exec, 0xffff")
        e(f"buffer_store_short v40, v{hOUT}, {SRD_OUT}, s59 offen")
        e(f"buffer_store_short_d16_hi v40, v{hOUT}, {SRD_OUT}, s59 offen offset:16")
        if not self.wo128: e("s_mov_b64 exec, 0xfff")
        e(f"buffer_store_short v41, v{hOUT}, {SRD_OUT}, s59 offen offset:32")
        e(f"buffer_store_short_d16_hi v41, v{hOUT}, {SRD_OUT}, s59 offen offset:48")
        e(f"s_cmp_lg_u32 {sLID}, 0"); e("s_cbranch_scc1 L_noep")
        e("s_mov_b64 exec, 1")
        e(f"v_mov_b32 v42, s60"); e(f"v_mov_b32 v43, s61"); e(f"v_mov_b32 v44, 0"); e(f"s_mov_b32 {sT0}, {EPOCH_OFF:#x}")
        e(f"buffer_store_dwordx2 v[42:43], v44, {SRD_WS}, {sT0} offen sc1")
        lab("L_noep")
        e("s_mov_b64 exec, -1")
        lab("L_fin")
        if self.dbgspan:
            c("debug: WGs 0,85,170,255 -> dwords 4k..: start, loop begin, loop end (S0), fin (H0)")
            e("s_memrealtime s[98:99]"); e("s_waitcnt vmcnt(0) lgkmcnt(0)")
            e(f"s_mul_i32 s97, {sWG}, 3"); e("s_mul_hi_u32 s96, s97, 0x1010102"); e("s_mul_i32 s95, s96, 255"); e("s_cmp_lg_u32 s95, s97"); e("s_cbranch_scc1 L_dbgdone")
            self.srd(52, 44, 45, 256)
            e(f"s_mul_i32 s96, {sWG}, 3"); e("s_lshr_b32 s96, s96, 8"); e(f"s_cmp_eq_u32 {sWG}, 0"); e("s_cselect_b32 s96, 0, s96")
            e(f"s_mul_hi_u32 s96, {sWG}, 0x3030304")
            e("s_lshl_b32 s96, s96, 4")
            e("s_mov_b64 exec, 1"); e("v_mov_b32 v2, 0")
            e(f"s_cmp_eq_u32 {sW}, 4"); e("s_cbranch_scc1 L_dbgh")
            e(f"s_cmp_eq_u32 {sW}, 0"); e("s_cbranch_scc0 L_dbgdone")
            e("v_mov_b32 v4, s100"); e("v_mov_b32 v5, s88"); e("v_mov_b32 v6, s90")
            e(f"buffer_store_dwordx3 v[4:6], v2, {SRD_DBG}, s96 offen sc1"); e("s_branch L_dbgdone")
            lab("L_dbgh")
            e("v_mov_b32 v4, s98")
            e(f"buffer_store_dword v4, v2, {SRD_DBG}, s96 offen offset:12 sc1")
            lab("L_dbgdone")
            e("s_waitcnt vmcnt(0)")
        if self.stamps:
            self.stamp(7)
            e("s_waitcnt vmcnt(0) lgkmcnt(0)")
            e(f"s_lshl_b32 {sT0}, {sWG}, 3"); e(f"s_add_u32 {sT0}, {sT0}, {sW}"); e(f"s_lshl_b32 {sT0}, {sT0}, 5"); e(f"s_add_u32 {sT0}, {sT0}, {STAMP_BASE:#x}")
            if self.bal or self.ldyn:
                e(f"s_cmp_lt_u32 {sW}, 4"); e("s_cbranch_scc0 L_non"); e(f"s_mov_b32 s96, {sN}"); lab("L_non")
            for i in range(8): e(f"v_mov_b32 v{i}, s{84+2*i}")
            e("v_mov_b32 v8, 0")
            e("s_mov_b64 exec, 1")
            e(f"buffer_store_dwordx4 v[0:3], v8, {SRD_WS}, {sT0} offen")
            e(f"buffer_store_dwordx4 v[4:7], v8, {SRD_WS}, {sT0} offen offset:16")
            e("s_waitcnt vmcnt(0)")
        lab("L_end")
        e("s_endpgm")
        L.append('.section .rodata,"a"'); L.append(".p2align 6"); L.append(f".amdhsa_kernel {NAME}_kernel")
        for d in ("next_free_vgpr 256", "next_free_sgpr 102", "accum_offset 128", "group_segment_fixed_size 0", "kernarg_size 64",
                  "user_sgpr_count 2", "user_sgpr_kernarg_segment_ptr 1", "system_sgpr_workgroup_id_x 1"):
            L.append("  .amdhsa_" + d)
        L.append(".end_amdhsa_kernel")
        return "\n".join(L) + "\n"

if __name__ == "__main__":
    import argparse
    ap = argparse.ArgumentParser()
    ap.add_argument("out"); ap.add_argument("--stamps", action="store_true"); ap.add_argument("--opt", default="{}")
    a = ap.parse_args()
    open(a.out, "w").write(Gen(stamps=a.stamps, **eval("dict(" + a.opt + ")" if not a.opt.startswith(("{", "dict")) else a.opt)).build())
```

```python
import sys, struct

NAME = "standalone__gqa_block_cached__sampling"
HDR = open("standalone__gqa_block_cached__sampling.s.ref").read().split("; Override")[0]

QB = 131072; QROW = 528
STB = QB + 8 * QROW
OB = STB + 256
OROW = 272
CNT = OB + 4 * OROW
WQS = 136704
RED = WQS + 16384
OWROW = 1040
LDS_BYTES = 163840
assert RED + 8192 <= LDS_BYTES

M1_SLICE = 2176
M2_BASE = 0x400000
QM_BASE = 0x600000
QF_BASE = 0x740000
CF_BASE = 0x760000
BAL_BASE = 0x7a0000
GC_BASE = 0x788000
EPOCH_OFF = 0x790000
TAG_C = 0x9E3779B9
STAMP_BASE = 0x800000
WS_BYTES = 0x1000000

sWG, sW, sKVH, sJ, sB = "s2", "s3", "s4", "s5", "s6"
sHW = "s7"
SRD_K, SRD_V, SRD_WQ, SRD_X, SRD_WO, SRD_WS = "s[8:11]", "s[12:15]", "s[16:19]", "s[20:23]", "s[24:27]", "s[28:31]"
SRD_OUT, SRD_DBG = "s[48:51]", "s[52:55]"
sKOFF, sVOFF = "s60", "s61"
sWB = "s62"
sKSLOT, sVSLOT = "s63", "s64"
sT = "s65"
sC, sNC = "s66", "s67"
sG = "s68"; sR = "s69"
sM1OUT, sM2OUT = "s70", "s71"
sT0, sT1, sT2, sT3, sT4, sT5 = "s72", "s73", "s74", "s75", "s76", "s77"
sSEL_LO, sSEL_HI = "s78", "s79"
sY = "s80"; sSPIN = "s81"; sTAG = "s82"; sLID = "s83"; sTL = "s59"
sN = "s56"; sGB = "s57"; sGC = "s58"; sSTAT = "s59"; sSTEP = "s57"; sPLO = "s55"
vA = 108; vZERO = 110
hWO = 114; sWOM = "s63"
STAMPS = ["s[84:85]", "s[86:87]", "s[88:89]", "s[90:91]", "s[92:93]", "s[94:95]", "s[96:97]", "s[98:99]"]

vO = 0
vLANE, vN, vGQ, vTMPA = 64, 65, 66, 67
vDMA = 68; vKA = 72; vVA = 76; vS = 84; vP = 88; vM, vL = 90, 91; vAL = 92
vT = 94
vLIN16 = 104; vODUMP = 105; vT2A, vT2B = 106, 107
AQ, AK, AV = 0, 32, 64

C_LOG2E_16 = 1.4426950408889634 / 16.0
def fbits(x): return struct.unpack("<I", struct.pack("<f", x))[0]

class Gen:
    def __init__(self, stamps=False, flags="nt", spin=1 << 18, kwait=16, nocomp=False, notail=False, wopace=8, hprio=0, qsleep=2, pace=3, dbgmid=False, nowo=False, noclr=False, v0pre=True, wosame=False, wopf=True, vwait=24, rate=False, noqwait=False, hexit=False, order2=True, kwait2=24, dyn=False, n0=16, pairmap=True, bal=True, ta=4, tb=11, tc=21, nlo=24, quiet=0, dbgq=False, hop1=True, qdelay=True, pre0=2, ldyn=False, t0s=44, t1s=92, plo=108, xmap=1, dbgspan=False, qcontig=False, nox=False, nowq=False, wo128=True, wolate=False, pflate=0, ploB=None, tmarg=8, rounds2=False, delta=6, tmarg2=6, kflags=None, vflags=None, dbgs=False, nob0=False, q8=False, q8v=False, qrot=False, outsc='', pipoll=False, pretail=False):
        self.pipoll = pipoll; self.pretail = pretail
        self.outsc = outsc
        self.qrot = qrot
        self.q8v = q8v
        if q8v: q8 = True
        self.q8 = q8
        self.nob0 = nob0
        self.dbgs = dbgs
        self.kflags = kflags; self.vflags = vflags
        self.rounds2 = rounds2; self.delta = delta; self.tmarg2 = tmarg2
        self.ploA = plo; self.ploB = ploB if ploB else plo; self.tmarg = tmarg; self.asym = ploB is not None
        self.pflate = pflate
        self.wolate = wolate
        self.wo128 = wo128
        self.nox = nox; self.nowq = nowq
        self.qcontig = qcontig
        self.dbgspan = dbgspan
        self.xmap = xmap
        self.ldyn = ldyn; self.t0s = t0s; self.t1s = t1s; self.plo = plo
        self.pre0 = pre0
        self.qdelay = qdelay
        self.hop1 = hop1
        self.dbgq = dbgq
        self.quiet = quiet
        self.bal = bal; self.ta = ta; self.tb = tb; self.tc = tc; self.nlo = nlo
        assert not (dyn and bal)
        self.dyn = dyn; self.n0 = n0; self.pairmap = pairmap
        self.order2 = order2; self.kwait2 = kwait2
        self.rate = rate; self.noqwait = noqwait; self.hexit = hexit
        self.vwait = vwait
        self.wopf = wopf
        self.wosame = wosame
        self.v0pre = v0pre
        self.dbgmid = dbgmid; self.nowo = nowo; self.noclr = noclr
        self.pace = pace
        self.qsleep = qsleep
        self.L = []; self.stamps = stamps; self.flags = flags; self.spin = spin; self.kwait = kwait
        self.nocomp = nocomp; self.notail = notail; self.wopace = wopace; self.hprio = hprio
    def e(self, s): self.L.append("  " + s)
    def lab(self, s): self.L.append(s + ":")
    def c(self, s): self.L.append("  ; " + s)
    def stamp(self, i):
        if self.stamps or (getattr(self, "dbgspan", False) and i in (2, 3)): self.e(f"s_memrealtime {STAMPS[i]}")
    def nop(self, n):
        while n > 0:
            k = min(n, 16); self.e(f"s_nop {k-1}"); n -= k
    def dma_half(self, srd, soff):
        fl = self.flags
        if srd == SRD_K and self.kflags is not None: fl = self.kflags
        if srd == SRD_V and self.vflags is not None: fl = self.vflags
        for i in range(4):
            o = f" offset:{i*1024}" if i else ""
            self.e(f"buffer_load_dwordx4 v{vDMA+i}, {srd}, {soff} offen{o} {fl} lds")
    def dma_tile(self, srd, goff, slot):
        e = self.e
        e(f"s_mov_b32 m0, {slot}"); e(f"s_add_u32 {sT0}, {goff}, 16384")
        self.dma_half(srd, goff)
        e(f"s_add_u32 m0, {slot}, 4096"); e("s_nop 0")
        self.dma_half(srd, sT0)
    def dma_tile_static(self, isv, tile):
        e = self.e
        for half in range(2):
            e(f"s_add_u32 m0, {sWB}, {isv*16384 + tile*8192 + half*4096}")
            e(f"s_add_u32 {sT5}, {sKOFF}, {tile*32768 + half*16384}")
            self.dma_half(SRD_V if isv else SRD_K, sT5)
    def dma_half_static(self, hn):
        e = self.e
        tile, half, isv = hn >> 2, hn & 1, (hn >> 1) & 1
        if self.dyn:
            e(f"s_add_u32 m0, {sWB}, {isv*16384 + tile*8192 + half*4096}")
            e(f"s_add_u32 {sT5}, {sKOFF}, {tile*32768 + half*16384}")
        else:
            e(f"s_add_u32 {sT5}, {sKOFF}, {half*16384}")
            if tile: e(f"s_add_u32 {sT5}, {sT5}, {sSTEP}")
            e(f"s_add_u32 m0, {sWB}, {isv*16384 + tile*8192 + half*4096}"); e("s_nop 0")
        self.dma_half(SRD_V if isv else SRD_K, sT5)
    def read_k(self):
        for s in range(8):
            a, u = s >> 2, s & 3
            self.e(f"ds_read_b128 a[{AK+4*s}:{AK+4*s+3}], v{vKA+u}" + (f" offset:{a*256}" if a else ""))
    def read_v(self):
        for t in range(16):
            a, u = t >> 3, t & 7
            self.e(f"ds_read_b64_tr_b16 a[{AV+2*t}:{AV+2*t+1}], v{vVA+u}" + (f" offset:{a*256}" if a else ""))
    def srd(self, base, lo, hi, size):
        e = self.e
        e(f"s_mov_b32 s{base}, s{lo}"); e(f"s_and_b32 s{base+1}, s{hi}, 0xffff"); e(f"s_mov_b32 s{base+2}, {size:#x}"); e(f"s_mov_b32 s{base+3}, 0x20000")
    def spin_dec(self, label):
        e = self.e
        e(f"s_sub_u32 {sSPIN}, {sSPIN}, 1"); e(f"s_cmp_lg_u32 {sSPIN}, 0"); e(f"s_cbranch_scc1 {label}")

    def loop1(self):
        e, lab, c = self.e, self.lab, self.c
        lab("L_loop")
        if self.rate:
            for tt, si in ((8, 1), (16, 4), (24, 5)):
                e(f"s_cmp_lg_u32 {sT}, {tt}"); e(f"s_cbranch_scc1 L_rs{tt}"); e(f"s_memrealtime {STAMPS[si]}"); lab(f"L_rs{tt}")
        for s in range(8):
            if self.nocomp: break
            cc = "0" if s == 0 else f"v[{vS}:{vS+3}]"
            e(f"v_mfma_f32_16x16x32_bf16 v[{vS}:{vS+3}], a[{AK+4*s}:{AK+4*s+3}], a[{AQ+4*s}:{AQ+4*s+3}], {cc}")
        e(f"s_cmp_eq_u32 {sT}, 31"); e("s_cbranch_scc1 L_k31")
        e(f"s_waitcnt vmcnt({self.kwait})")
        self.read_k()
        e("s_waitcnt lgkmcnt(0)")
        e(f"s_cmp_ge_u32 {sT}, 29"); e("s_cbranch_scc1 L_kdone")
        self.dma_tile(SRD_K, sKOFF, sKSLOT)
        e(f"s_add_u32 {sKOFF}, {sKOFF}, 32768"); e(f"s_xor_b32 {sKSLOT}, {sKSLOT}, 8192")
        lab("L_kdone")
        for u in range(4): e(f"v_xor_b32 v{vKA+u}, 8192, v{vKA+u}")
        lab("L_soft")
        t0, t1, t2 = vT, vT+1, vT+2
        if self.nocomp: e("s_branch L_noresc")
        e(f"v_max3_f32 v{t0}, v{vS}, v{vS+1}, v{vS+2}")
        e(f"v_max_f32 v{t0}, v{t0}, v{vS+3}")
        e(f"v_mov_b32 v{t1}, v{t0}"); e("s_nop 1")
        e(f"v_permlane32_swap_b32 v{t1}, v{t0}")
        e(f"v_max_f32 v{t0}, v{t0}, v{t1}")
        e(f"v_mov_b32 v{t1}, v{t0}"); e("s_nop 1")
        e(f"v_permlane16_swap_b32 v{t1}, v{t0}")
        e(f"v_max3_f32 v{t0}, v{t0}, v{t1}, v{vM}")
        e(f"v_sub_f32 v{t1}, v{vM}, v{t0}")
        e(f"v_mul_f32 v{t1}, {sC}, v{t1}")
        e(f"v_mul_f32 v{t2}, {sNC}, v{t0}")
        e(f"v_exp_f32 v{vAL}, v{t1}")
        e(f"v_mov_b32 v{vM}, v{t0}")
        for r in range(4): e(f"v_fma_f32 v{vS+r}, v{vS+r}, {sC}, v{t2}")
        for r in range(4): e(f"v_exp_f32 v{vS+r}, v{vS+r}")
        e(f"v_cmp_neq_f32 vcc, 1.0, v{vAL}")
        e(f"v_add_f32 v{t0}, v{vS}, v{vS+1}"); e(f"v_add_f32 v{t1}, v{vS+2}, v{vS+3}")
        e(f"v_cvt_pk_bf16_f32 v{vP}, v{vS}, v{vS+1}"); e(f"v_cvt_pk_bf16_f32 v{vP+1}, v{vS+2}, v{vS+3}")
        e(f"v_add_f32 v{t0}, v{t0}, v{t1}"); e(f"v_fma_f32 v{vL}, v{vL}, v{vAL}, v{t0}")
        e("s_cbranch_vccz L_noresc")
        for i in range(32):
            e(f"v_pk_mul_f32 v[{vO+2*i}:{vO+2*i+1}], v[{vO+2*i}:{vO+2*i+1}], v[{vAL}:{vAL+1}] op_sel_hi:[1,0]")
        lab("L_noresc")
        c("V point: steady state vmcnt(24); near the end fewer ops are outstanding")
        if self.v0pre:
            e(f"s_cmp_eq_u32 {sT}, 0"); e("s_cbranch_scc1 L_pv")
        e(f"s_cmp_ge_u32 {sT}, 29"); e("s_cbranch_scc1 L_vlate")
        e(f"s_waitcnt vmcnt({self.vwait})")
        lab("L_vrd")
        self.read_v()
        e("s_waitcnt lgkmcnt(0)")
        e(f"s_cmp_ge_u32 {sT}, 30"); e("s_cbranch_scc1 L_vdone")
        self.dma_tile(SRD_V, sVOFF, sVSLOT)
        e(f"s_add_u32 {sVOFF}, {sVOFF}, 32768"); e(f"s_xor_b32 {sVSLOT}, {sVSLOT}, 8192")
        lab("L_vdone")
        for u in range(8): e(f"v_xor_b32 v{vVA+u}, 8192, v{vVA+u}")
        lab("L_pv")
        for t in range(16):
            if self.nocomp: break
            e(f"v_mfma_f32_16x16x16_bf16 v[{vO+4*t}:{vO+4*t+3}], a[{AV+2*t}:{AV+2*t+1}], v[{vP}:{vP+1}], v[{vO+4*t}:{vO+4*t+3}]")
        e(f"s_add_u32 {sT}, {sT}, 1"); e(f"s_cmp_lt_u32 {sT}, 32"); e("s_cbranch_scc1 L_loop")
        e("s_branch L_tail")
        lab("L_vlate")
        e(f"s_cmp_eq_u32 {sT}, 29"); e("s_cbranch_scc1 L_vrd")
        e(f"s_cmp_eq_u32 {sT}, 30"); e("s_cbranch_scc0 L_vlast")
        e("s_waitcnt vmcnt(8)"); e("s_branch L_vrd")
        lab("L_vlast")
        e("s_waitcnt vmcnt(0)"); e("s_branch L_vrd")
        lab("L_k31")
        self.nop(8)
        e("s_branch L_soft")


    def loop2(self):
        e, lab, c = self.e, self.lab, self.c
        dyn = self.dyn
        ld = self.ldyn
        lab("L_loop")
        if self.rate:
            for tt, si in ((8, 1), (16, 4), (24, 5)):
                e(f"s_cmp_lg_u32 {sT}, {tt}"); e(f"s_cbranch_scc1 L_rs{tt}"); e(f"s_memrealtime {STAMPS[si]}"); lab(f"L_rs{tt}")
        t0, t1, t2 = vT, vT+1, vT+2
        def cmpN(op, k):
            if dyn or self.bal or ld:
                e(f"s_sub_u32 {sT1}, {sN}, {k}"); e(f"s_cmp_{op}_u32 {sT}, {sT1}")
            else:
                e(f"s_cmp_{op}_u32 {sT}, {32-k}")
        if ld:
            c("grab next tile id (lane 0) and read limit/final early")
            cmpN("ge", 3); e("s_cbranch_scc1 L_nograb")
            e("s_mov_b64 exec, 1")
            e(f"ds_add_rtn_u32 v{vA}, v{vZERO}, v{vA+1}")
            e("s_mov_b64 exec, -1")
            lab("L_nograb")
        c("A: QK")
        for s in range(8):
            if self.nocomp: break
            cc = "0" if s == 0 else f"v[{vS}:{vS+3}]"
            e(f"v_mfma_f32_16x16x32_bf16 v[{vS}:{vS+3}], a[{AK+4*s}:{AK+4*s+3}], a[{AQ+4*s}:{AQ+4*s+3}], {cc}")
        c("B: K point")
        if self.bal and not ld:
            e(f"s_cmp_eq_u32 {sT}, {self.ta}"); e("s_cbranch_scc1 L_balst")
            e(f"s_cmp_eq_u32 {sT}, {self.tb}"); e("s_cbranch_scc1 L_balst")
            e(f"s_cmp_eq_u32 {sT}, {self.tc}"); e("s_cbranch_scc1 L_balget")
            lab("L_balback")
        cmpN("ge", 2); e("s_cbranch_scc1 L_klate")
        e(f"s_waitcnt vmcnt({self.kwait2})")
        lab("L_krd")
        self.read_k()
        if dyn:
            cmpN("ge", 3); e("s_cbranch_scc1 L_knoref")
            c("tile id for t+3 ; atomics run two iterations ahead (regs vA, vA+1 by parity of t)")
            e(f"s_cmp_ge_u32 {sT}, {self.n0-3}"); e("s_cbranch_scc1 L_dynid")
            e(f"s_mov_b32 {sT2}, {sSTAT}"); e(f"s_add_u32 {sSTAT}, {sSTAT}, 16")
            e(f"s_cmp_eq_u32 {sT}, {self.n0-5}"); e("s_cbranch_scc1 L_dynchk")
            e(f"s_cmp_eq_u32 {sT}, {self.n0-4}"); e("s_cbranch_scc1 L_atom")
            e("s_branch L_mkoff")
            lab("L_dynid")
            e(f"s_bitcmp1_b32 {sT}, 0"); e("s_cbranch_scc1 L_dynid1")
            e(f"v_readfirstlane_b32 {sT2}, v{vA}"); e("s_branch L_dynid2")
            lab("L_dynid1")
            e(f"v_readfirstlane_b32 {sT2}, v{vA+1}")
            lab("L_dynid2")
            e("s_nop 3")
            e(f"s_add_u32 {sT2}, {sT2}, {self.n0*16}")
            e(f"s_cmp_ge_u32 {sT2}, 512"); e("s_cbranch_scc1 L_exhaust")
            lab("L_atom")
            e("s_mov_b64 exec, 1")
            e(f"s_bitcmp1_b32 {sT}, 0"); e("s_cbranch_scc1 L_atom1")
            e(f"v_mov_b32 v{vA}, 1")
            e(f"buffer_atomic_add v{vA}, v{vZERO}, {SRD_WS}, {sGC} offen sc0 sc1"); e("s_branch L_atom2")
            lab("L_atom1")
            e(f"v_mov_b32 v{vA+1}, 1")
            e(f"buffer_atomic_add v{vA+1}, v{vZERO}, {SRD_WS}, {sGC} offen sc0 sc1")
            lab("L_atom2")
            e("s_mov_b64 exec, -1")
            lab("L_mkoff")
            e(f"s_lshr_b32 {sT3}, {sT2}, 2"); e(f"s_and_b32 {sT3}, {sT3}, 3"); e(f"s_lshl_b32 {sT3}, {sT3}, 20")
            e(f"s_lshr_b32 {sT4}, {sT2}, 4"); e(f"s_lshl_b32 {sT4}, {sT4}, 15"); e(f"s_add_u32 {sT3}, {sT3}, {sT4}")
            e(f"s_and_b32 {sT4}, {sT2}, 3"); e(f"s_lshl_b32 {sT4}, {sT4}, 12"); e(f"s_add_u32 {sT3}, {sT3}, {sT4}")
            e(f"s_add_u32 {sKOFF}, {sGB}, {sT3}")
            e("s_waitcnt lgkmcnt(0)")
            self.dma_tile(SRD_K, sKOFF, sKSLOT)
            e(f"s_xor_b32 {sKSLOT}, {sKSLOT}, 8192")
            e("s_branch L_kdone")
            lab("L_knoref")
            e("s_waitcnt lgkmcnt(0)")
        elif ld:
            e("s_waitcnt lgkmcnt(0)")
            cmpN("ge", 3); e("s_cbranch_scc1 L_kdone")
            e(f"v_readfirstlane_b32 {sT2}, v{vA}"); e("s_nop 3")
            e(f"s_cmp_ge_u32 {sT2}, {sPLO}"); e("s_cbranch_scc1 L_limchk")
            lab("L_tileok")
            e(f"s_xor_b32 {sT2}, {sT2}, {sSTAT}")
            e(f"s_lshr_b32 {sT3}, {sT2}, 2"); e(f"s_lshl_b32 {sT3}, {sT3}, 15"); e(f"s_and_b32 {sT2}, {sT2}, 3"); e(f"s_lshl_b32 {sT2}, {sT2}, 12")
            e(f"s_add_u32 {sKOFF}, {sGC}, {sT3}"); e(f"s_add_u32 {sKOFF}, {sKOFF}, {sT2}")
            self.dma_tile(SRD_K, sKOFF, sKSLOT)
            e(f"s_xor_b32 {sKSLOT}, {sKSLOT}, 8192")
        else:
            e("s_waitcnt lgkmcnt(0)")
            cmpN("ge", 3); e("s_cbranch_scc1 L_kdone")
            self.dma_tile(SRD_K, sKOFF, sKSLOT)
            e(f"s_add_u32 {sKOFF}, {sKOFF}, {sSTEP}"); e(f"s_xor_b32 {sKSLOT}, {sKSLOT}, 8192")
        lab("L_kdone")
        for u in range(4): e(f"v_xor_b32 v{vKA+u}, 8192, v{vKA+u}")
        lab("L_soft")
        c("C: softmax")
        if self.nocomp: e("s_branch L_noresc")
        e(f"v_max3_f32 v{t0}, v{vS}, v{vS+1}, v{vS+2}")
        e(f"v_max_f32 v{t0}, v{t0}, v{vS+3}")
        e(f"v_mov_b32 v{t1}, v{t0}"); e("s_nop 1")
        e(f"v_permlane32_swap_b32 v{t1}, v{t0}")
        e(f"v_max_f32 v{t0}, v{t0}, v{t1}")
        e(f"v_mov_b32 v{t1}, v{t0}"); e("s_nop 1")
        e(f"v_permlane16_swap_b32 v{t1}, v{t0}")
        e(f"v_max3_f32 v{t0}, v{t0}, v{t1}, v{vM}")
        e(f"v_sub_f32 v{t1}, v{vM}, v{t0}")
        e(f"v_mul_f32 v{t1}, {sC}, v{t1}")
        e(f"v_mul_f32 v{t2}, {sNC}, v{t0}")
        e(f"v_exp_f32 v{vAL}, v{t1}")
        e(f"v_mov_b32 v{vM}, v{t0}")
        for r in range(4): e(f"v_fma_f32 v{vS+r}, v{vS+r}, {sC}, v{t2}")
        for r in range(4): e(f"v_exp_f32 v{vS+r}, v{vS+r}")
        e(f"v_cmp_neq_f32 vcc, 1.0, v{vAL}")
        e(f"v_add_f32 v{t0}, v{vS}, v{vS+1}"); e(f"v_add_f32 v{t1}, v{vS+2}, v{vS+3}")
        e(f"v_cvt_pk_bf16_f32 v{vP}, v{vS}, v{vS+1}"); e(f"v_cvt_pk_bf16_f32 v{vP+1}, v{vS+2}, v{vS+3}")
        e(f"v_add_f32 v{t0}, v{t0}, v{t1}"); e(f"v_fma_f32 v{vL}, v{vL}, v{vAL}, v{t0}")
        e("s_cbranch_vccz L_noresc")
        for i in range(32):
            e(f"v_pk_mul_f32 v[{vO+2*i}:{vO+2*i+1}], v[{vO+2*i}:{vO+2*i+1}], v[{vAL}:{vAL+1}] op_sel_hi:[1,0]")
        lab("L_noresc")
        cmpN("eq", 1); e("s_cbranch_scc1 L_vjit")
        lab("L_pv")
        c("D: PV")
        for t in range(16):
            if self.nocomp: break
            e(f"v_mfma_f32_16x16x16_bf16 v[{vO+4*t}:{vO+4*t+3}], a[{AV+2*t}:{AV+2*t+1}], v[{vP}:{vP+1}], v[{vO+4*t}:{vO+4*t+3}]")
        c("E: V point")
        cmpN("ge", 3); e("s_cbranch_scc1 L_vlate")
        e(f"s_waitcnt vmcnt({self.vwait})")
        if self.q8v:
            e(f"s_cmp_lg_u32 {sT}, 0"); e("s_cbranch_scc1 L_vnz"); e("s_waitcnt vmcnt(16)"); lab("L_vnz")
        self.read_v()
        e("s_waitcnt lgkmcnt(0)")
        if dyn or ld:
            self.dma_tile(SRD_V, sKOFF, sVSLOT)
            e(f"s_xor_b32 {sVSLOT}, {sVSLOT}, 8192")
        else:
            self.dma_tile(SRD_V, sVOFF, sVSLOT)
            e(f"s_add_u32 {sVOFF}, {sVOFF}, {sSTEP}"); e(f"s_xor_b32 {sVSLOT}, {sVSLOT}, 8192")
        lab("L_vdone")
        for u in range(8): e(f"v_xor_b32 v{vVA+u}, 8192, v{vVA+u}")
        lab("L_next")
        e(f"s_add_u32 {sT}, {sT}, 1")
        if dyn or self.bal or ld: e(f"s_cmp_lt_u32 {sT}, {sN}")
        else: e(f"s_cmp_lt_u32 {sT}, 32")
        e("s_cbranch_scc1 L_loop")
        e("s_branch L_tail")
        lab("L_klate")
        cmpN("eq", 1); e("s_cbranch_scc1 L_k31")
        e("s_waitcnt vmcnt(8)"); e("s_branch L_krd")
        lab("L_k31")
        self.nop(8)
        e("s_branch L_soft")
        lab("L_vlate")
        cmpN("eq", 3); e("s_cbranch_scc0 L_next")
        if self.wolate:
            e(f"v_mov_b32 v{t0}, {CNT+20}"); e(f"v_mov_b32 v{t1}, 1"); e("s_mov_b64 exec, 1"); e(f"ds_add_u32 v{t0}, v{t1}"); e("s_mov_b64 exec, -1")
        e("s_waitcnt vmcnt(16)")
        self.read_v()
        e("s_waitcnt lgkmcnt(0)")
        e("s_branch L_vdone")
        lab("L_vjit")
        e("s_waitcnt vmcnt(0)")
        self.read_v()
        e("s_waitcnt lgkmcnt(0)")
        e("s_branch L_pv")
        if ld:
            lab("L_limchk")
            e(f"s_mov_b32 {sSPIN}, {self.spin}")
            e(f"v_mov_b32 v{t0}, {CNT+12}")
            lab("L_limchk1")
            e(f"ds_read2_b32 v[{t1+1}:{t1+2}], v{t0} offset0:0 offset1:1"); e("s_waitcnt lgkmcnt(0)")
            e(f"v_readfirstlane_b32 {sT3}, v{t1+2}"); e(f"v_readfirstlane_b32 {sT4}, v{t1+1}"); e("s_nop 3")
            e(f"s_mov_b32 {sPLO}, {sT4}")
            e(f"s_cmp_lt_u32 {sT2}, {sT4}"); e("s_cbranch_scc1 L_tileok")
            e(f"s_cmp_lg_u32 {sT3}, 0"); e("s_cbranch_scc1 L_limfin")
            e("s_sleep 2")
            self.spin_dec("L_limchk1")
            lab("L_limfin")
            e(f"s_add_u32 {sN}, {sT}, 3")
            e("s_branch L_kdone")
        if self.bal and not ld:
            lab("L_balst")
            e(f"s_cmp_lg_u32 {sW}, 0"); e("s_cbranch_scc1 L_balback")
            e(f"s_memrealtime s[{sT2[1:]}:{sT3[1:]}]"); e("s_waitcnt lgkmcnt(0)")
            e(f"s_or_b32 {sT2}, {sT2}, 1")
            e(f"s_cmp_eq_u32 {sT}, {self.tb}"); e(f"s_cselect_b32 {sT3}, 4, 0"); e(f"s_add_u32 {sT3}, {sT3}, {CNT+8}")
            e(f"v_mov_b32 v{t0}, {sT3}"); e(f"v_mov_b32 v{t1}, {sT2}")
            e(f"ds_write_b32 v{t0}, v{t1}")
            e("s_branch L_balback")
            lab("L_balget")
            e(f"s_mov_b32 {sSPIN}, {self.spin}")
            e(f"v_mov_b32 v{t0}, {CNT+16}")
            lab("L_balget1")
            e(f"ds_read_b32 v{t1}, v{t0}"); e("s_waitcnt lgkmcnt(0)")
            e(f"v_readfirstlane_b32 {sN}, v{t1}"); e("s_nop 3")
            e(f"s_cmp_lg_u32 {sN}, 0"); e("s_cbranch_scc1 L_balback")
            e("s_sleep 4")
            self.spin_dec("L_balget1")
            e(f"s_mov_b32 {sN}, 32")
            e("s_branch L_balback")
        if dyn:
            lab("L_exhaust")
            e(f"s_add_u32 {sN}, {sT}, 3")
            e("s_branch L_knoref")
            lab("L_dynchk")
            e(f"s_mov_b32 {sSPIN}, {self.spin}")
            e(f"v_mov_b32 v{t0}, {CNT+8}")
            lab("L_dynchk1")
            e(f"ds_read_b32 v{t1}, v{t0}"); e("s_waitcnt lgkmcnt(0)")
            e(f"v_readfirstlane_b32 {sT3}, v{t1}"); e("s_nop 3")
            e(f"s_cmp_eq_u32 {sT3}, 1"); e("s_cbranch_scc1 L_atom")
            e("s_sleep 8")
            self.spin_dec("L_dynchk1")
            e("s_branch L_atom")

    def t3(self, hST, hOW, so4, lin16):
        e, lab, c = self.e, self.lab, self.c
        def issue(PB):
            for jj, so in enumerate(so4):
                e(f"buffer_load_dwordx4 v[{PB+8*jj}:{PB+8*jj+3}], v{lin16}, {SRD_WS}, {so} offen sc1")
                e(f"buffer_load_dwordx4 v[{PB+8*jj+4}:{PB+8*jj+7}], v{lin16}, {SRD_WS}, {so} offen offset:1024 sc1")
                e(f"buffer_load_dwordx2 v[{PB+32+2*jj}:{PB+32+2*jj+1}], v{hST}, {SRD_WS}, {so} offen offset:2048 sc1")
        def check(PB, oklab):
            mx = vT + 1
            e(f"v_max3_u32 v{mx}, v{PB}, v{PB+1}, v{PB+2}")
            for k in range(3, 39, 2): e(f"v_max3_u32 v{mx}, v{mx}, v{PB+k}, v{PB+k+1}")
            e(f"v_max_u32 v{mx}, v{mx}, v{PB+39}")
            e(f"v_cmp_eq_u32 vcc, -1, v{mx}"); e("s_nop 1"); e(f"s_cbranch_vccz {oklab}")
        def finish(PB):
            ST = PB + 32; a0 = vT + 2; F = vT + 4
            e(f"v_max3_f32 v{a0}, v{ST}, v{ST+2}, v{ST+4}"); e(f"v_max_f32 v{a0}, v{a0}, v{ST+6}")
            for w in range(4): e(f"v_sub_f32 v{F+w}, v{ST+2*w}, v{a0}")
            for w in range(4): e(f"v_mul_f32 v{F+w}, {sC}, v{F+w}")
            for w in range(4): e(f"v_exp_f32 v{F+w}, v{F+w}")
            e("s_nop 0")
            e(f"v_mul_f32 v{a0}, v{F}, v{ST+1}")
            for w in range(1, 4): e(f"v_fmac_f32 v{a0}, v{F+w}, v{ST+2*w+1}")
            e(f"v_rcp_f32 v{a0}, v{a0}"); e("s_nop 0")
            for w in range(4): e(f"v_mul_f32 v{F+w}, v{F+w}, v{a0}")
            ACC = ST
            for k in range(8): e(f"v_mul_f32 v{ACC+k}, v{F}, v{PB+k}")
            for w in range(1, 4):
                for k in range(8): e(f"v_fmac_f32 v{ACC+k}, v{F+w}, v{PB+8*w+k}")
            for p in range(4): e(f"v_cvt_pk_bf16_f32 v{PB+p}, v{ACC+2*p}, v{ACC+2*p+1}")
            e(f"ds_write_b128 v{hOW}, v[{PB}:{PB+3}]")
        e(f"s_mov_b32 {sSPIN}, {self.spin}")
        if True:
            lab("L_poll1"); issue(0); e("s_waitcnt vmcnt(0)"); check(0, "L_poll1ok"); self.spin_dec("L_poll1")
            lab("L_poll1ok"); finish(0)
        else:
            PA, PBb = 0, 40
            issue(PA); issue(PBb)
            lab("L_poll1")
            e("s_waitcnt vmcnt(12)"); check(PA, "L_poll1okA"); issue(PA)
            e("s_waitcnt vmcnt(12)"); check(PBb, "L_poll1okB"); issue(PBb)
            self.spin_dec("L_poll1")
            lab("L_poll1okA"); finish(PA); e("s_waitcnt vmcnt(0)"); e("s_branch L_poll1done")
            lab("L_poll1okB"); finish(PBb); e("s_waitcnt vmcnt(0)")
            lab("L_poll1done")

    def byrole(self, dst, a, b):
        e = self.e
        e(f"s_and_b32 {dst}, {sJ}, 1"); e(f"s_mul_i32 {dst}, {dst}, {b - a}"); e(f"s_add_u32 {dst}, {dst}, {a}")

    def lds_spin(self, label, addr_v, tmp_v, cmp_op, val, sleep):
        e, lab = self.e, self.lab
        e(f"s_mov_b32 {sSPIN}, {self.spin}")
        lab(label)
        e(f"ds_read_b32 v{tmp_v}, v{addr_v}"); e("s_waitcnt lgkmcnt(0)")
        e(f"v_readfirstlane_b32 {sT5}, v{tmp_v}"); e("s_nop 3")
        e(f"s_cmp_{cmp_op}_u32 {sT5}, {val}"); e(f"s_cbranch_scc1 {label}_ok")
        if sleep: e(f"s_sleep {sleep}")
        self.spin_dec(label)
        lab(label + "_ok")

    def wo_pipeline(self):
        e = self.e
        def issue(ks, R):
            e(f"s_mov_b32 {sT4}, {ks*32*896}"); e(f"s_mov_b32 {sT5}, {ks*32*896 + 4*896}")
            e(f"s_mov_b32 exec_lo, {sWOM}"); e(f"s_mov_b32 exec_hi, {sWOM}")
            for i in range(8):
                so = sT4 if i < 4 else sT5
                o = (i & 3) * 896
                e(f"buffer_load_dwordx4 v[{R+4*i}:{R+4*i+3}], v{hWO}, {SRD_WO}, {so} offen" + (f" offset:{o}" if o else ""))
            e("s_mov_b64 exec, -1")
        def proc(ks, R):
            TMP = 116
            n = 0
            for j in range(8):
                u = j >> 1; sel = sSEL_HI if (j & 1) else sSEL_LO
                for p in range(4):
                    tmp = TMP + (n % 8); n += 1
                    e(f"v_perm_b32 v{tmp}, v{R+4*(2*p+1)+u}, v{R+4*(2*p)+u}, {sel}")
                for p in range(4):
                    tmp = TMP + ((n - 4 + p) % 8)
                    e(f"v_accvgpr_write_b32 a{32*ks+4*j+p}, v{tmp}")
        for i in range(32, 64): e(f"v_mov_b32 v{i}, 0")
        issue(0, 0); issue(1, 32)
        e("s_waitcnt vmcnt(8)"); proc(0, 0); issue(2, 0)
        e("s_waitcnt vmcnt(8)"); proc(1, 32); issue(3, 32)
        e("s_waitcnt vmcnt(8)"); proc(2, 0)
        e("s_waitcnt vmcnt(0)"); proc(3, 32)

    def q32_phase(self):
        e, lab, c = self.e, self.lab, self.c
        c("wq DMA voffset: (l>>1)*8192 + (l&1)*16 + (kvh*512 + 16y)*2 ; x voffset: n*896 + g*16")
        hX = 0
        hA = 32
        hD = 48
        e(f"v_lshrrev_b32 v{vT}, 1, v{vLANE}"); e(f"v_lshlrev_b32 v{vT}, 13, v{vT}")
        e(f"v_and_b32 v{vT+1}, 1, v{vLANE}"); e(f"v_lshl_add_u32 v{vT}, v{vT+1}, 4, v{vT}")
        e(f"s_lshl_b32 {sT0}, {sKVH}, 10"); e(f"s_lshl_b32 {sT1}, {sY}, 5"); e(f"s_add_u32 {sT0}, {sT0}, {sT1}")
        e(f"v_add_u32 v{vDMA}, {sT0}, v{vT}")
        e(f"s_movk_i32 {sT1}, 896"); e(f"v_mul_lo_u32 v{vDMA+1}, v{vN}, {sT1}"); e(f"v_lshl_add_u32 v{vDMA+1}, v{vGQ}, 4, v{vDMA+1}")
        e(f"s_lshl_b32 {sWB}, {sHW}, 12"); e(f"s_add_u32 {sWB}, {sWB}, {WQS}")
        c("H0 zeroes the LDS counters")
        e(f"v_mov_b32 v{vT+2}, {CNT}")
        for i in range(4): e(f"v_mov_b32 v{vT+4+i}, 0")
        e(f"ds_write_b128 v{vT+2}, v[{vT+4}:{vT+7}] offset:16")
        if self.ldyn:
            self.byrole(sT3, self.ploA, self.ploB)
            e(f"v_mov_b32 v{vT+6}, 12"); e(f"v_mov_b32 v{vT+7}, {sT3}")
        e(f"ds_write_b128 v{vT+2}, v[{vT+4}:{vT+7}]")
        e("s_waitcnt lgkmcnt(0)")
        if self.dbgq: self.stamp(2)
        e(f"s_add_u32 s56, s46, {EPOCH_OFF:#x}"); e("s_addc_u32 s57, s47, 0")
        e(f"s_load_dwordx2 s[60:61], s[56:57], 0")
        self.srd(16, 38, 39, 3670016); self.srd(20, 32, 33, 28672)
        if self.qcontig:
            e(f"s_lshl_b32 {sT2}, {sHW}, 20"); e(f"s_lshl_b32 {sT3}, {sHW}, 8")
        else:
            e(f"s_lshl_b32 {sT2}, {sHW}, 18")
            e(f"s_lshl_b32 {sT3}, {sHW}, 6")
        for idx in range(4):
            if idx == 2 and self.qcontig:
                e(f"s_cmp_eq_u32 {sHW}, 3"); e("s_cbranch_scc1 L_hq_issued")
            if idx == 3 and not self.qcontig:
                e(f"s_cmp_ge_u32 {sHW}, 2"); e("s_cbranch_scc1 L_hq_issued")
            e(f"s_add_u32 m0, {sWB}, {idx*1024}")
            e(f"s_add_u32 {sT4}, {sT3}, 14336")
            if not self.nowq: e(f"buffer_load_dwordx4 v{vDMA}, {SRD_WQ}, {sT2} offen lds")
            if not self.nox:
                e(f"buffer_load_dwordx4 v[{hX+8*idx}:{hX+8*idx+3}], v{vDMA+1}, {SRD_X}, {sT3} offen")
                e(f"buffer_load_dwordx4 v[{hX+8*idx+4}:{hX+8*idx+7}], v{vDMA+1}, {SRD_X}, {sT4} offen")
            if idx < 3:
                if self.qcontig:
                    e(f"s_add_u32 {sT2}, {sT2}, 262144"); e(f"s_add_u32 {sT3}, {sT3}, 64")
                else:
                    e(f"s_add_u32 {sT2}, {sT2}, {4*262144}"); e(f"s_add_u32 {sT3}, {sT3}, 256")
        lab("L_hq_issued")
        if self.dbgq: self.stamp(3)
        if not self.nob0: e("s_barrier")
        if self.dbgq: self.stamp(4)
        self.srd(28, 46, 47, WS_BYTES); self.srd(24, 40, 41, 3670016)
        e("s_mov_b32 s34, s42"); e("s_mov_b32 s35, s43")
        c("tr-read address: wb + (8g + (i>>2))*32 + (i&3)*8  (+128 for second half, +1024*idx)")
        e(f"v_lshrrev_b32 v{vT}, 2, v{vN}"); e(f"v_lshl_add_u32 v{vT}, v{vGQ}, 3, v{vT}"); e(f"v_lshlrev_b32 v{vT}, 5, v{vT}")
        e(f"v_and_b32 v{vT+1}, 3, v{vN}"); e(f"v_lshl_add_u32 v{vT}, v{vT+1}, 3, v{vT}"); e(f"v_add_u32 v{vT}, {sWB}, v{vT}")
        for i in range(8): e(f"v_mov_b32 v{hD+i}, 0")
        c("partial write address: RED + hw*2048 + n*64 + g*16 (+1024 for h=1)")
        e(f"s_lshl_b32 {sT0}, {sHW}, 11"); e(f"s_add_u32 {sT0}, {sT0}, {RED}")
        e(f"v_lshlrev_b32 v{vT+2}, 6, v{vN}"); e(f"v_lshl_add_u32 v{vT+2}, v{vGQ}, 4, v{vT+2}"); e(f"v_add_u32 v{vT+2}, {sT0}, v{vT+2}")
        e("s_waitcnt vmcnt(0)")
        self.stamp(1)
        for idx in range(4):
            if idx == 2 and self.qcontig:
                e(f"s_cmp_eq_u32 {sHW}, 3"); e("s_cbranch_scc1 L_hq_mm")
            if idx == 3 and not self.qcontig:
                e(f"s_cmp_ge_u32 {sHW}, 2"); e("s_cbranch_scc1 L_hq_mm")
            e(f"ds_read_b64_tr_b16 v[{hA+4*idx}:{hA+4*idx+1}], v{vT} offset:{idx*1024}")
            e(f"ds_read_b64_tr_b16 v[{hA+4*idx+2}:{hA+4*idx+3}], v{vT} offset:{idx*1024+128}")
            e("s_waitcnt lgkmcnt(0)")
            for h in range(2):
                e(f"v_mfma_f32_16x16x32_bf16 v[{hD+4*h}:{hD+4*h+3}], v[{hA+4*idx}:{hA+4*idx+3}], v[{hX+8*idx+4*h}:{hX+8*idx+4*h+3}], v[{hD+4*h}:{hD+4*h+3}]")
        lab("L_hq_mm")
        self.nop(8)
        e(f"ds_write_b128 v{vT+2}, v[{hD}:{hD+3}]"); e(f"ds_write_b128 v{vT+2}, v[{hD+4}:{hD+7}] offset:1024")
        if self.nob0:
            c("launch tag: E' = E + C (64 bit); TL = low 16 bits << 16, sTAG = bits 16..47")
            e(f"s_add_u32 s60, s60, 0x7f4a7c15"); e(f"s_addc_u32 s61, s61, 0x9e3779b9")
            e(f"s_lshl_b32 {sTL}, s60, 16"); e(f"s_lshr_b32 {sTAG}, s60, 16"); e(f"s_lshl_b32 {sT1}, s61, 16"); e(f"s_or_b32 {sTAG}, {sTAG}, {sT1}")
            e(f"s_lshl_b32 {sT1}, {sHW}, 2"); e(f"s_add_u32 {sT1}, {sT1}, {CNT+32}")
            e(f"v_mov_b32 v{vT+3}, {sT1}"); e(f"v_mov_b32 v{vT+4}, {sTAG}")
            e("s_waitcnt lgkmcnt(0)")
            e(f"ds_write_b32 v{vT+3}, v{vT+4}")
            e(f"v_mov_b32 v{vT+3}, {CNT+32}")
        else:
            e(f"v_mov_b32 v{vT+3}, {CNT}"); e(f"v_mov_b32 v{vT+4}, 1")
            e("s_waitcnt lgkmcnt(0)")
            e("s_mov_b64 exec, 1"); e(f"ds_add_u32 v{vT+3}, v{vT+4}"); e("s_mov_b64 exec, -1")
        c("reduce read address: RED + rho*64 + cp*8, rho = 8hw + (l>>3), cp = l&7")
        e(f"v_lshrrev_b32 v{vT}, 3, v{vLANE}"); e(f"s_lshl_b32 {sT0}, {sHW}, 3"); e(f"v_add_u32 v{vT}, {sT0}, v{vT}")
        e(f"v_and_b32 v{vT+1}, 7, v{vLANE}")
        e(f"v_lshlrev_b32 v{vT+2}, 6, v{vT}"); e(f"v_lshl_add_u32 v{vT+2}, v{vT+1}, 3, v{vT+2}"); e(f"v_add_u32 v{vT+2}, {RED}, v{vT+2}")
        if True:
            if not self.nob0:
                c("launch tag: E' = E + C (64 bit); TL = low 16 bits << 16, sTAG = bits 16..47")
                e(f"s_add_u32 s60, s60, 0x7f4a7c15"); e(f"s_addc_u32 s61, s61, 0x9e3779b9")
                e(f"s_lshl_b32 {sTL}, s60, 16"); e(f"s_lshr_b32 {sTAG}, s60, 16"); e(f"s_lshl_b32 {sT1}, s61, 16"); e(f"s_or_b32 {sTAG}, {sTAG}, {sT1}")
            c("publish address: QM + ((kvh*8 + b)*32 + y)*512 + q*128 + cp*16 ; b = rho>>2, q = rho&3")
            e(f"v_lshrrev_b32 v{vT+4}, 2, v{vT}"); e(f"v_lshlrev_b32 v{vT+4}, 14, v{vT+4}")
            e(f"v_and_b32 v{vT+5}, 3, v{vT}"); e(f"v_lshl_add_u32 v{vT+4}, v{vT+5}, 7, v{vT+4}"); e(f"v_lshl_add_u32 v{vT+4}, v{vT+1}, 4, v{vT+4}")
            e(f"s_lshl_b32 {sT0}, {sKVH}, 17"); e(f"s_lshl_b32 {sT1}, {sY}, 9"); e(f"s_add_u32 {sT0}, {sT0}, {sT1}"); e(f"s_add_u32 {sT0}, {sT0}, {QM_BASE:#x}")
            e(f"s_mov_b32 {sSPIN}, {self.spin}")
            lab("L_hs1")
            if self.nob0:
                e(f"ds_read_b128 v[8:11], v{vT+3}"); e("s_waitcnt lgkmcnt(0)")
                e(f"v_xor_b32 v8, {sTAG}, v8"); e(f"v_xor_b32 v9, {sTAG}, v9"); e(f"v_xor_b32 v10, {sTAG}, v10"); e(f"v_xor_b32 v11, {sTAG}, v11")
                e("v_or3_b32 v8, v8, v9, v10"); e("v_or_b32 v8, v8, v11"); e("s_nop 0")
                e(f"v_readfirstlane_b32 {sT1}, v8"); e("s_nop 3")
                e(f"s_cmp_eq_u32 {sT1}, 0"); e("s_cbranch_scc1 L_hs1ok")
            else:
                e(f"ds_read_b32 v{vT+6}, v{vT+3}"); e("s_waitcnt lgkmcnt(0)")
                e(f"v_readfirstlane_b32 {sT1}, v{vT+6}"); e("s_nop 3")
                e(f"s_cmp_ge_u32 {sT1}, 4"); e("s_cbranch_scc1 L_hs1ok")
            self.spin_dec("L_hs1")
            lab("L_hs1ok")
            for w in range(4): e(f"ds_read_b64 v[{2*w}:{2*w+1}], v{vT+2} offset:{w*2048}")
            e("s_waitcnt lgkmcnt(0)")
            e("v_add_f32 v0, v0, v2"); e("v_add_f32 v1, v1, v3"); e("v_add_f32 v4, v4, v6"); e("v_add_f32 v5, v5, v7")
            e("v_add_f32 v0, v0, v4"); e("v_add_f32 v1, v1, v5")
            e("v_cvt_pk_bf16_f32 v0, v0, v1")
            c("granules {tl|val, tag}")
            e(f"v_and_b32 v4, 0xffff, v0"); e(f"v_lshrrev_b32 v6, 16, v0")
            e(f"v_or_b32 v4, {sTL}, v4"); e(f"v_or_b32 v6, {sTL}, v6"); e(f"v_mov_b32 v5, {sTAG}"); e(f"v_mov_b32 v7, {sTAG}")
            e(f"buffer_store_dwordx4 v[4:7], v{vT+4}, {SRD_WS}, {sT0} offen sc1")

    def build(self):
        e, lab, c = self.e, self.lab, self.c
        L = self.L
        L.append(HDR.rstrip())
        L.append(f"; @launch grid=(256,1,1) block=(512,1,1) lds={LDS_BYTES}")
        L.append('.amdgcn_target "amdgcn-amd-amdhsa--gfx950"')
        L.append(".text"); L.append(f".globl {NAME}_kernel"); L.append(".p2align 8"); L.append(f".type {NAME}_kernel,@function")
        lab(f"{NAME}_kernel")
        e(f"s_cmp_ge_u32 {sWG}, 256"); e("s_cbranch_scc1 L_end")
        e("s_load_dwordx16 s[32:47], s[0:1], 0")
        self.stamp(0)
        if self.dbgspan: e("s_memrealtime s[100:101]")
        e(f"v_lshrrev_b32 v{vTMPA}, 6, v0")
        e(f"v_and_b32 v{vLANE}, 63, v0")
        e(f"s_and_b32 {sT0}, {sWG}, 7"); e(f"s_lshr_b32 {sT1}, {sWG}, 3")
        e(f"v_readfirstlane_b32 {sW}, v{vTMPA}")
        if self.pairmap and self.xmap == 3:
            c("pairs on XCDs x, x^3: kvh = 4*(x>>2) + 2*gray(x&3) + (y&1)")
            e(f"s_lshr_b32 {sT2}, {sT0}, 1"); e(f"s_xor_b32 {sT2}, {sT2}, {sT0}"); e(f"s_and_b32 {sT2}, {sT2}, 1"); e(f"s_lshl_b32 {sT2}, {sT2}, 1")
            e(f"s_and_b32 {sKVH}, {sT0}, 4"); e(f"s_add_u32 {sKVH}, {sKVH}, {sT2}"); e(f"s_and_b32 {sT2}, {sT1}, 1"); e(f"s_add_u32 {sKVH}, {sKVH}, {sT2}")
            e(f"s_and_b32 {sJ}, {sT0}, 1"); e(f"s_and_b32 {sT2}, {sT1}, 2"); e(f"s_add_u32 {sJ}, {sJ}, {sT2}")
            e(f"s_lshr_b32 {sB}, {sT1}, 2")
        elif self.pairmap and self.xmap == 9:
            c("pairs on XCDs e, e^m with m = 1 + 2*(y&3): every even XCD is paired with every odd one")
            e(f"s_and_b32 {sT2}, {sT1}, 3"); e(f"s_lshl_b32 {sT2}, {sT2}, 1"); e(f"s_add_u32 {sT2}, {sT2}, 1")
            e(f"s_and_b32 {sT3}, {sT0}, 1"); e(f"s_mul_i32 {sT2}, {sT2}, {sT3}"); e(f"s_xor_b32 {sT2}, {sT2}, {sT0}")
            e(f"s_and_b32 {sKVH}, {sT2}, 6"); e(f"s_and_b32 {sT2}, {sT1}, 1"); e(f"s_add_u32 {sKVH}, {sKVH}, {sT2}")
            e(f"s_and_b32 {sJ}, {sT0}, 1"); e(f"s_and_b32 {sT2}, {sT1}, 2"); e(f"s_add_u32 {sJ}, {sJ}, {sT2}")
            e(f"s_lshr_b32 {sB}, {sT1}, 2")
        elif self.pairmap and self.xmap == 5:
            c("pairs on XCDs x, x^5 : (0,5),(1,4),(2,7),(3,6): pair id = (x ^ (x&1)*5) >> 1 ... canonical even member e = x if even else x^5; kvh = (e & 6) + (y&1)")
            e(f"s_and_b32 {sT2}, {sT0}, 1"); e(f"s_mul_i32 {sT2}, {sT2}, 5"); e(f"s_xor_b32 {sT2}, {sT2}, {sT0}")
            e(f"s_and_b32 {sKVH}, {sT2}, 6"); e(f"s_and_b32 {sT2}, {sT1}, 1"); e(f"s_add_u32 {sKVH}, {sKVH}, {sT2}")
            e(f"s_and_b32 {sJ}, {sT0}, 1"); e(f"s_and_b32 {sT2}, {sT1}, 2"); e(f"s_add_u32 {sJ}, {sJ}, {sT2}")
            e(f"s_lshr_b32 {sB}, {sT1}, 2")
        elif self.pairmap:
            e(f"s_and_b32 {sKVH}, {sT0}, 6"); e(f"s_and_b32 {sT2}, {sT1}, 1"); e(f"s_add_u32 {sKVH}, {sKVH}, {sT2}")
            e(f"s_and_b32 {sJ}, {sT0}, 1"); e(f"s_and_b32 {sT2}, {sT1}, 2"); e(f"s_add_u32 {sJ}, {sJ}, {sT2}")
            e(f"s_lshr_b32 {sB}, {sT1}, 2")
        else:
            e(f"s_mov_b32 {sKVH}, {sT0}"); e(f"s_and_b32 {sJ}, {sT1}, 3"); e(f"s_lshr_b32 {sB}, {sT1}, 2")
        e(f"s_lshl_b32 {sY}, {sB}, 2"); e(f"s_add_u32 {sY}, {sY}, {sJ}")
        e(f"s_lshl_b32 {sLID}, {sY}, 3"); e(f"s_add_u32 {sLID}, {sLID}, {sKVH}")
        e(f"s_lshl_b32 {sG}, {sB}, 3"); e(f"s_add_u32 {sG}, {sG}, {sKVH}")
        e(f"v_and_b32 v{vN}, 15, v{vLANE}"); e(f"v_lshrrev_b32 v{vGQ}, 4, v{vLANE}")
        e(f"s_and_b32 {sHW}, {sW}, 3")
        e(f"s_lshl_b32 {sR}, {sKVH}, 2"); e(f"s_add_u32 {sR}, {sR}, {sJ}")
        e(f"s_cmp_ge_u32 {sW}, 4"); e("s_cbranch_scc1 L_helper")

        c("DMA voffsets")
        e(f"v_lshrrev_b32 v{vT}, 5, v{vLANE}"); e(f"v_and_b32 v{vT+1}, 31, v{vLANE}")
        e(f"v_lshlrev_b32 v{vT+2}, 9, v{vT}"); e(f"v_lshlrev_b32 v{vT+3}, 1, v{vT}")
        for i in range(4):
            e(f"v_xor_b32 v{vT+4}, {4*i}, v{vT+3}"); e(f"v_xor_b32 v{vT+4}, v{vT+4}, v{vT+1}")
            e(f"v_lshl_add_u32 v{vDMA+i}, v{vT+4}, 4, v{vT+2}")
        if self.bal:
            e(f"s_lshl_b32 {sKOFF}, {sG}, 22"); e(f"s_lshr_b32 {sT0}, {sJ}, 1"); e(f"s_lshl_b32 {sT0}, {sT0}, 21"); e(f"s_add_u32 {sKOFF}, {sKOFF}, {sT0}")
            e(f"s_and_b32 {sT1}, {sJ}, 1"); e(f"s_mul_i32 {sT0}, {sT1}, {63*32768}"); e(f"s_add_u32 {sKOFF}, {sKOFF}, {sT0}")
            e(f"s_mul_i32 {sT1}, {sT1}, -65536"); e(f"s_add_u32 {sSTEP}, {sT1}, 32768")
            e(f"s_mov_b32 {sN}, 100000")
        else:
            e(f"s_lshl_b32 {sKOFF}, {sG}, 22"); e(f"s_lshl_b32 {sT0}, {sJ}, 20"); e(f"s_add_u32 {sKOFF}, {sKOFF}, {sT0}")
            e(f"s_mov_b32 {sSTEP}, 32768") if not self.dyn else None
        e(f"s_lshl_b32 {sT0}, {sW}, 12"); e(f"s_add_u32 {sKOFF}, {sKOFF}, {sT0}")
        e(f"s_lshl_b32 {sWB}, {sW}, 15")
        e("s_waitcnt lgkmcnt(0)")
        self.srd(8, 34, 35, 0x10000000); self.srd(12, 36, 37, 0x10000000)
        if self.dbgs: self.stamp(4)
        for hn in range(self.pre0): self.dma_half_static(hn)
        if self.dbgs: self.stamp(5)
        if not self.nob0: e("s_barrier")
        if self.dbgs: self.stamp(6)
        first = self.quiet if self.quiet else self.pace
        if self.q8v:
            assert self.pre0 == 2
            self.dma_half_static(4); self.dma_half_static(5)
        else:
            for hn in range(self.pre0, first): self.dma_half_static(hn)
        self.srd(28, 46, 47, WS_BYTES)
        c("K/V LDS read addresses")
        e(f"v_and_b32 v{vT}, 7, v{vN}"); e(f"v_lshlrev_b32 v{vT}, 1, v{vT}")
        e(f"v_lshlrev_b32 v{vT+1}, 9, v{vN}"); e(f"v_add_u32 v{vT+1}, {sWB}, v{vT+1}")
        for u in range(4):
            e(f"v_add_u32 v{vT+2}, {4*u}, v{vGQ}"); e(f"v_xor_b32 v{vT+2}, v{vT+2}, v{vT}"); e(f"v_lshl_add_u32 v{vKA+u}, v{vT+2}, 4, v{vT+1}")
        e(f"v_lshrrev_b32 v{vT}, 2, v{vN}"); e(f"v_lshl_add_u32 v{vT}, v{vGQ}, 2, v{vT}")
        e(f"v_and_b32 v{vT+1}, 7, v{vT}"); e(f"v_lshlrev_b32 v{vT+2}, 9, v{vT}")
        e(f"v_and_b32 v{vT+3}, 3, v{vN}"); e(f"v_lshl_add_u32 v{vT+2}, v{vT+3}, 3, v{vT+2}")
        e(f"s_add_u32 {sT0}, {sWB}, 16384"); e(f"v_add_u32 v{vT+2}, {sT0}, v{vT+2}")
        for u in range(8):
            e(f"v_xor_b32 v{vT+3}, {u}, v{vT+1}"); e(f"v_lshl_add_u32 v{vVA+u}, v{vT+3}, 5, v{vT+2}")
        c("init O, m, l, consts")
        for i in range(64): e(f"v_mov_b32 v{vO+i}, 0")
        e(f"v_mov_b32 v{vM}, 0xff7fffff"); e(f"v_mov_b32 v{vL}, 0")
        e(f"s_mov_b32 {sC}, {fbits(C_LOG2E_16):#x}"); e(f"s_mov_b32 {sNC}, {fbits(-C_LOG2E_16):#x}")
        e(f"v_lshlrev_b32 v{vLIN16}, 4, v{vLANE}")
        e(f"s_lshl_b32 {sT0}, {sG}, 2"); e(f"s_add_u32 {sT0}, {sT0}, {sW}"); e(f"s_lshl_b32 {sT0}, {sT0}, 2"); e(f"s_add_u32 {sT0}, {sT0}, {sJ}")
        e(f"s_mul_i32 {sM1OUT}, {sT0}, {M1_SLICE}")
        if self.dyn:
            e(f"s_mov_b32 {sN}, 100000"); e(f"s_lshl_b32 {sGB}, {sG}, 22")
            e(f"s_lshl_b32 {sGC}, {sG}, 7"); e(f"s_add_u32 {sGC}, {sGC}, {GC_BASE:#x}")
            e(f"s_lshl_b32 {sSTAT}, {sJ}, 2"); e(f"s_add_u32 {sSTAT}, {sSTAT}, {sW}"); e(f"s_add_u32 {sSTAT}, {sSTAT}, 48")
            e(f"v_mov_b32 v{vZERO}, 0")
        if self.ldyn:
            e(f"s_lshl_b32 {sGC}, {sG}, 22"); e(f"s_lshr_b32 {sT0}, {sJ}, 1"); e(f"s_lshl_b32 {sT0}, {sT0}, 21"); e(f"s_add_u32 {sGC}, {sGC}, {sT0}")
            e(f"s_and_b32 {sSTAT}, {sJ}, 1"); e(f"s_mul_i32 {sSTAT}, {sSTAT}, 255")
            e(f"v_mov_b32 v{vA+1}, 1"); e(f"v_mov_b32 v{vZERO}, {CNT+8}")
            self.byrole(sPLO, self.ploA, self.ploB)
        c("Q frag read address")
        e(f"s_movk_i32 {sT1}, {QROW}")
        e(f"v_and_b32 v{vT+5}, 7, v{vN}"); e(f"v_mul_lo_u32 v{vT+5}, v{vT+5}, {sT1}"); e(f"v_lshl_add_u32 v{vT+5}, v{vGQ}, 4, v{vT+5}"); e(f"v_add_u32 v{vT+5}, {QB}, v{vT+5}")
        if self.q8v:
            c("q8v prologue: K0 K1 [K0->regs] K2 | staging free | V0 V1 [V0->regs] V2")
            e("s_waitcnt vmcnt(8)")
            self.read_k()
            e(f"s_add_u32 {sT3}, {sKOFF}, {sSTEP}"); e(f"s_add_u32 {sT3}, {sT3}, {sSTEP}")
            e(f"s_mov_b32 {sKSLOT}, {sWB}"); e(f"s_add_u32 {sVSLOT}, {sWB}, 16384")
            e("s_waitcnt lgkmcnt(0)")
            self.dma_tile(SRD_K, sT3, sKSLOT)
            e(f"s_xor_b32 {sKSLOT}, {sKSLOT}, 8192")
            for u in range(4): e(f"v_xor_b32 v{vKA+u}, 8192, v{vKA+u}")
            e(f"v_mov_b32 v{vT+6}, {CNT+20}")
            self.lds_spin("L_sfree", vT+6, vT+7, "ge", 4, 2)
            for hn in (2, 3, 6, 7): self.dma_half_static(hn)
            e("s_waitcnt vmcnt(8)")
            self.read_v()
            e(f"s_add_u32 {sT3}, {sKOFF}, {sSTEP}"); e(f"s_add_u32 {sT3}, {sT3}, {sSTEP}")
            e("s_waitcnt lgkmcnt(0)")
            self.dma_tile(SRD_V, sT3, sVSLOT)
            e(f"s_xor_b32 {sVSLOT}, {sVSLOT}, 8192")
            for u in range(8): e(f"v_xor_b32 v{vVA+u}, 8192, v{vVA+u}")
            e(f"s_add_u32 {sKOFF}, {sT3}, {sSTEP}"); e(f"s_mov_b32 {sVOFF}, {sKOFF}")
        else:
            c("paced fill of halves: K0a K0b V0a V0b K1a K1b V1a V1b, then K2 (slot A after reading K0)")
            P = self.pace
            if self.quiet:
                e("s_barrier")
                for hn in range(max(self.quiet, self.pre0), P): self.dma_half_static(hn)
            if self.q8:
                assert P <= 4 and not self.quiet
                for hn in range(max(P, self.pre0), 4):
                    e(f"s_waitcnt vmcnt({4*(P-1)})")
                    self.dma_half_static(hn)
                e(f"v_mov_b32 v{vT+6}, {CNT+20}")
                self.lds_spin("L_sfree", vT+6, vT+7, "ge", 4, 2)
                for hn in range(4, 8):
                    e(f"s_waitcnt vmcnt({4*(P-1)})")
                    self.dma_half_static(hn)
            else:
              for hn in range(max(P, self.quiet, self.pre0), 8):
                e(f"s_waitcnt vmcnt({4*(P-1)})")
                self.dma_half_static(hn)
                if hn == max(P, 2) + 1 - (0 if P <= 2 else 0) and False: pass
            c("K0 landed")
            e("s_waitcnt vmcnt(24)")
            self.read_k()
            if self.dyn:
                e(f"s_add_u32 {sKOFF}, {sKOFF}, 65536")
            else:
                e(f"s_add_u32 {sKOFF}, {sKOFF}, {sSTEP}"); e(f"s_add_u32 {sKOFF}, {sKOFF}, {sSTEP}")
            e(f"s_mov_b32 {sVOFF}, {sKOFF}")
            e(f"s_mov_b32 {sKSLOT}, {sWB}"); e(f"s_add_u32 {sVSLOT}, {sWB}, 16384")
            e(f"s_add_u32 {sT4}, {sKOFF}, 16384")
            e(f"s_waitcnt vmcnt({4*(P-1)}) lgkmcnt(0)")
            e(f"s_mov_b32 m0, {sKSLOT}"); e("s_nop 0")
            self.dma_half(SRD_K, sKOFF)
            e(f"s_waitcnt vmcnt({4*(P-1)})")
            e(f"s_add_u32 m0, {sKSLOT}, 4096"); e("s_nop 0")
            self.dma_half(SRD_K, sT4)
            e(f"s_add_u32 {sKOFF}, {sKOFF}, {32768 if self.dyn else sSTEP}"); e(f"s_xor_b32 {sKSLOT}, {sKSLOT}, 8192")
            for u in range(4): e(f"v_xor_b32 v{vKA+u}, 8192, v{vKA+u}")
            if self.v0pre:
                c("V0 -> regs, refill V2")
                e("s_waitcnt vmcnt(24)")
                self.read_v()
                e(f"s_add_u32 {sT4}, {sVOFF}, 16384")
                e(f"s_waitcnt vmcnt({4*(P-1)}) lgkmcnt(0)")
                e(f"s_mov_b32 m0, {sVSLOT}"); e("s_nop 0")
                self.dma_half(SRD_V, sVOFF)
                e(f"s_waitcnt vmcnt({4*(P-1)})")
                e(f"s_add_u32 m0, {sVSLOT}, 4096"); e("s_nop 0")
                self.dma_half(SRD_V, sT4)
                e(f"s_add_u32 {sVOFF}, {sVOFF}, {32768 if self.dyn else sSTEP}"); e(f"s_xor_b32 {sVSLOT}, {sVSLOT}, 8192")
                for u in range(8): e(f"v_xor_b32 v{vVA+u}, 8192, v{vVA+u}")
        if not self.rate: self.stamp(1)
        e("s_barrier")
        for s in range(8):
            e(f"ds_read_b128 a[{AQ+4*s}:{AQ+4*s+3}], v{vT+5}" + (f" offset:{s*64}" if s else ""))
        e(f"s_mov_b32 {sT}, 0")
        e("s_waitcnt lgkmcnt(0)")
        self.stamp(2)

        if self.order2:
            self.loop2()
        else:
            self.loop1()
        lab("L_tail")
        t0, t1, t2 = vT, vT+1, vT+2
        self.stamp(3)
        e(f"v_mov_b32 v{t1}, v{vL}"); e("s_nop 1")
        e(f"v_permlane32_swap_b32 v{t1}, v{vL}"); e(f"v_add_f32 v{vL}, v{vL}, v{t1}")
        e(f"v_mov_b32 v{t1}, v{vL}"); e("s_nop 1")
        e(f"v_permlane16_swap_b32 v{t1}, v{vL}"); e(f"v_add_f32 v{vL}, v{vL}, v{t1}")
        e(f"s_movk_i32 {sT1}, {OWROW}"); e(f"v_mul_lo_u32 v{vODUMP}, v{vN}, {sT1}")
        e(f"v_lshl_add_u32 v{vODUMP}, v{vGQ}, 4, v{vODUMP}"); e(f"v_add_u32 v{vODUMP}, {sWB}, v{vODUMP}")
        e(f"s_lshl_b32 {sT0}, {sW}, 6"); e(f"s_add_u32 {sT0}, {sT0}, {STB}")
        e(f"v_lshlrev_b32 v{t2}, 3, v{vN}"); e(f"v_add_u32 v{t2}, {sT0}, v{t2}")
        e("s_mov_b32 exec_lo, 0x00ff00ff"); e("s_mov_b32 exec_hi, 0x00ff00ff")
        for t in range(16):
            e(f"ds_write_b128 v{vODUMP}, v[{vO+4*t}:{vO+4*t+3}]" + (f" offset:{t*64}" if t else ""))
        e("s_mov_b64 exec, 0xff")
        e(f"ds_write_b64 v{t2}, v[{vM}:{vM+1}]")
        e("s_mov_b64 exec, -1")
        e(f"v_and_b32 v{vT}, 3, v{vLANE}"); e(f"v_lshrrev_b32 v{vT+1}, 2, v{vLANE}")
        e(f"s_lshr_b32 {sT0}, {sW}, 1"); e(f"s_lshl_b32 {sT0}, {sT0}, 2")
        e(f"v_add_u32 v{vT}, {sT0}, v{vT}")
        e(f"v_mul_lo_u32 v{vT2A}, v{vT}, {sT1}"); e(f"v_lshl_add_u32 v{vT2A}, v{vT+1}, 5, v{vT2A}")
        e(f"s_and_b32 {sT0}, {sW}, 1"); e(f"s_lshl_b32 {sT0}, {sT0}, 9"); e(f"v_add_u32 v{vT2A}, {sT0}, v{vT2A}")
        e(f"v_add_u32 v{vT2B}, 65536, v{vT2A}")
        e(f"v_lshlrev_b32 v{vT+2}, 3, v{vT}"); e(f"v_add_u32 v{vT+2}, {STB}, v{vT+2}")
        if self.wolate:
            e("s_waitcnt lgkmcnt(0)")
            e(f"v_mov_b32 v{vT+3}, {CNT+24}"); e(f"v_mov_b32 v{vT+4}, 1"); e("s_mov_b64 exec, 1"); e(f"ds_add_u32 v{vT+3}, v{vT+4}"); e("s_mov_b64 exec, -1")
            self.lds_spin("L_sb2", vT+3, vT+4, "ge", 4, 0)
        else:
            e("s_waitcnt lgkmcnt(0)"); e("s_barrier")
        if not self.rate and not self.dbgs: self.stamp(4)
        for w in range(4): e(f"ds_read_b64 v[{2*w}:{2*w+1}], v{vT+2} offset:{w*64}")
        for w in range(4):
            for u in range(2):
                a = vT2A if w < 2 else vT2B
                o = (w & 1) * 32768 + u * 16
                e(f"ds_read_b128 v[{8+8*w+4*u}:{8+8*w+4*u+3}], v{a}" + (f" offset:{o}" if o else ""))
        e("s_waitcnt lgkmcnt(8)")
        e("v_max3_f32 v40, v0, v2, v4"); e("v_max_f32 v40, v40, v6")
        for w in range(4): e(f"v_sub_f32 v{44+w}, v{2*w}, v40")
        for w in range(4): e(f"v_mul_f32 v{44+w}, {sC}, v{44+w}")
        for w in range(4): e(f"v_exp_f32 v{44+w}, v{44+w}")
        e("s_nop 0")
        e("v_mul_f32 v41, v44, v1"); e("v_fmac_f32 v41, v45, v3"); e("v_fmac_f32 v41, v46, v5"); e("v_fmac_f32 v41, v47, v7")
        e("s_waitcnt lgkmcnt(0)")
        for k in range(8): e(f"v_mul_f32 v{48+k}, v44, v{8+k}")
        for w in range(1, 4):
            for k in range(8): e(f"v_fmac_f32 v{48+k}, v{44+w}, v{8+8*w+k}")
        e(f"buffer_store_dwordx4 v[48:51], v{vLIN16}, {SRD_WS}, {sM1OUT} offen sc1")
        e(f"buffer_store_dwordx4 v[52:55], v{vLIN16}, {SRD_WS}, {sM1OUT} offen offset:1024 sc1")
        e(f"v_lshlrev_b32 v{vT}, 3, v{vLANE}")
        e("s_mov_b64 exec, 0xf")
        e(f"buffer_store_dwordx2 v[40:41], v{vT}, {SRD_WS}, {sM1OUT} offen offset:2048 sc1")
        e("s_mov_b64 exec, -1")
        if not self.rate and not self.dbgs: self.stamp(5)
        if self.wolate:
            e(f"s_cmp_lg_u32 {sW}, 0"); e("s_cbranch_scc1 L_fin")
            c("S0: hop 1 (T3)")
            e(f"s_lshl_b32 {sT0}, {sG}, 2"); e(f"s_add_u32 {sT0}, {sT0}, {sJ}"); e(f"s_mul_i32 {sT0}, {sT0}, {4*M1_SLICE}")
            e(f"s_add_u32 {sT1}, {sT0}, {M1_SLICE}"); e(f"s_add_u32 {sT2}, {sT0}, {2*M1_SLICE}"); e(f"s_add_u32 {sT3}, {sT0}, {3*M1_SLICE}")
            e(f"v_and_b32 v112, 3, v{vLANE}"); e(f"v_lshlrev_b32 v112, 3, v112")
            e(f"v_and_b32 v113, 3, v{vLANE}"); e(f"s_movk_i32 {sT4}, {OROW}"); e(f"v_mul_lo_u32 v113, v113, {sT4}")
            e(f"v_lshrrev_b32 v{vT}, 2, v{vLANE}"); e(f"v_lshl_add_u32 v113, v{vT}, 4, v113"); e(f"v_add_u32 v113, {OB}, v113")
            e(f"v_mov_b32 v{vT+1}, {CNT+28}")
            self.lds_spin("L_scf", vT+1, vT+2, "ge", 1, 4)
            self.t3(112, 113, (sT0, sT1, sT2, sT3), vLIN16)
            e("s_waitcnt lgkmcnt(0)"); e("s_barrier")
        e("s_branch L_fin")

        lab("L_helper")
        if self.hexit:
            e("s_waitcnt lgkmcnt(0)"); self.srd(28, 46, 47, WS_BYTES)
            e("s_barrier"); e("s_barrier"); e("s_barrier")
            if self.quiet: e("s_barrier")
            e("s_branch L_fin")
        if self.hprio: e(f"s_setprio {self.hprio}")
        if self.q8:
            c("Q phase (q8): 8 rows (batch pair) x 64 columns per WG, staged through the not yet used ring slots")
            FIRST = [0, 4, 8, 11]; NST = [4, 4, 3, 3]
            e(f"v_lshrrev_b32 v{vT}, 3, v{vLANE}"); e(f"v_lshlrev_b32 v{vT}, 13, v{vT}")
            e(f"v_and_b32 v{vT+1}, 7, v{vLANE}"); e(f"v_lshl_add_u32 v{vT}, v{vT+1}, 4, v{vT}")
            e(f"s_and_b32 {sT2}, {sY}, 7")
            e(f"s_lshl_b32 {sT0}, {sKVH}, 10"); e(f"s_lshl_b32 {sT1}, {sT2}, 7"); e(f"s_add_u32 {sT0}, {sT0}, {sT1}")
            e(f"v_add_u32 v{vDMA}, {sT0}, v{vT}")
            e(f"v_lshlrev_b32 v{vDMA+1}, 4, v{vLANE}")
            c("H0 zeroes the LDS counters")
            e(f"v_mov_b32 v{vT+2}, {CNT}")
            for i in range(4): e(f"v_mov_b32 v{vT+4+i}, 0")
            e(f"ds_write_b128 v{vT+2}, v[{vT+4}:{vT+7}] offset:16")
            if self.ldyn:
                self.byrole(sT3, self.ploA, self.ploB)
                e(f"v_mov_b32 v{vT+6}, 12"); e(f"v_mov_b32 v{vT+7}, {sT3}")
            e(f"ds_write_b128 v{vT+2}, v[{vT+4}:{vT+7}]")
            c("first step: 4*hw (hw<3) or 11 ; soffset = step*262144")
            e(f"s_lshl_b32 {sT2}, {sHW}, 2"); e(f"s_cmp_eq_u32 {sHW}, 3"); e(f"s_cselect_b32 {sT2}, 11, {sT2}"); e(f"s_lshl_b32 {sT2}, {sT2}, 18")
            e(f"s_lshl_b32 {sWB}, {sHW}, 15")
            e(f"s_lshr_b32 {sT3}, {sB}, 1"); e(f"s_mul_i32 {sT3}, {sT3}, 7168"); e(f"s_lshl_b32 {sT4}, {sHW}, 11"); e(f"s_add_u32 {sT3}, {sT3}, {sT4}")
            e(f"s_add_u32 {sT4}, {sT4}, {WQS}")
            e("s_waitcnt lgkmcnt(0)")
            if self.dbgq: self.stamp(2)
            e(f"s_add_u32 s56, s46, {EPOCH_OFF:#x}"); e("s_addc_u32 s57, s47, 0")
            e(f"s_load_dwordx2 s[60:61], s[56:57], 0")
            self.srd(16, 38, 39, 3670016); self.srd(20, 32, 33, 28672)
            e(f"s_mov_b32 m0, {sT4}"); e("s_nop 0")
            e(f"buffer_load_dwordx4 v{vDMA+1}, {SRD_X}, {sT3} offen lds")
            e(f"buffer_load_dwordx4 v{vDMA+1}, {SRD_X}, {sT3} offen offset:1024 lds")
            def wq_issue(endlab):
                for ls in range(4):
                    if ls == 3:
                        e(f"s_cmp_ge_u32 {sHW}, 2"); e(f"s_cbranch_scc1 {endlab}")
                    slot = (16384 + ls * 4096) if self.q8v else (8192 + ls * 4096 if ls < 2 else 24576 + (ls - 2) * 4096)
                    for i in range(4):
                        e(f"s_add_u32 m0, {sWB}, {slot + i*1024}")
                        if ls or i: e(f"s_add_u32 {sT2}, {sT2}, 65536")
                        else: e("s_nop 0")
                        e(f"buffer_load_dwordx4 v{vDMA}, {SRD_WQ}, {sT2} offen lds")
                lab(endlab)
            if self.qrot:
                c("the 4 WGs (batch pairs) that share these wq columns fetch a different part first; the rest then hits in L2")
                e(f"s_lshr_b32 {sT5}, {sB}, 1"); e(f"s_cmp_lg_u32 {sHW}, {sT5}"); e("s_cbranch_scc1 L_hq_late")
                wq_issue("L_hq_issued")
                e("s_barrier")
                e("s_waitcnt vmcnt(0)")
                e(f"v_mov_b32 v{vT+3}, {CNT+24}"); e(f"v_mov_b32 v{vT+4}, 1"); e(f"ds_write_b32 v{vT+3}, v{vT+4}")
                e("s_branch L_hq_go")
                lab("L_hq_late")
                e("s_barrier")
                e(f"v_mov_b32 v{vT+3}, {CNT+24}")
                self.lds_spin("L_hqw", vT+3, vT+4, "ge", 1, 1)
                wq_issue("L_hq_issued2")
                lab("L_hq_go")
            else:
                wq_issue("L_hq_issued")
                if self.dbgq: self.stamp(3)
                e("s_barrier")
            if self.dbgq: self.stamp(4)
            self.srd(28, 46, 47, WS_BYTES); self.srd(24, 40, 41, 3670016)
            e("s_mov_b32 s34, s42"); e("s_mov_b32 s35, s43")
            c("A tr-read base: (8g + (i>>2))*128 + (i&3)*8 + hw*32 ; B read base: WQS + (n&7)*896 + g*16")
            vTR0, vTR1, vXB = vT, vT+1, vT+2
            e(f"v_lshrrev_b32 v{vTR0}, 2, v{vN}"); e(f"v_lshl_add_u32 v{vTR0}, v{vGQ}, 3, v{vTR0}"); e(f"v_lshlrev_b32 v{vTR0}, 7, v{vTR0}")
            e(f"v_and_b32 v{vTR1}, 3, v{vN}"); e(f"v_lshl_add_u32 v{vTR0}, v{vTR1}, 3, v{vTR0}")
            e(f"s_lshl_b32 {sT0}, {sHW}, 5"); e(f"v_add_u32 v{vTR0}, {sT0}, v{vTR0}"); e(f"v_add_u32 v{vTR1}, 65536, v{vTR0}")
            e(f"v_and_b32 v{vXB}, 7, v{vN}"); e(f"s_movk_i32 {sT1}, 896"); e(f"v_mul_lo_u32 v{vXB}, v{vXB}, {sT1}"); e(f"v_lshl_add_u32 v{vXB}, v{vGQ}, 4, v{vXB}"); e(f"v_add_u32 v{vXB}, {WQS}, v{vXB}")
            hD = 48
            for i in range(4): e(f"v_mov_b32 v{hD+i}, 0")
            e(f"v_mov_b32 v{vT+3}, {CNT}"); e(f"v_mov_b32 v{vT+4}, 1")
            e("s_waitcnt vmcnt(0)")
            self.stamp(1)
            e("s_mov_b64 exec, 1"); e(f"ds_add_u32 v{vT+3}, v{vT+4}"); e("s_mov_b64 exec, -1")
            c("publish address while waiting: QM + ((kvh*8 + b')*32 + 4*y8 + hw)*512 + q*128 + (2g + (n>>3))*16 ; b' = (b&~1) + ((n&7)>>2), q = n&3")
            e(f"v_bfe_u32 v{vT+5}, v{vN}, 2, 1"); e(f"v_lshlrev_b32 v{vT+5}, 14, v{vT+5}")
            e(f"v_and_b32 v{vT+6}, 3, v{vN}"); e(f"v_lshl_add_u32 v{vT+5}, v{vT+6}, 7, v{vT+5}")
            e(f"v_lshrrev_b32 v{vT+6}, 3, v{vN}"); e(f"v_lshl_add_u32 v{vT+6}, v{vGQ}, 1, v{vT+6}"); e(f"v_lshl_add_u32 v{vT+5}, v{vT+6}, 4, v{vT+5}")
            e(f"s_lshl_b32 {sT0}, {sKVH}, 3"); e(f"s_and_b32 {sT1}, {sB}, 6"); e(f"s_add_u32 {sT0}, {sT0}, {sT1}"); e(f"s_lshl_b32 {sT0}, {sT0}, 14")
            e(f"s_and_b32 {sT1}, {sY}, 7"); e(f"s_lshl_b32 {sT1}, {sT1}, 2"); e(f"s_add_u32 {sT1}, {sT1}, {sHW}"); e(f"s_lshl_b32 {sT1}, {sT1}, 9")
            e(f"s_add_u32 {sT0}, {sT0}, {sT1}"); e(f"s_add_u32 {sT0}, {sT0}, {QM_BASE:#x}")
            e(f"s_mov_b32 {sSPIN}, {self.spin}")
            lab("L_hs1")
            e(f"ds_read_b32 v{vT+6}, v{vT+3}"); e("s_waitcnt lgkmcnt(0)")
            e(f"v_readfirstlane_b32 {sT1}, v{vT+6}"); e("s_nop 3")
            e(f"s_cmp_ge_u32 {sT1}, 4"); e("s_cbranch_scc1 L_hs1ok")
            self.spin_dec("L_hs1")
            lab("L_hs1ok")
            def rd(sg):
                p = max(k for k in range(4) if FIRST[k] <= sg); ls = sg - FIRST[p]
                slot = (16384 + ls * 4096) if self.q8v else (8192 + ls * 4096 if ls < 2 else 24576 + (ls - 2) * 4096)
                base = (p & 1) * 32768 + slot; ar = vTR0 if p < 2 else vTR1
                R = 8 * (sg % 5)
                e(f"ds_read_b64_tr_b16 v[{R}:{R+1}], v{ar} offset:{base}")
                e(f"ds_read_b64_tr_b16 v[{R+2}:{R+3}], v{ar} offset:{base+512}")
                e(f"ds_read_b128 v[{R+4}:{R+7}], v{vXB}" + (f" offset:{sg*64}" if sg else ""))
            for sg in range(4): rd(sg)
            for sg in range(14):
                if sg + 4 < 14: rd(sg + 4)
                outstanding = min(4, 13 - sg)
                e(f"s_waitcnt lgkmcnt({3*outstanding})")
                R = 8 * (sg % 5)
                e(f"v_mfma_f32_16x16x32_bf16 v[{hD}:{hD+3}], v[{R}:{R+3}], v[{R+4}:{R+7}], v[{hD}:{hD+3}]")
            c("staging is free now: tell the streamers")
            e(f"v_mov_b32 v{vT+3}, {CNT+20}"); e(f"v_mov_b32 v{vT+4}, 1")
            e("s_mov_b64 exec, 1"); e(f"ds_add_u32 v{vT+3}, v{vT+4}"); e("s_mov_b64 exec, -1")
            c("launch tag: E' = E + C (64 bit); TL = low 16 bits << 16, sTAG = bits 16..47")
            e(f"s_add_u32 s60, s60, 0x7f4a7c15"); e(f"s_addc_u32 s61, s61, 0x9e3779b9")
            e(f"s_lshl_b32 {sTL}, s60, 16"); e(f"s_lshr_b32 {sTAG}, s60, 16"); e(f"s_lshl_b32 {sT1}, s61, 16"); e(f"s_or_b32 {sTAG}, {sTAG}, {sT1}")
            e(f"v_cmp_gt_u32 vcc, 8, v{vN}")
            self.nop(2)
            e(f"v_cndmask_b32 v0, v{hD+2}, v{hD}, vcc"); e(f"v_cndmask_b32 v1, v{hD+3}, v{hD+1}, vcc")
            e("v_cvt_pk_bf16_f32 v0, v0, v1")
            e(f"v_and_b32 v4, 0xffff, v0"); e(f"v_lshrrev_b32 v6, 16, v0")
            e(f"v_or_b32 v4, {sTL}, v4"); e(f"v_or_b32 v6, {sTL}, v6"); e(f"v_mov_b32 v5, {sTAG}"); e(f"v_mov_b32 v7, {sTAG}")
            e(f"buffer_store_dwordx4 v[4:7], v{vT+5}, {SRD_WS}, {sT0} offen sc1")
        else:
            self.q32_phase()
        if True:
            self.stamp(2) if not self.dbgq else None
            if self.quiet: e("s_barrier")
            e(f"v_lshlrev_b32 v{vLIN16}, 4, v{vLANE}")
            c("poll own 4 KB: QM + (kvh*8+b)*16384 + hw*4096 + i*1024 + l*16")
            e(f"s_lshl_b32 {sT0}, {sKVH}, 3"); e(f"s_add_u32 {sT0}, {sT0}, {sB}"); e(f"s_lshl_b32 {sT0}, {sT0}, 14"); e(f"s_lshl_b32 {sT1}, {sHW}, 12")
            e(f"s_add_u32 {sT0}, {sT0}, {sT1}"); e(f"s_add_u32 {sT0}, {sT0}, {QM_BASE:#x}")
            c("LDS write address: QB + (4h+q)*528 + (128*(hw&1) + 16yy + 2cp)*2 ; yy = 2i + (l>>5), q=(l&31)>>3, cp=l&7, h=hw>>1")
            e(f"v_bfe_u32 v{vT}, v{vLANE}, 3, 2")
            e(f"s_lshr_b32 {sT1}, {sHW}, 1"); e(f"s_lshl_b32 {sT1}, {sT1}, 2"); e(f"v_add_u32 v{vT}, {sT1}, v{vT}")
            e(f"s_movk_i32 {sT1}, {QROW}"); e(f"v_mul_lo_u32 v{vT}, v{vT}, {sT1}")
            e(f"v_lshrrev_b32 v{vT+1}, 5, v{vLANE}"); e(f"v_lshl_add_u32 v{vT}, v{vT+1}, 5, v{vT}")
            e(f"v_and_b32 v{vT+1}, 7, v{vLANE}"); e(f"v_lshl_add_u32 v{vT}, v{vT+1}, 2, v{vT}")
            e(f"s_and_b32 {sT1}, {sHW}, 1"); e(f"s_lshl_b32 {sT1}, {sT1}, 8"); e(f"s_add_u32 {sT1}, {sT1}, {QB}"); e(f"v_add_u32 v{vT}, {sT1}, v{vT}")
            e(f"s_mov_b32 {sSPIN}, {self.spin}"); e(f"s_mov_b32 {sT2}, 0xffff0000"); e(f"s_mov_b32 {sT3}, 0x05040100")
            if self.qdelay: e(f"s_waitcnt vmcnt(0)")
            lab("L_hq_poll")
            for i in range(4):
                e(f"buffer_load_dwordx4 v[{8+4*i}:{8+4*i+3}], v{vLIN16}, {SRD_WS}, {sT0} offen" + (f" offset:{i*1024}" if i else "") + " sc1")
            e("s_waitcnt vmcnt(0)")
            for i in range(4):
                b = 8 + 4*i
                e(f"v_and_b32 v{24+2*i}, {sT2}, v{b}"); e(f"v_and_b32 v{25+2*i}, {sT2}, v{b+2}")
                e(f"v_xor_b32 v{24+2*i}, {sTL}, v{24+2*i}"); e(f"v_xor_b32 v{25+2*i}, {sTL}, v{25+2*i}")
                e(f"v_xor_b32 v{32+2*i}, {sTAG}, v{b+1}"); e(f"v_xor_b32 v{33+2*i}, {sTAG}, v{b+3}")
            e("v_or3_b32 v24, v24, v25, v26"); e("v_or3_b32 v27, v27, v28, v29"); e("v_or3_b32 v30, v30, v31, v32"); e("v_or3_b32 v33, v33, v34, v35")
            e("v_or3_b32 v36, v36, v37, v38"); e("v_or3_b32 v24, v24, v27, v30"); e("v_or3_b32 v33, v33, v36, v39"); e("v_or_b32 v24, v24, v33")
            e("v_cmp_ne_u32 vcc, 0, v24"); e("s_nop 1"); e("s_cbranch_vccz L_hq_ok")
            self.spin_dec("L_hq_poll")
            lab("L_hq_ok")
            if not self.dbgq: self.stamp(3)
            for i in range(4):
                b = 8 + 4*i
                e(f"v_perm_b32 v{24+i}, v{b+2}, v{b}, {sT3}")
            for i in range(4):
                e(f"ds_write_b32 v{vT}, v{24+i}" + (f" offset:{i*64}" if i else ""))
            e("s_waitcnt lgkmcnt(0)")
            if not self.dbgq: self.stamp(4)
        lab("L_hq_done")
        e("s_barrier")
        self.srd(48, 34, 35, 28672)
        if self.wopf and not self.pflate:
            c("L2 prefetch of this WG's 1/8 share of the wo quarter: rows r*128 + 16b .. +16 (14336 B contiguous); wave hw: 4KB pieces")
            e(f"s_lshl_b32 {sT0}, {sR}, 7"); e(f"s_lshl_b32 {sT1}, {sB}, 4"); e(f"s_add_u32 {sT0}, {sT0}, {sT1}"); e(f"s_mul_i32 {sT0}, {sT0}, 896")
            e(f"s_lshl_b32 {sT1}, {sHW}, 12"); e(f"s_add_u32 {sT0}, {sT0}, {sT1}")
            for i in range(4):
                e(f"buffer_load_dwordx4 v[{8+4*i}:{8+4*i+3}], v{vLIN16}, {SRD_WO}, {sT0} offen" + (f" offset:{i*1024}" if i else ""))
        c("clears: M1[g][recv=hw][sender=j] (2176B) and M2[b][r][hw] (2048B)")
        e(f"s_lshl_b32 {sT0}, {sG}, 2"); e(f"s_add_u32 {sT0}, {sT0}, {sHW}"); e(f"s_lshl_b32 {sT0}, {sT0}, 2"); e(f"s_add_u32 {sT0}, {sT0}, {sJ}")
        e(f"s_mul_i32 {sM1OUT}, {sT0}, {M1_SLICE}")
        e(f"s_lshl_b32 {sT0}, {sB}, 5"); e(f"s_add_u32 {sT0}, {sT0}, {sR}"); e(f"s_lshl_b32 {sT0}, {sT0}, 13"); e(f"s_lshl_b32 {sT1}, {sHW}, 11")
        e(f"s_add_u32 {sM2OUT}, {sT0}, {sT1}"); e(f"s_add_u32 {sM2OUT}, {sM2OUT}, {M2_BASE:#x}")
        for i in range(4): e(f"v_mov_b32 v{i}, -1")
        if not self.noclr:
            e(f"buffer_store_dwordx4 v[0:3], v{vLIN16}, {SRD_WS}, {sM1OUT} offen sc1")
            e(f"buffer_store_dwordx4 v[0:3], v{vLIN16}, {SRD_WS}, {sM1OUT} offen offset:1024 sc1")
            e(f"buffer_store_dwordx4 v[0:3], v{vLIN16}, {SRD_WS}, {sM2OUT} offen sc1")
            e(f"buffer_store_dwordx4 v[0:3], v{vLIN16}, {SRD_WS}, {sM2OUT} offen offset:1024 sc1")
        e("s_mov_b64 exec, 0xff")
        e(f"buffer_store_dwordx4 v[0:3], v{vLIN16}, {SRD_WS}, {sM1OUT} offen offset:2048 sc1")
        if self.dyn:
            c("group counter := 0 (j==0, hw==0)")
            e(f"s_or_b32 {sT0}, {sJ}, {sHW}"); e(f"s_cmp_lg_u32 {sT0}, 0"); e("s_cbranch_scc1 L_hnogc")
            e("s_mov_b64 exec, 1"); e(f"v_mov_b32 v4, 0"); e(f"s_lshl_b32 {sT0}, {sG}, 7"); e(f"s_add_u32 {sT0}, {sT0}, {GC_BASE:#x}")
            e(f"buffer_store_dword v4, v4, {SRD_WS}, {sT0} offen sc1")
            lab("L_hnogc")
        e("s_mov_b64 exec, -1")
        e("s_waitcnt vmcnt(0)")
        if self.dbgmid: self.stamp(1)
        c("last helper wave signals clears done: lane r' writes CF[consumer wg' = (r'>>2) + 32b + 8(r'&3)][r] := tag")
        e(f"v_mov_b32 v{vT+4}, 1"); e(f"v_mov_b32 v{vT+3}, {CNT+4}")
        e("s_mov_b64 exec, 1")
        e(f"ds_add_rtn_u32 v{vT+6}, v{vT+3}, v{vT+4}"); e("s_waitcnt lgkmcnt(0)")
        e(f"v_readfirstlane_b32 {sT1}, v{vT+6}"); e("s_nop 3")
        e("s_mov_b64 exec, -1")
        e(f"s_cmp_eq_u32 {sT1}, {3 if self.hop1 else 7}"); e("s_cbranch_scc0 L_hnoflag2")
        e(f"v_lshrrev_b32 v{vT+5}, 2, v{vLANE}"); e(f"v_and_b32 v{vT+6}, 3, v{vLANE}"); e(f"v_lshl_add_u32 v{vT+5}, v{vT+6}, 3, v{vT+5}")
        e(f"v_lshlrev_b32 v{vT+5}, 7, v{vT+5}"); e(f"v_mov_b32 v{vT+4}, {sTAG}")
        e(f"s_lshl_b32 {sT4}, {sB}, 12"); e(f"s_lshl_b32 {sT5}, {sR}, 2"); e(f"s_add_u32 {sT4}, {sT4}, {sT5}"); e(f"s_add_u32 {sT4}, {sT4}, {CF_BASE:#x}")
        e("s_mov_b32 exec_lo, -1"); e("s_mov_b32 exec_hi, 0")
        e(f"buffer_store_dword v{vT+4}, v{vT+5}, {SRD_WS}, {sT4} offen sc1")
        lab("L_hnoflag2")
        e("s_mov_b64 exec, -1")
        c("wo: load, transpose, park in AGPRs a[0:127]")
        e(f"s_mov_b32 {sSEL_LO}, 0x05040100"); e(f"s_mov_b32 {sSEL_HI}, 0x07060302")
        e(f"s_lshl_b32 {sT0}, {sR}, 7")
        if self.wosame: e(f"s_mov_b32 {sT0}, 0")
        e(f"v_lshlrev_b32 v{vT}, 3, v{vGQ}"); e(f"v_add_u32 v{vT}, {sT0}, v{vT}")
        e(f"s_movk_i32 {sT1}, 896"); e(f"v_mul_lo_u32 v{vT}, v{vT}, {sT1}")
        e(f"s_mul_i32 {sT0}, {sHW}, {256 if self.wo128 else 224}"); e(f"v_lshl_add_u32 v{vT}, v{vN}, 4, v{vT}"); e(f"v_add_u32 v{vT}, {sT0}, v{vT}")
        if self.wo128:
            c("wave 3 owns only 64 columns: lanes m>=8 stay zero")
            for i in range(32): e(f"v_mov_b32 v{i}, 0")
            e(f"s_cmp_eq_u32 {sHW}, 3"); e(f"s_cselect_b32 {sT2}, 0x00ff00ff, -1")
        if self.wolate:
            e(f"v_mov_b32 v{hWO}, v{vT}"); e(f"s_mov_b32 {sWOM}, {sT2}")
        for ks in range(4):
            if self.nowo or self.wolate: break
            kk = 0 if self.wosame else ks
            e(f"s_mov_b32 {sT0}, {kk*32*896}"); e(f"s_mov_b32 {sT1}, {kk*32*896 + 4*896}")
            if self.wo128: e(f"s_mov_b32 exec_lo, {sT2}"); e(f"s_mov_b32 exec_hi, {sT2}")
            for i in range(8):
                so = sT0 if i < 4 else sT1
                o = (i & 3) * 896
                e(f"buffer_load_dwordx4 v[{4*i}:{4*i+3}], v{vT}, {SRD_WO}, {so} offen" + (f" offset:{o}" if o else ""))
                if self.wopace < 8 and (i + 1) % self.wopace == 0: e("s_waitcnt vmcnt(0)")
            if self.wo128: e("s_mov_b64 exec, -1")
            e("s_waitcnt vmcnt(0)")
            for j in range(8):
                u = j >> 1; sel = sSEL_HI if (j & 1) else sSEL_LO
                for p in range(4):
                    e(f"v_perm_b32 v{32+4*j+p}, v{4*(2*p+1)+u}, v{4*(2*p)+u}, {sel}")
            for k in range(32): e(f"v_accvgpr_write_b32 a{32*ks+k}, v{32+k}")
        if self.dbgmid: self.stamp(2)
        c("wait until all WGs of batch b have cleared their outboxes: dword at kvh*32+4b == 0x01010101 for all kvh")
        e(f"s_cmp_lg_u32 {sHW}, 0"); e("s_cbranch_scc1 L_hclrok")
        e(f"s_lshl_b32 {sT0}, {sLID}, 7"); e(f"s_add_u32 {sT0}, {sT0}, {CF_BASE:#x}")
        e(f"v_and_b32 v{vT+1}, 31, v{vLANE}"); e(f"v_lshlrev_b32 v{vT+1}, 2, v{vT+1}")
        e(f"s_mov_b32 {sSPIN}, {self.spin}")
        lab("L_hclr")
        e(f"buffer_load_dword v{vT+2}, v{vT+1}, {SRD_WS}, {sT0} offen sc1"); e("s_waitcnt vmcnt(0)")
        e(f"v_cmp_ne_u32 vcc, {sTAG}, v{vT+2}"); e("s_nop 1"); e("s_cbranch_vccz L_hclrok")
        e("s_sleep 16")
        self.spin_dec("L_hclr")
        lab("L_hclrok")
        if self.wolate:
            e(f"s_cmp_lg_u32 {sHW}, 0"); e("s_cbranch_scc1 L_hnocf")
            e(f"v_mov_b32 v{vT+1}, {CNT+28}"); e(f"v_mov_b32 v{vT+2}, 1"); e(f"ds_write_b32 v{vT+1}, v{vT+2}")
            lab("L_hnocf")
        if self.dyn:
            e(f"s_cmp_lg_u32 {sHW}, 0"); e("s_cbranch_scc1 L_hnodyn")
            e(f"v_mov_b32 v{vT+1}, {CNT+8}"); e(f"v_mov_b32 v{vT+2}, 1"); e(f"ds_write_b32 v{vT+1}, v{vT+2}")
            lab("L_hnodyn")
        if self.dbgmid: self.stamp(3)
        if self.ldyn:
            c("H0: late balance exchange with partner (lid ^ 8). LDS: CNT+8 tile counter, CNT+12 limit, CNT+16 final")
            e(f"s_cmp_lg_u32 {sHW}, 0"); e("s_cbranch_scc1 L_hbaldone")
            e(f"v_mov_b32 v{vT}, {CNT+8}"); e(f"s_mov_b32 {sSPIN}, {self.spin}")
            lab("L_hb0")
            e(f"ds_read_b32 v0, v{vT}"); e("s_waitcnt lgkmcnt(0)")
            e(f"v_readfirstlane_b32 {sT0}, v0"); e("s_nop 3")
            e(f"s_cmp_ge_u32 {sT0}, {self.t0s}"); e("s_cbranch_scc1 L_hb0ok")
            e("s_sleep 32"); self.spin_dec("L_hb0")
            lab("L_hb0ok")
            e("s_memrealtime s[8:9]"); e("s_waitcnt lgkmcnt(0)")
            e(f"s_lshl_b32 {sT1}, {sLID}, 7"); e(f"s_add_u32 {sT1}, {sT1}, {BAL_BASE:#x}")
            e(f"s_add_u32 s10, s46, {sT1}"); e("s_addc_u32 s11, s47, 0")
            if self.asym: self.byrole(sT4, self.ploA - self.tmarg, self.ploB - self.tmarg)
            else: e(f"s_mov_b32 {sT4}, {self.t1s}")
            c("s64 = clamp lo for nA, s65 = clamp hi for nA, s66 = round, s67 = partner mailbox offset")
            e(f"s_mov_b32 s64, {self.ploA}"); e(f"s_mov_b32 s65, {256-self.ploB}"); e("s_mov_b32 s66, 0")
            e(f"s_xor_b32 s67, {sLID}, 8"); e("s_lshl_b32 s67, s67, 7"); e(f"s_add_u32 s67, s67, {BAL_BASE:#x}")
            lab("L_hbround")
            e(f"s_mov_b32 {sSPIN}, {self.spin}")
            lab("L_hb1")
            e(f"ds_read_b32 v0, v{vT}"); e("s_load_dwordx8 s[12:19], s[10:11], 0 glc"); e("s_waitcnt lgkmcnt(0)")
            e(f"v_readfirstlane_b32 {sT2}, v0"); e("s_nop 3")
            e(f"s_cmp_ge_u32 {sT2}, {sT4}"); e("s_cbranch_scc1 L_hb1ok")
            e(f"s_cmp_eq_u32 s17, {sTAG}"); e("s_cbranch_scc1 L_hb1ok")
            e("s_sleep 12"); self.spin_dec("L_hb1")
            lab("L_hb1ok")
            e("s_memrealtime s[20:21]"); e("s_waitcnt lgkmcnt(0)")
            c("publish {T0|T1<<16, tag, tau0, tag} {tau1, tag}")
            e(f"s_lshl_b32 {sT3}, {sT2}, 16"); e(f"s_or_b32 {sT3}, {sT3}, {sT0}")
            e(f"v_mov_b32 v4, {sT3}"); e(f"v_mov_b32 v5, {sTAG}"); e("v_mov_b32 v6, s8"); e(f"v_mov_b32 v7, {sTAG}"); e("v_mov_b32 v8, s20"); e(f"v_mov_b32 v9, {sTAG}"); e("v_mov_b32 v10, 0")
            e("s_mov_b64 exec, 1")
            e(f"buffer_store_dwordx4 v[4:7], v10, {SRD_WS}, s67 offen sc1")
            e(f"buffer_store_dwordx2 v[8:9], v10, {SRD_WS}, s67 offen offset:16 sc1")
            e(f"s_mov_b32 {sSPIN}, {self.spin}")
            lab("L_hb2")
            e("s_load_dwordx8 s[12:19], s[10:11], 0 glc"); e("s_waitcnt lgkmcnt(0)")
            e(f"s_xor_b32 s22, s13, {sTAG}"); e(f"s_xor_b32 s23, s15, {sTAG}"); e("s_or_b32 s22, s22, s23"); e(f"s_xor_b32 s23, s17, {sTAG}"); e("s_or_b32 s22, s22, s23")
            e("s_cmp_eq_u32 s22, 0"); e("s_cbranch_scc1 L_hb2ok")
            e("s_sleep 4"); self.spin_dec("L_hb2")
            e("v_mov_b32 v20, s64"); e("s_mov_b32 s66, 1"); e("s_branch L_hbn")
            lab("L_hb2ok")
            e(f"s_and_b32 {sT1}, {sJ}, 1"); e(f"s_cmp_eq_u32 {sT1}, 0")
            e(f"s_cselect_b32 s22, {sT3}, s12"); e("s_cselect_b32 s23, s8, s14"); e("s_cselect_b32 s9, s20, s16")
            e(f"s_cselect_b32 s12, s12, {sT3}"); e("s_cselect_b32 s14, s14, s8"); e("s_cselect_b32 s16, s16, s20")
            e("s_lshr_b32 s13, s22, 16"); e("s_and_b32 s22, s22, 0xffff")
            e("s_lshr_b32 s15, s12, 16"); e("s_and_b32 s12, s12, 0xffff")
            e("s_sub_u32 s22, s13, s22"); e("s_sub_u32 s23, s9, s23")
            e("s_sub_u32 s12, s15, s12"); e("s_sub_u32 s14, s16, s14")
            e("s_sub_u32 s16, s16, s9")
            e("v_cvt_f32_u32 v0, s22"); e("v_cvt_f32_u32 v1, s23"); e("v_cvt_f32_u32 v2, s12"); e("v_cvt_f32_u32 v3, s14")
            e("v_cvt_f32_i32 v4, s16"); e("v_cvt_f32_u32 v5, s13"); e("v_cvt_f32_u32 v6, s15")
            c("pA = dtauA/dTA (time per tile), pB = dtauB/dTB ; n = (delta + TA*pA + (256 - TB)*pB) / (pA + pB)")
            e("v_rcp_f32 v0, v0"); e("v_rcp_f32 v2, v2"); e("s_nop 0")
            e("v_mul_f32 v1, v1, v0"); e("v_mul_f32 v3, v3, v2")
            e(f"v_sub_f32 v6, {fbits(256.0):#x}, v6")
            e("v_fmac_f32 v4, v5, v1"); e("v_fmac_f32 v4, v6, v3")
            e("v_add_f32 v6, v1, v3"); e("v_rcp_f32 v6, v6"); e("s_nop 0")
            e("v_mul_f32 v5, v4, v6"); e("v_add_f32 v5, 0.5, v5"); e("v_cvt_i32_f32 v20, v5")
            e("v_max_i32 v20, s64, v20"); e("v_min_i32 v20, s65, v20")
            lab("L_hbn")
            e("s_nop 0"); e(f"v_readfirstlane_b32 s22, v20"); e("s_nop 3")
            e(f"v_mov_b32 v22, {CNT+12}")
            if self.rounds2:
                e("s_cmp_lg_u32 s66, 0"); e("s_cbranch_scc1 L_hbfinal")
                c("round 1: provisional limits pA = max(ploA, nA - delta), pB = max(ploB, 256 - nA - delta)")
                e(f"s_sub_u32 s23, s22, {self.delta}"); e("s_max_i32 s64, s64, s23")
                e(f"s_sub_u32 s23, {256 - self.delta}, s22"); e(f"s_max_i32 s23, s23, {self.ploB}")
                e("s_sub_u32 s65, 256, s23")
                e(f"s_and_b32 {sT1}, {sJ}, 1"); e(f"s_cmp_eq_u32 {sT1}, 0"); e("s_cselect_b32 s23, s64, s23")
                e("v_mov_b32 v21, s23"); e("ds_write_b32 v22, v21")
                e(f"s_sub_u32 {sT4}, s23, {self.tmarg2}")
                e("s_mov_b32 s8, s20"); e(f"s_mov_b32 {sT0}, {sT2}")
                e("s_add_u32 s10, s10, 32"); e("s_addc_u32 s11, s11, 0"); e("s_add_u32 s67, s67, 32")
                e("s_mov_b32 s66, 1"); e("s_mov_b64 exec, -1")
                e("s_branch L_hbround")
                lab("L_hbfinal")
            e(f"s_and_b32 {sT1}, {sJ}, 1"); e(f"s_cmp_eq_u32 {sT1}, 0"); e("s_cbranch_scc1 L_hb3")
            e("s_sub_u32 s22, 256, s22")
            lab("L_hb3")
            e("v_mov_b32 v20, s22"); e("v_mov_b32 v21, 1")
            e("ds_write_b32 v22, v20"); e("s_waitcnt lgkmcnt(0)"); e("ds_write_b32 v22, v21 offset:4")
            e("s_mov_b64 exec, -1")
            lab("L_hbaldone")
        elif self.bal:
            c("H0: balance exchange with partner (lid ^ 8)")
            e(f"s_cmp_lg_u32 {sHW}, 0"); e("s_cbranch_scc1 L_hbaldone")
            e(f"v_mov_b32 v{vT}, {CNT+8}"); e(f"s_mov_b32 {sSPIN}, {self.spin}")
            lab("L_hbal1")
            e(f"ds_read_b64 v[0:1], v{vT}"); e("s_waitcnt lgkmcnt(0)")
            e(f"v_readfirstlane_b32 {sT0}, v1"); e("s_nop 3")
            e(f"s_cmp_lg_u32 {sT0}, 0"); e("s_cbranch_scc1 L_hbal1ok")
            e("s_sleep 32")
            self.spin_dec("L_hbal1")
            lab("L_hbal1ok")
            c("v0 = a (time at ta), v1 = c (time at tb): publish {a, tag, c, tag}")
            e(f"v_mov_b32 v4, v0"); e(f"v_mov_b32 v5, {sTAG}"); e(f"v_mov_b32 v6, v1"); e(f"v_mov_b32 v7, {sTAG}"); e("v_mov_b32 v8, 0")
            e(f"s_xor_b32 {sT0}, {sLID}, 8"); e(f"s_lshl_b32 {sT0}, {sT0}, 7"); e(f"s_add_u32 {sT0}, {sT0}, {BAL_BASE:#x}")
            e("s_mov_b64 exec, 1")
            e(f"buffer_store_dwordx4 v[4:7], v8, {SRD_WS}, {sT0} offen sc1")
            e(f"s_lshl_b32 {sT0}, {sLID}, 7"); e(f"s_add_u32 {sT0}, {sT0}, {BAL_BASE:#x}")
            e(f"s_mov_b32 {sSPIN}, {self.spin}")
            lab("L_hbal2")
            e(f"buffer_load_dwordx4 v[12:15], v8, {SRD_WS}, {sT0} offen sc1"); e("s_waitcnt vmcnt(0)")
            e(f"v_xor_b32 v16, {sTAG}, v13"); e(f"v_xor_b32 v17, {sTAG}, v15"); e("v_or_b32 v16, v16, v17")
            e("s_nop 0"); e(f"v_readfirstlane_b32 {sT1}, v16"); e("s_nop 3")
            e(f"s_cmp_eq_u32 {sT1}, 0"); e("s_cbranch_scc1 L_hbal2ok")
            e("s_sleep 16")
            self.spin_dec("L_hbal2")
            c("timeout: both sides cannot agree -> cannot happen in a healthy run; use N = 32")
            e("v_mov_b32 v20, 32"); e("s_branch L_hbal3")
            lab("L_hbal2ok")
            c("A = role 0, B = role 1: (aA,cA) in v[0:1] / (aB,cB) in v12,v14 for role 0; swapped for role 1")
            e(f"s_and_b32 {sT1}, {sJ}, 1"); e(f"s_cmp_eq_u32 {sT1}, 0")
            e("s_cbranch_scc1 L_hbalA")
            e("v_mov_b32 v18, v0"); e("v_mov_b32 v19, v1"); e("v_mov_b32 v0, v12"); e("v_mov_b32 v1, v14"); e("v_mov_b32 v12, v18"); e("v_mov_b32 v14, v19")
            lab("L_hbalA")
            e("v_sub_u32 v2, v1, v0"); e("v_sub_u32 v3, v14, v12"); e("v_sub_u32 v4, v14, v1")
            e("v_cvt_f32_i32 v2, v2"); e("v_cvt_f32_i32 v3, v3"); e("v_cvt_f32_i32 v4, v4")
            nint = self.tb - self.ta
            e(f"v_mul_f32 v5, {fbits(float(nint)):#x}, v4")
            e(f"v_mov_b32 v6, {fbits(float(64-self.tb)):#x}"); e("v_fmac_f32 v5, v6, v3")
            e(f"v_mov_b32 v6, {fbits(float(self.tb)):#x}"); e("v_fmac_f32 v5, v6, v2")
            e("v_add_f32 v6, v2, v3"); e("v_rcp_f32 v6, v6"); e("s_nop 0")
            e("v_mul_f32 v5, v5, v6"); e("v_add_f32 v5, 0.5, v5"); e("v_cvt_i32_f32 v20, v5")
            e(f"v_max_i32 v20, {self.nlo}, v20"); e(f"v_min_i32 v20, {64-self.nlo}, v20")
            e(f"s_cbranch_scc1 L_hbal3")
            e("v_sub_u32 v20, 64, v20")
            lab("L_hbal3")
            e(f"v_mov_b32 v21, {CNT+16}"); e("ds_write_b32 v21, v20")
            e("s_mov_b64 exec, -1")
            lab("L_hbaldone")
        e(f"s_mov_b32 {sC}, {fbits(C_LOG2E_16):#x}")
        c("precompute tail addresses")
        e(f"s_lshl_b32 {sT0}, {sG}, 2"); e(f"s_add_u32 {sT0}, {sT0}, {sJ}"); e(f"s_mul_i32 {sT0}, {sT0}, {4*M1_SLICE}")
        e(f"s_add_u32 {sT1}, {sT0}, {M1_SLICE}"); e(f"s_add_u32 {sT2}, {sT0}, {2*M1_SLICE}"); e(f"s_add_u32 {sT3}, {sT0}, {3*M1_SLICE}")
        hST = 108
        e(f"v_and_b32 v{hST}, 3, v{vLANE}"); e(f"v_lshlrev_b32 v{hST}, 3, v{hST}")
        hOW, hOR, hYS, hP2, hOUT = 109, 110, 111, 112, 113
        e(f"v_and_b32 v{hOW}, 3, v{vLANE}"); e(f"s_movk_i32 {sT4}, {OROW}"); e(f"v_mul_lo_u32 v{hOW}, v{hOW}, {sT4}")
        e(f"v_lshrrev_b32 v{vT}, 2, v{vLANE}"); e(f"v_lshl_add_u32 v{hOW}, v{vT}, 4, v{hOW}"); e(f"v_add_u32 v{hOW}, {OB}, v{hOW}")
        e(f"v_and_b32 v{hOR}, 3, v{vN}"); e(f"v_mul_lo_u32 v{hOR}, v{hOR}, {sT4}"); e(f"v_lshl_add_u32 v{hOR}, v{vGQ}, 4, v{hOR}"); e(f"v_add_u32 v{hOR}, {OB}, v{hOR}")
        e(f"v_lshlrev_b32 v{hYS}, 6, v{vGQ}"); e(f"v_lshl_add_u32 v{hYS}, v{vN}, 4, v{hYS}")
        e(f"v_lshlrev_b32 v{hP2}, 16, v{vGQ}"); e(f"v_lshl_add_u32 v{hP2}, v{vN}, 4, v{hP2}")
        e(f"v_and_b32 v{hOUT}, 3, v{vN}"); e(f"s_lshl_b32 {sT4}, {sB}, 2"); e(f"v_add_u32 v{hOUT}, {sT4}, v{hOUT}")
        e(f"s_movk_i32 {sT4}, 896"); e(f"v_mul_lo_u32 v{hOUT}, v{hOUT}, {sT4}")
        e(f"v_lshrrev_b32 v{vT}, 2, v{vN}"); e(f"v_lshl_add_u32 v{hOUT}, v{vT}, 6, v{hOUT}")
        e(f"s_lshl_b32 s58, {sB}, 18"); e(f"s_lshr_b32 {sT4}, {sR}, 3"); e(f"s_lshl_b32 {sT4}, {sT4}, 11"); e(f"s_add_u32 s58, s58, {sT4}")
        e(f"s_and_b32 {sT4}, {sR}, 7"); e(f"s_lshl_b32 {sT4}, {sT4}, 8"); e(f"s_add_u32 s58, s58, {sT4}"); e(f"s_add_u32 s58, s58, {M2_BASE:#x}")
        e(f"s_lshr_b32 s59, {sR}, 3"); e(f"s_mul_i32 s59, s59, {256 if self.wo128 else 224}"); e(f"s_and_b32 {sT4}, {sR}, 7"); e(f"s_lshl_b32 {sT4}, {sT4}, 1"); e(f"s_add_u32 s59, s59, {sT4}")
        self.stamp(5)
        if not self.wolate:
            e("s_barrier")
            if self.notail: e("s_branch L_fin")
            e(f"s_cmp_lg_u32 {sHW}, 0"); e("s_cbranch_scc1 L_t3done")
            self.t3(hST, hOW, (sT0, sT1, sT2, sT3), vLIN16)
        else:
            if self.pflate:
                c("late L2 prefetch of this WG's 1/8 share: when the tile counter is within pflate tiles of the limit")
                e(f"v_mov_b32 v{vT+1}, {CNT+8}"); e(f"s_mov_b32 {sSPIN}, {self.spin}")
                lab("L_hpf")
                e(f"ds_read_b32 v{vT+2}, v{vT+1}"); e(f"ds_read2_b32 v[{vT+4}:{vT+5}], v{vT+1} offset0:1 offset1:2"); e("s_waitcnt lgkmcnt(0)")
                e(f"v_readfirstlane_b32 {sT4}, v{vT+2}"); e(f"v_readfirstlane_b32 {sT5}, v{vT+4}"); e(f"v_readfirstlane_b32 s64, v{vT+5}"); e("s_nop 3")
                e(f"s_add_u32 {sT4}, {sT4}, {self.pflate}")
                e(f"s_cmp_ge_u32 {sT4}, {sT5}"); e(f"s_cselect_b32 {sT4}, s64, 0"); e(f"s_cmp_lg_u32 {sT4}, 0"); e("s_cbranch_scc1 L_hpf_ok")
                e("s_sleep 16"); self.spin_dec("L_hpf")
                lab("L_hpf_ok")
                e(f"s_lshl_b32 {sT4}, {sR}, 7"); e(f"s_lshl_b32 {sT5}, {sB}, 4"); e(f"s_add_u32 {sT4}, {sT4}, {sT5}"); e(f"s_mul_i32 {sT4}, {sT4}, 896")
                e(f"s_lshl_b32 {sT5}, {sHW}, 12"); e(f"s_add_u32 {sT4}, {sT4}, {sT5}")
                for i in range(4):
                    e(f"buffer_load_dwordx4 v[{68+4*i}:{68+4*i+3}], v{vLIN16}, {SRD_WO}, {sT4} offen" + (f" offset:{i*1024}" if i else ""))
            c("wait until all streamers have issued their last DMA, then load wo (L2 hits) behind them")
            e(f"v_mov_b32 v{vT+1}, {CNT+20}")
            self.lds_spin("L_hiss", vT+1, vT+2, "ge", 4, 8)
            self.wo_pipeline()
        lab("L_t3done")
        e("s_waitcnt lgkmcnt(0)"); e("s_barrier")
        self.stamp(6)
        BF = 64 + 48 - 64 + 40
        BF = 40
        for ks in range(4):
            e(f"ds_read_b128 v[{BF+4*ks}:{BF+4*ks+3}], v{hOR}" + (f" offset:{ks*64}" if ks else ""))
        YA = 0
        e("s_waitcnt lgkmcnt(0)")
        for ks in range(4):
            for j in range(8):
                A = 32*ks + 4*j
                cc = "0" if ks == 0 else f"v[{YA+4*j}:{YA+4*j+3}]"
                e(f"v_mfma_f32_16x16x32_bf16 v[{YA+4*j}:{YA+4*j+3}], a[{A}:{A+3}], v[{BF+4*ks}:{BF+4*ks+3}], {cc}")
        e("s_mov_b32 exec_lo, 0x000f000f"); e("s_mov_b32 exec_hi, 0x000f000f")
        self.nop(6)
        for j in range(8):
            e(f"buffer_store_dwordx4 v[{YA+4*j}:{YA+4*j+3}], v{hYS}, {SRD_WS}, {sM2OUT} offen offset:{j*256} sc1")
        e("s_mov_b64 exec, -1")
        e(f"s_cmp_lg_u32 {sHW}, 0"); e("s_cbranch_scc1 L_fin")
        e(f"s_mov_b32 {sSPIN}, {self.spin}")
        def issue2(PB):
            for i in range(8):
                if i == 0: so = "s58"
                else:
                    e(f"s_add_u32 {sT1}, s58, {i*8192}"); so = sT1
                e(f"buffer_load_dwordx4 v[{PB+4*i}:{PB+4*i+3}], v{hP2}, {SRD_WS}, {so} offen sc1")
        def check2(PB, oklab):
            mx = 60
            e(f"v_max3_u32 v{mx}, v{PB}, v{PB+1}, v{PB+2}")
            for k in range(3, 31, 2): e(f"v_max3_u32 v{mx}, v{mx}, v{PB+k}, v{PB+k+1}")
            e(f"v_max_u32 v{mx}, v{mx}, v{PB+31}")
            e(f"v_cmp_eq_u32 vcc, -1, v{mx}"); e("s_nop 1"); e(f"s_cbranch_vccz {oklab}")
        def sum2(PB):
            for k in range(4): e(f"v_add_f32 v{32+k}, v{PB+k}, v{PB+4+k}")
            for i in range(2, 8):
                for k in range(4): e(f"v_add_f32 v{32+k}, v{32+k}, v{PB+4*i+k}")
        if not self.pipoll:
            lab("L_poll2"); issue2(64); e("s_waitcnt vmcnt(0)"); check2(64, "L_poll2ok"); self.spin_dec("L_poll2")
            lab("L_poll2ok"); sum2(64)
        else:
            PA, PBb = 64, 0
            issue2(PA); issue2(PBb)
            lab("L_poll2")
            e("s_waitcnt vmcnt(8)"); check2(PA, "L_poll2okA"); issue2(PA)
            e("s_waitcnt vmcnt(8)"); check2(PBb, "L_poll2okB"); issue2(PBb)
            self.spin_dec("L_poll2")
            lab("L_poll2okA"); sum2(PA); e("s_branch L_poll2done")
            lab("L_poll2okB"); sum2(PBb)
            lab("L_poll2done")
        for k in range(4): e(f"v_mov_b32 v{36+k}, v{32+k}")
        e("s_nop 0")
        for k in range(4): e(f"v_permlane32_swap_b32 v{36+k}, v{32+k}")
        for k in range(4): e(f"v_add_f32 v{32+k}, v{32+k}, v{36+k}")
        for k in range(4): e(f"v_mov_b32 v{36+k}, v{32+k}")
        e("s_nop 0")
        for k in range(4): e(f"v_permlane16_swap_b32 v{36+k}, v{32+k}")
        for k in range(4): e(f"v_add_f32 v{32+k}, v{32+k}, v{36+k}")
        e("v_cvt_pk_bf16_f32 v40, v32, v33"); e("v_cvt_pk_bf16_f32 v41, v34, v35")
        if self.wo128:
            e(f"s_cmp_ge_u32 {sR}, 24"); e(f"s_cselect_b32 {sT1}, 0xff, -1"); e(f"s_and_b32 exec_lo, {sT1}, 0xffff"); e("s_mov_b32 exec_hi, 0")
        else:
            e("s_mov_b64 exec, 0xffff")
        e(f"buffer_store_short v40, v{hOUT}, {SRD_OUT}, s59 offen{self.outsc}")
        e(f"buffer_store_short_d16_hi v40, v{hOUT}, {SRD_OUT}, s59 offen offset:16{self.outsc}")
        if not self.wo128: e("s_mov_b64 exec, 0xfff")
        e(f"buffer_store_short v41, v{hOUT}, {SRD_OUT}, s59 offen offset:32{self.outsc}")
        e(f"buffer_store_short_d16_hi v41, v{hOUT}, {SRD_OUT}, s59 offen offset:48{self.outsc}")
        e(f"s_cmp_lg_u32 {sLID}, 0"); e("s_cbranch_scc1 L_noep")
        e("s_mov_b64 exec, 1")
        e(f"v_mov_b32 v42, s60"); e(f"v_mov_b32 v43, s61"); e(f"v_mov_b32 v44, 0"); e(f"s_mov_b32 {sT0}, {EPOCH_OFF:#x}")
        e(f"buffer_store_dwordx2 v[42:43], v44, {SRD_WS}, {sT0} offen sc1")
        lab("L_noep")
        e("s_mov_b64 exec, -1")
        lab("L_fin")
        if self.dbgspan:
            c("debug: WGs 0,85,170,255 -> dwords 4k..: start, loop begin, loop end (S0), fin (H0)")
            e("s_memrealtime s[98:99]"); e("s_waitcnt vmcnt(0) lgkmcnt(0)")
            e(f"s_mul_i32 s97, {sWG}, 3"); e("s_mul_hi_u32 s96, s97, 0x1010102"); e("s_mul_i32 s95, s96, 255"); e("s_cmp_lg_u32 s95, s97"); e("s_cbranch_scc1 L_dbgdone")
            self.srd(52, 44, 45, 256)
            e(f"s_mul_i32 s96, {sWG}, 3"); e("s_lshr_b32 s96, s96, 8"); e(f"s_cmp_eq_u32 {sWG}, 0"); e("s_cselect_b32 s96, 0, s96")
            e(f"s_mul_hi_u32 s96, {sWG}, 0x3030304")
            e("s_lshl_b32 s96, s96, 4")
            e("s_mov_b64 exec, 1"); e("v_mov_b32 v2, 0")
            e(f"s_cmp_eq_u32 {sW}, 4"); e("s_cbranch_scc1 L_dbgh")
            e(f"s_cmp_eq_u32 {sW}, 0"); e("s_cbranch_scc0 L_dbgdone")
            e("v_mov_b32 v4, s100"); e("v_mov_b32 v5, s88"); e("v_mov_b32 v6, s90")
            e(f"buffer_store_dwordx3 v[4:6], v2, {SRD_DBG}, s96 offen sc1"); e("s_branch L_dbgdone")
            lab("L_dbgh")
            e("v_mov_b32 v4, s98")
            e(f"buffer_store_dword v4, v2, {SRD_DBG}, s96 offen offset:12 sc1")
            lab("L_dbgdone")
            e("s_waitcnt vmcnt(0)")
        if self.stamps:
            self.stamp(7)
            e("s_waitcnt vmcnt(0) lgkmcnt(0)")
            e(f"s_lshl_b32 {sT0}, {sWG}, 3"); e(f"s_add_u32 {sT0}, {sT0}, {sW}"); e(f"s_lshl_b32 {sT0}, {sT0}, 5"); e(f"s_add_u32 {sT0}, {sT0}, {STAMP_BASE:#x}")
            if (self.bal or self.ldyn) and not self.dbgs:
                e(f"s_cmp_lt_u32 {sW}, 4"); e("s_cbranch_scc0 L_non"); e(f"s_mov_b32 s96, {sN}"); lab("L_non")
            for i in range(8): e(f"v_mov_b32 v{i}, s{84+2*i}")
            e("v_mov_b32 v8, 0")
            e("s_mov_b64 exec, 1")
            e(f"buffer_store_dwordx4 v[0:3], v8, {SRD_WS}, {sT0} offen")
            e(f"buffer_store_dwordx4 v[4:7], v8, {SRD_WS}, {sT0} offen offset:16")
            e("s_waitcnt vmcnt(0)")
        lab("L_end")
        e("s_endpgm")
        L.append('.section .rodata,"a"'); L.append(".p2align 6"); L.append(f".amdhsa_kernel {NAME}_kernel")
        for d in ("next_free_vgpr 256", "next_free_sgpr 102", "accum_offset 128", "group_segment_fixed_size 0", "kernarg_size 64",
                  "user_sgpr_count 2", "user_sgpr_kernarg_segment_ptr 1", "system_sgpr_workgroup_id_x 1"):
            L.append("  .amdhsa_" + d)
        L.append(".end_amdhsa_kernel")
        return "\n".join(L) + "\n"

if __name__ == "__main__":
    import argparse
    ap = argparse.ArgumentParser()
    ap.add_argument("out"); ap.add_argument("--stamps", action="store_true"); ap.add_argument("--opt", default="{}")
    a = ap.parse_args()
    open(a.out, "w").write(Gen(stamps=a.stamps, **eval("dict(" + a.opt + ")" if not a.opt.startswith(("{", "dict")) else a.opt)).build())
```

```python
import sys, struct

NAME = "standalone__gqa_block_cached__sampling"
HDR = open("standalone__gqa_block_cached__sampling.s.ref").read().split("; Override")[0]

QB = 131072; QROW = 528
STB = QB + 8 * QROW
OB = STB + 256
OROW = 272
CNT = OB + 4 * OROW
WQS = 136704
RED = WQS + 16384
OWROW = 1040
LDS_BYTES = 163840
assert RED + 8192 <= LDS_BYTES

M1_SLICE = 2176
M2_BASE = 0x400000
QM_BASE = 0x600000
QF_BASE = 0x740000
CF_BASE = 0x760000
BAL_BASE = 0x7a0000
GC_BASE = 0x788000
EPOCH_OFF = 0x790000
TAG_C = 0x9E3779B9
STAMP_BASE = 0x800000
WS_BYTES = 0x1000000

sWG, sW, sKVH, sJ, sB = "s2", "s3", "s4", "s5", "s6"
sHW = "s7"
SRD_K, SRD_V, SRD_WQ, SRD_X, SRD_WO, SRD_WS = "s[8:11]", "s[12:15]", "s[16:19]", "s[20:23]", "s[24:27]", "s[28:31]"
SRD_OUT, SRD_DBG = "s[48:51]", "s[52:55]"
sKOFF, sVOFF = "s60", "s61"
sWB = "s62"
sKSLOT, sVSLOT = "s63", "s64"
sT = "s65"
sC, sNC = "s66", "s67"
sG = "s68"; sR = "s69"
sM1OUT, sM2OUT = "s70", "s71"
sT0, sT1, sT2, sT3, sT4, sT5 = "s72", "s73", "s74", "s75", "s76", "s77"
sSEL_LO, sSEL_HI = "s78", "s79"
sY = "s80"; sSPIN = "s81"; sTAG = "s82"; sLID = "s83"; sTL = "s59"
sN = "s56"; sGB = "s57"; sGC = "s58"; sSTAT = "s59"; sSTEP = "s57"; sPLO = "s55"
vA = 108; vZERO = 110
hWO = 114; sWOM = "s63"
STAMPS = ["s[84:85]", "s[86:87]", "s[88:89]", "s[90:91]", "s[92:93]", "s[94:95]", "s[96:97]", "s[98:99]"]

vO = 0
vLANE, vN, vGQ, vTMPA = 64, 65, 66, 67
vDMA = 68; vKA = 72; vVA = 76; vS = 84; vP = 88; vM, vL = 90, 91; vAL = 92
vT = 94
vLIN16 = 104; vODUMP = 105; vT2A, vT2B = 106, 107
AQ, AK, AV = 0, 32, 64

C_LOG2E_16 = 1.4426950408889634 / 16.0
def fbits(x): return struct.unpack("<I", struct.pack("<f", x))[0]

class Gen:
    def __init__(self, stamps=False, flags="nt", spin=1 << 18, kwait=16, nocomp=False, notail=False, wopace=8, hprio=0, qsleep=2, pace=3, dbgmid=False, nowo=False, noclr=False, v0pre=True, wosame=False, wopf=True, vwait=24, rate=False, noqwait=False, hexit=False, order2=True, kwait2=24, dyn=False, n0=16, pairmap=True, bal=True, ta=4, tb=11, tc=21, nlo=24, quiet=0, dbgq=False, hop1=True, qdelay=True, pre0=2, ldyn=False, t0s=44, t1s=92, plo=108, xmap=1, dbgspan=False, qcontig=False, nox=False, nowq=False, wo128=True, wolate=False, pflate=0, ploB=None, tmarg=8, rounds2=False, delta=6, tmarg2=6, kflags=None, vflags=None, dbgs=False, nob0=False, q8=False, q8v=False, qrot=False, outsc='', pipoll=False, pretail=False, split=4, errlog=False):
        self.errlog = errlog; self.errn = 0; self.errnames = []
        self.split = split
        self.pipoll = pipoll; self.pretail = pretail
        self.outsc = outsc
        self.qrot = qrot
        self.q8v = q8v
        if q8v: q8 = True
        self.q8 = q8
        self.nob0 = nob0
        self.dbgs = dbgs
        self.kflags = kflags; self.vflags = vflags
        self.rounds2 = rounds2; self.delta = delta; self.tmarg2 = tmarg2
        self.ploA = plo; self.ploB = ploB if ploB else plo; self.tmarg = tmarg; self.asym = ploB is not None
        self.pflate = pflate
        self.wolate = wolate
        self.wo128 = wo128
        self.nox = nox; self.nowq = nowq
        self.qcontig = qcontig
        self.dbgspan = dbgspan
        self.xmap = xmap
        self.ldyn = ldyn; self.t0s = t0s; self.t1s = t1s; self.plo = plo
        self.pre0 = pre0
        self.qdelay = qdelay
        self.hop1 = hop1
        self.dbgq = dbgq
        self.quiet = quiet
        self.bal = bal; self.ta = ta; self.tb = tb; self.tc = tc; self.nlo = nlo
        assert not (dyn and bal)
        self.dyn = dyn; self.n0 = n0; self.pairmap = pairmap
        self.order2 = order2; self.kwait2 = kwait2
        self.rate = rate; self.noqwait = noqwait; self.hexit = hexit
        self.vwait = vwait
        self.wopf = wopf
        self.wosame = wosame
        self.v0pre = v0pre
        self.dbgmid = dbgmid; self.nowo = nowo; self.noclr = noclr
        self.pace = pace
        self.qsleep = qsleep
        self.L = []; self.stamps = stamps; self.flags = flags; self.spin = spin; self.kwait = kwait
        self.nocomp = nocomp; self.notail = notail; self.wopace = wopace; self.hprio = hprio
    def e(self, s): self.L.append("  " + s)
    def lab(self, s): self.L.append(s + ":")
    def c(self, s): self.L.append("  ; " + s)
    def stamp(self, i):
        if self.stamps or (getattr(self, "dbgspan", False) and i in (2, 3)): self.e(f"s_memrealtime {STAMPS[i]}")
    def nop(self, n):
        while n > 0:
            k = min(n, 16); self.e(f"s_nop {k-1}"); n -= k
    def dma_half(self, srd, soff):
        fl = self.flags
        if srd == SRD_K and self.kflags is not None: fl = self.kflags
        if srd == SRD_V and self.vflags is not None: fl = self.vflags
        for i in range(4):
            o = f" offset:{i*1024}" if i else ""
            self.e(f"buffer_load_dwordx4 v{vDMA+i}, {srd}, {soff} offen{o} {fl} lds")
    def dma_tile(self, srd, goff, slot):
        e = self.e
        e(f"s_mov_b32 m0, {slot}"); e(f"s_add_u32 {sT0}, {goff}, 16384")
        self.dma_half(srd, goff)
        e(f"s_add_u32 m0, {slot}, 4096"); e("s_nop 0")
        self.dma_half(srd, sT0)
    def dma_tile_static(self, isv, tile):
        e = self.e
        for half in range(2):
            e(f"s_add_u32 m0, {sWB}, {isv*16384 + tile*8192 + half*4096}")
            e(f"s_add_u32 {sT5}, {sKOFF}, {tile*32768 + half*16384}")
            self.dma_half(SRD_V if isv else SRD_K, sT5)
    def dma_half_static(self, hn):
        e = self.e
        tile, half, isv = hn >> 2, hn & 1, (hn >> 1) & 1
        if self.dyn:
            e(f"s_add_u32 m0, {sWB}, {isv*16384 + tile*8192 + half*4096}")
            e(f"s_add_u32 {sT5}, {sKOFF}, {tile*32768 + half*16384}")
        else:
            e(f"s_add_u32 {sT5}, {sKOFF}, {half*16384}")
            if tile: e(f"s_add_u32 {sT5}, {sT5}, {sSTEP}")
            e(f"s_add_u32 m0, {sWB}, {isv*16384 + tile*8192 + half*4096}"); e("s_nop 0")
        self.dma_half(SRD_V if isv else SRD_K, sT5)
    def read_k(self):
        for s in range(8):
            a, u = s >> 2, s & 3
            self.e(f"ds_read_b128 a[{AK+4*s}:{AK+4*s+3}], v{vKA+u}" + (f" offset:{a*256}" if a else ""))
    def read_v(self):
        for t in range(16):
            a, u = t >> 3, t & 7
            self.e(f"ds_read_b64_tr_b16 a[{AV+2*t}:{AV+2*t+1}], v{vVA+u}" + (f" offset:{a*256}" if a else ""))
    def srd(self, base, lo, hi, size):
        e = self.e
        e(f"s_mov_b32 s{base}, s{lo}"); e(f"s_and_b32 s{base+1}, s{hi}, 0xffff"); e(f"s_mov_b32 s{base+2}, {size:#x}"); e(f"s_mov_b32 s{base+3}, 0x20000")
    def spin_dec(self, label):
        e = self.e
        e(f"s_sub_u32 {sSPIN}, {sSPIN}, 1"); e(f"s_cmp_lg_u32 {sSPIN}, 0"); e(f"s_cbranch_scc1 {label}")
        if self.errlog:
            e(f"s_or_b32 s101, s101, {1 << self.errn:#x}"); self.errnames.append(label); self.errn += 1

    def loop1(self):
        e, lab, c = self.e, self.lab, self.c
        lab("L_loop")
        if self.rate:
            for tt, si in ((8, 1), (16, 4), (24, 5)):
                e(f"s_cmp_lg_u32 {sT}, {tt}"); e(f"s_cbranch_scc1 L_rs{tt}"); e(f"s_memrealtime {STAMPS[si]}"); lab(f"L_rs{tt}")
        for s in range(8):
            if self.nocomp: break
            cc = "0" if s == 0 else f"v[{vS}:{vS+3}]"
            e(f"v_mfma_f32_16x16x32_bf16 v[{vS}:{vS+3}], a[{AK+4*s}:{AK+4*s+3}], a[{AQ+4*s}:{AQ+4*s+3}], {cc}")
        e(f"s_cmp_eq_u32 {sT}, 31"); e("s_cbranch_scc1 L_k31")
        e(f"s_waitcnt vmcnt({self.kwait})")
        self.read_k()
        e("s_waitcnt lgkmcnt(0)")
        e(f"s_cmp_ge_u32 {sT}, 29"); e("s_cbranch_scc1 L_kdone")
        self.dma_tile(SRD_K, sKOFF, sKSLOT)
        e(f"s_add_u32 {sKOFF}, {sKOFF}, 32768"); e(f"s_xor_b32 {sKSLOT}, {sKSLOT}, 8192")
        lab("L_kdone")
        for u in range(4): e(f"v_xor_b32 v{vKA+u}, 8192, v{vKA+u}")
        lab("L_soft")
        t0, t1, t2 = vT, vT+1, vT+2
        if self.nocomp: e("s_branch L_noresc")
        e(f"v_max3_f32 v{t0}, v{vS}, v{vS+1}, v{vS+2}")
        e(f"v_max_f32 v{t0}, v{t0}, v{vS+3}")
        e(f"v_mov_b32 v{t1}, v{t0}"); e("s_nop 1")
        e(f"v_permlane32_swap_b32 v{t1}, v{t0}")
        e(f"v_max_f32 v{t0}, v{t0}, v{t1}")
        e(f"v_mov_b32 v{t1}, v{t0}"); e("s_nop 1")
        e(f"v_permlane16_swap_b32 v{t1}, v{t0}")
        e(f"v_max3_f32 v{t0}, v{t0}, v{t1}, v{vM}")
        e(f"v_sub_f32 v{t1}, v{vM}, v{t0}")
        e(f"v_mul_f32 v{t1}, {sC}, v{t1}")
        e(f"v_mul_f32 v{t2}, {sNC}, v{t0}")
        e(f"v_exp_f32 v{vAL}, v{t1}")
        e(f"v_mov_b32 v{vM}, v{t0}")
        for r in range(4): e(f"v_fma_f32 v{vS+r}, v{vS+r}, {sC}, v{t2}")
        for r in range(4): e(f"v_exp_f32 v{vS+r}, v{vS+r}")
        e(f"v_cmp_neq_f32 vcc, 1.0, v{vAL}")
        e(f"v_add_f32 v{t0}, v{vS}, v{vS+1}"); e(f"v_add_f32 v{t1}, v{vS+2}, v{vS+3}")
        e(f"v_cvt_pk_bf16_f32 v{vP}, v{vS}, v{vS+1}"); e(f"v_cvt_pk_bf16_f32 v{vP+1}, v{vS+2}, v{vS+3}")
        e(f"v_add_f32 v{t0}, v{t0}, v{t1}"); e(f"v_fma_f32 v{vL}, v{vL}, v{vAL}, v{t0}")
        e("s_cbranch_vccz L_noresc")
        for i in range(32):
            e(f"v_pk_mul_f32 v[{vO+2*i}:{vO+2*i+1}], v[{vO+2*i}:{vO+2*i+1}], v[{vAL}:{vAL+1}] op_sel_hi:[1,0]")
        lab("L_noresc")
        c("V point: steady state vmcnt(24); near the end fewer ops are outstanding")
        if self.v0pre:
            e(f"s_cmp_eq_u32 {sT}, 0"); e("s_cbranch_scc1 L_pv")
        e(f"s_cmp_ge_u32 {sT}, 29"); e("s_cbranch_scc1 L_vlate")
        e(f"s_waitcnt vmcnt({self.vwait})")
        lab("L_vrd")
        self.read_v()
        e("s_waitcnt lgkmcnt(0)")
        e(f"s_cmp_ge_u32 {sT}, 30"); e("s_cbranch_scc1 L_vdone")
        self.dma_tile(SRD_V, sVOFF, sVSLOT)
        e(f"s_add_u32 {sVOFF}, {sVOFF}, 32768"); e(f"s_xor_b32 {sVSLOT}, {sVSLOT}, 8192")
        lab("L_vdone")
        for u in range(8): e(f"v_xor_b32 v{vVA+u}, 8192, v{vVA+u}")
        lab("L_pv")
        for t in range(16):
            if self.nocomp: break
            e(f"v_mfma_f32_16x16x16_bf16 v[{vO+4*t}:{vO+4*t+3}], a[{AV+2*t}:{AV+2*t+1}], v[{vP}:{vP+1}], v[{vO+4*t}:{vO+4*t+3}]")
        e(f"s_add_u32 {sT}, {sT}, 1"); e(f"s_cmp_lt_u32 {sT}, 32"); e("s_cbranch_scc1 L_loop")
        e("s_branch L_tail")
        lab("L_vlate")
        e(f"s_cmp_eq_u32 {sT}, 29"); e("s_cbranch_scc1 L_vrd")
        e(f"s_cmp_eq_u32 {sT}, 30"); e("s_cbranch_scc0 L_vlast")
        e("s_waitcnt vmcnt(8)"); e("s_branch L_vrd")
        lab("L_vlast")
        e("s_waitcnt vmcnt(0)"); e("s_branch L_vrd")
        lab("L_k31")
        self.nop(8)
        e("s_branch L_soft")


    def loop2(self):
        e, lab, c = self.e, self.lab, self.c
        dyn = self.dyn
        ld = self.ldyn
        lab("L_loop")
        if self.rate:
            for tt, si in ((8, 1), (16, 4), (24, 5)):
                e(f"s_cmp_lg_u32 {sT}, {tt}"); e(f"s_cbranch_scc1 L_rs{tt}"); e(f"s_memrealtime {STAMPS[si]}"); lab(f"L_rs{tt}")
        t0, t1, t2 = vT, vT+1, vT+2
        def cmpN(op, k):
            if dyn or self.bal or ld:
                e(f"s_sub_u32 {sT1}, {sN}, {k}"); e(f"s_cmp_{op}_u32 {sT}, {sT1}")
            else:
                e(f"s_cmp_{op}_u32 {sT}, {32-k}")
        if ld:
            c("grab next tile id (lane 0) and read limit/final early")
            cmpN("ge", 3); e("s_cbranch_scc1 L_nograb")
            e("s_mov_b64 exec, 1")
            e(f"ds_add_rtn_u32 v{vA}, v{vZERO}, v{vA+1}")
            e("s_mov_b64 exec, -1")
            lab("L_nograb")
        c("A: QK")
        for s in range(8):
            if self.nocomp: break
            cc = "0" if s == 0 else f"v[{vS}:{vS+3}]"
            e(f"v_mfma_f32_16x16x32_bf16 v[{vS}:{vS+3}], a[{AK+4*s}:{AK+4*s+3}], a[{AQ+4*s}:{AQ+4*s+3}], {cc}")
        c("B: K point")
        if self.bal and not ld:
            e(f"s_cmp_eq_u32 {sT}, {self.ta}"); e("s_cbranch_scc1 L_balst")
            e(f"s_cmp_eq_u32 {sT}, {self.tb}"); e("s_cbranch_scc1 L_balst")
            e(f"s_cmp_eq_u32 {sT}, {self.tc}"); e("s_cbranch_scc1 L_balget")
            lab("L_balback")
        cmpN("ge", 2); e("s_cbranch_scc1 L_klate")
        e(f"s_waitcnt vmcnt({self.kwait2})")
        lab("L_krd")
        self.read_k()
        if dyn:
            cmpN("ge", 3); e("s_cbranch_scc1 L_knoref")
            c("tile id for t+3 ; atomics run two iterations ahead (regs vA, vA+1 by parity of t)")
            e(f"s_cmp_ge_u32 {sT}, {self.n0-3}"); e("s_cbranch_scc1 L_dynid")
            e(f"s_mov_b32 {sT2}, {sSTAT}"); e(f"s_add_u32 {sSTAT}, {sSTAT}, 16")
            e(f"s_cmp_eq_u32 {sT}, {self.n0-5}"); e("s_cbranch_scc1 L_dynchk")
            e(f"s_cmp_eq_u32 {sT}, {self.n0-4}"); e("s_cbranch_scc1 L_atom")
            e("s_branch L_mkoff")
            lab("L_dynid")
            e(f"s_bitcmp1_b32 {sT}, 0"); e("s_cbranch_scc1 L_dynid1")
            e(f"v_readfirstlane_b32 {sT2}, v{vA}"); e("s_branch L_dynid2")
            lab("L_dynid1")
            e(f"v_readfirstlane_b32 {sT2}, v{vA+1}")
            lab("L_dynid2")
            e("s_nop 3")
            e(f"s_add_u32 {sT2}, {sT2}, {self.n0*16}")
            e(f"s_cmp_ge_u32 {sT2}, 512"); e("s_cbranch_scc1 L_exhaust")
            lab("L_atom")
            e("s_mov_b64 exec, 1")
            e(f"s_bitcmp1_b32 {sT}, 0"); e("s_cbranch_scc1 L_atom1")
            e(f"v_mov_b32 v{vA}, 1")
            e(f"buffer_atomic_add v{vA}, v{vZERO}, {SRD_WS}, {sGC} offen sc0 sc1"); e("s_branch L_atom2")
            lab("L_atom1")
            e(f"v_mov_b32 v{vA+1}, 1")
            e(f"buffer_atomic_add v{vA+1}, v{vZERO}, {SRD_WS}, {sGC} offen sc0 sc1")
            lab("L_atom2")
            e("s_mov_b64 exec, -1")
            lab("L_mkoff")
            e(f"s_lshr_b32 {sT3}, {sT2}, 2"); e(f"s_and_b32 {sT3}, {sT3}, 3"); e(f"s_lshl_b32 {sT3}, {sT3}, 20")
            e(f"s_lshr_b32 {sT4}, {sT2}, 4"); e(f"s_lshl_b32 {sT4}, {sT4}, 15"); e(f"s_add_u32 {sT3}, {sT3}, {sT4}")
            e(f"s_and_b32 {sT4}, {sT2}, 3"); e(f"s_lshl_b32 {sT4}, {sT4}, 12"); e(f"s_add_u32 {sT3}, {sT3}, {sT4}")
            e(f"s_add_u32 {sKOFF}, {sGB}, {sT3}")
            e("s_waitcnt lgkmcnt(0)")
            self.dma_tile(SRD_K, sKOFF, sKSLOT)
            e(f"s_xor_b32 {sKSLOT}, {sKSLOT}, 8192")
            e("s_branch L_kdone")
            lab("L_knoref")
            e("s_waitcnt lgkmcnt(0)")
        elif ld:
            e("s_waitcnt lgkmcnt(0)")
            cmpN("ge", 3); e("s_cbranch_scc1 L_kdone")
            e(f"v_readfirstlane_b32 {sT2}, v{vA}"); e("s_nop 3")
            e(f"s_cmp_ge_u32 {sT2}, {sPLO}"); e("s_cbranch_scc1 L_limchk")
            lab("L_tileok")
            e(f"s_xor_b32 {sT2}, {sT2}, {sSTAT}")
            e(f"s_lshr_b32 {sT3}, {sT2}, 2"); e(f"s_lshl_b32 {sT3}, {sT3}, 15"); e(f"s_and_b32 {sT2}, {sT2}, 3"); e(f"s_lshl_b32 {sT2}, {sT2}, {dict([(4,12),(2,11),(1,10)])[self.split]}")
            e(f"s_add_u32 {sKOFF}, {sGC}, {sT3}"); e(f"s_add_u32 {sKOFF}, {sKOFF}, {sT2}")
            self.dma_tile(SRD_K, sKOFF, sKSLOT)
            e(f"s_xor_b32 {sKSLOT}, {sKSLOT}, 8192")
        else:
            e("s_waitcnt lgkmcnt(0)")
            cmpN("ge", 3); e("s_cbranch_scc1 L_kdone")
            self.dma_tile(SRD_K, sKOFF, sKSLOT)
            e(f"s_add_u32 {sKOFF}, {sKOFF}, {sSTEP}"); e(f"s_xor_b32 {sKSLOT}, {sKSLOT}, 8192")
        lab("L_kdone")
        for u in range(4): e(f"v_xor_b32 v{vKA+u}, 8192, v{vKA+u}")
        lab("L_soft")
        c("C: softmax")
        if self.nocomp: e("s_branch L_noresc")
        e(f"v_max3_f32 v{t0}, v{vS}, v{vS+1}, v{vS+2}")
        e(f"v_max_f32 v{t0}, v{t0}, v{vS+3}")
        e(f"v_mov_b32 v{t1}, v{t0}"); e("s_nop 1")
        e(f"v_permlane32_swap_b32 v{t1}, v{t0}")
        e(f"v_max_f32 v{t0}, v{t0}, v{t1}")
        e(f"v_mov_b32 v{t1}, v{t0}"); e("s_nop 1")
        e(f"v_permlane16_swap_b32 v{t1}, v{t0}")
        e(f"v_max3_f32 v{t0}, v{t0}, v{t1}, v{vM}")
        e(f"v_sub_f32 v{t1}, v{vM}, v{t0}")
        e(f"v_mul_f32 v{t1}, {sC}, v{t1}")
        e(f"v_mul_f32 v{t2}, {sNC}, v{t0}")
        e(f"v_exp_f32 v{vAL}, v{t1}")
        e(f"v_mov_b32 v{vM}, v{t0}")
        for r in range(4): e(f"v_fma_f32 v{vS+r}, v{vS+r}, {sC}, v{t2}")
        for r in range(4): e(f"v_exp_f32 v{vS+r}, v{vS+r}")
        e(f"v_cmp_neq_f32 vcc, 1.0, v{vAL}")
        e(f"v_add_f32 v{t0}, v{vS}, v{vS+1}"); e(f"v_add_f32 v{t1}, v{vS+2}, v{vS+3}")
        e(f"v_cvt_pk_bf16_f32 v{vP}, v{vS}, v{vS+1}"); e(f"v_cvt_pk_bf16_f32 v{vP+1}, v{vS+2}, v{vS+3}")
        e(f"v_add_f32 v{t0}, v{t0}, v{t1}"); e(f"v_fma_f32 v{vL}, v{vL}, v{vAL}, v{t0}")
        e("s_cbranch_vccz L_noresc")
        for i in range(32):
            e(f"v_pk_mul_f32 v[{vO+2*i}:{vO+2*i+1}], v[{vO+2*i}:{vO+2*i+1}], v[{vAL}:{vAL+1}] op_sel_hi:[1,0]")
        lab("L_noresc")
        cmpN("eq", 1); e("s_cbranch_scc1 L_vjit")
        lab("L_pv")
        c("D: PV")
        for t in range(16):
            if self.nocomp: break
            e(f"v_mfma_f32_16x16x16_bf16 v[{vO+4*t}:{vO+4*t+3}], a[{AV+2*t}:{AV+2*t+1}], v[{vP}:{vP+1}], v[{vO+4*t}:{vO+4*t+3}]")
        c("E: V point")
        cmpN("ge", 3); e("s_cbranch_scc1 L_vlate")
        e(f"s_waitcnt vmcnt({self.vwait})")
        if self.q8v:
            e(f"s_cmp_lg_u32 {sT}, 0"); e("s_cbranch_scc1 L_vnz"); e("s_waitcnt vmcnt(16)"); lab("L_vnz")
        self.read_v()
        e("s_waitcnt lgkmcnt(0)")
        if dyn or ld:
            self.dma_tile(SRD_V, sKOFF, sVSLOT)
            e(f"s_xor_b32 {sVSLOT}, {sVSLOT}, 8192")
        else:
            self.dma_tile(SRD_V, sVOFF, sVSLOT)
            e(f"s_add_u32 {sVOFF}, {sVOFF}, {sSTEP}"); e(f"s_xor_b32 {sVSLOT}, {sVSLOT}, 8192")
        lab("L_vdone")
        for u in range(8): e(f"v_xor_b32 v{vVA+u}, 8192, v{vVA+u}")
        lab("L_next")
        e(f"s_add_u32 {sT}, {sT}, 1")
        if dyn or self.bal or ld: e(f"s_cmp_lt_u32 {sT}, {sN}")
        else: e(f"s_cmp_lt_u32 {sT}, 32")
        e("s_cbranch_scc1 L_loop")
        e("s_branch L_tail")
        lab("L_klate")
        cmpN("eq", 1); e("s_cbranch_scc1 L_k31")
        e("s_waitcnt vmcnt(8)"); e("s_branch L_krd")
        lab("L_k31")
        self.nop(8)
        e("s_branch L_soft")
        lab("L_vlate")
        cmpN("eq", 3); e("s_cbranch_scc0 L_next")
        if self.wolate:
            e(f"v_mov_b32 v{t0}, {CNT+20}"); e(f"v_mov_b32 v{t1}, 1"); e("s_mov_b64 exec, 1"); e(f"ds_add_u32 v{t0}, v{t1}"); e("s_mov_b64 exec, -1")
        e("s_waitcnt vmcnt(16)")
        self.read_v()
        e("s_waitcnt lgkmcnt(0)")
        e("s_branch L_vdone")
        lab("L_vjit")
        e("s_waitcnt vmcnt(0)")
        self.read_v()
        e("s_waitcnt lgkmcnt(0)")
        e("s_branch L_pv")
        if ld:
            lab("L_limchk")
            e(f"s_mov_b32 {sSPIN}, {self.spin}")
            e(f"v_mov_b32 v{t0}, {CNT+12}")
            lab("L_limchk1")
            e(f"ds_read2_b32 v[{t1+1}:{t1+2}], v{t0} offset0:0 offset1:1"); e("s_waitcnt lgkmcnt(0)")
            e(f"v_readfirstlane_b32 {sT3}, v{t1+2}"); e(f"v_readfirstlane_b32 {sT4}, v{t1+1}"); e("s_nop 3")
            e(f"s_mov_b32 {sPLO}, {sT4}")
            e(f"s_cmp_lt_u32 {sT2}, {sT4}"); e("s_cbranch_scc1 L_tileok")
            e(f"s_cmp_lg_u32 {sT3}, 0"); e("s_cbranch_scc1 L_limfin")
            e("s_sleep 2")
            self.spin_dec("L_limchk1")
            lab("L_limfin")
            e(f"s_add_u32 {sN}, {sT}, 3")
            e("s_branch L_kdone")
        if self.bal and not ld:
            lab("L_balst")
            e(f"s_cmp_lg_u32 {sW}, 0"); e("s_cbranch_scc1 L_balback")
            e(f"s_memrealtime s[{sT2[1:]}:{sT3[1:]}]"); e("s_waitcnt lgkmcnt(0)")
            e(f"s_or_b32 {sT2}, {sT2}, 1")
            e(f"s_cmp_eq_u32 {sT}, {self.tb}"); e(f"s_cselect_b32 {sT3}, 4, 0"); e(f"s_add_u32 {sT3}, {sT3}, {CNT+8}")
            e(f"v_mov_b32 v{t0}, {sT3}"); e(f"v_mov_b32 v{t1}, {sT2}")
            e(f"ds_write_b32 v{t0}, v{t1}")
            e("s_branch L_balback")
            lab("L_balget")
            e(f"s_mov_b32 {sSPIN}, {self.spin}")
            e(f"v_mov_b32 v{t0}, {CNT+16}")
            lab("L_balget1")
            e(f"ds_read_b32 v{t1}, v{t0}"); e("s_waitcnt lgkmcnt(0)")
            e(f"v_readfirstlane_b32 {sN}, v{t1}"); e("s_nop 3")
            e(f"s_cmp_lg_u32 {sN}, 0"); e("s_cbranch_scc1 L_balback")
            e("s_sleep 4")
            self.spin_dec("L_balget1")
            e(f"s_mov_b32 {sN}, 32")
            e("s_branch L_balback")
        if dyn:
            lab("L_exhaust")
            e(f"s_add_u32 {sN}, {sT}, 3")
            e("s_branch L_knoref")
            lab("L_dynchk")
            e(f"s_mov_b32 {sSPIN}, {self.spin}")
            e(f"v_mov_b32 v{t0}, {CNT+8}")
            lab("L_dynchk1")
            e(f"ds_read_b32 v{t1}, v{t0}"); e("s_waitcnt lgkmcnt(0)")
            e(f"v_readfirstlane_b32 {sT3}, v{t1}"); e("s_nop 3")
            e(f"s_cmp_eq_u32 {sT3}, 1"); e("s_cbranch_scc1 L_atom")
            e("s_sleep 8")
            self.spin_dec("L_dynchk1")
            e("s_branch L_atom")

    def t3(self, hST, hOW, so4, lin16):
        e, lab, c = self.e, self.lab, self.c
        def issue(PB):
            for jj, so in enumerate(so4):
                e(f"buffer_load_dwordx4 v[{PB+8*jj}:{PB+8*jj+3}], v{lin16}, {SRD_WS}, {so} offen sc1")
                e(f"buffer_load_dwordx4 v[{PB+8*jj+4}:{PB+8*jj+7}], v{lin16}, {SRD_WS}, {so} offen offset:1024 sc1")
                e(f"buffer_load_dwordx2 v[{PB+32+2*jj}:{PB+32+2*jj+1}], v{hST}, {SRD_WS}, {so} offen offset:2048 sc1")
        def check(PB, oklab):
            mx = vT + 1
            e(f"v_max3_u32 v{mx}, v{PB}, v{PB+1}, v{PB+2}")
            for k in range(3, 39, 2): e(f"v_max3_u32 v{mx}, v{mx}, v{PB+k}, v{PB+k+1}")
            e(f"v_max_u32 v{mx}, v{mx}, v{PB+39}")
            e(f"v_cmp_eq_u32 vcc, -1, v{mx}"); e("s_nop 1"); e(f"s_cbranch_vccz {oklab}")
        def finish(PB):
            ST = PB + 32; a0 = vT + 2; F = vT + 4
            e(f"v_max3_f32 v{a0}, v{ST}, v{ST+2}, v{ST+4}"); e(f"v_max_f32 v{a0}, v{a0}, v{ST+6}")
            for w in range(4): e(f"v_sub_f32 v{F+w}, v{ST+2*w}, v{a0}")
            for w in range(4): e(f"v_mul_f32 v{F+w}, {sC}, v{F+w}")
            for w in range(4): e(f"v_exp_f32 v{F+w}, v{F+w}")
            e("s_nop 0")
            e(f"v_mul_f32 v{a0}, v{F}, v{ST+1}")
            for w in range(1, 4): e(f"v_fmac_f32 v{a0}, v{F+w}, v{ST+2*w+1}")
            e(f"v_rcp_f32 v{a0}, v{a0}"); e("s_nop 0")
            for w in range(4): e(f"v_mul_f32 v{F+w}, v{F+w}, v{a0}")
            ACC = ST
            for k in range(8): e(f"v_mul_f32 v{ACC+k}, v{F}, v{PB+k}")
            for w in range(1, 4):
                for k in range(8): e(f"v_fmac_f32 v{ACC+k}, v{F+w}, v{PB+8*w+k}")
            for p in range(4): e(f"v_cvt_pk_bf16_f32 v{PB+p}, v{ACC+2*p}, v{ACC+2*p+1}")
            e(f"ds_write_b128 v{hOW}, v[{PB}:{PB+3}]")
        e(f"s_mov_b32 {sSPIN}, {self.spin}")
        if True:
            lab("L_poll1"); issue(0); e("s_waitcnt vmcnt(0)"); check(0, "L_poll1ok"); self.spin_dec("L_poll1")
            lab("L_poll1ok"); finish(0)
        else:
            PA, PBb = 0, 40
            issue(PA); issue(PBb)
            lab("L_poll1")
            e("s_waitcnt vmcnt(12)"); check(PA, "L_poll1okA"); issue(PA)
            e("s_waitcnt vmcnt(12)"); check(PBb, "L_poll1okB"); issue(PBb)
            self.spin_dec("L_poll1")
            lab("L_poll1okA"); finish(PA); e("s_waitcnt vmcnt(0)"); e("s_branch L_poll1done")
            lab("L_poll1okB"); finish(PBb); e("s_waitcnt vmcnt(0)")
            lab("L_poll1done")

    def byrole(self, dst, a, b):
        e = self.e
        e(f"s_and_b32 {dst}, {sJ}, 1"); e(f"s_mul_i32 {dst}, {dst}, {b - a}"); e(f"s_add_u32 {dst}, {dst}, {a}")

    def lds_spin(self, label, addr_v, tmp_v, cmp_op, val, sleep):
        e, lab = self.e, self.lab
        e(f"s_mov_b32 {sSPIN}, {self.spin}")
        lab(label)
        e(f"ds_read_b32 v{tmp_v}, v{addr_v}"); e("s_waitcnt lgkmcnt(0)")
        e(f"v_readfirstlane_b32 {sT5}, v{tmp_v}"); e("s_nop 3")
        e(f"s_cmp_{cmp_op}_u32 {sT5}, {val}"); e(f"s_cbranch_scc1 {label}_ok")
        if sleep: e(f"s_sleep {sleep}")
        self.spin_dec(label)
        lab(label + "_ok")

    def wo_pipeline(self):
        e = self.e
        def issue(ks, R):
            e(f"s_mov_b32 {sT4}, {ks*32*896}"); e(f"s_mov_b32 {sT5}, {ks*32*896 + 4*896}")
            e(f"s_mov_b32 exec_lo, {sWOM}"); e(f"s_mov_b32 exec_hi, {sWOM}")
            for i in range(8):
                so = sT4 if i < 4 else sT5
                o = (i & 3) * 896
                e(f"buffer_load_dwordx4 v[{R+4*i}:{R+4*i+3}], v{hWO}, {SRD_WO}, {so} offen" + (f" offset:{o}" if o else ""))
            e("s_mov_b64 exec, -1")
        def proc(ks, R):
            TMP = 116
            n = 0
            for j in range(8):
                u = j >> 1; sel = sSEL_HI if (j & 1) else sSEL_LO
                for p in range(4):
                    tmp = TMP + (n % 8); n += 1
                    e(f"v_perm_b32 v{tmp}, v{R+4*(2*p+1)+u}, v{R+4*(2*p)+u}, {sel}")
                for p in range(4):
                    tmp = TMP + ((n - 4 + p) % 8)
                    e(f"v_accvgpr_write_b32 a{32*ks+4*j+p}, v{tmp}")
        for i in range(32, 64): e(f"v_mov_b32 v{i}, 0")
        issue(0, 0); issue(1, 32)
        e("s_waitcnt vmcnt(8)"); proc(0, 0); issue(2, 0)
        e("s_waitcnt vmcnt(8)"); proc(1, 32); issue(3, 32)
        e("s_waitcnt vmcnt(8)"); proc(2, 0)
        e("s_waitcnt vmcnt(0)"); proc(3, 32)

    def q32_phase(self):
        e, lab, c = self.e, self.lab, self.c
        c("wq DMA voffset: (l>>1)*8192 + (l&1)*16 + (kvh*512 + 16y)*2 ; x voffset: n*896 + g*16")
        hX = 0
        hA = 32
        hD = 48
        e(f"v_lshrrev_b32 v{vT}, 1, v{vLANE}"); e(f"v_lshlrev_b32 v{vT}, 13, v{vT}")
        e(f"v_and_b32 v{vT+1}, 1, v{vLANE}"); e(f"v_lshl_add_u32 v{vT}, v{vT+1}, 4, v{vT}")
        e(f"s_lshl_b32 {sT0}, {sKVH}, 10"); e(f"s_lshl_b32 {sT1}, {sY}, 5"); e(f"s_add_u32 {sT0}, {sT0}, {sT1}")
        e(f"v_add_u32 v{vDMA}, {sT0}, v{vT}")
        e(f"s_movk_i32 {sT1}, 896"); e(f"v_mul_lo_u32 v{vDMA+1}, v{vN}, {sT1}"); e(f"v_lshl_add_u32 v{vDMA+1}, v{vGQ}, 4, v{vDMA+1}")
        e(f"s_lshl_b32 {sWB}, {sHW}, 12"); e(f"s_add_u32 {sWB}, {sWB}, {WQS}")
        c("H0 zeroes the LDS counters")
        e(f"v_mov_b32 v{vT+2}, {CNT}")
        for i in range(4): e(f"v_mov_b32 v{vT+4+i}, 0")
        e(f"ds_write_b128 v{vT+2}, v[{vT+4}:{vT+7}] offset:16")
        if self.ldyn:
            self.byrole(sT3, self.ploA, self.ploB)
            e(f"v_mov_b32 v{vT+6}, 12"); e(f"v_mov_b32 v{vT+7}, {sT3}")
        e(f"ds_write_b128 v{vT+2}, v[{vT+4}:{vT+7}]")
        e("s_waitcnt lgkmcnt(0)")
        if self.dbgq: self.stamp(2)
        e(f"s_add_u32 s56, s46, {EPOCH_OFF:#x}"); e("s_addc_u32 s57, s47, 0")
        e(f"s_load_dwordx2 s[60:61], s[56:57], 0")
        self.srd(16, 38, 39, 3670016); self.srd(20, 32, 33, 28672)
        if self.qcontig:
            e(f"s_lshl_b32 {sT2}, {sHW}, 20"); e(f"s_lshl_b32 {sT3}, {sHW}, 8")
        else:
            e(f"s_lshl_b32 {sT2}, {sHW}, 18")
            e(f"s_lshl_b32 {sT3}, {sHW}, 6")
        for idx in range(4):
            if idx == 2 and self.qcontig:
                e(f"s_cmp_eq_u32 {sHW}, 3"); e("s_cbranch_scc1 L_hq_issued")
            if idx == 3 and not self.qcontig:
                e(f"s_cmp_ge_u32 {sHW}, 2"); e("s_cbranch_scc1 L_hq_issued")
            e(f"s_add_u32 m0, {sWB}, {idx*1024}")
            e(f"s_add_u32 {sT4}, {sT3}, 14336")
            if not self.nowq: e(f"buffer_load_dwordx4 v{vDMA}, {SRD_WQ}, {sT2} offen lds")
            if not self.nox:
                e(f"buffer_load_dwordx4 v[{hX+8*idx}:{hX+8*idx+3}], v{vDMA+1}, {SRD_X}, {sT3} offen")
                e(f"buffer_load_dwordx4 v[{hX+8*idx+4}:{hX+8*idx+7}], v{vDMA+1}, {SRD_X}, {sT4} offen")
            if idx < 3:
                if self.qcontig:
                    e(f"s_add_u32 {sT2}, {sT2}, 262144"); e(f"s_add_u32 {sT3}, {sT3}, 64")
                else:
                    e(f"s_add_u32 {sT2}, {sT2}, {4*262144}"); e(f"s_add_u32 {sT3}, {sT3}, 256")
        lab("L_hq_issued")
        if self.dbgq: self.stamp(3)
        if not self.nob0: e("s_barrier")
        if self.dbgq: self.stamp(4)
        self.srd(28, 46, 47, WS_BYTES); self.srd(24, 40, 41, 3670016)
        e("s_mov_b32 s34, s42"); e("s_mov_b32 s35, s43")
        c("tr-read address: wb + (8g + (i>>2))*32 + (i&3)*8  (+128 for second half, +1024*idx)")
        e(f"v_lshrrev_b32 v{vT}, 2, v{vN}"); e(f"v_lshl_add_u32 v{vT}, v{vGQ}, 3, v{vT}"); e(f"v_lshlrev_b32 v{vT}, 5, v{vT}")
        e(f"v_and_b32 v{vT+1}, 3, v{vN}"); e(f"v_lshl_add_u32 v{vT}, v{vT+1}, 3, v{vT}"); e(f"v_add_u32 v{vT}, {sWB}, v{vT}")
        for i in range(8): e(f"v_mov_b32 v{hD+i}, 0")
        c("partial write address: RED + hw*2048 + n*64 + g*16 (+1024 for h=1)")
        e(f"s_lshl_b32 {sT0}, {sHW}, 11"); e(f"s_add_u32 {sT0}, {sT0}, {RED}")
        e(f"v_lshlrev_b32 v{vT+2}, 6, v{vN}"); e(f"v_lshl_add_u32 v{vT+2}, v{vGQ}, 4, v{vT+2}"); e(f"v_add_u32 v{vT+2}, {sT0}, v{vT+2}")
        e("s_waitcnt vmcnt(0)")
        self.stamp(1)
        for idx in range(4):
            if idx == 2 and self.qcontig:
                e(f"s_cmp_eq_u32 {sHW}, 3"); e("s_cbranch_scc1 L_hq_mm")
            if idx == 3 and not self.qcontig:
                e(f"s_cmp_ge_u32 {sHW}, 2"); e("s_cbranch_scc1 L_hq_mm")
            e(f"ds_read_b64_tr_b16 v[{hA+4*idx}:{hA+4*idx+1}], v{vT} offset:{idx*1024}")
            e(f"ds_read_b64_tr_b16 v[{hA+4*idx+2}:{hA+4*idx+3}], v{vT} offset:{idx*1024+128}")
            e("s_waitcnt lgkmcnt(0)")
            for h in range(2):
                e(f"v_mfma_f32_16x16x32_bf16 v[{hD+4*h}:{hD+4*h+3}], v[{hA+4*idx}:{hA+4*idx+3}], v[{hX+8*idx+4*h}:{hX+8*idx+4*h+3}], v[{hD+4*h}:{hD+4*h+3}]")
        lab("L_hq_mm")
        self.nop(8)
        e(f"ds_write_b128 v{vT+2}, v[{hD}:{hD+3}]"); e(f"ds_write_b128 v{vT+2}, v[{hD+4}:{hD+7}] offset:1024")
        if self.nob0:
            c("launch tag: E' = E + C (64 bit); TL = low 16 bits << 16, sTAG = bits 16..47")
            e(f"s_add_u32 s60, s60, 0x7f4a7c15"); e(f"s_addc_u32 s61, s61, 0x9e3779b9")
            e(f"s_lshl_b32 {sTL}, s60, 16"); e(f"s_lshr_b32 {sTAG}, s60, 16"); e(f"s_lshl_b32 {sT1}, s61, 16"); e(f"s_or_b32 {sTAG}, {sTAG}, {sT1}")
            e(f"s_lshl_b32 {sT1}, {sHW}, 2"); e(f"s_add_u32 {sT1}, {sT1}, {CNT+32}")
            e(f"v_mov_b32 v{vT+3}, {sT1}"); e(f"v_mov_b32 v{vT+4}, {sTAG}")
            e("s_waitcnt lgkmcnt(0)")
            e(f"ds_write_b32 v{vT+3}, v{vT+4}")
            e(f"v_mov_b32 v{vT+3}, {CNT+32}")
        else:
            e(f"v_mov_b32 v{vT+3}, {CNT}"); e(f"v_mov_b32 v{vT+4}, 1")
            e("s_waitcnt lgkmcnt(0)")
            e("s_mov_b64 exec, 1"); e(f"ds_add_u32 v{vT+3}, v{vT+4}"); e("s_mov_b64 exec, -1")
        c("reduce read address: RED + rho*64 + cp*8, rho = 8hw + (l>>3), cp = l&7")
        e(f"v_lshrrev_b32 v{vT}, 3, v{vLANE}"); e(f"s_lshl_b32 {sT0}, {sHW}, 3"); e(f"v_add_u32 v{vT}, {sT0}, v{vT}")
        e(f"v_and_b32 v{vT+1}, 7, v{vLANE}")
        e(f"v_lshlrev_b32 v{vT+2}, 6, v{vT}"); e(f"v_lshl_add_u32 v{vT+2}, v{vT+1}, 3, v{vT+2}"); e(f"v_add_u32 v{vT+2}, {RED}, v{vT+2}")
        if True:
            if not self.nob0:
                c("launch tag: E' = E + C (64 bit); TL = low 16 bits << 16, sTAG = bits 16..47")
                e(f"s_add_u32 s60, s60, 0x7f4a7c15"); e(f"s_addc_u32 s61, s61, 0x9e3779b9")
                e(f"s_lshl_b32 {sTL}, s60, 16"); e(f"s_lshr_b32 {sTAG}, s60, 16"); e(f"s_lshl_b32 {sT1}, s61, 16"); e(f"s_or_b32 {sTAG}, {sTAG}, {sT1}")
            c("publish address: QM + ((kvh*8 + b)*32 + y)*512 + q*128 + cp*16 ; b = rho>>2, q = rho&3")
            e(f"v_lshrrev_b32 v{vT+4}, 2, v{vT}"); e(f"v_lshlrev_b32 v{vT+4}, 14, v{vT+4}")
            e(f"v_and_b32 v{vT+5}, 3, v{vT}"); e(f"v_lshl_add_u32 v{vT+4}, v{vT+5}, 7, v{vT+4}"); e(f"v_lshl_add_u32 v{vT+4}, v{vT+1}, 4, v{vT+4}")
            e(f"s_lshl_b32 {sT0}, {sKVH}, 17"); e(f"s_lshl_b32 {sT1}, {sY}, 9"); e(f"s_add_u32 {sT0}, {sT0}, {sT1}"); e(f"s_add_u32 {sT0}, {sT0}, {QM_BASE:#x}")
            e(f"s_mov_b32 {sSPIN}, {self.spin}")
            lab("L_hs1")
            if self.nob0:
                e(f"ds_read_b128 v[8:11], v{vT+3}"); e("s_waitcnt lgkmcnt(0)")
                e(f"v_xor_b32 v8, {sTAG}, v8"); e(f"v_xor_b32 v9, {sTAG}, v9"); e(f"v_xor_b32 v10, {sTAG}, v10"); e(f"v_xor_b32 v11, {sTAG}, v11")
                e("v_or3_b32 v8, v8, v9, v10"); e("v_or_b32 v8, v8, v11"); e("s_nop 0")
                e(f"v_readfirstlane_b32 {sT1}, v8"); e("s_nop 3")
                e(f"s_cmp_eq_u32 {sT1}, 0"); e("s_cbranch_scc1 L_hs1ok")
            else:
                e(f"ds_read_b32 v{vT+6}, v{vT+3}"); e("s_waitcnt lgkmcnt(0)")
                e(f"v_readfirstlane_b32 {sT1}, v{vT+6}"); e("s_nop 3")
                e(f"s_cmp_ge_u32 {sT1}, 4"); e("s_cbranch_scc1 L_hs1ok")
            self.spin_dec("L_hs1")
            lab("L_hs1ok")
            for w in range(4): e(f"ds_read_b64 v[{2*w}:{2*w+1}], v{vT+2} offset:{w*2048}")
            e("s_waitcnt lgkmcnt(0)")
            e("v_add_f32 v0, v0, v2"); e("v_add_f32 v1, v1, v3"); e("v_add_f32 v4, v4, v6"); e("v_add_f32 v5, v5, v7")
            e("v_add_f32 v0, v0, v4"); e("v_add_f32 v1, v1, v5")
            e("v_cvt_pk_bf16_f32 v0, v0, v1")
            c("granules {tl|val, tag}")
            e(f"v_and_b32 v4, 0xffff, v0"); e(f"v_lshrrev_b32 v6, 16, v0")
            e(f"v_or_b32 v4, {sTL}, v4"); e(f"v_or_b32 v6, {sTL}, v6"); e(f"v_mov_b32 v5, {sTAG}"); e(f"v_mov_b32 v7, {sTAG}")
            e(f"buffer_store_dwordx4 v[4:7], v{vT+4}, {SRD_WS}, {sT0} offen sc1")

    def build(self):
        e, lab, c = self.e, self.lab, self.c
        L = self.L
        L.append(HDR.rstrip())
        L.append(f"; @launch grid=(256,1,1) block=(512,1,1) lds={LDS_BYTES}")
        L.append('.amdgcn_target "amdgcn-amd-amdhsa--gfx950"')
        L.append(".text"); L.append(f".globl {NAME}_kernel"); L.append(".p2align 8"); L.append(f".type {NAME}_kernel,@function")
        lab(f"{NAME}_kernel")
        e(f"s_cmp_ge_u32 {sWG}, 256"); e("s_cbranch_scc1 L_end")
        e("s_load_dwordx16 s[32:47], s[0:1], 0")
        if self.errlog: e("s_mov_b32 s101, 0")
        self.stamp(0)
        if self.dbgspan: e("s_memrealtime s[100:101]")
        e(f"v_lshrrev_b32 v{vTMPA}, 6, v0")
        e(f"v_and_b32 v{vLANE}, 63, v0")
        e(f"s_and_b32 {sT0}, {sWG}, 7"); e(f"s_lshr_b32 {sT1}, {sWG}, 3")
        e(f"v_readfirstlane_b32 {sW}, v{vTMPA}")
        if self.pairmap and self.xmap == 3:
            c("pairs on XCDs x, x^3: kvh = 4*(x>>2) + 2*gray(x&3) + (y&1)")
            e(f"s_lshr_b32 {sT2}, {sT0}, 1"); e(f"s_xor_b32 {sT2}, {sT2}, {sT0}"); e(f"s_and_b32 {sT2}, {sT2}, 1"); e(f"s_lshl_b32 {sT2}, {sT2}, 1")
            e(f"s_and_b32 {sKVH}, {sT0}, 4"); e(f"s_add_u32 {sKVH}, {sKVH}, {sT2}"); e(f"s_and_b32 {sT2}, {sT1}, 1"); e(f"s_add_u32 {sKVH}, {sKVH}, {sT2}")
            e(f"s_and_b32 {sJ}, {sT0}, 1"); e(f"s_and_b32 {sT2}, {sT1}, 2"); e(f"s_add_u32 {sJ}, {sJ}, {sT2}")
            e(f"s_lshr_b32 {sB}, {sT1}, 2")
        elif self.pairmap and self.xmap == 9:
            c("pairs on XCDs e, e^m with m = 1 + 2*(y&3): every even XCD is paired with every odd one")
            e(f"s_and_b32 {sT2}, {sT1}, 3"); e(f"s_lshl_b32 {sT2}, {sT2}, 1"); e(f"s_add_u32 {sT2}, {sT2}, 1")
            e(f"s_and_b32 {sT3}, {sT0}, 1"); e(f"s_mul_i32 {sT2}, {sT2}, {sT3}"); e(f"s_xor_b32 {sT2}, {sT2}, {sT0}")
            e(f"s_and_b32 {sKVH}, {sT2}, 6"); e(f"s_and_b32 {sT2}, {sT1}, 1"); e(f"s_add_u32 {sKVH}, {sKVH}, {sT2}")
            e(f"s_and_b32 {sJ}, {sT0}, 1"); e(f"s_and_b32 {sT2}, {sT1}, 2"); e(f"s_add_u32 {sJ}, {sJ}, {sT2}")
            e(f"s_lshr_b32 {sB}, {sT1}, 2")
        elif self.pairmap and self.xmap == 5:
            c("pairs on XCDs x, x^5 : (0,5),(1,4),(2,7),(3,6): pair id = (x ^ (x&1)*5) >> 1 ... canonical even member e = x if even else x^5; kvh = (e & 6) + (y&1)")
            e(f"s_and_b32 {sT2}, {sT0}, 1"); e(f"s_mul_i32 {sT2}, {sT2}, 5"); e(f"s_xor_b32 {sT2}, {sT2}, {sT0}")
            e(f"s_and_b32 {sKVH}, {sT2}, 6"); e(f"s_and_b32 {sT2}, {sT1}, 1"); e(f"s_add_u32 {sKVH}, {sKVH}, {sT2}")
            e(f"s_and_b32 {sJ}, {sT0}, 1"); e(f"s_and_b32 {sT2}, {sT1}, 2"); e(f"s_add_u32 {sJ}, {sJ}, {sT2}")
            e(f"s_lshr_b32 {sB}, {sT1}, 2")
        elif self.pairmap:
            e(f"s_and_b32 {sKVH}, {sT0}, 6"); e(f"s_and_b32 {sT2}, {sT1}, 1"); e(f"s_add_u32 {sKVH}, {sKVH}, {sT2}")
            e(f"s_and_b32 {sJ}, {sT0}, 1"); e(f"s_and_b32 {sT2}, {sT1}, 2"); e(f"s_add_u32 {sJ}, {sJ}, {sT2}")
            e(f"s_lshr_b32 {sB}, {sT1}, 2")
        else:
            e(f"s_mov_b32 {sKVH}, {sT0}"); e(f"s_and_b32 {sJ}, {sT1}, 3"); e(f"s_lshr_b32 {sB}, {sT1}, 2")
        e(f"s_lshl_b32 {sY}, {sB}, 2"); e(f"s_add_u32 {sY}, {sY}, {sJ}")
        e(f"s_lshl_b32 {sLID}, {sY}, 3"); e(f"s_add_u32 {sLID}, {sLID}, {sKVH}")
        e(f"s_lshl_b32 {sG}, {sB}, 3"); e(f"s_add_u32 {sG}, {sG}, {sKVH}")
        e(f"v_and_b32 v{vN}, 15, v{vLANE}"); e(f"v_lshrrev_b32 v{vGQ}, 4, v{vLANE}")
        e(f"s_and_b32 {sHW}, {sW}, 3")
        e(f"s_lshl_b32 {sR}, {sKVH}, 2"); e(f"s_add_u32 {sR}, {sR}, {sJ}")
        e(f"s_cmp_ge_u32 {sW}, 4"); e("s_cbranch_scc1 L_helper")

        c("DMA voffsets")
        e(f"v_lshrrev_b32 v{vT}, 5, v{vLANE}"); e(f"v_and_b32 v{vT+1}, 31, v{vLANE}")
        e(f"v_lshlrev_b32 v{vT+2}, 9, v{vT}"); e(f"v_lshlrev_b32 v{vT+3}, 1, v{vT}")
        for i in range(4):
            e(f"v_xor_b32 v{vT+4}, {4*i}, v{vT+3}"); e(f"v_xor_b32 v{vT+4}, v{vT+4}, v{vT+1}")
            e(f"v_lshl_add_u32 v{vDMA+i}, v{vT+4}, 4, v{vT+2}")
            if self.split == 2 and i >= 2: e(f"v_add_u32 v{vDMA+i}, 6144, v{vDMA+i}")
            if self.split == 1 and i >= 1: e(f"v_add_u32 v{vDMA+i}, {3072*i}, v{vDMA+i}")
        if self.bal:
            e(f"s_lshl_b32 {sKOFF}, {sG}, 22"); e(f"s_lshr_b32 {sT0}, {sJ}, 1"); e(f"s_lshl_b32 {sT0}, {sT0}, 21"); e(f"s_add_u32 {sKOFF}, {sKOFF}, {sT0}")
            e(f"s_and_b32 {sT1}, {sJ}, 1"); e(f"s_mul_i32 {sT0}, {sT1}, {63*32768}"); e(f"s_add_u32 {sKOFF}, {sKOFF}, {sT0}")
            e(f"s_mul_i32 {sT1}, {sT1}, -65536"); e(f"s_add_u32 {sSTEP}, {sT1}, 32768")
            e(f"s_mov_b32 {sN}, 100000")
        else:
            e(f"s_lshl_b32 {sKOFF}, {sG}, 22"); e(f"s_lshl_b32 {sT0}, {sJ}, 20"); e(f"s_add_u32 {sKOFF}, {sKOFF}, {sT0}")
            e(f"s_mov_b32 {sSTEP}, 32768") if not self.dyn else None
        e(f"s_lshl_b32 {sT0}, {sW}, {dict([(4,12),(2,11),(1,10)])[self.split]}"); e(f"s_add_u32 {sKOFF}, {sKOFF}, {sT0}")
        e(f"s_lshl_b32 {sWB}, {sW}, 15")
        e("s_waitcnt lgkmcnt(0)")
        self.srd(8, 34, 35, 0x10000000); self.srd(12, 36, 37, 0x10000000)
        if self.dbgs: self.stamp(4)
        for hn in range(self.pre0): self.dma_half_static(hn)
        if self.dbgs: self.stamp(5)
        if not self.nob0: e("s_barrier")
        if self.dbgs: self.stamp(6)
        first = self.quiet if self.quiet else self.pace
        if self.q8v:
            assert self.pre0 == 2
            self.dma_half_static(4); self.dma_half_static(5)
        else:
            for hn in range(self.pre0, first): self.dma_half_static(hn)
        self.srd(28, 46, 47, WS_BYTES)
        c("K/V LDS read addresses")
        e(f"v_and_b32 v{vT}, 7, v{vN}"); e(f"v_lshlrev_b32 v{vT}, 1, v{vT}")
        e(f"v_lshlrev_b32 v{vT+1}, 9, v{vN}"); e(f"v_add_u32 v{vT+1}, {sWB}, v{vT+1}")
        for u in range(4):
            e(f"v_add_u32 v{vT+2}, {4*u}, v{vGQ}"); e(f"v_xor_b32 v{vT+2}, v{vT+2}, v{vT}"); e(f"v_lshl_add_u32 v{vKA+u}, v{vT+2}, 4, v{vT+1}")
        e(f"v_lshrrev_b32 v{vT}, 2, v{vN}"); e(f"v_lshl_add_u32 v{vT}, v{vGQ}, 2, v{vT}")
        e(f"v_and_b32 v{vT+1}, 7, v{vT}"); e(f"v_lshlrev_b32 v{vT+2}, 9, v{vT}")
        e(f"v_and_b32 v{vT+3}, 3, v{vN}"); e(f"v_lshl_add_u32 v{vT+2}, v{vT+3}, 3, v{vT+2}")
        e(f"s_add_u32 {sT0}, {sWB}, 16384"); e(f"v_add_u32 v{vT+2}, {sT0}, v{vT+2}")
        for u in range(8):
            e(f"v_xor_b32 v{vT+3}, {u}, v{vT+1}"); e(f"v_lshl_add_u32 v{vVA+u}, v{vT+3}, 5, v{vT+2}")
        c("init O, m, l, consts")
        for i in range(64): e(f"v_mov_b32 v{vO+i}, 0")
        e(f"v_mov_b32 v{vM}, 0xff7fffff"); e(f"v_mov_b32 v{vL}, 0")
        e(f"s_mov_b32 {sC}, {fbits(C_LOG2E_16):#x}"); e(f"s_mov_b32 {sNC}, {fbits(-C_LOG2E_16):#x}")
        e(f"v_lshlrev_b32 v{vLIN16}, 4, v{vLANE}")
        e(f"s_lshl_b32 {sT0}, {sG}, 2"); e(f"s_add_u32 {sT0}, {sT0}, {sW}"); e(f"s_lshl_b32 {sT0}, {sT0}, 2"); e(f"s_add_u32 {sT0}, {sT0}, {sJ}")
        e(f"s_mul_i32 {sM1OUT}, {sT0}, {M1_SLICE}")
        if self.dyn:
            e(f"s_mov_b32 {sN}, 100000"); e(f"s_lshl_b32 {sGB}, {sG}, 22")
            e(f"s_lshl_b32 {sGC}, {sG}, 7"); e(f"s_add_u32 {sGC}, {sGC}, {GC_BASE:#x}")
            e(f"s_lshl_b32 {sSTAT}, {sJ}, 2"); e(f"s_add_u32 {sSTAT}, {sSTAT}, {sW}"); e(f"s_add_u32 {sSTAT}, {sSTAT}, 48")
            e(f"v_mov_b32 v{vZERO}, 0")
        if self.ldyn:
            e(f"s_lshl_b32 {sGC}, {sG}, 22"); e(f"s_lshr_b32 {sT0}, {sJ}, 1"); e(f"s_lshl_b32 {sT0}, {sT0}, 21"); e(f"s_add_u32 {sGC}, {sGC}, {sT0}")
            e(f"s_and_b32 {sSTAT}, {sJ}, 1"); e(f"s_mul_i32 {sSTAT}, {sSTAT}, 255")
            e(f"v_mov_b32 v{vA+1}, 1"); e(f"v_mov_b32 v{vZERO}, {CNT+8}")
            self.byrole(sPLO, self.ploA, self.ploB)
        c("Q frag read address")
        e(f"s_movk_i32 {sT1}, {QROW}")
        e(f"v_and_b32 v{vT+5}, 7, v{vN}"); e(f"v_mul_lo_u32 v{vT+5}, v{vT+5}, {sT1}"); e(f"v_lshl_add_u32 v{vT+5}, v{vGQ}, 4, v{vT+5}"); e(f"v_add_u32 v{vT+5}, {QB}, v{vT+5}")
        if self.q8v:
            c("q8v prologue: K0 K1 [K0->regs] K2 | staging free | V0 V1 [V0->regs] V2")
            e("s_waitcnt vmcnt(8)")
            self.read_k()
            e(f"s_add_u32 {sT3}, {sKOFF}, {sSTEP}"); e(f"s_add_u32 {sT3}, {sT3}, {sSTEP}")
            e(f"s_mov_b32 {sKSLOT}, {sWB}"); e(f"s_add_u32 {sVSLOT}, {sWB}, 16384")
            e("s_waitcnt lgkmcnt(0)")
            self.dma_tile(SRD_K, sT3, sKSLOT)
            e(f"s_xor_b32 {sKSLOT}, {sKSLOT}, 8192")
            for u in range(4): e(f"v_xor_b32 v{vKA+u}, 8192, v{vKA+u}")
            e(f"v_mov_b32 v{vT+6}, {CNT+20}")
            self.lds_spin("L_sfree", vT+6, vT+7, "ge", 4, 2)
            for hn in (2, 3, 6, 7): self.dma_half_static(hn)
            e("s_waitcnt vmcnt(8)")
            self.read_v()
            e(f"s_add_u32 {sT3}, {sKOFF}, {sSTEP}"); e(f"s_add_u32 {sT3}, {sT3}, {sSTEP}")
            e("s_waitcnt lgkmcnt(0)")
            self.dma_tile(SRD_V, sT3, sVSLOT)
            e(f"s_xor_b32 {sVSLOT}, {sVSLOT}, 8192")
            for u in range(8): e(f"v_xor_b32 v{vVA+u}, 8192, v{vVA+u}")
            e(f"s_add_u32 {sKOFF}, {sT3}, {sSTEP}"); e(f"s_mov_b32 {sVOFF}, {sKOFF}")
        else:
            c("paced fill of halves: K0a K0b V0a V0b K1a K1b V1a V1b, then K2 (slot A after reading K0)")
            P = self.pace
            if self.quiet:
                e("s_barrier")
                for hn in range(max(self.quiet, self.pre0), P): self.dma_half_static(hn)
            if self.q8:
                assert P <= 4 and not self.quiet
                for hn in range(max(P, self.pre0), 4):
                    e(f"s_waitcnt vmcnt({4*(P-1)})")
                    self.dma_half_static(hn)
                e(f"v_mov_b32 v{vT+6}, {CNT+20}")
                self.lds_spin("L_sfree", vT+6, vT+7, "ge", 4, 2)
                for hn in range(4, 8):
                    e(f"s_waitcnt vmcnt({4*(P-1)})")
                    self.dma_half_static(hn)
            else:
              for hn in range(max(P, self.quiet, self.pre0), 8):
                e(f"s_waitcnt vmcnt({4*(P-1)})")
                self.dma_half_static(hn)
                if hn == max(P, 2) + 1 - (0 if P <= 2 else 0) and False: pass
            c("K0 landed")
            e("s_waitcnt vmcnt(24)")
            self.read_k()
            if self.dyn:
                e(f"s_add_u32 {sKOFF}, {sKOFF}, 65536")
            else:
                e(f"s_add_u32 {sKOFF}, {sKOFF}, {sSTEP}"); e(f"s_add_u32 {sKOFF}, {sKOFF}, {sSTEP}")
            e(f"s_mov_b32 {sVOFF}, {sKOFF}")
            e(f"s_mov_b32 {sKSLOT}, {sWB}"); e(f"s_add_u32 {sVSLOT}, {sWB}, 16384")
            e(f"s_add_u32 {sT4}, {sKOFF}, 16384")
            e(f"s_waitcnt vmcnt({4*(P-1)}) lgkmcnt(0)")
            e(f"s_mov_b32 m0, {sKSLOT}"); e("s_nop 0")
            self.dma_half(SRD_K, sKOFF)
            e(f"s_waitcnt vmcnt({4*(P-1)})")
            e(f"s_add_u32 m0, {sKSLOT}, 4096"); e("s_nop 0")
            self.dma_half(SRD_K, sT4)
            e(f"s_add_u32 {sKOFF}, {sKOFF}, {32768 if self.dyn else sSTEP}"); e(f"s_xor_b32 {sKSLOT}, {sKSLOT}, 8192")
            for u in range(4): e(f"v_xor_b32 v{vKA+u}, 8192, v{vKA+u}")
            if self.v0pre:
                c("V0 -> regs, refill V2")
                e("s_waitcnt vmcnt(24)")
                self.read_v()
                e(f"s_add_u32 {sT4}, {sVOFF}, 16384")
                e(f"s_waitcnt vmcnt({4*(P-1)}) lgkmcnt(0)")
                e(f"s_mov_b32 m0, {sVSLOT}"); e("s_nop 0")
                self.dma_half(SRD_V, sVOFF)
                e(f"s_waitcnt vmcnt({4*(P-1)})")
                e(f"s_add_u32 m0, {sVSLOT}, 4096"); e("s_nop 0")
                self.dma_half(SRD_V, sT4)
                e(f"s_add_u32 {sVOFF}, {sVOFF}, {32768 if self.dyn else sSTEP}"); e(f"s_xor_b32 {sVSLOT}, {sVSLOT}, 8192")
                for u in range(8): e(f"v_xor_b32 v{vVA+u}, 8192, v{vVA+u}")
        if not self.rate: self.stamp(1)
        e("s_barrier")
        for s in range(8):
            e(f"ds_read_b128 a[{AQ+4*s}:{AQ+4*s+3}], v{vT+5}" + (f" offset:{s*64}" if s else ""))
        e(f"s_mov_b32 {sT}, 0")
        e("s_waitcnt lgkmcnt(0)")
        self.stamp(2)

        if self.order2:
            self.loop2()
        else:
            self.loop1()
        lab("L_tail")
        t0, t1, t2 = vT, vT+1, vT+2
        self.stamp(3)
        e(f"v_mov_b32 v{t1}, v{vL}"); e("s_nop 1")
        e(f"v_permlane32_swap_b32 v{t1}, v{vL}"); e(f"v_add_f32 v{vL}, v{vL}, v{t1}")
        e(f"v_mov_b32 v{t1}, v{vL}"); e("s_nop 1")
        e(f"v_permlane16_swap_b32 v{t1}, v{vL}"); e(f"v_add_f32 v{vL}, v{vL}, v{t1}")
        e(f"s_movk_i32 {sT1}, {OWROW}"); e(f"v_mul_lo_u32 v{vODUMP}, v{vN}, {sT1}")
        e(f"v_lshl_add_u32 v{vODUMP}, v{vGQ}, 4, v{vODUMP}"); e(f"v_add_u32 v{vODUMP}, {sWB}, v{vODUMP}")
        e(f"s_lshl_b32 {sT0}, {sW}, 6"); e(f"s_add_u32 {sT0}, {sT0}, {STB}")
        e(f"v_lshlrev_b32 v{t2}, 3, v{vN}"); e(f"v_add_u32 v{t2}, {sT0}, v{t2}")
        e("s_mov_b32 exec_lo, 0x00ff00ff"); e("s_mov_b32 exec_hi, 0x00ff00ff")
        for t in range(16):
            e(f"ds_write_b128 v{vODUMP}, v[{vO+4*t}:{vO+4*t+3}]" + (f" offset:{t*64}" if t else ""))
        e("s_mov_b64 exec, 0xff")
        e(f"ds_write_b64 v{t2}, v[{vM}:{vM+1}]")
        e("s_mov_b64 exec, -1")
        e(f"v_and_b32 v{vT}, 3, v{vLANE}"); e(f"v_lshrrev_b32 v{vT+1}, 2, v{vLANE}")
        e(f"s_lshr_b32 {sT0}, {sW}, 1"); e(f"s_lshl_b32 {sT0}, {sT0}, 2")
        e(f"v_add_u32 v{vT}, {sT0}, v{vT}")
        e(f"v_mul_lo_u32 v{vT2A}, v{vT}, {sT1}"); e(f"v_lshl_add_u32 v{vT2A}, v{vT+1}, 5, v{vT2A}")
        e(f"s_and_b32 {sT0}, {sW}, 1"); e(f"s_lshl_b32 {sT0}, {sT0}, 9"); e(f"v_add_u32 v{vT2A}, {sT0}, v{vT2A}")
        e(f"v_add_u32 v{vT2B}, 65536, v{vT2A}")
        e(f"v_lshlrev_b32 v{vT+2}, 3, v{vT}"); e(f"v_add_u32 v{vT+2}, {STB}, v{vT+2}")
        if self.wolate:
            e("s_waitcnt lgkmcnt(0)")
            e(f"v_mov_b32 v{vT+3}, {CNT+24}"); e(f"v_mov_b32 v{vT+4}, 1"); e("s_mov_b64 exec, 1"); e(f"ds_add_u32 v{vT+3}, v{vT+4}"); e("s_mov_b64 exec, -1")
            self.lds_spin("L_sb2", vT+3, vT+4, "ge", 4, 0)
        else:
            e("s_waitcnt lgkmcnt(0)"); e("s_barrier")
        if not self.rate and not self.dbgs: self.stamp(4)
        for w in range(4): e(f"ds_read_b64 v[{2*w}:{2*w+1}], v{vT+2} offset:{w*64}")
        for w in range(4):
            for u in range(2):
                a = vT2A if w < 2 else vT2B
                o = (w & 1) * 32768 + u * 16
                e(f"ds_read_b128 v[{8+8*w+4*u}:{8+8*w+4*u+3}], v{a}" + (f" offset:{o}" if o else ""))
        e("s_waitcnt lgkmcnt(8)")
        e("v_max3_f32 v40, v0, v2, v4"); e("v_max_f32 v40, v40, v6")
        for w in range(4): e(f"v_sub_f32 v{44+w}, v{2*w}, v40")
        for w in range(4): e(f"v_mul_f32 v{44+w}, {sC}, v{44+w}")
        for w in range(4): e(f"v_exp_f32 v{44+w}, v{44+w}")
        e("s_nop 0")
        e("v_mul_f32 v41, v44, v1"); e("v_fmac_f32 v41, v45, v3"); e("v_fmac_f32 v41, v46, v5"); e("v_fmac_f32 v41, v47, v7")
        e("s_waitcnt lgkmcnt(0)")
        for k in range(8): e(f"v_mul_f32 v{48+k}, v44, v{8+k}")
        for w in range(1, 4):
            for k in range(8): e(f"v_fmac_f32 v{48+k}, v{44+w}, v{8+8*w+k}")
        e(f"buffer_store_dwordx4 v[48:51], v{vLIN16}, {SRD_WS}, {sM1OUT} offen sc1")
        e(f"buffer_store_dwordx4 v[52:55], v{vLIN16}, {SRD_WS}, {sM1OUT} offen offset:1024 sc1")
        e(f"v_lshlrev_b32 v{vT}, 3, v{vLANE}")
        e("s_mov_b64 exec, 0xf")
        e(f"buffer_store_dwordx2 v[40:41], v{vT}, {SRD_WS}, {sM1OUT} offen offset:2048 sc1")
        e("s_mov_b64 exec, -1")
        if not self.rate and not self.dbgs: self.stamp(5)
        if self.wolate:
            e(f"s_cmp_lg_u32 {sW}, 0"); e("s_cbranch_scc1 L_fin")
            c("S0: hop 1 (T3)")
            e(f"s_lshl_b32 {sT0}, {sG}, 2"); e(f"s_add_u32 {sT0}, {sT0}, {sJ}"); e(f"s_mul_i32 {sT0}, {sT0}, {4*M1_SLICE}")
            e(f"s_add_u32 {sT1}, {sT0}, {M1_SLICE}"); e(f"s_add_u32 {sT2}, {sT0}, {2*M1_SLICE}"); e(f"s_add_u32 {sT3}, {sT0}, {3*M1_SLICE}")
            e(f"v_and_b32 v112, 3, v{vLANE}"); e(f"v_lshlrev_b32 v112, 3, v112")
            e(f"v_and_b32 v113, 3, v{vLANE}"); e(f"s_movk_i32 {sT4}, {OROW}"); e(f"v_mul_lo_u32 v113, v113, {sT4}")
            e(f"v_lshrrev_b32 v{vT}, 2, v{vLANE}"); e(f"v_lshl_add_u32 v113, v{vT}, 4, v113"); e(f"v_add_u32 v113, {OB}, v113")
            e(f"v_mov_b32 v{vT+1}, {CNT+28}")
            self.lds_spin("L_scf", vT+1, vT+2, "ge", 1, 4)
            self.t3(112, 113, (sT0, sT1, sT2, sT3), vLIN16)
            e("s_waitcnt lgkmcnt(0)"); e("s_barrier")
        e("s_branch L_fin")

        lab("L_helper")
        if self.hexit:
            e("s_waitcnt lgkmcnt(0)"); self.srd(28, 46, 47, WS_BYTES)
            e("s_barrier"); e("s_barrier"); e("s_barrier")
            if self.quiet: e("s_barrier")
            e("s_branch L_fin")
        if self.hprio: e(f"s_setprio {self.hprio}")
        if self.q8:
            c("Q phase (q8): 8 rows (batch pair) x 64 columns per WG, staged through the not yet used ring slots")
            FIRST = [0, 4, 8, 11]; NST = [4, 4, 3, 3]
            e(f"v_lshrrev_b32 v{vT}, 3, v{vLANE}"); e(f"v_lshlrev_b32 v{vT}, 13, v{vT}")
            e(f"v_and_b32 v{vT+1}, 7, v{vLANE}"); e(f"v_lshl_add_u32 v{vT}, v{vT+1}, 4, v{vT}")
            e(f"s_and_b32 {sT2}, {sY}, 7")
            e(f"s_lshl_b32 {sT0}, {sKVH}, 10"); e(f"s_lshl_b32 {sT1}, {sT2}, 7"); e(f"s_add_u32 {sT0}, {sT0}, {sT1}")
            e(f"v_add_u32 v{vDMA}, {sT0}, v{vT}")
            e(f"v_lshlrev_b32 v{vDMA+1}, 4, v{vLANE}")
            c("H0 zeroes the LDS counters")
            e(f"v_mov_b32 v{vT+2}, {CNT}")
            for i in range(4): e(f"v_mov_b32 v{vT+4+i}, 0")
            e(f"ds_write_b128 v{vT+2}, v[{vT+4}:{vT+7}] offset:16")
            if self.ldyn:
                self.byrole(sT3, self.ploA, self.ploB)
                e(f"v_mov_b32 v{vT+6}, 12"); e(f"v_mov_b32 v{vT+7}, {sT3}")
            e(f"ds_write_b128 v{vT+2}, v[{vT+4}:{vT+7}]")
            c("first step: 4*hw (hw<3) or 11 ; soffset = step*262144")
            e(f"s_lshl_b32 {sT2}, {sHW}, 2"); e(f"s_cmp_eq_u32 {sHW}, 3"); e(f"s_cselect_b32 {sT2}, 11, {sT2}"); e(f"s_lshl_b32 {sT2}, {sT2}, 18")
            e(f"s_lshl_b32 {sWB}, {sHW}, 15")
            e(f"s_lshr_b32 {sT3}, {sB}, 1"); e(f"s_mul_i32 {sT3}, {sT3}, 7168"); e(f"s_lshl_b32 {sT4}, {sHW}, 11"); e(f"s_add_u32 {sT3}, {sT3}, {sT4}")
            e(f"s_add_u32 {sT4}, {sT4}, {WQS}")
            e("s_waitcnt lgkmcnt(0)")
            if self.dbgq: self.stamp(2)
            e(f"s_add_u32 s56, s46, {EPOCH_OFF:#x}"); e("s_addc_u32 s57, s47, 0")
            e(f"s_load_dwordx2 s[60:61], s[56:57], 0")
            self.srd(16, 38, 39, 3670016); self.srd(20, 32, 33, 28672)
            e(f"s_mov_b32 m0, {sT4}"); e("s_nop 0")
            e(f"buffer_load_dwordx4 v{vDMA+1}, {SRD_X}, {sT3} offen lds")
            e(f"buffer_load_dwordx4 v{vDMA+1}, {SRD_X}, {sT3} offen offset:1024 lds")
            def wq_issue(endlab):
                for ls in range(4):
                    if ls == 3:
                        e(f"s_cmp_ge_u32 {sHW}, 2"); e(f"s_cbranch_scc1 {endlab}")
                    slot = (16384 + ls * 4096) if self.q8v else (8192 + ls * 4096 if ls < 2 else 24576 + (ls - 2) * 4096)
                    for i in range(4):
                        e(f"s_add_u32 m0, {sWB}, {slot + i*1024}")
                        if ls or i: e(f"s_add_u32 {sT2}, {sT2}, 65536")
                        else: e("s_nop 0")
                        e(f"buffer_load_dwordx4 v{vDMA}, {SRD_WQ}, {sT2} offen lds")
                lab(endlab)
            if self.qrot:
                c("the 4 WGs (batch pairs) that share these wq columns fetch a different part first; the rest then hits in L2")
                e(f"s_lshr_b32 {sT5}, {sB}, 1"); e(f"s_cmp_lg_u32 {sHW}, {sT5}"); e("s_cbranch_scc1 L_hq_late")
                wq_issue("L_hq_issued")
                e("s_barrier")
                e("s_waitcnt vmcnt(0)")
                e(f"v_mov_b32 v{vT+3}, {CNT+24}"); e(f"v_mov_b32 v{vT+4}, 1"); e(f"ds_write_b32 v{vT+3}, v{vT+4}")
                e("s_branch L_hq_go")
                lab("L_hq_late")
                e("s_barrier")
                e(f"v_mov_b32 v{vT+3}, {CNT+24}")
                self.lds_spin("L_hqw", vT+3, vT+4, "ge", 1, 1)
                wq_issue("L_hq_issued2")
                lab("L_hq_go")
            else:
                wq_issue("L_hq_issued")
                if self.dbgq: self.stamp(3)
                e("s_barrier")
            if self.dbgq: self.stamp(4)
            self.srd(28, 46, 47, WS_BYTES); self.srd(24, 40, 41, 3670016)
            e("s_mov_b32 s34, s42"); e("s_mov_b32 s35, s43")
            c("A tr-read base: (8g + (i>>2))*128 + (i&3)*8 + hw*32 ; B read base: WQS + (n&7)*896 + g*16")
            vTR0, vTR1, vXB = vT, vT+1, vT+2
            e(f"v_lshrrev_b32 v{vTR0}, 2, v{vN}"); e(f"v_lshl_add_u32 v{vTR0}, v{vGQ}, 3, v{vTR0}"); e(f"v_lshlrev_b32 v{vTR0}, 7, v{vTR0}")
            e(f"v_and_b32 v{vTR1}, 3, v{vN}"); e(f"v_lshl_add_u32 v{vTR0}, v{vTR1}, 3, v{vTR0}")
            e(f"s_lshl_b32 {sT0}, {sHW}, 5"); e(f"v_add_u32 v{vTR0}, {sT0}, v{vTR0}"); e(f"v_add_u32 v{vTR1}, 65536, v{vTR0}")
            e(f"v_and_b32 v{vXB}, 7, v{vN}"); e(f"s_movk_i32 {sT1}, 896"); e(f"v_mul_lo_u32 v{vXB}, v{vXB}, {sT1}"); e(f"v_lshl_add_u32 v{vXB}, v{vGQ}, 4, v{vXB}"); e(f"v_add_u32 v{vXB}, {WQS}, v{vXB}")
            hD = 48
            for i in range(4): e(f"v_mov_b32 v{hD+i}, 0")
            e(f"v_mov_b32 v{vT+3}, {CNT}"); e(f"v_mov_b32 v{vT+4}, 1")
            e("s_waitcnt vmcnt(0)")
            self.stamp(1)
            e("s_mov_b64 exec, 1"); e(f"ds_add_u32 v{vT+3}, v{vT+4}"); e("s_mov_b64 exec, -1")
            c("publish address while waiting: QM + ((kvh*8 + b')*32 + 4*y8 + hw)*512 + q*128 + (2g + (n>>3))*16 ; b' = (b&~1) + ((n&7)>>2), q = n&3")
            e(f"v_bfe_u32 v{vT+5}, v{vN}, 2, 1"); e(f"v_lshlrev_b32 v{vT+5}, 14, v{vT+5}")
            e(f"v_and_b32 v{vT+6}, 3, v{vN}"); e(f"v_lshl_add_u32 v{vT+5}, v{vT+6}, 7, v{vT+5}")
            e(f"v_lshrrev_b32 v{vT+6}, 3, v{vN}"); e(f"v_lshl_add_u32 v{vT+6}, v{vGQ}, 1, v{vT+6}"); e(f"v_lshl_add_u32 v{vT+5}, v{vT+6}, 4, v{vT+5}")
            e(f"s_lshl_b32 {sT0}, {sKVH}, 3"); e(f"s_and_b32 {sT1}, {sB}, 6"); e(f"s_add_u32 {sT0}, {sT0}, {sT1}"); e(f"s_lshl_b32 {sT0}, {sT0}, 14")
            e(f"s_and_b32 {sT1}, {sY}, 7"); e(f"s_lshl_b32 {sT1}, {sT1}, 2"); e(f"s_add_u32 {sT1}, {sT1}, {sHW}"); e(f"s_lshl_b32 {sT1}, {sT1}, 9")
            e(f"s_add_u32 {sT0}, {sT0}, {sT1}"); e(f"s_add_u32 {sT0}, {sT0}, {QM_BASE:#x}")
            e(f"s_mov_b32 {sSPIN}, {self.spin}")
            lab("L_hs1")
            e(f"ds_read_b32 v{vT+6}, v{vT+3}"); e("s_waitcnt lgkmcnt(0)")
            e(f"v_readfirstlane_b32 {sT1}, v{vT+6}"); e("s_nop 3")
            e(f"s_cmp_ge_u32 {sT1}, 4"); e("s_cbranch_scc1 L_hs1ok")
            self.spin_dec("L_hs1")
            lab("L_hs1ok")
            def rd(sg):
                p = max(k for k in range(4) if FIRST[k] <= sg); ls = sg - FIRST[p]
                slot = (16384 + ls * 4096) if self.q8v else (8192 + ls * 4096 if ls < 2 else 24576 + (ls - 2) * 4096)
                base = (p & 1) * 32768 + slot; ar = vTR0 if p < 2 else vTR1
                R = 8 * (sg % 5)
                e(f"ds_read_b64_tr_b16 v[{R}:{R+1}], v{ar} offset:{base}")
                e(f"ds_read_b64_tr_b16 v[{R+2}:{R+3}], v{ar} offset:{base+512}")
                e(f"ds_read_b128 v[{R+4}:{R+7}], v{vXB}" + (f" offset:{sg*64}" if sg else ""))
            for sg in range(4): rd(sg)
            for sg in range(14):
                if sg + 4 < 14: rd(sg + 4)
                outstanding = min(4, 13 - sg)
                e(f"s_waitcnt lgkmcnt({3*outstanding})")
                R = 8 * (sg % 5)
                e(f"v_mfma_f32_16x16x32_bf16 v[{hD}:{hD+3}], v[{R}:{R+3}], v[{R+4}:{R+7}], v[{hD}:{hD+3}]")
            c("staging is free now: tell the streamers")
            e(f"v_mov_b32 v{vT+3}, {CNT+20}"); e(f"v_mov_b32 v{vT+4}, 1")
            e("s_mov_b64 exec, 1"); e(f"ds_add_u32 v{vT+3}, v{vT+4}"); e("s_mov_b64 exec, -1")
            c("launch tag: E' = E + C (64 bit); TL = low 16 bits << 16, sTAG = bits 16..47")
            e(f"s_add_u32 s60, s60, 0x7f4a7c15"); e(f"s_addc_u32 s61, s61, 0x9e3779b9")
            e(f"s_lshl_b32 {sTL}, s60, 16"); e(f"s_lshr_b32 {sTAG}, s60, 16"); e(f"s_lshl_b32 {sT1}, s61, 16"); e(f"s_or_b32 {sTAG}, {sTAG}, {sT1}")
            e(f"v_cmp_gt_u32 vcc, 8, v{vN}")
            self.nop(2)
            e(f"v_cndmask_b32 v0, v{hD+2}, v{hD}, vcc"); e(f"v_cndmask_b32 v1, v{hD+3}, v{hD+1}, vcc")
            e("v_cvt_pk_bf16_f32 v0, v0, v1")
            e(f"v_and_b32 v4, 0xffff, v0"); e(f"v_lshrrev_b32 v6, 16, v0")
            e(f"v_or_b32 v4, {sTL}, v4"); e(f"v_or_b32 v6, {sTL}, v6"); e(f"v_mov_b32 v5, {sTAG}"); e(f"v_mov_b32 v7, {sTAG}")
            e(f"buffer_store_dwordx4 v[4:7], v{vT+5}, {SRD_WS}, {sT0} offen sc1")
        else:
            self.q32_phase()
        if True:
            self.stamp(2) if not self.dbgq else None
            if self.quiet: e("s_barrier")
            e(f"v_lshlrev_b32 v{vLIN16}, 4, v{vLANE}")
            c("poll own 4 KB: QM + (kvh*8+b)*16384 + hw*4096 + i*1024 + l*16")
            e(f"s_lshl_b32 {sT0}, {sKVH}, 3"); e(f"s_add_u32 {sT0}, {sT0}, {sB}"); e(f"s_lshl_b32 {sT0}, {sT0}, 14"); e(f"s_lshl_b32 {sT1}, {sHW}, 12")
            e(f"s_add_u32 {sT0}, {sT0}, {sT1}"); e(f"s_add_u32 {sT0}, {sT0}, {QM_BASE:#x}")
            c("LDS write address: QB + (4h+q)*528 + (128*(hw&1) + 16yy + 2cp)*2 ; yy = 2i + (l>>5), q=(l&31)>>3, cp=l&7, h=hw>>1")
            e(f"v_bfe_u32 v{vT}, v{vLANE}, 3, 2")
            e(f"s_lshr_b32 {sT1}, {sHW}, 1"); e(f"s_lshl_b32 {sT1}, {sT1}, 2"); e(f"v_add_u32 v{vT}, {sT1}, v{vT}")
            e(f"s_movk_i32 {sT1}, {QROW}"); e(f"v_mul_lo_u32 v{vT}, v{vT}, {sT1}")
            e(f"v_lshrrev_b32 v{vT+1}, 5, v{vLANE}"); e(f"v_lshl_add_u32 v{vT}, v{vT+1}, 5, v{vT}")
            e(f"v_and_b32 v{vT+1}, 7, v{vLANE}"); e(f"v_lshl_add_u32 v{vT}, v{vT+1}, 2, v{vT}")
            e(f"s_and_b32 {sT1}, {sHW}, 1"); e(f"s_lshl_b32 {sT1}, {sT1}, 8"); e(f"s_add_u32 {sT1}, {sT1}, {QB}"); e(f"v_add_u32 v{vT}, {sT1}, v{vT}")
            e(f"s_mov_b32 {sSPIN}, {self.spin}"); e(f"s_mov_b32 {sT2}, 0xffff0000"); e(f"s_mov_b32 {sT3}, 0x05040100")
            if self.qdelay: e(f"s_waitcnt vmcnt(0)")
            lab("L_hq_poll")
            for i in range(4):
                e(f"buffer_load_dwordx4 v[{8+4*i}:{8+4*i+3}], v{vLIN16}, {SRD_WS}, {sT0} offen" + (f" offset:{i*1024}" if i else "") + " sc1")
            e("s_waitcnt vmcnt(0)")
            for i in range(4):
                b = 8 + 4*i
                e(f"v_and_b32 v{24+2*i}, {sT2}, v{b}"); e(f"v_and_b32 v{25+2*i}, {sT2}, v{b+2}")
                e(f"v_xor_b32 v{24+2*i}, {sTL}, v{24+2*i}"); e(f"v_xor_b32 v{25+2*i}, {sTL}, v{25+2*i}")
                e(f"v_xor_b32 v{32+2*i}, {sTAG}, v{b+1}"); e(f"v_xor_b32 v{33+2*i}, {sTAG}, v{b+3}")
            e("v_or3_b32 v24, v24, v25, v26"); e("v_or3_b32 v27, v27, v28, v29"); e("v_or3_b32 v30, v30, v31, v32"); e("v_or3_b32 v33, v33, v34, v35")
            e("v_or3_b32 v36, v36, v37, v38"); e("v_or3_b32 v24, v24, v27, v30"); e("v_or3_b32 v33, v33, v36, v39"); e("v_or_b32 v24, v24, v33")
            e("v_cmp_ne_u32 vcc, 0, v24"); e("s_nop 1"); e("s_cbranch_vccz L_hq_ok")
            self.spin_dec("L_hq_poll")
            lab("L_hq_ok")
            if not self.dbgq: self.stamp(3)
            for i in range(4):
                b = 8 + 4*i
                e(f"v_perm_b32 v{24+i}, v{b+2}, v{b}, {sT3}")
            for i in range(4):
                e(f"ds_write_b32 v{vT}, v{24+i}" + (f" offset:{i*64}" if i else ""))
            e("s_waitcnt lgkmcnt(0)")
            if not self.dbgq: self.stamp(4)
        lab("L_hq_done")
        e("s_barrier")
        self.srd(48, 34, 35, 28672)
        if self.wopf and not self.pflate:
            c("L2 prefetch of this WG's 1/8 share of the wo quarter: rows r*128 + 16b .. +16 (14336 B contiguous); wave hw: 4KB pieces")
            e(f"s_lshl_b32 {sT0}, {sR}, 7"); e(f"s_lshl_b32 {sT1}, {sB}, 4"); e(f"s_add_u32 {sT0}, {sT0}, {sT1}"); e(f"s_mul_i32 {sT0}, {sT0}, 896")
            e(f"s_lshl_b32 {sT1}, {sHW}, 12"); e(f"s_add_u32 {sT0}, {sT0}, {sT1}")
            for i in range(4):
                e(f"buffer_load_dwordx4 v[{8+4*i}:{8+4*i+3}], v{vLIN16}, {SRD_WO}, {sT0} offen" + (f" offset:{i*1024}" if i else ""))
        c("clears: M1[g][recv=hw][sender=j] (2176B) and M2[b][r][hw] (2048B)")
        e(f"s_lshl_b32 {sT0}, {sG}, 2"); e(f"s_add_u32 {sT0}, {sT0}, {sHW}"); e(f"s_lshl_b32 {sT0}, {sT0}, 2"); e(f"s_add_u32 {sT0}, {sT0}, {sJ}")
        e(f"s_mul_i32 {sM1OUT}, {sT0}, {M1_SLICE}")
        e(f"s_lshl_b32 {sT0}, {sB}, 5"); e(f"s_add_u32 {sT0}, {sT0}, {sR}"); e(f"s_lshl_b32 {sT0}, {sT0}, 13"); e(f"s_lshl_b32 {sT1}, {sHW}, 11")
        e(f"s_add_u32 {sM2OUT}, {sT0}, {sT1}"); e(f"s_add_u32 {sM2OUT}, {sM2OUT}, {M2_BASE:#x}")
        for i in range(4): e(f"v_mov_b32 v{i}, -1")
        if not self.noclr:
            e(f"buffer_store_dwordx4 v[0:3], v{vLIN16}, {SRD_WS}, {sM1OUT} offen sc1")
            e(f"buffer_store_dwordx4 v[0:3], v{vLIN16}, {SRD_WS}, {sM1OUT} offen offset:1024 sc1")
            e(f"buffer_store_dwordx4 v[0:3], v{vLIN16}, {SRD_WS}, {sM2OUT} offen sc1")
            e(f"buffer_store_dwordx4 v[0:3], v{vLIN16}, {SRD_WS}, {sM2OUT} offen offset:1024 sc1")
        e("s_mov_b64 exec, 0xff")
        e(f"buffer_store_dwordx4 v[0:3], v{vLIN16}, {SRD_WS}, {sM1OUT} offen offset:2048 sc1")
        if self.dyn:
            c("group counter := 0 (j==0, hw==0)")
            e(f"s_or_b32 {sT0}, {sJ}, {sHW}"); e(f"s_cmp_lg_u32 {sT0}, 0"); e("s_cbranch_scc1 L_hnogc")
            e("s_mov_b64 exec, 1"); e(f"v_mov_b32 v4, 0"); e(f"s_lshl_b32 {sT0}, {sG}, 7"); e(f"s_add_u32 {sT0}, {sT0}, {GC_BASE:#x}")
            e(f"buffer_store_dword v4, v4, {SRD_WS}, {sT0} offen sc1")
            lab("L_hnogc")
        e("s_mov_b64 exec, -1")
        e("s_waitcnt vmcnt(0)")
        if self.dbgmid: self.stamp(1)
        c("last helper wave signals clears done: lane r' writes CF[consumer wg' = (r'>>2) + 32b + 8(r'&3)][r] := tag")
        e(f"v_mov_b32 v{vT+4}, 1"); e(f"v_mov_b32 v{vT+3}, {CNT+4}")
        e("s_mov_b64 exec, 1")
        e(f"ds_add_rtn_u32 v{vT+6}, v{vT+3}, v{vT+4}"); e("s_waitcnt lgkmcnt(0)")
        e(f"v_readfirstlane_b32 {sT1}, v{vT+6}"); e("s_nop 3")
        e("s_mov_b64 exec, -1")
        e(f"s_cmp_eq_u32 {sT1}, {3 if self.hop1 else 7}"); e("s_cbranch_scc0 L_hnoflag2")
        e(f"v_lshrrev_b32 v{vT+5}, 2, v{vLANE}"); e(f"v_and_b32 v{vT+6}, 3, v{vLANE}"); e(f"v_lshl_add_u32 v{vT+5}, v{vT+6}, 3, v{vT+5}")
        e(f"v_lshlrev_b32 v{vT+5}, 7, v{vT+5}"); e(f"v_mov_b32 v{vT+4}, {sTAG}")
        e(f"s_lshl_b32 {sT4}, {sB}, 12"); e(f"s_lshl_b32 {sT5}, {sR}, 2"); e(f"s_add_u32 {sT4}, {sT4}, {sT5}"); e(f"s_add_u32 {sT4}, {sT4}, {CF_BASE:#x}")
        e("s_mov_b32 exec_lo, -1"); e("s_mov_b32 exec_hi, 0")
        e(f"buffer_store_dword v{vT+4}, v{vT+5}, {SRD_WS}, {sT4} offen sc1")
        lab("L_hnoflag2")
        e("s_mov_b64 exec, -1")
        c("wo: load, transpose, park in AGPRs a[0:127]")
        e(f"s_mov_b32 {sSEL_LO}, 0x05040100"); e(f"s_mov_b32 {sSEL_HI}, 0x07060302")
        e(f"s_lshl_b32 {sT0}, {sR}, 7")
        if self.wosame: e(f"s_mov_b32 {sT0}, 0")
        e(f"v_lshlrev_b32 v{vT}, 3, v{vGQ}"); e(f"v_add_u32 v{vT}, {sT0}, v{vT}")
        e(f"s_movk_i32 {sT1}, 896"); e(f"v_mul_lo_u32 v{vT}, v{vT}, {sT1}")
        e(f"s_mul_i32 {sT0}, {sHW}, {256 if self.wo128 else 224}"); e(f"v_lshl_add_u32 v{vT}, v{vN}, 4, v{vT}"); e(f"v_add_u32 v{vT}, {sT0}, v{vT}")
        if self.wo128:
            c("wave 3 owns only 64 columns: lanes m>=8 stay zero")
            for i in range(32): e(f"v_mov_b32 v{i}, 0")
            e(f"s_cmp_eq_u32 {sHW}, 3"); e(f"s_cselect_b32 {sT2}, 0x00ff00ff, -1")
        if self.wolate:
            e(f"v_mov_b32 v{hWO}, v{vT}"); e(f"s_mov_b32 {sWOM}, {sT2}")
        for ks in range(4):
            if self.nowo or self.wolate: break
            kk = 0 if self.wosame else ks
            e(f"s_mov_b32 {sT0}, {kk*32*896}"); e(f"s_mov_b32 {sT1}, {kk*32*896 + 4*896}")
            if self.wo128: e(f"s_mov_b32 exec_lo, {sT2}"); e(f"s_mov_b32 exec_hi, {sT2}")
            for i in range(8):
                so = sT0 if i < 4 else sT1
                o = (i & 3) * 896
                e(f"buffer_load_dwordx4 v[{4*i}:{4*i+3}], v{vT}, {SRD_WO}, {so} offen" + (f" offset:{o}" if o else ""))
                if self.wopace < 8 and (i + 1) % self.wopace == 0: e("s_waitcnt vmcnt(0)")
            if self.wo128: e("s_mov_b64 exec, -1")
            e("s_waitcnt vmcnt(0)")
            for j in range(8):
                u = j >> 1; sel = sSEL_HI if (j & 1) else sSEL_LO
                for p in range(4):
                    e(f"v_perm_b32 v{32+4*j+p}, v{4*(2*p+1)+u}, v{4*(2*p)+u}, {sel}")
            for k in range(32): e(f"v_accvgpr_write_b32 a{32*ks+k}, v{32+k}")
        if self.dbgmid: self.stamp(2)
        c("wait until all WGs of batch b have cleared their outboxes: dword at kvh*32+4b == 0x01010101 for all kvh")
        e(f"s_cmp_lg_u32 {sHW}, 0"); e("s_cbranch_scc1 L_hclrok")
        e(f"s_lshl_b32 {sT0}, {sLID}, 7"); e(f"s_add_u32 {sT0}, {sT0}, {CF_BASE:#x}")
        e(f"v_and_b32 v{vT+1}, 31, v{vLANE}"); e(f"v_lshlrev_b32 v{vT+1}, 2, v{vT+1}")
        e(f"s_mov_b32 {sSPIN}, {self.spin}")
        lab("L_hclr")
        e(f"buffer_load_dword v{vT+2}, v{vT+1}, {SRD_WS}, {sT0} offen sc1"); e("s_waitcnt vmcnt(0)")
        e(f"v_cmp_ne_u32 vcc, {sTAG}, v{vT+2}"); e("s_nop 1"); e("s_cbranch_vccz L_hclrok")
        e("s_sleep 16")
        self.spin_dec("L_hclr")
        lab("L_hclrok")
        if self.wolate:
            e(f"s_cmp_lg_u32 {sHW}, 0"); e("s_cbranch_scc1 L_hnocf")
            e(f"v_mov_b32 v{vT+1}, {CNT+28}"); e(f"v_mov_b32 v{vT+2}, 1"); e(f"ds_write_b32 v{vT+1}, v{vT+2}")
            lab("L_hnocf")
        if self.dyn:
            e(f"s_cmp_lg_u32 {sHW}, 0"); e("s_cbranch_scc1 L_hnodyn")
            e(f"v_mov_b32 v{vT+1}, {CNT+8}"); e(f"v_mov_b32 v{vT+2}, 1"); e(f"ds_write_b32 v{vT+1}, v{vT+2}")
            lab("L_hnodyn")
        if self.dbgmid: self.stamp(3)
        if self.ldyn:
            c("H0: late balance exchange with partner (lid ^ 8). LDS: CNT+8 tile counter, CNT+12 limit, CNT+16 final")
            e(f"s_cmp_lg_u32 {sHW}, 0"); e("s_cbranch_scc1 L_hbaldone")
            e(f"v_mov_b32 v{vT}, {CNT+8}"); e(f"s_mov_b32 {sSPIN}, {self.spin}")
            lab("L_hb0")
            e(f"ds_read_b32 v0, v{vT}"); e("s_waitcnt lgkmcnt(0)")
            e(f"v_readfirstlane_b32 {sT0}, v0"); e("s_nop 3")
            e(f"s_cmp_ge_u32 {sT0}, {self.t0s}"); e("s_cbranch_scc1 L_hb0ok")
            e("s_sleep 32"); self.spin_dec("L_hb0")
            lab("L_hb0ok")
            e("s_memrealtime s[8:9]"); e("s_waitcnt lgkmcnt(0)")
            e(f"s_lshl_b32 {sT1}, {sLID}, 7"); e(f"s_add_u32 {sT1}, {sT1}, {BAL_BASE:#x}")
            e(f"s_add_u32 s10, s46, {sT1}"); e("s_addc_u32 s11, s47, 0")
            if self.asym: self.byrole(sT4, self.ploA - self.tmarg, self.ploB - self.tmarg)
            else: e(f"s_mov_b32 {sT4}, {self.t1s}")
            c("s64 = clamp lo for nA, s65 = clamp hi for nA, s66 = round, s67 = partner mailbox offset")
            e(f"s_mov_b32 s64, {self.ploA}"); e(f"s_mov_b32 s65, {256-self.ploB}"); e("s_mov_b32 s66, 0")
            e(f"s_xor_b32 s67, {sLID}, 8"); e("s_lshl_b32 s67, s67, 7"); e(f"s_add_u32 s67, s67, {BAL_BASE:#x}")
            lab("L_hbround")
            e(f"s_mov_b32 {sSPIN}, {self.spin}")
            lab("L_hb1")
            e(f"ds_read_b32 v0, v{vT}"); e("s_load_dwordx8 s[12:19], s[10:11], 0 glc"); e("s_waitcnt lgkmcnt(0)")
            e(f"v_readfirstlane_b32 {sT2}, v0"); e("s_nop 3")
            e(f"s_cmp_ge_u32 {sT2}, {sT4}"); e("s_cbranch_scc1 L_hb1ok")
            e(f"s_cmp_eq_u32 s17, {sTAG}"); e("s_cbranch_scc1 L_hb1ok")
            e("s_sleep 12"); self.spin_dec("L_hb1")
            lab("L_hb1ok")
            e("s_memrealtime s[20:21]"); e("s_waitcnt lgkmcnt(0)")
            c("publish {T0|T1<<16, tag, tau0, tag} {tau1, tag}")
            e(f"s_lshl_b32 {sT3}, {sT2}, 16"); e(f"s_or_b32 {sT3}, {sT3}, {sT0}")
            e(f"v_mov_b32 v4, {sT3}"); e(f"v_mov_b32 v5, {sTAG}"); e("v_mov_b32 v6, s8"); e(f"v_mov_b32 v7, {sTAG}"); e("v_mov_b32 v8, s20"); e(f"v_mov_b32 v9, {sTAG}"); e("v_mov_b32 v10, 0")
            e("s_mov_b64 exec, 1")
            e(f"buffer_store_dwordx4 v[4:7], v10, {SRD_WS}, s67 offen sc1")
            e(f"buffer_store_dwordx2 v[8:9], v10, {SRD_WS}, s67 offen offset:16 sc1")
            e(f"s_mov_b32 {sSPIN}, {self.spin}")
            lab("L_hb2")
            e("s_load_dwordx8 s[12:19], s[10:11], 0 glc"); e("s_waitcnt lgkmcnt(0)")
            e(f"s_xor_b32 s22, s13, {sTAG}"); e(f"s_xor_b32 s23, s15, {sTAG}"); e("s_or_b32 s22, s22, s23"); e(f"s_xor_b32 s23, s17, {sTAG}"); e("s_or_b32 s22, s22, s23")
            e("s_cmp_eq_u32 s22, 0"); e("s_cbranch_scc1 L_hb2ok")
            e("s_sleep 4"); self.spin_dec("L_hb2")
            e("v_mov_b32 v20, s64"); e("s_mov_b32 s66, 1"); e("s_branch L_hbn")
            lab("L_hb2ok")
            e(f"s_and_b32 {sT1}, {sJ}, 1"); e(f"s_cmp_eq_u32 {sT1}, 0")
            e(f"s_cselect_b32 s22, {sT3}, s12"); e("s_cselect_b32 s23, s8, s14"); e("s_cselect_b32 s9, s20, s16")
            e(f"s_cselect_b32 s12, s12, {sT3}"); e("s_cselect_b32 s14, s14, s8"); e("s_cselect_b32 s16, s16, s20")
            e("s_lshr_b32 s13, s22, 16"); e("s_and_b32 s22, s22, 0xffff")
            e("s_lshr_b32 s15, s12, 16"); e("s_and_b32 s12, s12, 0xffff")
            e("s_sub_u32 s22, s13, s22"); e("s_sub_u32 s23, s9, s23")
            e("s_sub_u32 s12, s15, s12"); e("s_sub_u32 s14, s16, s14")
            e("s_sub_u32 s16, s16, s9")
            e("v_cvt_f32_u32 v0, s22"); e("v_cvt_f32_u32 v1, s23"); e("v_cvt_f32_u32 v2, s12"); e("v_cvt_f32_u32 v3, s14")
            e("v_cvt_f32_i32 v4, s16"); e("v_cvt_f32_u32 v5, s13"); e("v_cvt_f32_u32 v6, s15")
            c("pA = dtauA/dTA (time per tile), pB = dtauB/dTB ; n = (delta + TA*pA + (256 - TB)*pB) / (pA + pB)")
            e("v_rcp_f32 v0, v0"); e("v_rcp_f32 v2, v2"); e("s_nop 0")
            e("v_mul_f32 v1, v1, v0"); e("v_mul_f32 v3, v3, v2")
            e(f"v_sub_f32 v6, {fbits(256.0):#x}, v6")
            e("v_fmac_f32 v4, v5, v1"); e("v_fmac_f32 v4, v6, v3")
            e("v_add_f32 v6, v1, v3"); e("v_rcp_f32 v6, v6"); e("s_nop 0")
            e("v_mul_f32 v5, v4, v6"); e("v_add_f32 v5, 0.5, v5"); e("v_cvt_i32_f32 v20, v5")
            e("v_max_i32 v20, s64, v20"); e("v_min_i32 v20, s65, v20")
            lab("L_hbn")
            e("s_nop 0"); e(f"v_readfirstlane_b32 s22, v20"); e("s_nop 3")
            e(f"v_mov_b32 v22, {CNT+12}")
            if self.rounds2:
                e("s_cmp_lg_u32 s66, 0"); e("s_cbranch_scc1 L_hbfinal")
                c("round 1: provisional limits pA = max(ploA, nA - delta), pB = max(ploB, 256 - nA - delta)")
                e(f"s_sub_u32 s23, s22, {self.delta}"); e("s_max_i32 s64, s64, s23")
                e(f"s_sub_u32 s23, {256 - self.delta}, s22"); e(f"s_max_i32 s23, s23, {self.ploB}")
                e("s_sub_u32 s65, 256, s23")
                e(f"s_and_b32 {sT1}, {sJ}, 1"); e(f"s_cmp_eq_u32 {sT1}, 0"); e("s_cselect_b32 s23, s64, s23")
                e("v_mov_b32 v21, s23"); e("ds_write_b32 v22, v21")
                e(f"s_sub_u32 {sT4}, s23, {self.tmarg2}")
                e("s_mov_b32 s8, s20"); e(f"s_mov_b32 {sT0}, {sT2}")
                e("s_add_u32 s10, s10, 32"); e("s_addc_u32 s11, s11, 0"); e("s_add_u32 s67, s67, 32")
                e("s_mov_b32 s66, 1"); e("s_mov_b64 exec, -1")
                e("s_branch L_hbround")
                lab("L_hbfinal")
            e(f"s_and_b32 {sT1}, {sJ}, 1"); e(f"s_cmp_eq_u32 {sT1}, 0"); e("s_cbranch_scc1 L_hb3")
            e("s_sub_u32 s22, 256, s22")
            lab("L_hb3")
            e("v_mov_b32 v20, s22"); e("v_mov_b32 v21, 1")
            e("ds_write_b32 v22, v20"); e("s_waitcnt lgkmcnt(0)"); e("ds_write_b32 v22, v21 offset:4")
            e("s_mov_b64 exec, -1")
            lab("L_hbaldone")
        elif self.bal:
            c("H0: balance exchange with partner (lid ^ 8)")
            e(f"s_cmp_lg_u32 {sHW}, 0"); e("s_cbranch_scc1 L_hbaldone")
            e(f"v_mov_b32 v{vT}, {CNT+8}"); e(f"s_mov_b32 {sSPIN}, {self.spin}")
            lab("L_hbal1")
            e(f"ds_read_b64 v[0:1], v{vT}"); e("s_waitcnt lgkmcnt(0)")
            e(f"v_readfirstlane_b32 {sT0}, v1"); e("s_nop 3")
            e(f"s_cmp_lg_u32 {sT0}, 0"); e("s_cbranch_scc1 L_hbal1ok")
            e("s_sleep 32")
            self.spin_dec("L_hbal1")
            lab("L_hbal1ok")
            c("v0 = a (time at ta), v1 = c (time at tb): publish {a, tag, c, tag}")
            e(f"v_mov_b32 v4, v0"); e(f"v_mov_b32 v5, {sTAG}"); e(f"v_mov_b32 v6, v1"); e(f"v_mov_b32 v7, {sTAG}"); e("v_mov_b32 v8, 0")
            e(f"s_xor_b32 {sT0}, {sLID}, 8"); e(f"s_lshl_b32 {sT0}, {sT0}, 7"); e(f"s_add_u32 {sT0}, {sT0}, {BAL_BASE:#x}")
            e("s_mov_b64 exec, 1")
            e(f"buffer_store_dwordx4 v[4:7], v8, {SRD_WS}, {sT0} offen sc1")
            e(f"s_lshl_b32 {sT0}, {sLID}, 7"); e(f"s_add_u32 {sT0}, {sT0}, {BAL_BASE:#x}")
            e(f"s_mov_b32 {sSPIN}, {self.spin}")
            lab("L_hbal2")
            e(f"buffer_load_dwordx4 v[12:15], v8, {SRD_WS}, {sT0} offen sc1"); e("s_waitcnt vmcnt(0)")
            e(f"v_xor_b32 v16, {sTAG}, v13"); e(f"v_xor_b32 v17, {sTAG}, v15"); e("v_or_b32 v16, v16, v17")
            e("s_nop 0"); e(f"v_readfirstlane_b32 {sT1}, v16"); e("s_nop 3")
            e(f"s_cmp_eq_u32 {sT1}, 0"); e("s_cbranch_scc1 L_hbal2ok")
            e("s_sleep 16")
            self.spin_dec("L_hbal2")
            c("timeout: both sides cannot agree -> cannot happen in a healthy run; use N = 32")
            e("v_mov_b32 v20, 32"); e("s_branch L_hbal3")
            lab("L_hbal2ok")
            c("A = role 0, B = role 1: (aA,cA) in v[0:1] / (aB,cB) in v12,v14 for role 0; swapped for role 1")
            e(f"s_and_b32 {sT1}, {sJ}, 1"); e(f"s_cmp_eq_u32 {sT1}, 0")
            e("s_cbranch_scc1 L_hbalA")
            e("v_mov_b32 v18, v0"); e("v_mov_b32 v19, v1"); e("v_mov_b32 v0, v12"); e("v_mov_b32 v1, v14"); e("v_mov_b32 v12, v18"); e("v_mov_b32 v14, v19")
            lab("L_hbalA")
            e("v_sub_u32 v2, v1, v0"); e("v_sub_u32 v3, v14, v12"); e("v_sub_u32 v4, v14, v1")
            e("v_cvt_f32_i32 v2, v2"); e("v_cvt_f32_i32 v3, v3"); e("v_cvt_f32_i32 v4, v4")
            nint = self.tb - self.ta
            e(f"v_mul_f32 v5, {fbits(float(nint)):#x}, v4")
            e(f"v_mov_b32 v6, {fbits(float(64-self.tb)):#x}"); e("v_fmac_f32 v5, v6, v3")
            e(f"v_mov_b32 v6, {fbits(float(self.tb)):#x}"); e("v_fmac_f32 v5, v6, v2")
            e("v_add_f32 v6, v2, v3"); e("v_rcp_f32 v6, v6"); e("s_nop 0")
            e("v_mul_f32 v5, v5, v6"); e("v_add_f32 v5, 0.5, v5"); e("v_cvt_i32_f32 v20, v5")
            e(f"v_max_i32 v20, {self.nlo}, v20"); e(f"v_min_i32 v20, {64-self.nlo}, v20")
            e(f"s_cbranch_scc1 L_hbal3")
            e("v_sub_u32 v20, 64, v20")
            lab("L_hbal3")
            e(f"v_mov_b32 v21, {CNT+16}"); e("ds_write_b32 v21, v20")
            e("s_mov_b64 exec, -1")
            lab("L_hbaldone")
        e(f"s_mov_b32 {sC}, {fbits(C_LOG2E_16):#x}")
        c("precompute tail addresses")
        e(f"s_lshl_b32 {sT0}, {sG}, 2"); e(f"s_add_u32 {sT0}, {sT0}, {sJ}"); e(f"s_mul_i32 {sT0}, {sT0}, {4*M1_SLICE}")
        e(f"s_add_u32 {sT1}, {sT0}, {M1_SLICE}"); e(f"s_add_u32 {sT2}, {sT0}, {2*M1_SLICE}"); e(f"s_add_u32 {sT3}, {sT0}, {3*M1_SLICE}")
        hST = 108
        e(f"v_and_b32 v{hST}, 3, v{vLANE}"); e(f"v_lshlrev_b32 v{hST}, 3, v{hST}")
        hOW, hOR, hYS, hP2, hOUT = 109, 110, 111, 112, 113
        e(f"v_and_b32 v{hOW}, 3, v{vLANE}"); e(f"s_movk_i32 {sT4}, {OROW}"); e(f"v_mul_lo_u32 v{hOW}, v{hOW}, {sT4}")
        e(f"v_lshrrev_b32 v{vT}, 2, v{vLANE}"); e(f"v_lshl_add_u32 v{hOW}, v{vT}, 4, v{hOW}"); e(f"v_add_u32 v{hOW}, {OB}, v{hOW}")
        e(f"v_and_b32 v{hOR}, 3, v{vN}"); e(f"v_mul_lo_u32 v{hOR}, v{hOR}, {sT4}"); e(f"v_lshl_add_u32 v{hOR}, v{vGQ}, 4, v{hOR}"); e(f"v_add_u32 v{hOR}, {OB}, v{hOR}")
        e(f"v_lshlrev_b32 v{hYS}, 6, v{vGQ}"); e(f"v_lshl_add_u32 v{hYS}, v{vN}, 4, v{hYS}")
        e(f"v_lshlrev_b32 v{hP2}, 16, v{vGQ}"); e(f"v_lshl_add_u32 v{hP2}, v{vN}, 4, v{hP2}")
        e(f"v_and_b32 v{hOUT}, 3, v{vN}"); e(f"s_lshl_b32 {sT4}, {sB}, 2"); e(f"v_add_u32 v{hOUT}, {sT4}, v{hOUT}")
        e(f"s_movk_i32 {sT4}, 896"); e(f"v_mul_lo_u32 v{hOUT}, v{hOUT}, {sT4}")
        e(f"v_lshrrev_b32 v{vT}, 2, v{vN}"); e(f"v_lshl_add_u32 v{hOUT}, v{vT}, 6, v{hOUT}")
        e(f"s_lshl_b32 s58, {sB}, 18"); e(f"s_lshr_b32 {sT4}, {sR}, 3"); e(f"s_lshl_b32 {sT4}, {sT4}, 11"); e(f"s_add_u32 s58, s58, {sT4}")
        e(f"s_and_b32 {sT4}, {sR}, 7"); e(f"s_lshl_b32 {sT4}, {sT4}, 8"); e(f"s_add_u32 s58, s58, {sT4}"); e(f"s_add_u32 s58, s58, {M2_BASE:#x}")
        e(f"s_lshr_b32 s59, {sR}, 3"); e(f"s_mul_i32 s59, s59, {256 if self.wo128 else 224}"); e(f"s_and_b32 {sT4}, {sR}, 7"); e(f"s_lshl_b32 {sT4}, {sT4}, 1"); e(f"s_add_u32 s59, s59, {sT4}")
        self.stamp(5)
        if not self.wolate:
            e("s_barrier")
            if self.notail: e("s_branch L_fin")
            e(f"s_cmp_lg_u32 {sHW}, 0"); e("s_cbranch_scc1 L_t3done")
            self.t3(hST, hOW, (sT0, sT1, sT2, sT3), vLIN16)
        else:
            if self.pflate:
                c("late L2 prefetch of this WG's 1/8 share: when the tile counter is within pflate tiles of the limit")
                e(f"v_mov_b32 v{vT+1}, {CNT+8}"); e(f"s_mov_b32 {sSPIN}, {self.spin}")
                lab("L_hpf")
                e(f"ds_read_b32 v{vT+2}, v{vT+1}"); e(f"ds_read2_b32 v[{vT+4}:{vT+5}], v{vT+1} offset0:1 offset1:2"); e("s_waitcnt lgkmcnt(0)")
                e(f"v_readfirstlane_b32 {sT4}, v{vT+2}"); e(f"v_readfirstlane_b32 {sT5}, v{vT+4}"); e(f"v_readfirstlane_b32 s64, v{vT+5}"); e("s_nop 3")
                e(f"s_add_u32 {sT4}, {sT4}, {self.pflate}")
                e(f"s_cmp_ge_u32 {sT4}, {sT5}"); e(f"s_cselect_b32 {sT4}, s64, 0"); e(f"s_cmp_lg_u32 {sT4}, 0"); e("s_cbranch_scc1 L_hpf_ok")
                e("s_sleep 16"); self.spin_dec("L_hpf")
                lab("L_hpf_ok")
                e(f"s_lshl_b32 {sT4}, {sR}, 7"); e(f"s_lshl_b32 {sT5}, {sB}, 4"); e(f"s_add_u32 {sT4}, {sT4}, {sT5}"); e(f"s_mul_i32 {sT4}, {sT4}, 896")
                e(f"s_lshl_b32 {sT5}, {sHW}, 12"); e(f"s_add_u32 {sT4}, {sT4}, {sT5}")
                for i in range(4):
                    e(f"buffer_load_dwordx4 v[{68+4*i}:{68+4*i+3}], v{vLIN16}, {SRD_WO}, {sT4} offen" + (f" offset:{i*1024}" if i else ""))
            c("wait until all streamers have issued their last DMA, then load wo (L2 hits) behind them")
            e(f"v_mov_b32 v{vT+1}, {CNT+20}")
            self.lds_spin("L_hiss", vT+1, vT+2, "ge", 4, 8)
            self.wo_pipeline()
        lab("L_t3done")
        e("s_waitcnt lgkmcnt(0)"); e("s_barrier")
        self.stamp(6)
        BF = 64 + 48 - 64 + 40
        BF = 40
        for ks in range(4):
            e(f"ds_read_b128 v[{BF+4*ks}:{BF+4*ks+3}], v{hOR}" + (f" offset:{ks*64}" if ks else ""))
        YA = 0
        e("s_waitcnt lgkmcnt(0)")
        for ks in range(4):
            for j in range(8):
                A = 32*ks + 4*j
                cc = "0" if ks == 0 else f"v[{YA+4*j}:{YA+4*j+3}]"
                e(f"v_mfma_f32_16x16x32_bf16 v[{YA+4*j}:{YA+4*j+3}], a[{A}:{A+3}], v[{BF+4*ks}:{BF+4*ks+3}], {cc}")
        e("s_mov_b32 exec_lo, 0x000f000f"); e("s_mov_b32 exec_hi, 0x000f000f")
        self.nop(6)
        for j in range(8):
            e(f"buffer_store_dwordx4 v[{YA+4*j}:{YA+4*j+3}], v{hYS}, {SRD_WS}, {sM2OUT} offen offset:{j*256} sc1")
        e("s_mov_b64 exec, -1")
        e(f"s_cmp_lg_u32 {sHW}, 0"); e("s_cbranch_scc1 L_fin")
        e(f"s_mov_b32 {sSPIN}, {self.spin}")
        def issue2(PB):
            for i in range(8):
                if i == 0: so = "s58"
                else:
                    e(f"s_add_u32 {sT1}, s58, {i*8192}"); so = sT1
                e(f"buffer_load_dwordx4 v[{PB+4*i}:{PB+4*i+3}], v{hP2}, {SRD_WS}, {so} offen sc1")
        def check2(PB, oklab):
            mx = 60
            e(f"v_max3_u32 v{mx}, v{PB}, v{PB+1}, v{PB+2}")
            for k in range(3, 31, 2): e(f"v_max3_u32 v{mx}, v{mx}, v{PB+k}, v{PB+k+1}")
            e(f"v_max_u32 v{mx}, v{mx}, v{PB+31}")
            e(f"v_cmp_eq_u32 vcc, -1, v{mx}"); e("s_nop 1"); e(f"s_cbranch_vccz {oklab}")
        def sum2(PB):
            for k in range(4): e(f"v_add_f32 v{32+k}, v{PB+k}, v{PB+4+k}")
            for i in range(2, 8):
                for k in range(4): e(f"v_add_f32 v{32+k}, v{32+k}, v{PB+4*i+k}")
        if not self.pipoll:
            lab("L_poll2"); issue2(64); e("s_waitcnt vmcnt(0)"); check2(64, "L_poll2ok"); self.spin_dec("L_poll2")
            lab("L_poll2ok"); sum2(64)
        else:
            PA, PBb = 64, 0
            issue2(PA); issue2(PBb)
            lab("L_poll2")
            e("s_waitcnt vmcnt(8)"); check2(PA, "L_poll2okA"); issue2(PA)
            e("s_waitcnt vmcnt(8)"); check2(PBb, "L_poll2okB"); issue2(PBb)
            self.spin_dec("L_poll2")
            lab("L_poll2okA"); sum2(PA); e("s_branch L_poll2done")
            lab("L_poll2okB"); sum2(PBb)
            lab("L_poll2done")
        for k in range(4): e(f"v_mov_b32 v{36+k}, v{32+k}")
        e("s_nop 0")
        for k in range(4): e(f"v_permlane32_swap_b32 v{36+k}, v{32+k}")
        for k in range(4): e(f"v_add_f32 v{32+k}, v{32+k}, v{36+k}")
        for k in range(4): e(f"v_mov_b32 v{36+k}, v{32+k}")
        e("s_nop 0")
        for k in range(4): e(f"v_permlane16_swap_b32 v{36+k}, v{32+k}")
        for k in range(4): e(f"v_add_f32 v{32+k}, v{32+k}, v{36+k}")
        e("v_cvt_pk_bf16_f32 v40, v32, v33"); e("v_cvt_pk_bf16_f32 v41, v34, v35")
        if self.wo128:
            e(f"s_cmp_ge_u32 {sR}, 24"); e(f"s_cselect_b32 {sT1}, 0xff, -1"); e(f"s_and_b32 exec_lo, {sT1}, 0xffff"); e("s_mov_b32 exec_hi, 0")
        else:
            e("s_mov_b64 exec, 0xffff")
        e(f"buffer_store_short v40, v{hOUT}, {SRD_OUT}, s59 offen{self.outsc}")
        e(f"buffer_store_short_d16_hi v40, v{hOUT}, {SRD_OUT}, s59 offen offset:16{self.outsc}")
        if not self.wo128: e("s_mov_b64 exec, 0xfff")
        e(f"buffer_store_short v41, v{hOUT}, {SRD_OUT}, s59 offen offset:32{self.outsc}")
        e(f"buffer_store_short_d16_hi v41, v{hOUT}, {SRD_OUT}, s59 offen offset:48{self.outsc}")
        e(f"s_cmp_lg_u32 {sLID}, 0"); e("s_cbranch_scc1 L_noep")
        e("s_mov_b64 exec, 1")
        e(f"v_mov_b32 v42, s60"); e(f"v_mov_b32 v43, s61"); e(f"v_mov_b32 v44, 0"); e(f"s_mov_b32 {sT0}, {EPOCH_OFF:#x}")
        e(f"buffer_store_dwordx2 v[42:43], v44, {SRD_WS}, {sT0} offen sc1")
        lab("L_noep")
        e("s_mov_b64 exec, -1")
        lab("L_fin")
        if self.errlog:
            e("s_cmp_eq_u32 s101, 0"); e("s_cbranch_scc1 L_noerr")
            self.srd(52, 44, 45, 256)
            e("s_mov_b64 exec, 1"); e("v_mov_b32 v0, s101"); e(f"v_mov_b32 v1, {sLID}"); e(f"v_mov_b32 v2, {sW}"); e(f"v_mov_b32 v3, {sWG}"); e("v_mov_b32 v4, 0")
            e(f"s_and_b32 s100, {sWG}, 15"); e("s_lshl_b32 s100, s100, 4")
            e(f"buffer_store_dwordx4 v[0:3], v4, {SRD_DBG}, s100 offen sc1"); e("s_waitcnt vmcnt(0)")
            lab("L_noerr")
        if self.dbgspan:
            c("debug: WGs 0,85,170,255 -> dwords 4k..: start, loop begin, loop end (S0), fin (H0)")
            e("s_memrealtime s[98:99]"); e("s_waitcnt vmcnt(0) lgkmcnt(0)")
            e(f"s_mul_i32 s97, {sWG}, 3"); e("s_mul_hi_u32 s96, s97, 0x1010102"); e("s_mul_i32 s95, s96, 255"); e("s_cmp_lg_u32 s95, s97"); e("s_cbranch_scc1 L_dbgdone")
            self.srd(52, 44, 45, 256)
            e(f"s_mul_i32 s96, {sWG}, 3"); e("s_lshr_b32 s96, s96, 8"); e(f"s_cmp_eq_u32 {sWG}, 0"); e("s_cselect_b32 s96, 0, s96")
            e(f"s_mul_hi_u32 s96, {sWG}, 0x3030304")
            e("s_lshl_b32 s96, s96, 4")
            e("s_mov_b64 exec, 1"); e("v_mov_b32 v2, 0")
            e(f"s_cmp_eq_u32 {sW}, 4"); e("s_cbranch_scc1 L_dbgh")
            e(f"s_cmp_eq_u32 {sW}, 0"); e("s_cbranch_scc0 L_dbgdone")
            e("v_mov_b32 v4, s100"); e("v_mov_b32 v5, s88"); e("v_mov_b32 v6, s90")
            e(f"buffer_store_dwordx3 v[4:6], v2, {SRD_DBG}, s96 offen sc1"); e("s_branch L_dbgdone")
            lab("L_dbgh")
            e("v_mov_b32 v4, s98")
            e(f"buffer_store_dword v4, v2, {SRD_DBG}, s96 offen offset:12 sc1")
            lab("L_dbgdone")
            e("s_waitcnt vmcnt(0)")
        if self.stamps:
            self.stamp(7)
            e("s_waitcnt vmcnt(0) lgkmcnt(0)")
            e(f"s_lshl_b32 {sT0}, {sWG}, 3"); e(f"s_add_u32 {sT0}, {sT0}, {sW}"); e(f"s_lshl_b32 {sT0}, {sT0}, 5"); e(f"s_add_u32 {sT0}, {sT0}, {STAMP_BASE:#x}")
            if (self.bal or self.ldyn) and not self.dbgs:
                e(f"s_cmp_lt_u32 {sW}, 4"); e("s_cbranch_scc0 L_non"); e(f"s_mov_b32 s96, {sN}"); lab("L_non")
            for i in range(8): e(f"v_mov_b32 v{i}, s{84+2*i}")
            e("v_mov_b32 v8, 0")
            e("s_mov_b64 exec, 1")
            e(f"buffer_store_dwordx4 v[0:3], v8, {SRD_WS}, {sT0} offen")
            e(f"buffer_store_dwordx4 v[4:7], v8, {SRD_WS}, {sT0} offen offset:16")
            e("s_waitcnt vmcnt(0)")
        lab("L_end")
        e("s_endpgm")
        L.append('.section .rodata,"a"'); L.append(".p2align 6"); L.append(f".amdhsa_kernel {NAME}_kernel")
        for d in ("next_free_vgpr 256", "next_free_sgpr 102", "accum_offset 128", "group_segment_fixed_size 0", "kernarg_size 64",
                  "user_sgpr_count 2", "user_sgpr_kernarg_segment_ptr 1", "system_sgpr_workgroup_id_x 1"):
            L.append("  .amdhsa_" + d)
        L.append(".end_amdhsa_kernel")
        return "\n".join(L) + "\n"

if __name__ == "__main__":
    import argparse
    ap = argparse.ArgumentParser()
    ap.add_argument("out"); ap.add_argument("--stamps", action="store_true"); ap.add_argument("--opt", default="{}")
    a = ap.parse_args()
    G = Gen(stamps=a.stamps, **eval("dict(" + a.opt + ")" if not a.opt.startswith(("{", "dict")) else a.opt))
    open(a.out, "w").write(G.build())
    if G.errlog: print(list(enumerate(G.errnames)))
```

```python
import sys, struct

NAME = "standalone__gqa_block_cached__sampling"
HDR = open("standalone__gqa_block_cached__sampling.s.ref").read().split("; Override")[0]

QB = 131072; QROW = 528
STB = QB + 8 * QROW
OB = STB + 256
OROW = 272
CNT = OB + 4 * OROW
WQS = 136704
RED = WQS + 16384
OWROW = 1040
LDS_BYTES = 163840
assert RED + 8192 <= LDS_BYTES

M1_SLICE = 2176
M2_BASE = 0x400000
QM_BASE = 0x600000
QF_BASE = 0x740000
CF_BASE = 0x760000
BAL_BASE = 0x7a0000
GC_BASE = 0x788000
EPOCH_OFF = 0x790000
TAG_C = 0x9E3779B9
STAMP_BASE = 0x800000
WS_BYTES = 0x1000000

sWG, sW, sKVH, sJ, sB = "s2", "s3", "s4", "s5", "s6"
sHW = "s7"
SRD_K, SRD_V, SRD_WQ, SRD_X, SRD_WO, SRD_WS = "s[8:11]", "s[12:15]", "s[16:19]", "s[20:23]", "s[24:27]", "s[28:31]"
SRD_OUT, SRD_DBG = "s[48:51]", "s[52:55]"
sKOFF, sVOFF = "s60", "s61"
sWB = "s62"
sKSLOT, sVSLOT = "s63", "s64"
sT = "s65"
sC, sNC = "s66", "s67"
sG = "s68"; sR = "s69"
sM1OUT, sM2OUT = "s70", "s71"
sT0, sT1, sT2, sT3, sT4, sT5 = "s72", "s73", "s74", "s75", "s76", "s77"
sSEL_LO, sSEL_HI = "s78", "s79"
sY = "s80"; sSPIN = "s81"; sTAG = "s82"; sLID = "s83"; sTL = "s59"
sN = "s56"; sGB = "s57"; sGC = "s58"; sSTAT = "s59"; sSTEP = "s57"; sPLO = "s55"
vA = 108; vZERO = 110
hWO = 114; sWOM = "s63"
STAMPS = ["s[84:85]", "s[86:87]", "s[88:89]", "s[90:91]", "s[92:93]", "s[94:95]", "s[96:97]", "s[98:99]"]

vO = 0
vLANE, vN, vGQ, vTMPA = 64, 65, 66, 67
vDMA = 68; vKA = 72; vVA = 76; vS = 84; vP = 88; vM, vL = 90, 91; vAL = 92
vT = 94
vLIN16 = 104; vODUMP = 105; vT2A, vT2B = 106, 107
AQ, AK, AV = 0, 32, 64

C_LOG2E_16 = 1.4426950408889634 / 16.0
def fbits(x): return struct.unpack("<I", struct.pack("<f", x))[0]

DOC = '; ---------------------------------------------------------------------------------------------------\n; ---------------------------------------------------------------------------------------------------'

class Gen:
    def __init__(self, stamps=False, flags="nt", spin=1 << 18, kwait=16, nocomp=False, notail=False, wopace=8, hprio=0, qsleep=2, pace=3, dbgmid=False, nowo=False, noclr=False, v0pre=True, wosame=False, wopf=True, vwait=24, rate=False, noqwait=False, hexit=False, order2=True, kwait2=24, dyn=False, n0=16, pairmap=True, bal=True, ta=4, tb=11, tc=21, nlo=24, quiet=0, dbgq=False, hop1=True, qdelay=True, pre0=2, ldyn=False, t0s=44, t1s=92, plo=108, xmap=1, dbgspan=False, qcontig=False, nox=False, nowq=False, wo128=True, wolate=False, pflate=0, ploB=None, tmarg=8, rounds2=False, delta=6, tmarg2=6, kflags=None, vflags=None, dbgs=False, nob0=False, q8=False, q8v=False, qrot=False, outsc='', pipoll=False, pretail=False, split=4, errlog=False, perm=None, wqfl='', xfl='', wofl='', pffl='', yq=False):
        self.yq = yq
        self.wqfl = wqfl; self.xfl = xfl; self.wofl = wofl; self.pffl = pffl
        if perm is None: perm = {4: ((2,3),(0,1,4)), 2: ((1,2),(0,3,4)), 1: ((0,1),(2,3,4))}[split]
        self.wb, self.ib = perm
        self.errlog = errlog; self.errn = 0; self.errnames = []
        self.split = split
        self.pipoll = pipoll; self.pretail = pretail
        self.outsc = outsc
        self.qrot = qrot
        self.q8v = q8v
        if q8v: q8 = True
        self.q8 = q8
        self.nob0 = nob0
        self.dbgs = dbgs
        self.kflags = kflags; self.vflags = vflags
        self.rounds2 = rounds2; self.delta = delta; self.tmarg2 = tmarg2
        self.ploA = plo; self.ploB = ploB if ploB else plo; self.tmarg = tmarg; self.asym = ploB is not None
        self.pflate = pflate
        self.wolate = wolate
        self.wo128 = wo128
        self.nox = nox; self.nowq = nowq
        self.qcontig = qcontig
        self.dbgspan = dbgspan
        self.xmap = xmap
        self.ldyn = ldyn; self.t0s = t0s; self.t1s = t1s; self.plo = plo
        self.pre0 = pre0
        self.qdelay = qdelay
        self.hop1 = hop1
        self.dbgq = dbgq
        self.quiet = quiet
        self.bal = bal; self.ta = ta; self.tb = tb; self.tc = tc; self.nlo = nlo
        assert not (dyn and bal)
        self.dyn = dyn; self.n0 = n0; self.pairmap = pairmap
        self.order2 = order2; self.kwait2 = kwait2
        self.rate = rate; self.noqwait = noqwait; self.hexit = hexit
        self.vwait = vwait
        self.wopf = wopf
        self.wosame = wosame
        self.v0pre = v0pre
        self.dbgmid = dbgmid; self.nowo = nowo; self.noclr = noclr
        self.pace = pace
        self.qsleep = qsleep
        self.L = []; self.stamps = stamps; self.flags = flags; self.spin = spin; self.kwait = kwait
        self.nocomp = nocomp; self.notail = notail; self.wopace = wopace; self.hprio = hprio
    def e(self, s): self.L.append("  " + s)
    def lab(self, s): self.L.append(s + ":")
    def c(self, s): self.L.append("  ; " + s)
    def stamp(self, i):
        if self.stamps or (getattr(self, "dbgspan", False) and i in (2, 3)): self.e(f"s_memrealtime {STAMPS[i]}")
    def nop(self, n):
        while n > 0:
            k = min(n, 16); self.e(f"s_nop {k-1}"); n -= k
    def dma_half(self, srd, soff):
        fl = self.flags
        if srd == SRD_K and self.kflags is not None: fl = self.kflags
        if srd == SRD_V and self.vflags is not None: fl = self.vflags
        for i in range(4):
            o = f" offset:{i*1024}" if i else ""
            self.e(f"buffer_load_dwordx4 v{vDMA+i}, {srd}, {soff} offen{o} {fl} lds")
    def dma_tile(self, srd, goff, slot):
        e = self.e
        e(f"s_mov_b32 m0, {slot}"); e(f"s_add_u32 {sT0}, {goff}, {1024 << self.ib[2]}")
        self.dma_half(srd, goff)
        e(f"s_add_u32 m0, {slot}, 4096"); e("s_nop 0")
        self.dma_half(srd, sT0)
    def dma_tile_static(self, isv, tile):
        e = self.e
        for half in range(2):
            e(f"s_add_u32 m0, {sWB}, {isv*16384 + tile*8192 + half*4096}")
            e(f"s_add_u32 {sT5}, {sKOFF}, {tile*32768 + half*16384}")
            self.dma_half(SRD_V if isv else SRD_K, sT5)
    def dma_half_static(self, hn):
        e = self.e
        tile, half, isv = hn >> 2, hn & 1, (hn >> 1) & 1
        if self.dyn:
            e(f"s_add_u32 m0, {sWB}, {isv*16384 + tile*8192 + half*4096}")
            e(f"s_add_u32 {sT5}, {sKOFF}, {tile*32768 + half*16384}")
        else:
            e(f"s_add_u32 {sT5}, {sKOFF}, {half*(1024 << self.ib[2])}")
            if tile: e(f"s_add_u32 {sT5}, {sT5}, {sSTEP}")
            e(f"s_add_u32 m0, {sWB}, {isv*16384 + tile*8192 + half*4096}"); e("s_nop 0")
        self.dma_half(SRD_V if isv else SRD_K, sT5)
    def read_k(self):
        for s in range(8):
            a, u = s >> 2, s & 3
            self.e(f"ds_read_b128 a[{AK+4*s}:{AK+4*s+3}], v{vKA+u}" + (f" offset:{a*256}" if a else ""))
    def read_v(self):
        for t in range(16):
            a, u = t >> 3, t & 7
            self.e(f"ds_read_b64_tr_b16 a[{AV+2*t}:{AV+2*t+1}], v{vVA+u}" + (f" offset:{a*256}" if a else ""))
    def srd(self, base, lo, hi, size):
        e = self.e
        e(f"s_mov_b32 s{base}, s{lo}"); e(f"s_and_b32 s{base+1}, s{hi}, 0xffff"); e(f"s_mov_b32 s{base+2}, {size:#x}"); e(f"s_mov_b32 s{base+3}, 0x20000")
    def spin_dec(self, label):
        e = self.e
        e(f"s_sub_u32 {sSPIN}, {sSPIN}, 1"); e(f"s_cmp_lg_u32 {sSPIN}, 0"); e(f"s_cbranch_scc1 {label}")
        if self.errlog:
            e(f"s_or_b32 s101, s101, {1 << self.errn:#x}"); self.errnames.append(label); self.errn += 1

    def loop1(self):
        e, lab, c = self.e, self.lab, self.c
        lab("L_loop")
        if self.rate:
            for tt, si in ((8, 1), (16, 4), (24, 5)):
                e(f"s_cmp_lg_u32 {sT}, {tt}"); e(f"s_cbranch_scc1 L_rs{tt}"); e(f"s_memrealtime {STAMPS[si]}"); lab(f"L_rs{tt}")
        for s in range(8):
            if self.nocomp: break
            cc = "0" if s == 0 else f"v[{vS}:{vS+3}]"
            e(f"v_mfma_f32_16x16x32_bf16 v[{vS}:{vS+3}], a[{AK+4*s}:{AK+4*s+3}], a[{AQ+4*s}:{AQ+4*s+3}], {cc}")
        e(f"s_cmp_eq_u32 {sT}, 31"); e("s_cbranch_scc1 L_k31")
        e(f"s_waitcnt vmcnt({self.kwait})")
        self.read_k()
        e("s_waitcnt lgkmcnt(0)")
        e(f"s_cmp_ge_u32 {sT}, 29"); e("s_cbranch_scc1 L_kdone")
        self.dma_tile(SRD_K, sKOFF, sKSLOT)
        e(f"s_add_u32 {sKOFF}, {sKOFF}, 32768"); e(f"s_xor_b32 {sKSLOT}, {sKSLOT}, 8192")
        lab("L_kdone")
        for u in range(4): e(f"v_xor_b32 v{vKA+u}, 8192, v{vKA+u}")
        lab("L_soft")
        t0, t1, t2 = vT, vT+1, vT+2
        if self.nocomp: e("s_branch L_noresc")
        e(f"v_max3_f32 v{t0}, v{vS}, v{vS+1}, v{vS+2}")
        e(f"v_max_f32 v{t0}, v{t0}, v{vS+3}")
        e(f"v_mov_b32 v{t1}, v{t0}"); e("s_nop 1")
        e(f"v_permlane32_swap_b32 v{t1}, v{t0}")
        e(f"v_max_f32 v{t0}, v{t0}, v{t1}")
        e(f"v_mov_b32 v{t1}, v{t0}"); e("s_nop 1")
        e(f"v_permlane16_swap_b32 v{t1}, v{t0}")
        e(f"v_max3_f32 v{t0}, v{t0}, v{t1}, v{vM}")
        e(f"v_sub_f32 v{t1}, v{vM}, v{t0}")
        e(f"v_mul_f32 v{t1}, {sC}, v{t1}")
        e(f"v_mul_f32 v{t2}, {sNC}, v{t0}")
        e(f"v_exp_f32 v{vAL}, v{t1}")
        e(f"v_mov_b32 v{vM}, v{t0}")
        for r in range(4): e(f"v_fma_f32 v{vS+r}, v{vS+r}, {sC}, v{t2}")
        for r in range(4): e(f"v_exp_f32 v{vS+r}, v{vS+r}")
        e(f"v_cmp_neq_f32 vcc, 1.0, v{vAL}")
        e(f"v_add_f32 v{t0}, v{vS}, v{vS+1}"); e(f"v_add_f32 v{t1}, v{vS+2}, v{vS+3}")
        e(f"v_cvt_pk_bf16_f32 v{vP}, v{vS}, v{vS+1}"); e(f"v_cvt_pk_bf16_f32 v{vP+1}, v{vS+2}, v{vS+3}")
        e(f"v_add_f32 v{t0}, v{t0}, v{t1}"); e(f"v_fma_f32 v{vL}, v{vL}, v{vAL}, v{t0}")
        e("s_cbranch_vccz L_noresc")
        for i in range(32):
            e(f"v_pk_mul_f32 v[{vO+2*i}:{vO+2*i+1}], v[{vO+2*i}:{vO+2*i+1}], v[{vAL}:{vAL+1}] op_sel_hi:[1,0]")
        lab("L_noresc")
        c("V point: steady state vmcnt(24); near the end fewer ops are outstanding")
        if self.v0pre:
            e(f"s_cmp_eq_u32 {sT}, 0"); e("s_cbranch_scc1 L_pv")
        e(f"s_cmp_ge_u32 {sT}, 29"); e("s_cbranch_scc1 L_vlate")
        e(f"s_waitcnt vmcnt({self.vwait})")
        lab("L_vrd")
        self.read_v()
        e("s_waitcnt lgkmcnt(0)")
        e(f"s_cmp_ge_u32 {sT}, 30"); e("s_cbranch_scc1 L_vdone")
        self.dma_tile(SRD_V, sVOFF, sVSLOT)
        e(f"s_add_u32 {sVOFF}, {sVOFF}, 32768"); e(f"s_xor_b32 {sVSLOT}, {sVSLOT}, 8192")
        lab("L_vdone")
        for u in range(8): e(f"v_xor_b32 v{vVA+u}, 8192, v{vVA+u}")
        lab("L_pv")
        for t in range(16):
            if self.nocomp: break
            e(f"v_mfma_f32_16x16x16_bf16 v[{vO+4*t}:{vO+4*t+3}], a[{AV+2*t}:{AV+2*t+1}], v[{vP}:{vP+1}], v[{vO+4*t}:{vO+4*t+3}]")
        e(f"s_add_u32 {sT}, {sT}, 1"); e(f"s_cmp_lt_u32 {sT}, 32"); e("s_cbranch_scc1 L_loop")
        e("s_branch L_tail")
        lab("L_vlate")
        e(f"s_cmp_eq_u32 {sT}, 29"); e("s_cbranch_scc1 L_vrd")
        e(f"s_cmp_eq_u32 {sT}, 30"); e("s_cbranch_scc0 L_vlast")
        e("s_waitcnt vmcnt(8)"); e("s_branch L_vrd")
        lab("L_vlast")
        e("s_waitcnt vmcnt(0)"); e("s_branch L_vrd")
        lab("L_k31")
        self.nop(8)
        e("s_branch L_soft")


    def loop2(self):
        e, lab, c = self.e, self.lab, self.c
        dyn = self.dyn
        ld = self.ldyn
        lab("L_loop")
        if self.rate:
            for tt, si in ((8, 1), (16, 4), (24, 5)):
                e(f"s_cmp_lg_u32 {sT}, {tt}"); e(f"s_cbranch_scc1 L_rs{tt}"); e(f"s_memrealtime {STAMPS[si]}"); lab(f"L_rs{tt}")
        t0, t1, t2 = vT, vT+1, vT+2
        def cmpN(op, k):
            if dyn or self.bal or ld:
                e(f"s_sub_u32 {sT1}, {sN}, {k}"); e(f"s_cmp_{op}_u32 {sT}, {sT1}")
            else:
                e(f"s_cmp_{op}_u32 {sT}, {32-k}")
        if ld:
            c("grab next tile id (lane 0) and read limit/final early")
            cmpN("ge", 3); e("s_cbranch_scc1 L_nograb")
            e("s_mov_b64 exec, 1")
            e(f"ds_add_rtn_u32 v{vA}, v{vZERO}, v{vA+1}")
            e("s_mov_b64 exec, -1")
            lab("L_nograb")
        c("A: QK")
        for s in range(8):
            if self.nocomp: break
            cc = "0" if s == 0 else f"v[{vS}:{vS+3}]"
            e(f"v_mfma_f32_16x16x32_bf16 v[{vS}:{vS+3}], a[{AK+4*s}:{AK+4*s+3}], a[{AQ+4*s}:{AQ+4*s+3}], {cc}")
        c("B: K point")
        if self.bal and not ld:
            e(f"s_cmp_eq_u32 {sT}, {self.ta}"); e("s_cbranch_scc1 L_balst")
            e(f"s_cmp_eq_u32 {sT}, {self.tb}"); e("s_cbranch_scc1 L_balst")
            e(f"s_cmp_eq_u32 {sT}, {self.tc}"); e("s_cbranch_scc1 L_balget")
            lab("L_balback")
        cmpN("ge", 2); e("s_cbranch_scc1 L_klate")
        e(f"s_waitcnt vmcnt({self.kwait2})")
        lab("L_krd")
        self.read_k()
        if dyn:
            cmpN("ge", 3); e("s_cbranch_scc1 L_knoref")
            c("tile id for t+3 ; atomics run two iterations ahead (regs vA, vA+1 by parity of t)")
            e(f"s_cmp_ge_u32 {sT}, {self.n0-3}"); e("s_cbranch_scc1 L_dynid")
            e(f"s_mov_b32 {sT2}, {sSTAT}"); e(f"s_add_u32 {sSTAT}, {sSTAT}, 16")
            e(f"s_cmp_eq_u32 {sT}, {self.n0-5}"); e("s_cbranch_scc1 L_dynchk")
            e(f"s_cmp_eq_u32 {sT}, {self.n0-4}"); e("s_cbranch_scc1 L_atom")
            e("s_branch L_mkoff")
            lab("L_dynid")
            e(f"s_bitcmp1_b32 {sT}, 0"); e("s_cbranch_scc1 L_dynid1")
            e(f"v_readfirstlane_b32 {sT2}, v{vA}"); e("s_branch L_dynid2")
            lab("L_dynid1")
            e(f"v_readfirstlane_b32 {sT2}, v{vA+1}")
            lab("L_dynid2")
            e("s_nop 3")
            e(f"s_add_u32 {sT2}, {sT2}, {self.n0*16}")
            e(f"s_cmp_ge_u32 {sT2}, 512"); e("s_cbranch_scc1 L_exhaust")
            lab("L_atom")
            e("s_mov_b64 exec, 1")
            e(f"s_bitcmp1_b32 {sT}, 0"); e("s_cbranch_scc1 L_atom1")
            e(f"v_mov_b32 v{vA}, 1")
            e(f"buffer_atomic_add v{vA}, v{vZERO}, {SRD_WS}, {sGC} offen sc0 sc1"); e("s_branch L_atom2")
            lab("L_atom1")
            e(f"v_mov_b32 v{vA+1}, 1")
            e(f"buffer_atomic_add v{vA+1}, v{vZERO}, {SRD_WS}, {sGC} offen sc0 sc1")
            lab("L_atom2")
            e("s_mov_b64 exec, -1")
            lab("L_mkoff")
            e(f"s_lshr_b32 {sT3}, {sT2}, 2"); e(f"s_and_b32 {sT3}, {sT3}, 3"); e(f"s_lshl_b32 {sT3}, {sT3}, 20")
            e(f"s_lshr_b32 {sT4}, {sT2}, 4"); e(f"s_lshl_b32 {sT4}, {sT4}, 15"); e(f"s_add_u32 {sT3}, {sT3}, {sT4}")
            e(f"s_and_b32 {sT4}, {sT2}, 3"); e(f"s_lshl_b32 {sT4}, {sT4}, 12"); e(f"s_add_u32 {sT3}, {sT3}, {sT4}")
            e(f"s_add_u32 {sKOFF}, {sGB}, {sT3}")
            e("s_waitcnt lgkmcnt(0)")
            self.dma_tile(SRD_K, sKOFF, sKSLOT)
            e(f"s_xor_b32 {sKSLOT}, {sKSLOT}, 8192")
            e("s_branch L_kdone")
            lab("L_knoref")
            e("s_waitcnt lgkmcnt(0)")
        elif ld:
            e("s_waitcnt lgkmcnt(0)")
            cmpN("ge", 3); e("s_cbranch_scc1 L_kdone")
            e(f"v_readfirstlane_b32 {sT2}, v{vA}"); e("s_nop 3")
            e(f"s_cmp_ge_u32 {sT2}, {sPLO}"); e("s_cbranch_scc1 L_limchk")
            lab("L_tileok")
            e(f"s_xor_b32 {sT2}, {sT2}, {sSTAT}")
            e(f"s_lshr_b32 {sT3}, {sT2}, 2"); e(f"s_lshl_b32 {sT3}, {sT3}, 15"); self.wavepart(sT2, sT2, sT4)
            e(f"s_add_u32 {sKOFF}, {sGC}, {sT3}"); e(f"s_add_u32 {sKOFF}, {sKOFF}, {sT2}")
            self.dma_tile(SRD_K, sKOFF, sKSLOT)
            e(f"s_xor_b32 {sKSLOT}, {sKSLOT}, 8192")
        else:
            e("s_waitcnt lgkmcnt(0)")
            cmpN("ge", 3); e("s_cbranch_scc1 L_kdone")
            self.dma_tile(SRD_K, sKOFF, sKSLOT)
            e(f"s_add_u32 {sKOFF}, {sKOFF}, {sSTEP}"); e(f"s_xor_b32 {sKSLOT}, {sKSLOT}, 8192")
        lab("L_kdone")
        for u in range(4): e(f"v_xor_b32 v{vKA+u}, 8192, v{vKA+u}")
        lab("L_soft")
        c("C: softmax")
        if self.nocomp: e("s_branch L_noresc")
        e(f"v_max3_f32 v{t0}, v{vS}, v{vS+1}, v{vS+2}")
        e(f"v_max_f32 v{t0}, v{t0}, v{vS+3}")
        e(f"v_mov_b32 v{t1}, v{t0}"); e("s_nop 1")
        e(f"v_permlane32_swap_b32 v{t1}, v{t0}")
        e(f"v_max_f32 v{t0}, v{t0}, v{t1}")
        e(f"v_mov_b32 v{t1}, v{t0}"); e("s_nop 1")
        e(f"v_permlane16_swap_b32 v{t1}, v{t0}")
        e(f"v_max3_f32 v{t0}, v{t0}, v{t1}, v{vM}")
        e(f"v_sub_f32 v{t1}, v{vM}, v{t0}")
        e(f"v_mul_f32 v{t1}, {sC}, v{t1}")
        e(f"v_mul_f32 v{t2}, {sNC}, v{t0}")
        e(f"v_exp_f32 v{vAL}, v{t1}")
        e(f"v_mov_b32 v{vM}, v{t0}")
        for r in range(4): e(f"v_fma_f32 v{vS+r}, v{vS+r}, {sC}, v{t2}")
        for r in range(4): e(f"v_exp_f32 v{vS+r}, v{vS+r}")
        e(f"v_cmp_neq_f32 vcc, 1.0, v{vAL}")
        e(f"v_add_f32 v{t0}, v{vS}, v{vS+1}"); e(f"v_add_f32 v{t1}, v{vS+2}, v{vS+3}")
        e(f"v_cvt_pk_bf16_f32 v{vP}, v{vS}, v{vS+1}"); e(f"v_cvt_pk_bf16_f32 v{vP+1}, v{vS+2}, v{vS+3}")
        e(f"v_add_f32 v{t0}, v{t0}, v{t1}"); e(f"v_fma_f32 v{vL}, v{vL}, v{vAL}, v{t0}")
        e("s_cbranch_vccz L_noresc")
        for i in range(32):
            e(f"v_pk_mul_f32 v[{vO+2*i}:{vO+2*i+1}], v[{vO+2*i}:{vO+2*i+1}], v[{vAL}:{vAL+1}] op_sel_hi:[1,0]")
        lab("L_noresc")
        cmpN("eq", 1); e("s_cbranch_scc1 L_vjit")
        lab("L_pv")
        c("D: PV")
        for t in range(16):
            if self.nocomp: break
            e(f"v_mfma_f32_16x16x16_bf16 v[{vO+4*t}:{vO+4*t+3}], a[{AV+2*t}:{AV+2*t+1}], v[{vP}:{vP+1}], v[{vO+4*t}:{vO+4*t+3}]")
        c("E: V point")
        cmpN("ge", 3); e("s_cbranch_scc1 L_vlate")
        e(f"s_waitcnt vmcnt({self.vwait})")
        if self.q8v:
            e(f"s_cmp_lg_u32 {sT}, 0"); e("s_cbranch_scc1 L_vnz"); e("s_waitcnt vmcnt(16)"); lab("L_vnz")
        self.read_v()
        e("s_waitcnt lgkmcnt(0)")
        if dyn or ld:
            self.dma_tile(SRD_V, sKOFF, sVSLOT)
            e(f"s_xor_b32 {sVSLOT}, {sVSLOT}, 8192")
        else:
            self.dma_tile(SRD_V, sVOFF, sVSLOT)
            e(f"s_add_u32 {sVOFF}, {sVOFF}, {sSTEP}"); e(f"s_xor_b32 {sVSLOT}, {sVSLOT}, 8192")
        lab("L_vdone")
        for u in range(8): e(f"v_xor_b32 v{vVA+u}, 8192, v{vVA+u}")
        lab("L_next")
        e(f"s_add_u32 {sT}, {sT}, 1")
        if dyn or self.bal or ld: e(f"s_cmp_lt_u32 {sT}, {sN}")
        else: e(f"s_cmp_lt_u32 {sT}, 32")
        e("s_cbranch_scc1 L_loop")
        e("s_branch L_tail")
        lab("L_klate")
        cmpN("eq", 1); e("s_cbranch_scc1 L_k31")
        e("s_waitcnt vmcnt(8)"); e("s_branch L_krd")
        lab("L_k31")
        self.nop(8)
        e("s_branch L_soft")
        lab("L_vlate")
        cmpN("eq", 3); e("s_cbranch_scc0 L_next")
        if self.wolate:
            e(f"v_mov_b32 v{t0}, {CNT+20}"); e(f"v_mov_b32 v{t1}, 1"); e("s_mov_b64 exec, 1"); e(f"ds_add_u32 v{t0}, v{t1}"); e("s_mov_b64 exec, -1")
        e("s_waitcnt vmcnt(16)")
        self.read_v()
        e("s_waitcnt lgkmcnt(0)")
        e("s_branch L_vdone")
        lab("L_vjit")
        e("s_waitcnt vmcnt(0)")
        self.read_v()
        e("s_waitcnt lgkmcnt(0)")
        e("s_branch L_pv")
        if ld:
            lab("L_limchk")
            e(f"s_mov_b32 {sSPIN}, {self.spin}")
            e(f"v_mov_b32 v{t0}, {CNT+12}")
            lab("L_limchk1")
            e(f"ds_read2_b32 v[{t1+1}:{t1+2}], v{t0} offset0:0 offset1:1"); e("s_waitcnt lgkmcnt(0)")
            e(f"v_readfirstlane_b32 {sT3}, v{t1+2}"); e(f"v_readfirstlane_b32 {sT4}, v{t1+1}"); e("s_nop 3")
            e(f"s_mov_b32 {sPLO}, {sT4}")
            e(f"s_cmp_lt_u32 {sT2}, {sT4}"); e("s_cbranch_scc1 L_tileok")
            e(f"s_cmp_lg_u32 {sT3}, 0"); e("s_cbranch_scc1 L_limfin")
            e("s_sleep 2")
            self.spin_dec("L_limchk1")
            lab("L_limfin")
            e(f"s_add_u32 {sN}, {sT}, 3")
            e("s_branch L_kdone")
        if self.bal and not ld:
            lab("L_balst")
            e(f"s_cmp_lg_u32 {sW}, 0"); e("s_cbranch_scc1 L_balback")
            e(f"s_memrealtime s[{sT2[1:]}:{sT3[1:]}]"); e("s_waitcnt lgkmcnt(0)")
            e(f"s_or_b32 {sT2}, {sT2}, 1")
            e(f"s_cmp_eq_u32 {sT}, {self.tb}"); e(f"s_cselect_b32 {sT3}, 4, 0"); e(f"s_add_u32 {sT3}, {sT3}, {CNT+8}")
            e(f"v_mov_b32 v{t0}, {sT3}"); e(f"v_mov_b32 v{t1}, {sT2}")
            e(f"ds_write_b32 v{t0}, v{t1}")
            e("s_branch L_balback")
            lab("L_balget")
            e(f"s_mov_b32 {sSPIN}, {self.spin}")
            e(f"v_mov_b32 v{t0}, {CNT+16}")
            lab("L_balget1")
            e(f"ds_read_b32 v{t1}, v{t0}"); e("s_waitcnt lgkmcnt(0)")
            e(f"v_readfirstlane_b32 {sN}, v{t1}"); e("s_nop 3")
            e(f"s_cmp_lg_u32 {sN}, 0"); e("s_cbranch_scc1 L_balback")
            e("s_sleep 4")
            self.spin_dec("L_balget1")
            e(f"s_mov_b32 {sN}, 32")
            e("s_branch L_balback")
        if dyn:
            lab("L_exhaust")
            e(f"s_add_u32 {sN}, {sT}, 3")
            e("s_branch L_knoref")
            lab("L_dynchk")
            e(f"s_mov_b32 {sSPIN}, {self.spin}")
            e(f"v_mov_b32 v{t0}, {CNT+8}")
            lab("L_dynchk1")
            e(f"ds_read_b32 v{t1}, v{t0}"); e("s_waitcnt lgkmcnt(0)")
            e(f"v_readfirstlane_b32 {sT3}, v{t1}"); e("s_nop 3")
            e(f"s_cmp_eq_u32 {sT3}, 1"); e("s_cbranch_scc1 L_atom")
            e("s_sleep 8")
            self.spin_dec("L_dynchk1")
            e("s_branch L_atom")

    def t3(self, hST, hOW, so4, lin16):
        e, lab, c = self.e, self.lab, self.c
        def issue(PB):
            for jj, so in enumerate(so4):
                e(f"buffer_load_dwordx4 v[{PB+8*jj}:{PB+8*jj+3}], v{lin16}, {SRD_WS}, {so} offen sc1")
                e(f"buffer_load_dwordx4 v[{PB+8*jj+4}:{PB+8*jj+7}], v{lin16}, {SRD_WS}, {so} offen offset:1024 sc1")
                e(f"buffer_load_dwordx2 v[{PB+32+2*jj}:{PB+32+2*jj+1}], v{hST}, {SRD_WS}, {so} offen offset:2048 sc1")
        def check(PB, oklab):
            mx = vT + 1
            e(f"v_max3_u32 v{mx}, v{PB}, v{PB+1}, v{PB+2}")
            for k in range(3, 39, 2): e(f"v_max3_u32 v{mx}, v{mx}, v{PB+k}, v{PB+k+1}")
            e(f"v_max_u32 v{mx}, v{mx}, v{PB+39}")
            e(f"v_cmp_eq_u32 vcc, -1, v{mx}"); e("s_nop 1"); e(f"s_cbranch_vccz {oklab}")
        def finish(PB):
            ST = PB + 32; a0 = vT + 2; F = vT + 4
            e(f"v_max3_f32 v{a0}, v{ST}, v{ST+2}, v{ST+4}"); e(f"v_max_f32 v{a0}, v{a0}, v{ST+6}")
            for w in range(4): e(f"v_sub_f32 v{F+w}, v{ST+2*w}, v{a0}")
            for w in range(4): e(f"v_mul_f32 v{F+w}, {sC}, v{F+w}")
            for w in range(4): e(f"v_exp_f32 v{F+w}, v{F+w}")
            e("s_nop 0")
            e(f"v_mul_f32 v{a0}, v{F}, v{ST+1}")
            for w in range(1, 4): e(f"v_fmac_f32 v{a0}, v{F+w}, v{ST+2*w+1}")
            e(f"v_rcp_f32 v{a0}, v{a0}"); e("s_nop 0")
            for w in range(4): e(f"v_mul_f32 v{F+w}, v{F+w}, v{a0}")
            ACC = ST
            for k in range(8): e(f"v_mul_f32 v{ACC+k}, v{F}, v{PB+k}")
            for w in range(1, 4):
                for k in range(8): e(f"v_fmac_f32 v{ACC+k}, v{F+w}, v{PB+8*w+k}")
            for p in range(4): e(f"v_cvt_pk_bf16_f32 v{PB+p}, v{ACC+2*p}, v{ACC+2*p+1}")
            e(f"ds_write_b128 v{hOW}, v[{PB}:{PB+3}]")
        e(f"s_mov_b32 {sSPIN}, {self.spin}")
        if True:
            lab("L_poll1"); issue(0); e("s_waitcnt vmcnt(0)"); check(0, "L_poll1ok"); self.spin_dec("L_poll1")
            lab("L_poll1ok"); finish(0)
        else:
            PA, PBb = 0, 40
            issue(PA); issue(PBb)
            lab("L_poll1")
            e("s_waitcnt vmcnt(12)"); check(PA, "L_poll1okA"); issue(PA)
            e("s_waitcnt vmcnt(12)"); check(PBb, "L_poll1okB"); issue(PBb)
            self.spin_dec("L_poll1")
            lab("L_poll1okA"); finish(PA); e("s_waitcnt vmcnt(0)"); e("s_branch L_poll1done")
            lab("L_poll1okB"); finish(PBb); e("s_waitcnt vmcnt(0)")
            lab("L_poll1done")

    def wavepart(self, dst, src, tmp):
        e = self.e
        e(f"s_and_b32 {tmp}, {src}, 1"); e(f"s_lshl_b32 {tmp}, {tmp}, {10 + self.wb[0]}")
        e(f"s_lshr_b32 {dst}, {src}, 1"); e(f"s_and_b32 {dst}, {dst}, 1"); e(f"s_lshl_b32 {dst}, {dst}, {10 + self.wb[1]}"); e(f"s_or_b32 {dst}, {dst}, {tmp}")

    def byrole(self, dst, a, b):
        e = self.e
        e(f"s_and_b32 {dst}, {sJ}, 1"); e(f"s_mul_i32 {dst}, {dst}, {b - a}"); e(f"s_add_u32 {dst}, {dst}, {a}")

    def lds_spin(self, label, addr_v, tmp_v, cmp_op, val, sleep):
        e, lab = self.e, self.lab
        e(f"s_mov_b32 {sSPIN}, {self.spin}")
        lab(label)
        e(f"ds_read_b32 v{tmp_v}, v{addr_v}"); e("s_waitcnt lgkmcnt(0)")
        e(f"v_readfirstlane_b32 {sT5}, v{tmp_v}"); e("s_nop 3")
        e(f"s_cmp_{cmp_op}_u32 {sT5}, {val}"); e(f"s_cbranch_scc1 {label}_ok")
        if sleep: e(f"s_sleep {sleep}")
        self.spin_dec(label)
        lab(label + "_ok")

    def wo_pipeline(self):
        e = self.e
        def issue(ks, R):
            e(f"s_mov_b32 {sT4}, {ks*32*896}"); e(f"s_mov_b32 {sT5}, {ks*32*896 + 4*896}")
            e(f"s_mov_b32 exec_lo, {sWOM}"); e(f"s_mov_b32 exec_hi, {sWOM}")
            for i in range(8):
                so = sT4 if i < 4 else sT5
                o = (i & 3) * 896
                e(f"buffer_load_dwordx4 v[{R+4*i}:{R+4*i+3}], v{hWO}, {SRD_WO}, {so} offen" + (f" offset:{o}" if o else ""))
            e("s_mov_b64 exec, -1")
        def proc(ks, R):
            TMP = 116
            n = 0
            for j in range(8):
                u = j >> 1; sel = sSEL_HI if (j & 1) else sSEL_LO
                for p in range(4):
                    tmp = TMP + (n % 8); n += 1
                    e(f"v_perm_b32 v{tmp}, v{R+4*(2*p+1)+u}, v{R+4*(2*p)+u}, {sel}")
                for p in range(4):
                    tmp = TMP + ((n - 4 + p) % 8)
                    e(f"v_accvgpr_write_b32 a{32*ks+4*j+p}, v{tmp}")
        for i in range(32, 64): e(f"v_mov_b32 v{i}, 0")
        issue(0, 0); issue(1, 32)
        e("s_waitcnt vmcnt(8)"); proc(0, 0); issue(2, 0)
        e("s_waitcnt vmcnt(8)"); proc(1, 32); issue(3, 32)
        e("s_waitcnt vmcnt(8)"); proc(2, 0)
        e("s_waitcnt vmcnt(0)"); proc(3, 32)

    def q32_phase(self):
        e, lab, c = self.e, self.lab, self.c
        c("wq DMA voffset: (l>>1)*8192 + (l&1)*16 + (kvh*512 + 16y)*2 ; x voffset: n*896 + g*16")
        hX = 0
        hA = 32
        hD = 48
        e(f"v_lshrrev_b32 v{vT}, 1, v{vLANE}"); e(f"v_lshlrev_b32 v{vT}, 13, v{vT}")
        e(f"v_and_b32 v{vT+1}, 1, v{vLANE}"); e(f"v_lshl_add_u32 v{vT}, v{vT+1}, 4, v{vT}")
        if self.yq:
            c("column block: the 4 workgroups that share a 128-B line of wq sit on one XCD: yq = (2j + (b>>2))*4 + (b&3)")
            e(f"s_lshl_b32 s65, {sJ}, 1"); e(f"s_lshr_b32 {sT0}, {sB}, 2"); e(f"s_add_u32 s65, s65, {sT0}"); e("s_lshl_b32 s65, s65, 2"); e(f"s_and_b32 {sT0}, {sB}, 3"); e(f"s_add_u32 s65, s65, {sT0}")
        else:
            e(f"s_mov_b32 s65, {sY}")
        e(f"s_lshl_b32 {sT0}, {sKVH}, 10"); e(f"s_lshl_b32 {sT1}, s65, 5"); e(f"s_add_u32 {sT0}, {sT0}, {sT1}")
        e(f"v_add_u32 v{vDMA}, {sT0}, v{vT}")
        e(f"s_movk_i32 {sT1}, 896"); e(f"v_mul_lo_u32 v{vDMA+1}, v{vN}, {sT1}"); e(f"v_lshl_add_u32 v{vDMA+1}, v{vGQ}, 4, v{vDMA+1}")
        e(f"s_lshl_b32 {sWB}, {sHW}, 12"); e(f"s_add_u32 {sWB}, {sWB}, {WQS}")
        c("H0 zeroes the LDS counters")
        e(f"v_mov_b32 v{vT+2}, {CNT}")
        for i in range(4): e(f"v_mov_b32 v{vT+4+i}, 0")
        e(f"ds_write_b128 v{vT+2}, v[{vT+4}:{vT+7}] offset:16")
        if self.ldyn:
            self.byrole(sT3, self.ploA, self.ploB)
            e(f"v_mov_b32 v{vT+6}, 12"); e(f"v_mov_b32 v{vT+7}, {sT3}")
        e(f"ds_write_b128 v{vT+2}, v[{vT+4}:{vT+7}]")
        e("s_waitcnt lgkmcnt(0)")
        if self.dbgq: self.stamp(2)
        e(f"s_add_u32 s56, s46, {EPOCH_OFF:#x}"); e("s_addc_u32 s57, s47, 0")
        e(f"s_load_dwordx2 s[60:61], s[56:57], 0")
        self.srd(16, 38, 39, 3670016); self.srd(20, 32, 33, 28672)
        if self.qcontig:
            e(f"s_lshl_b32 {sT2}, {sHW}, 20"); e(f"s_lshl_b32 {sT3}, {sHW}, 8")
        else:
            e(f"s_lshl_b32 {sT2}, {sHW}, 18")
            e(f"s_lshl_b32 {sT3}, {sHW}, 6")
        for idx in range(4):
            if idx == 2 and self.qcontig:
                e(f"s_cmp_eq_u32 {sHW}, 3"); e("s_cbranch_scc1 L_hq_issued")
            if idx == 3 and not self.qcontig:
                e(f"s_cmp_ge_u32 {sHW}, 2"); e("s_cbranch_scc1 L_hq_issued")
            e(f"s_add_u32 m0, {sWB}, {idx*1024}")
            e(f"s_add_u32 {sT4}, {sT3}, 14336")
            if not self.nowq: e(f"buffer_load_dwordx4 v{vDMA}, {SRD_WQ}, {sT2} offen{self.wqfl} lds")
            if not self.nox:
                e(f"buffer_load_dwordx4 v[{hX+8*idx}:{hX+8*idx+3}], v{vDMA+1}, {SRD_X}, {sT3} offen{self.xfl}")
                e(f"buffer_load_dwordx4 v[{hX+8*idx+4}:{hX+8*idx+7}], v{vDMA+1}, {SRD_X}, {sT4} offen{self.xfl}")
            if idx < 3:
                if self.qcontig:
                    e(f"s_add_u32 {sT2}, {sT2}, 262144"); e(f"s_add_u32 {sT3}, {sT3}, 64")
                else:
                    e(f"s_add_u32 {sT2}, {sT2}, {4*262144}"); e(f"s_add_u32 {sT3}, {sT3}, 256")
        lab("L_hq_issued")
        if self.dbgq: self.stamp(3)
        if not self.nob0: e("s_barrier")
        if self.dbgq: self.stamp(4)
        self.srd(28, 46, 47, WS_BYTES); self.srd(24, 40, 41, 3670016)
        e("s_mov_b32 s34, s42"); e("s_mov_b32 s35, s43")
        c("tr-read address: wb + (8g + (i>>2))*32 + (i&3)*8  (+128 for second half, +1024*idx)")
        e(f"v_lshrrev_b32 v{vT}, 2, v{vN}"); e(f"v_lshl_add_u32 v{vT}, v{vGQ}, 3, v{vT}"); e(f"v_lshlrev_b32 v{vT}, 5, v{vT}")
        e(f"v_and_b32 v{vT+1}, 3, v{vN}"); e(f"v_lshl_add_u32 v{vT}, v{vT+1}, 3, v{vT}"); e(f"v_add_u32 v{vT}, {sWB}, v{vT}")
        for i in range(8): e(f"v_mov_b32 v{hD+i}, 0")
        c("partial write address: RED + hw*2048 + n*64 + g*16 (+1024 for h=1)")
        e(f"s_lshl_b32 {sT0}, {sHW}, 11"); e(f"s_add_u32 {sT0}, {sT0}, {RED}")
        e(f"v_lshlrev_b32 v{vT+2}, 6, v{vN}"); e(f"v_lshl_add_u32 v{vT+2}, v{vGQ}, 4, v{vT+2}"); e(f"v_add_u32 v{vT+2}, {sT0}, v{vT+2}")
        e("s_waitcnt vmcnt(0)")
        self.stamp(1)
        for idx in range(4):
            if idx == 2 and self.qcontig:
                e(f"s_cmp_eq_u32 {sHW}, 3"); e("s_cbranch_scc1 L_hq_mm")
            if idx == 3 and not self.qcontig:
                e(f"s_cmp_ge_u32 {sHW}, 2"); e("s_cbranch_scc1 L_hq_mm")
            e(f"ds_read_b64_tr_b16 v[{hA+4*idx}:{hA+4*idx+1}], v{vT} offset:{idx*1024}")
            e(f"ds_read_b64_tr_b16 v[{hA+4*idx+2}:{hA+4*idx+3}], v{vT} offset:{idx*1024+128}")
            e("s_waitcnt lgkmcnt(0)")
            for h in range(2):
                e(f"v_mfma_f32_16x16x32_bf16 v[{hD+4*h}:{hD+4*h+3}], v[{hA+4*idx}:{hA+4*idx+3}], v[{hX+8*idx+4*h}:{hX+8*idx+4*h+3}], v[{hD+4*h}:{hD+4*h+3}]")
        lab("L_hq_mm")
        self.nop(8)
        e(f"ds_write_b128 v{vT+2}, v[{hD}:{hD+3}]"); e(f"ds_write_b128 v{vT+2}, v[{hD+4}:{hD+7}] offset:1024")
        if self.nob0:
            c("launch tag: E' = E + C (64 bit); TL = low 16 bits << 16, sTAG = bits 16..47")
            e(f"s_add_u32 s60, s60, 0x7f4a7c15"); e(f"s_addc_u32 s61, s61, 0x9e3779b9")
            e(f"s_lshl_b32 {sTL}, s60, 16"); e(f"s_lshr_b32 {sTAG}, s60, 16"); e(f"s_lshl_b32 {sT1}, s61, 16"); e(f"s_or_b32 {sTAG}, {sTAG}, {sT1}")
            e(f"s_lshl_b32 {sT1}, {sHW}, 2"); e(f"s_add_u32 {sT1}, {sT1}, {CNT+32}")
            e(f"v_mov_b32 v{vT+3}, {sT1}"); e(f"v_mov_b32 v{vT+4}, {sTAG}")
            e("s_waitcnt lgkmcnt(0)")
            e(f"ds_write_b32 v{vT+3}, v{vT+4}")
            e(f"v_mov_b32 v{vT+3}, {CNT+32}")
        else:
            e(f"v_mov_b32 v{vT+3}, {CNT}"); e(f"v_mov_b32 v{vT+4}, 1")
            e("s_waitcnt lgkmcnt(0)")
            e("s_mov_b64 exec, 1"); e(f"ds_add_u32 v{vT+3}, v{vT+4}"); e("s_mov_b64 exec, -1")
        c("reduce read address: RED + rho*64 + cp*8, rho = 8hw + (l>>3), cp = l&7")
        e(f"v_lshrrev_b32 v{vT}, 3, v{vLANE}"); e(f"s_lshl_b32 {sT0}, {sHW}, 3"); e(f"v_add_u32 v{vT}, {sT0}, v{vT}")
        e(f"v_and_b32 v{vT+1}, 7, v{vLANE}")
        e(f"v_lshlrev_b32 v{vT+2}, 6, v{vT}"); e(f"v_lshl_add_u32 v{vT+2}, v{vT+1}, 3, v{vT+2}"); e(f"v_add_u32 v{vT+2}, {RED}, v{vT+2}")
        if True:
            if not self.nob0:
                c("launch tag: E' = E + C (64 bit); TL = low 16 bits << 16, sTAG = bits 16..47")
                e(f"s_add_u32 s60, s60, 0x7f4a7c15"); e(f"s_addc_u32 s61, s61, 0x9e3779b9")
                e(f"s_lshl_b32 {sTL}, s60, 16"); e(f"s_lshr_b32 {sTAG}, s60, 16"); e(f"s_lshl_b32 {sT1}, s61, 16"); e(f"s_or_b32 {sTAG}, {sTAG}, {sT1}")
            c("publish address: QM + ((kvh*8 + b)*32 + y)*512 + q*128 + cp*16 ; b = rho>>2, q = rho&3")
            e(f"v_lshrrev_b32 v{vT+4}, 2, v{vT}"); e(f"v_lshlrev_b32 v{vT+4}, 14, v{vT+4}")
            e(f"v_and_b32 v{vT+5}, 3, v{vT}"); e(f"v_lshl_add_u32 v{vT+4}, v{vT+5}, 7, v{vT+4}"); e(f"v_lshl_add_u32 v{vT+4}, v{vT+1}, 4, v{vT+4}")
            e(f"s_lshl_b32 {sT0}, {sKVH}, 17"); e(f"s_lshl_b32 {sT1}, s65, 9"); e(f"s_add_u32 {sT0}, {sT0}, {sT1}"); e(f"s_add_u32 {sT0}, {sT0}, {QM_BASE:#x}")
            e(f"s_mov_b32 {sSPIN}, {self.spin}")
            lab("L_hs1")
            if self.nob0:
                e(f"ds_read_b128 v[8:11], v{vT+3}"); e("s_waitcnt lgkmcnt(0)")
                e(f"v_xor_b32 v8, {sTAG}, v8"); e(f"v_xor_b32 v9, {sTAG}, v9"); e(f"v_xor_b32 v10, {sTAG}, v10"); e(f"v_xor_b32 v11, {sTAG}, v11")
                e("v_or3_b32 v8, v8, v9, v10"); e("v_or_b32 v8, v8, v11"); e("s_nop 0")
                e(f"v_readfirstlane_b32 {sT1}, v8"); e("s_nop 3")
                e(f"s_cmp_eq_u32 {sT1}, 0"); e("s_cbranch_scc1 L_hs1ok")
            else:
                e(f"ds_read_b32 v{vT+6}, v{vT+3}"); e("s_waitcnt lgkmcnt(0)")
                e(f"v_readfirstlane_b32 {sT1}, v{vT+6}"); e("s_nop 3")
                e(f"s_cmp_ge_u32 {sT1}, 4"); e("s_cbranch_scc1 L_hs1ok")
            self.spin_dec("L_hs1")
            lab("L_hs1ok")
            for w in range(4): e(f"ds_read_b64 v[{2*w}:{2*w+1}], v{vT+2} offset:{w*2048}")
            e("s_waitcnt lgkmcnt(0)")
            e("v_add_f32 v0, v0, v2"); e("v_add_f32 v1, v1, v3"); e("v_add_f32 v4, v4, v6"); e("v_add_f32 v5, v5, v7")
            e("v_add_f32 v0, v0, v4"); e("v_add_f32 v1, v1, v5")
            e("v_cvt_pk_bf16_f32 v0, v0, v1")
            c("granules {tl|val, tag}")
            e(f"v_and_b32 v4, 0xffff, v0"); e(f"v_lshrrev_b32 v6, 16, v0")
            e(f"v_or_b32 v4, {sTL}, v4"); e(f"v_or_b32 v6, {sTL}, v6"); e(f"v_mov_b32 v5, {sTAG}"); e(f"v_mov_b32 v7, {sTAG}")
            e(f"buffer_store_dwordx4 v[4:7], v{vT+4}, {SRD_WS}, {sT0} offen sc1")

    def build(self):
        e, lab, c = self.e, self.lab, self.c
        L = self.L
        L.append(HDR.rstrip())
        L.append(f"; @launch grid=(256,1,1) block=(512,1,1) lds={LDS_BYTES}")
        L.append(DOC)
        L.append('.amdgcn_target "amdgcn-amd-amdhsa--gfx950"')
        L.append(".text"); L.append(f".globl {NAME}_kernel"); L.append(".p2align 8"); L.append(f".type {NAME}_kernel,@function")
        lab(f"{NAME}_kernel")
        e(f"s_cmp_ge_u32 {sWG}, 256"); e("s_cbranch_scc1 L_end")
        e("s_load_dwordx16 s[32:47], s[0:1], 0")
        if self.errlog: e("s_mov_b32 s101, 0")
        self.stamp(0)
        if self.dbgspan: e("s_memrealtime s[100:101]")
        e(f"v_lshrrev_b32 v{vTMPA}, 6, v0")
        e(f"v_and_b32 v{vLANE}, 63, v0")
        e(f"s_and_b32 {sT0}, {sWG}, 7"); e(f"s_lshr_b32 {sT1}, {sWG}, 3")
        e(f"v_readfirstlane_b32 {sW}, v{vTMPA}")
        if self.pairmap and self.xmap == 3:
            c("pairs on XCDs x, x^3: kvh = 4*(x>>2) + 2*gray(x&3) + (y&1)")
            e(f"s_lshr_b32 {sT2}, {sT0}, 1"); e(f"s_xor_b32 {sT2}, {sT2}, {sT0}"); e(f"s_and_b32 {sT2}, {sT2}, 1"); e(f"s_lshl_b32 {sT2}, {sT2}, 1")
            e(f"s_and_b32 {sKVH}, {sT0}, 4"); e(f"s_add_u32 {sKVH}, {sKVH}, {sT2}"); e(f"s_and_b32 {sT2}, {sT1}, 1"); e(f"s_add_u32 {sKVH}, {sKVH}, {sT2}")
            e(f"s_and_b32 {sJ}, {sT0}, 1"); e(f"s_and_b32 {sT2}, {sT1}, 2"); e(f"s_add_u32 {sJ}, {sJ}, {sT2}")
            e(f"s_lshr_b32 {sB}, {sT1}, 2")
        elif self.pairmap and self.xmap == 9:
            c("pairs on XCDs e, e^m with m = 1 + 2*(y&3): every even XCD is paired with every odd one")
            e(f"s_and_b32 {sT2}, {sT1}, 3"); e(f"s_lshl_b32 {sT2}, {sT2}, 1"); e(f"s_add_u32 {sT2}, {sT2}, 1")
            e(f"s_and_b32 {sT3}, {sT0}, 1"); e(f"s_mul_i32 {sT2}, {sT2}, {sT3}"); e(f"s_xor_b32 {sT2}, {sT2}, {sT0}")
            e(f"s_and_b32 {sKVH}, {sT2}, 6"); e(f"s_and_b32 {sT2}, {sT1}, 1"); e(f"s_add_u32 {sKVH}, {sKVH}, {sT2}")
            e(f"s_and_b32 {sJ}, {sT0}, 1"); e(f"s_and_b32 {sT2}, {sT1}, 2"); e(f"s_add_u32 {sJ}, {sJ}, {sT2}")
            e(f"s_lshr_b32 {sB}, {sT1}, 2")
        elif self.pairmap and self.xmap == 5:
            c("pairs on XCDs x, x^5 : (0,5),(1,4),(2,7),(3,6): pair id = (x ^ (x&1)*5) >> 1 ... canonical even member e = x if even else x^5; kvh = (e & 6) + (y&1)")
            e(f"s_and_b32 {sT2}, {sT0}, 1"); e(f"s_mul_i32 {sT2}, {sT2}, 5"); e(f"s_xor_b32 {sT2}, {sT2}, {sT0}")
            e(f"s_and_b32 {sKVH}, {sT2}, 6"); e(f"s_and_b32 {sT2}, {sT1}, 1"); e(f"s_add_u32 {sKVH}, {sKVH}, {sT2}")
            e(f"s_and_b32 {sJ}, {sT0}, 1"); e(f"s_and_b32 {sT2}, {sT1}, 2"); e(f"s_add_u32 {sJ}, {sJ}, {sT2}")
            e(f"s_lshr_b32 {sB}, {sT1}, 2")
        elif self.pairmap:
            e(f"s_and_b32 {sKVH}, {sT0}, 6"); e(f"s_and_b32 {sT2}, {sT1}, 1"); e(f"s_add_u32 {sKVH}, {sKVH}, {sT2}")
            e(f"s_and_b32 {sJ}, {sT0}, 1"); e(f"s_and_b32 {sT2}, {sT1}, 2"); e(f"s_add_u32 {sJ}, {sJ}, {sT2}")
            e(f"s_lshr_b32 {sB}, {sT1}, 2")
        else:
            e(f"s_mov_b32 {sKVH}, {sT0}"); e(f"s_and_b32 {sJ}, {sT1}, 3"); e(f"s_lshr_b32 {sB}, {sT1}, 2")
        e(f"s_lshl_b32 {sY}, {sB}, 2"); e(f"s_add_u32 {sY}, {sY}, {sJ}")
        e(f"s_lshl_b32 {sLID}, {sY}, 3"); e(f"s_add_u32 {sLID}, {sLID}, {sKVH}")
        e(f"s_lshl_b32 {sG}, {sB}, 3"); e(f"s_add_u32 {sG}, {sG}, {sKVH}")
        e(f"v_and_b32 v{vN}, 15, v{vLANE}"); e(f"v_lshrrev_b32 v{vGQ}, 4, v{vLANE}")
        e(f"s_and_b32 {sHW}, {sW}, 3")
        e(f"s_lshl_b32 {sR}, {sKVH}, 2"); e(f"s_add_u32 {sR}, {sR}, {sJ}")
        e(f"s_cmp_ge_u32 {sW}, 4"); e("s_cbranch_scc1 L_helper")

        c("DMA voffsets")
        e(f"v_lshrrev_b32 v{vT}, 5, v{vLANE}"); e(f"v_and_b32 v{vT+1}, 31, v{vLANE}")
        e(f"v_lshlrev_b32 v{vT+2}, 9, v{vT}"); e(f"v_lshlrev_b32 v{vT+3}, 1, v{vT}")
        for i in range(4):
            e(f"v_xor_b32 v{vT+4}, {4*i}, v{vT+3}"); e(f"v_xor_b32 v{vT+4}, v{vT+4}, v{vT+1}")
            e(f"v_lshl_add_u32 v{vDMA+i}, v{vT+4}, 4, v{vT+2}")
            want = ((i & 1) << self.ib[0] | ((i >> 1) & 1) << self.ib[1]) * 1024
            if want != i * 1024: e(f"v_add_u32 v{vDMA+i}, {(want - i*1024) & 0xffffffff:#x}, v{vDMA+i}")
        if self.bal:
            e(f"s_lshl_b32 {sKOFF}, {sG}, 22"); e(f"s_lshr_b32 {sT0}, {sJ}, 1"); e(f"s_lshl_b32 {sT0}, {sT0}, 21"); e(f"s_add_u32 {sKOFF}, {sKOFF}, {sT0}")
            e(f"s_and_b32 {sT1}, {sJ}, 1"); e(f"s_mul_i32 {sT0}, {sT1}, {63*32768}"); e(f"s_add_u32 {sKOFF}, {sKOFF}, {sT0}")
            e(f"s_mul_i32 {sT1}, {sT1}, -65536"); e(f"s_add_u32 {sSTEP}, {sT1}, 32768")
            e(f"s_mov_b32 {sN}, 100000")
        else:
            e(f"s_lshl_b32 {sKOFF}, {sG}, 22"); e(f"s_lshl_b32 {sT0}, {sJ}, 20"); e(f"s_add_u32 {sKOFF}, {sKOFF}, {sT0}")
            e(f"s_mov_b32 {sSTEP}, 32768") if not self.dyn else None
        self.wavepart(sT0, sW, sT1); e(f"s_add_u32 {sKOFF}, {sKOFF}, {sT0}")
        e(f"s_lshl_b32 {sWB}, {sW}, 15")
        e("s_waitcnt lgkmcnt(0)")
        self.srd(8, 34, 35, 0x10000000); self.srd(12, 36, 37, 0x10000000)
        if self.dbgs: self.stamp(4)
        for hn in range(self.pre0): self.dma_half_static(hn)
        if self.dbgs: self.stamp(5)
        if not self.nob0: e("s_barrier")
        if self.dbgs: self.stamp(6)
        first = self.quiet if self.quiet else self.pace
        if self.q8v:
            assert self.pre0 == 2
            self.dma_half_static(4); self.dma_half_static(5)
        else:
            for hn in range(self.pre0, first): self.dma_half_static(hn)
        self.srd(28, 46, 47, WS_BYTES)
        c("K/V LDS read addresses")
        e(f"v_and_b32 v{vT}, 7, v{vN}"); e(f"v_lshlrev_b32 v{vT}, 1, v{vT}")
        e(f"v_lshlrev_b32 v{vT+1}, 9, v{vN}"); e(f"v_add_u32 v{vT+1}, {sWB}, v{vT+1}")
        for u in range(4):
            e(f"v_add_u32 v{vT+2}, {4*u}, v{vGQ}"); e(f"v_xor_b32 v{vT+2}, v{vT+2}, v{vT}"); e(f"v_lshl_add_u32 v{vKA+u}, v{vT+2}, 4, v{vT+1}")
        e(f"v_lshrrev_b32 v{vT}, 2, v{vN}"); e(f"v_lshl_add_u32 v{vT}, v{vGQ}, 2, v{vT}")
        e(f"v_and_b32 v{vT+1}, 7, v{vT}"); e(f"v_lshlrev_b32 v{vT+2}, 9, v{vT}")
        e(f"v_and_b32 v{vT+3}, 3, v{vN}"); e(f"v_lshl_add_u32 v{vT+2}, v{vT+3}, 3, v{vT+2}")
        e(f"s_add_u32 {sT0}, {sWB}, 16384"); e(f"v_add_u32 v{vT+2}, {sT0}, v{vT+2}")
        for u in range(8):
            e(f"v_xor_b32 v{vT+3}, {u}, v{vT+1}"); e(f"v_lshl_add_u32 v{vVA+u}, v{vT+3}, 5, v{vT+2}")
        c("init O, m, l, consts")
        for i in range(64): e(f"v_mov_b32 v{vO+i}, 0")
        e(f"v_mov_b32 v{vM}, 0xff7fffff"); e(f"v_mov_b32 v{vL}, 0")
        e(f"s_mov_b32 {sC}, {fbits(C_LOG2E_16):#x}"); e(f"s_mov_b32 {sNC}, {fbits(-C_LOG2E_16):#x}")
        e(f"v_lshlrev_b32 v{vLIN16}, 4, v{vLANE}")
        e(f"s_lshl_b32 {sT0}, {sG}, 2"); e(f"s_add_u32 {sT0}, {sT0}, {sW}"); e(f"s_lshl_b32 {sT0}, {sT0}, 2"); e(f"s_add_u32 {sT0}, {sT0}, {sJ}")
        e(f"s_mul_i32 {sM1OUT}, {sT0}, {M1_SLICE}")
        if self.dyn:
            e(f"s_mov_b32 {sN}, 100000"); e(f"s_lshl_b32 {sGB}, {sG}, 22")
            e(f"s_lshl_b32 {sGC}, {sG}, 7"); e(f"s_add_u32 {sGC}, {sGC}, {GC_BASE:#x}")
            e(f"s_lshl_b32 {sSTAT}, {sJ}, 2"); e(f"s_add_u32 {sSTAT}, {sSTAT}, {sW}"); e(f"s_add_u32 {sSTAT}, {sSTAT}, 48")
            e(f"v_mov_b32 v{vZERO}, 0")
        if self.ldyn:
            e(f"s_lshl_b32 {sGC}, {sG}, 22"); e(f"s_lshr_b32 {sT0}, {sJ}, 1"); e(f"s_lshl_b32 {sT0}, {sT0}, 21"); e(f"s_add_u32 {sGC}, {sGC}, {sT0}")
            e(f"s_and_b32 {sSTAT}, {sJ}, 1"); e(f"s_mul_i32 {sSTAT}, {sSTAT}, 255")
            e(f"v_mov_b32 v{vA+1}, 1"); e(f"v_mov_b32 v{vZERO}, {CNT+8}")
            self.byrole(sPLO, self.ploA, self.ploB)
        c("Q frag read address")
        e(f"s_movk_i32 {sT1}, {QROW}")
        e(f"v_and_b32 v{vT+5}, 7, v{vN}"); e(f"v_mul_lo_u32 v{vT+5}, v{vT+5}, {sT1}"); e(f"v_lshl_add_u32 v{vT+5}, v{vGQ}, 4, v{vT+5}"); e(f"v_add_u32 v{vT+5}, {QB}, v{vT+5}")
        if self.q8v:
            c("q8v prologue: K0 K1 [K0->regs] K2 | staging free | V0 V1 [V0->regs] V2")
            e("s_waitcnt vmcnt(8)")
            self.read_k()
            e(f"s_add_u32 {sT3}, {sKOFF}, {sSTEP}"); e(f"s_add_u32 {sT3}, {sT3}, {sSTEP}")
            e(f"s_mov_b32 {sKSLOT}, {sWB}"); e(f"s_add_u32 {sVSLOT}, {sWB}, 16384")
            e("s_waitcnt lgkmcnt(0)")
            self.dma_tile(SRD_K, sT3, sKSLOT)
            e(f"s_xor_b32 {sKSLOT}, {sKSLOT}, 8192")
            for u in range(4): e(f"v_xor_b32 v{vKA+u}, 8192, v{vKA+u}")
            e(f"v_mov_b32 v{vT+6}, {CNT+20}")
            self.lds_spin("L_sfree", vT+6, vT+7, "ge", 4, 2)
            for hn in (2, 3, 6, 7): self.dma_half_static(hn)
            e("s_waitcnt vmcnt(8)")
            self.read_v()
            e(f"s_add_u32 {sT3}, {sKOFF}, {sSTEP}"); e(f"s_add_u32 {sT3}, {sT3}, {sSTEP}")
            e("s_waitcnt lgkmcnt(0)")
            self.dma_tile(SRD_V, sT3, sVSLOT)
            e(f"s_xor_b32 {sVSLOT}, {sVSLOT}, 8192")
            for u in range(8): e(f"v_xor_b32 v{vVA+u}, 8192, v{vVA+u}")
            e(f"s_add_u32 {sKOFF}, {sT3}, {sSTEP}"); e(f"s_mov_b32 {sVOFF}, {sKOFF}")
        else:
            c("paced fill of halves: K0a K0b V0a V0b K1a K1b V1a V1b, then K2 (slot A after reading K0)")
            P = self.pace
            if self.quiet:
                e("s_barrier")
                for hn in range(max(self.quiet, self.pre0), P): self.dma_half_static(hn)
            if self.q8:
                assert P <= 4 and not self.quiet
                for hn in range(max(P, self.pre0), 4):
                    e(f"s_waitcnt vmcnt({4*(P-1)})")
                    self.dma_half_static(hn)
                e(f"v_mov_b32 v{vT+6}, {CNT+20}")
                self.lds_spin("L_sfree", vT+6, vT+7, "ge", 4, 2)
                for hn in range(4, 8):
                    e(f"s_waitcnt vmcnt({4*(P-1)})")
                    self.dma_half_static(hn)
            else:
              for hn in range(max(P, self.quiet, self.pre0), 8):
                e(f"s_waitcnt vmcnt({4*(P-1)})")
                self.dma_half_static(hn)
                if hn == max(P, 2) + 1 - (0 if P <= 2 else 0) and False: pass
            c("K0 landed")
            e("s_waitcnt vmcnt(24)")
            self.read_k()
            if self.dyn:
                e(f"s_add_u32 {sKOFF}, {sKOFF}, 65536")
            else:
                e(f"s_add_u32 {sKOFF}, {sKOFF}, {sSTEP}"); e(f"s_add_u32 {sKOFF}, {sKOFF}, {sSTEP}")
            e(f"s_mov_b32 {sVOFF}, {sKOFF}")
            e(f"s_mov_b32 {sKSLOT}, {sWB}"); e(f"s_add_u32 {sVSLOT}, {sWB}, 16384")
            e(f"s_add_u32 {sT4}, {sKOFF}, {1024 << self.ib[2]}")
            e(f"s_waitcnt vmcnt({4*(P-1)}) lgkmcnt(0)")
            e(f"s_mov_b32 m0, {sKSLOT}"); e("s_nop 0")
            self.dma_half(SRD_K, sKOFF)
            e(f"s_waitcnt vmcnt({4*(P-1)})")
            e(f"s_add_u32 m0, {sKSLOT}, 4096"); e("s_nop 0")
            self.dma_half(SRD_K, sT4)
            e(f"s_add_u32 {sKOFF}, {sKOFF}, {32768 if self.dyn else sSTEP}"); e(f"s_xor_b32 {sKSLOT}, {sKSLOT}, 8192")
            for u in range(4): e(f"v_xor_b32 v{vKA+u}, 8192, v{vKA+u}")
            if self.v0pre:
                c("V0 -> regs, refill V2")
                e("s_waitcnt vmcnt(24)")
                self.read_v()
                e(f"s_add_u32 {sT4}, {sVOFF}, {1024 << self.ib[2]}")
                e(f"s_waitcnt vmcnt({4*(P-1)}) lgkmcnt(0)")
                e(f"s_mov_b32 m0, {sVSLOT}"); e("s_nop 0")
                self.dma_half(SRD_V, sVOFF)
                e(f"s_waitcnt vmcnt({4*(P-1)})")
                e(f"s_add_u32 m0, {sVSLOT}, 4096"); e("s_nop 0")
                self.dma_half(SRD_V, sT4)
                e(f"s_add_u32 {sVOFF}, {sVOFF}, {32768 if self.dyn else sSTEP}"); e(f"s_xor_b32 {sVSLOT}, {sVSLOT}, 8192")
                for u in range(8): e(f"v_xor_b32 v{vVA+u}, 8192, v{vVA+u}")
        if not self.rate: self.stamp(1)
        e("s_barrier")
        for s in range(8):
            e(f"ds_read_b128 a[{AQ+4*s}:{AQ+4*s+3}], v{vT+5}" + (f" offset:{s*64}" if s else ""))
        e(f"s_mov_b32 {sT}, 0")
        e("s_waitcnt lgkmcnt(0)")
        self.stamp(2)

        if self.order2:
            self.loop2()
        else:
            self.loop1()
        lab("L_tail")
        t0, t1, t2 = vT, vT+1, vT+2
        self.stamp(3)
        e(f"v_mov_b32 v{t1}, v{vL}"); e("s_nop 1")
        e(f"v_permlane32_swap_b32 v{t1}, v{vL}"); e(f"v_add_f32 v{vL}, v{vL}, v{t1}")
        e(f"v_mov_b32 v{t1}, v{vL}"); e("s_nop 1")
        e(f"v_permlane16_swap_b32 v{t1}, v{vL}"); e(f"v_add_f32 v{vL}, v{vL}, v{t1}")
        e(f"s_movk_i32 {sT1}, {OWROW}"); e(f"v_mul_lo_u32 v{vODUMP}, v{vN}, {sT1}")
        e(f"v_lshl_add_u32 v{vODUMP}, v{vGQ}, 4, v{vODUMP}"); e(f"v_add_u32 v{vODUMP}, {sWB}, v{vODUMP}")
        e(f"s_lshl_b32 {sT0}, {sW}, 6"); e(f"s_add_u32 {sT0}, {sT0}, {STB}")
        e(f"v_lshlrev_b32 v{t2}, 3, v{vN}"); e(f"v_add_u32 v{t2}, {sT0}, v{t2}")
        e("s_mov_b32 exec_lo, 0x00ff00ff"); e("s_mov_b32 exec_hi, 0x00ff00ff")
        for t in range(16):
            e(f"ds_write_b128 v{vODUMP}, v[{vO+4*t}:{vO+4*t+3}]" + (f" offset:{t*64}" if t else ""))
        e("s_mov_b64 exec, 0xff")
        e(f"ds_write_b64 v{t2}, v[{vM}:{vM+1}]")
        e("s_mov_b64 exec, -1")
        e(f"v_and_b32 v{vT}, 3, v{vLANE}"); e(f"v_lshrrev_b32 v{vT+1}, 2, v{vLANE}")
        e(f"s_lshr_b32 {sT0}, {sW}, 1"); e(f"s_lshl_b32 {sT0}, {sT0}, 2")
        e(f"v_add_u32 v{vT}, {sT0}, v{vT}")
        e(f"v_mul_lo_u32 v{vT2A}, v{vT}, {sT1}"); e(f"v_lshl_add_u32 v{vT2A}, v{vT+1}, 5, v{vT2A}")
        e(f"s_and_b32 {sT0}, {sW}, 1"); e(f"s_lshl_b32 {sT0}, {sT0}, 9"); e(f"v_add_u32 v{vT2A}, {sT0}, v{vT2A}")
        e(f"v_add_u32 v{vT2B}, 65536, v{vT2A}")
        e(f"v_lshlrev_b32 v{vT+2}, 3, v{vT}"); e(f"v_add_u32 v{vT+2}, {STB}, v{vT+2}")
        if self.wolate:
            e("s_waitcnt lgkmcnt(0)")
            e(f"v_mov_b32 v{vT+3}, {CNT+24}"); e(f"v_mov_b32 v{vT+4}, 1"); e("s_mov_b64 exec, 1"); e(f"ds_add_u32 v{vT+3}, v{vT+4}"); e("s_mov_b64 exec, -1")
            self.lds_spin("L_sb2", vT+3, vT+4, "ge", 4, 0)
        else:
            e("s_waitcnt lgkmcnt(0)"); e("s_barrier")
        if not self.rate and not self.dbgs: self.stamp(4)
        for w in range(4): e(f"ds_read_b64 v[{2*w}:{2*w+1}], v{vT+2} offset:{w*64}")
        for w in range(4):
            for u in range(2):
                a = vT2A if w < 2 else vT2B
                o = (w & 1) * 32768 + u * 16
                e(f"ds_read_b128 v[{8+8*w+4*u}:{8+8*w+4*u+3}], v{a}" + (f" offset:{o}" if o else ""))
        e("s_waitcnt lgkmcnt(8)")
        e("v_max3_f32 v40, v0, v2, v4"); e("v_max_f32 v40, v40, v6")
        for w in range(4): e(f"v_sub_f32 v{44+w}, v{2*w}, v40")
        for w in range(4): e(f"v_mul_f32 v{44+w}, {sC}, v{44+w}")
        for w in range(4): e(f"v_exp_f32 v{44+w}, v{44+w}")
        e("s_nop 0")
        e("v_mul_f32 v41, v44, v1"); e("v_fmac_f32 v41, v45, v3"); e("v_fmac_f32 v41, v46, v5"); e("v_fmac_f32 v41, v47, v7")
        e("s_waitcnt lgkmcnt(0)")
        for k in range(8): e(f"v_mul_f32 v{48+k}, v44, v{8+k}")
        for w in range(1, 4):
            for k in range(8): e(f"v_fmac_f32 v{48+k}, v{44+w}, v{8+8*w+k}")
        e(f"buffer_store_dwordx4 v[48:51], v{vLIN16}, {SRD_WS}, {sM1OUT} offen sc1")
        e(f"buffer_store_dwordx4 v[52:55], v{vLIN16}, {SRD_WS}, {sM1OUT} offen offset:1024 sc1")
        e(f"v_lshlrev_b32 v{vT}, 3, v{vLANE}")
        e("s_mov_b64 exec, 0xf")
        e(f"buffer_store_dwordx2 v[40:41], v{vT}, {SRD_WS}, {sM1OUT} offen offset:2048 sc1")
        e("s_mov_b64 exec, -1")
        if not self.rate and not self.dbgs: self.stamp(5)
        if self.wolate:
            e(f"s_cmp_lg_u32 {sW}, 0"); e("s_cbranch_scc1 L_fin")
            c("S0: hop 1 (T3)")
            e(f"s_lshl_b32 {sT0}, {sG}, 2"); e(f"s_add_u32 {sT0}, {sT0}, {sJ}"); e(f"s_mul_i32 {sT0}, {sT0}, {4*M1_SLICE}")
            e(f"s_add_u32 {sT1}, {sT0}, {M1_SLICE}"); e(f"s_add_u32 {sT2}, {sT0}, {2*M1_SLICE}"); e(f"s_add_u32 {sT3}, {sT0}, {3*M1_SLICE}")
            e(f"v_and_b32 v112, 3, v{vLANE}"); e(f"v_lshlrev_b32 v112, 3, v112")
            e(f"v_and_b32 v113, 3, v{vLANE}"); e(f"s_movk_i32 {sT4}, {OROW}"); e(f"v_mul_lo_u32 v113, v113, {sT4}")
            e(f"v_lshrrev_b32 v{vT}, 2, v{vLANE}"); e(f"v_lshl_add_u32 v113, v{vT}, 4, v113"); e(f"v_add_u32 v113, {OB}, v113")
            e(f"v_mov_b32 v{vT+1}, {CNT+28}")
            self.lds_spin("L_scf", vT+1, vT+2, "ge", 1, 4)
            self.t3(112, 113, (sT0, sT1, sT2, sT3), vLIN16)
            e("s_waitcnt lgkmcnt(0)"); e("s_barrier")
        e("s_branch L_fin")

        lab("L_helper")
        if self.hexit:
            e("s_waitcnt lgkmcnt(0)"); self.srd(28, 46, 47, WS_BYTES)
            e("s_barrier"); e("s_barrier"); e("s_barrier")
            if self.quiet: e("s_barrier")
            e("s_branch L_fin")
        if self.hprio: e(f"s_setprio {self.hprio}")
        if self.q8:
            c("Q phase (q8): 8 rows (batch pair) x 64 columns per WG, staged through the not yet used ring slots")
            FIRST = [0, 4, 8, 11]; NST = [4, 4, 3, 3]
            e(f"v_lshrrev_b32 v{vT}, 3, v{vLANE}"); e(f"v_lshlrev_b32 v{vT}, 13, v{vT}")
            e(f"v_and_b32 v{vT+1}, 7, v{vLANE}"); e(f"v_lshl_add_u32 v{vT}, v{vT+1}, 4, v{vT}")
            e(f"s_and_b32 {sT2}, {sY}, 7")
            e(f"s_lshl_b32 {sT0}, {sKVH}, 10"); e(f"s_lshl_b32 {sT1}, {sT2}, 7"); e(f"s_add_u32 {sT0}, {sT0}, {sT1}")
            e(f"v_add_u32 v{vDMA}, {sT0}, v{vT}")
            e(f"v_lshlrev_b32 v{vDMA+1}, 4, v{vLANE}")
            c("H0 zeroes the LDS counters")
            e(f"v_mov_b32 v{vT+2}, {CNT}")
            for i in range(4): e(f"v_mov_b32 v{vT+4+i}, 0")
            e(f"ds_write_b128 v{vT+2}, v[{vT+4}:{vT+7}] offset:16")
            if self.ldyn:
                self.byrole(sT3, self.ploA, self.ploB)
                e(f"v_mov_b32 v{vT+6}, 12"); e(f"v_mov_b32 v{vT+7}, {sT3}")
            e(f"ds_write_b128 v{vT+2}, v[{vT+4}:{vT+7}]")
            c("first step: 4*hw (hw<3) or 11 ; soffset = step*262144")
            e(f"s_lshl_b32 {sT2}, {sHW}, 2"); e(f"s_cmp_eq_u32 {sHW}, 3"); e(f"s_cselect_b32 {sT2}, 11, {sT2}"); e(f"s_lshl_b32 {sT2}, {sT2}, 18")
            e(f"s_lshl_b32 {sWB}, {sHW}, 15")
            e(f"s_lshr_b32 {sT3}, {sB}, 1"); e(f"s_mul_i32 {sT3}, {sT3}, 7168"); e(f"s_lshl_b32 {sT4}, {sHW}, 11"); e(f"s_add_u32 {sT3}, {sT3}, {sT4}")
            e(f"s_add_u32 {sT4}, {sT4}, {WQS}")
            e("s_waitcnt lgkmcnt(0)")
            if self.dbgq: self.stamp(2)
            e(f"s_add_u32 s56, s46, {EPOCH_OFF:#x}"); e("s_addc_u32 s57, s47, 0")
            e(f"s_load_dwordx2 s[60:61], s[56:57], 0")
            self.srd(16, 38, 39, 3670016); self.srd(20, 32, 33, 28672)
            e(f"s_mov_b32 m0, {sT4}"); e("s_nop 0")
            e(f"buffer_load_dwordx4 v{vDMA+1}, {SRD_X}, {sT3} offen lds")
            e(f"buffer_load_dwordx4 v{vDMA+1}, {SRD_X}, {sT3} offen offset:1024 lds")
            def wq_issue(endlab):
                for ls in range(4):
                    if ls == 3:
                        e(f"s_cmp_ge_u32 {sHW}, 2"); e(f"s_cbranch_scc1 {endlab}")
                    slot = (16384 + ls * 4096) if self.q8v else (8192 + ls * 4096 if ls < 2 else 24576 + (ls - 2) * 4096)
                    for i in range(4):
                        e(f"s_add_u32 m0, {sWB}, {slot + i*1024}")
                        if ls or i: e(f"s_add_u32 {sT2}, {sT2}, 65536")
                        else: e("s_nop 0")
                        e(f"buffer_load_dwordx4 v{vDMA}, {SRD_WQ}, {sT2} offen lds")
                lab(endlab)
            if self.qrot:
                c("the 4 WGs (batch pairs) that share these wq columns fetch a different part first; the rest then hits in L2")
                e(f"s_lshr_b32 {sT5}, {sB}, 1"); e(f"s_cmp_lg_u32 {sHW}, {sT5}"); e("s_cbranch_scc1 L_hq_late")
                wq_issue("L_hq_issued")
                e("s_barrier")
                e("s_waitcnt vmcnt(0)")
                e(f"v_mov_b32 v{vT+3}, {CNT+24}"); e(f"v_mov_b32 v{vT+4}, 1"); e(f"ds_write_b32 v{vT+3}, v{vT+4}")
                e("s_branch L_hq_go")
                lab("L_hq_late")
                e("s_barrier")
                e(f"v_mov_b32 v{vT+3}, {CNT+24}")
                self.lds_spin("L_hqw", vT+3, vT+4, "ge", 1, 1)
                wq_issue("L_hq_issued2")
                lab("L_hq_go")
            else:
                wq_issue("L_hq_issued")
                if self.dbgq: self.stamp(3)
                e("s_barrier")
            if self.dbgq: self.stamp(4)
            self.srd(28, 46, 47, WS_BYTES); self.srd(24, 40, 41, 3670016)
            e("s_mov_b32 s34, s42"); e("s_mov_b32 s35, s43")
            c("A tr-read base: (8g + (i>>2))*128 + (i&3)*8 + hw*32 ; B read base: WQS + (n&7)*896 + g*16")
            vTR0, vTR1, vXB = vT, vT+1, vT+2
            e(f"v_lshrrev_b32 v{vTR0}, 2, v{vN}"); e(f"v_lshl_add_u32 v{vTR0}, v{vGQ}, 3, v{vTR0}"); e(f"v_lshlrev_b32 v{vTR0}, 7, v{vTR0}")
            e(f"v_and_b32 v{vTR1}, 3, v{vN}"); e(f"v_lshl_add_u32 v{vTR0}, v{vTR1}, 3, v{vTR0}")
            e(f"s_lshl_b32 {sT0}, {sHW}, 5"); e(f"v_add_u32 v{vTR0}, {sT0}, v{vTR0}"); e(f"v_add_u32 v{vTR1}, 65536, v{vTR0}")
            e(f"v_and_b32 v{vXB}, 7, v{vN}"); e(f"s_movk_i32 {sT1}, 896"); e(f"v_mul_lo_u32 v{vXB}, v{vXB}, {sT1}"); e(f"v_lshl_add_u32 v{vXB}, v{vGQ}, 4, v{vXB}"); e(f"v_add_u32 v{vXB}, {WQS}, v{vXB}")
            hD = 48
            for i in range(4): e(f"v_mov_b32 v{hD+i}, 0")
            e(f"v_mov_b32 v{vT+3}, {CNT}"); e(f"v_mov_b32 v{vT+4}, 1")
            e("s_waitcnt vmcnt(0)")
            self.stamp(1)
            e("s_mov_b64 exec, 1"); e(f"ds_add_u32 v{vT+3}, v{vT+4}"); e("s_mov_b64 exec, -1")
            c("publish address while waiting: QM + ((kvh*8 + b')*32 + 4*y8 + hw)*512 + q*128 + (2g + (n>>3))*16 ; b' = (b&~1) + ((n&7)>>2), q = n&3")
            e(f"v_bfe_u32 v{vT+5}, v{vN}, 2, 1"); e(f"v_lshlrev_b32 v{vT+5}, 14, v{vT+5}")
            e(f"v_and_b32 v{vT+6}, 3, v{vN}"); e(f"v_lshl_add_u32 v{vT+5}, v{vT+6}, 7, v{vT+5}")
            e(f"v_lshrrev_b32 v{vT+6}, 3, v{vN}"); e(f"v_lshl_add_u32 v{vT+6}, v{vGQ}, 1, v{vT+6}"); e(f"v_lshl_add_u32 v{vT+5}, v{vT+6}, 4, v{vT+5}")
            e(f"s_lshl_b32 {sT0}, {sKVH}, 3"); e(f"s_and_b32 {sT1}, {sB}, 6"); e(f"s_add_u32 {sT0}, {sT0}, {sT1}"); e(f"s_lshl_b32 {sT0}, {sT0}, 14")
            e(f"s_and_b32 {sT1}, {sY}, 7"); e(f"s_lshl_b32 {sT1}, {sT1}, 2"); e(f"s_add_u32 {sT1}, {sT1}, {sHW}"); e(f"s_lshl_b32 {sT1}, {sT1}, 9")
            e(f"s_add_u32 {sT0}, {sT0}, {sT1}"); e(f"s_add_u32 {sT0}, {sT0}, {QM_BASE:#x}")
            e(f"s_mov_b32 {sSPIN}, {self.spin}")
            lab("L_hs1")
            e(f"ds_read_b32 v{vT+6}, v{vT+3}"); e("s_waitcnt lgkmcnt(0)")
            e(f"v_readfirstlane_b32 {sT1}, v{vT+6}"); e("s_nop 3")
            e(f"s_cmp_ge_u32 {sT1}, 4"); e("s_cbranch_scc1 L_hs1ok")
            self.spin_dec("L_hs1")
            lab("L_hs1ok")
            def rd(sg):
                p = max(k for k in range(4) if FIRST[k] <= sg); ls = sg - FIRST[p]
                slot = (16384 + ls * 4096) if self.q8v else (8192 + ls * 4096 if ls < 2 else 24576 + (ls - 2) * 4096)
                base = (p & 1) * 32768 + slot; ar = vTR0 if p < 2 else vTR1
                R = 8 * (sg % 5)
                e(f"ds_read_b64_tr_b16 v[{R}:{R+1}], v{ar} offset:{base}")
                e(f"ds_read_b64_tr_b16 v[{R+2}:{R+3}], v{ar} offset:{base+512}")
                e(f"ds_read_b128 v[{R+4}:{R+7}], v{vXB}" + (f" offset:{sg*64}" if sg else ""))
            for sg in range(4): rd(sg)
            for sg in range(14):
                if sg + 4 < 14: rd(sg + 4)
                outstanding = min(4, 13 - sg)
                e(f"s_waitcnt lgkmcnt({3*outstanding})")
                R = 8 * (sg % 5)
                e(f"v_mfma_f32_16x16x32_bf16 v[{hD}:{hD+3}], v[{R}:{R+3}], v[{R+4}:{R+7}], v[{hD}:{hD+3}]")
            c("staging is free now: tell the streamers")
            e(f"v_mov_b32 v{vT+3}, {CNT+20}"); e(f"v_mov_b32 v{vT+4}, 1")
            e("s_mov_b64 exec, 1"); e(f"ds_add_u32 v{vT+3}, v{vT+4}"); e("s_mov_b64 exec, -1")
            c("launch tag: E' = E + C (64 bit); TL = low 16 bits << 16, sTAG = bits 16..47")
            e(f"s_add_u32 s60, s60, 0x7f4a7c15"); e(f"s_addc_u32 s61, s61, 0x9e3779b9")
            e(f"s_lshl_b32 {sTL}, s60, 16"); e(f"s_lshr_b32 {sTAG}, s60, 16"); e(f"s_lshl_b32 {sT1}, s61, 16"); e(f"s_or_b32 {sTAG}, {sTAG}, {sT1}")
            e(f"v_cmp_gt_u32 vcc, 8, v{vN}")
            self.nop(2)
            e(f"v_cndmask_b32 v0, v{hD+2}, v{hD}, vcc"); e(f"v_cndmask_b32 v1, v{hD+3}, v{hD+1}, vcc")
            e("v_cvt_pk_bf16_f32 v0, v0, v1")
            e(f"v_and_b32 v4, 0xffff, v0"); e(f"v_lshrrev_b32 v6, 16, v0")
            e(f"v_or_b32 v4, {sTL}, v4"); e(f"v_or_b32 v6, {sTL}, v6"); e(f"v_mov_b32 v5, {sTAG}"); e(f"v_mov_b32 v7, {sTAG}")
            e(f"buffer_store_dwordx4 v[4:7], v{vT+5}, {SRD_WS}, {sT0} offen sc1")
        else:
            self.q32_phase()
        if True:
            self.stamp(2) if not self.dbgq else None
            if self.quiet: e("s_barrier")
            e(f"v_lshlrev_b32 v{vLIN16}, 4, v{vLANE}")
            c("poll own 4 KB: QM + (kvh*8+b)*16384 + hw*4096 + i*1024 + l*16")
            e(f"s_lshl_b32 {sT0}, {sKVH}, 3"); e(f"s_add_u32 {sT0}, {sT0}, {sB}"); e(f"s_lshl_b32 {sT0}, {sT0}, 14"); e(f"s_lshl_b32 {sT1}, {sHW}, 12")
            e(f"s_add_u32 {sT0}, {sT0}, {sT1}"); e(f"s_add_u32 {sT0}, {sT0}, {QM_BASE:#x}")
            c("LDS write address: QB + (4h+q)*528 + (128*(hw&1) + 16yy + 2cp)*2 ; yy = 2i + (l>>5), q=(l&31)>>3, cp=l&7, h=hw>>1")
            e(f"v_bfe_u32 v{vT}, v{vLANE}, 3, 2")
            e(f"s_lshr_b32 {sT1}, {sHW}, 1"); e(f"s_lshl_b32 {sT1}, {sT1}, 2"); e(f"v_add_u32 v{vT}, {sT1}, v{vT}")
            e(f"s_movk_i32 {sT1}, {QROW}"); e(f"v_mul_lo_u32 v{vT}, v{vT}, {sT1}")
            e(f"v_lshrrev_b32 v{vT+1}, 5, v{vLANE}"); e(f"v_lshl_add_u32 v{vT}, v{vT+1}, 5, v{vT}")
            e(f"v_and_b32 v{vT+1}, 7, v{vLANE}"); e(f"v_lshl_add_u32 v{vT}, v{vT+1}, 2, v{vT}")
            e(f"s_and_b32 {sT1}, {sHW}, 1"); e(f"s_lshl_b32 {sT1}, {sT1}, 8"); e(f"s_add_u32 {sT1}, {sT1}, {QB}"); e(f"v_add_u32 v{vT}, {sT1}, v{vT}")
            e(f"s_mov_b32 {sSPIN}, {self.spin}"); e(f"s_mov_b32 {sT2}, 0xffff0000"); e(f"s_mov_b32 {sT3}, 0x05040100")
            if self.qdelay: e(f"s_waitcnt vmcnt(0)")
            lab("L_hq_poll")
            for i in range(4):
                e(f"buffer_load_dwordx4 v[{8+4*i}:{8+4*i+3}], v{vLIN16}, {SRD_WS}, {sT0} offen" + (f" offset:{i*1024}" if i else "") + " sc1")
            e("s_waitcnt vmcnt(0)")
            for i in range(4):
                b = 8 + 4*i
                e(f"v_and_b32 v{24+2*i}, {sT2}, v{b}"); e(f"v_and_b32 v{25+2*i}, {sT2}, v{b+2}")
                e(f"v_xor_b32 v{24+2*i}, {sTL}, v{24+2*i}"); e(f"v_xor_b32 v{25+2*i}, {sTL}, v{25+2*i}")
                e(f"v_xor_b32 v{32+2*i}, {sTAG}, v{b+1}"); e(f"v_xor_b32 v{33+2*i}, {sTAG}, v{b+3}")
            e("v_or3_b32 v24, v24, v25, v26"); e("v_or3_b32 v27, v27, v28, v29"); e("v_or3_b32 v30, v30, v31, v32"); e("v_or3_b32 v33, v33, v34, v35")
            e("v_or3_b32 v36, v36, v37, v38"); e("v_or3_b32 v24, v24, v27, v30"); e("v_or3_b32 v33, v33, v36, v39"); e("v_or_b32 v24, v24, v33")
            e("v_cmp_ne_u32 vcc, 0, v24"); e("s_nop 1"); e("s_cbranch_vccz L_hq_ok")
            self.spin_dec("L_hq_poll")
            lab("L_hq_ok")
            if not self.dbgq: self.stamp(3)
            for i in range(4):
                b = 8 + 4*i
                e(f"v_perm_b32 v{24+i}, v{b+2}, v{b}, {sT3}")
            for i in range(4):
                e(f"ds_write_b32 v{vT}, v{24+i}" + (f" offset:{i*64}" if i else ""))
            e("s_waitcnt lgkmcnt(0)")
            if not self.dbgq: self.stamp(4)
        lab("L_hq_done")
        e("s_barrier")
        self.srd(48, 34, 35, 28672)
        if self.wopf and not self.pflate:
            c("L2 prefetch of this WG's 1/8 share of the wo quarter: rows r*128 + 16b .. +16 (14336 B contiguous); wave hw: 4KB pieces")
            e(f"s_lshl_b32 {sT0}, {sR}, 7"); e(f"s_lshl_b32 {sT1}, {sB}, 4"); e(f"s_add_u32 {sT0}, {sT0}, {sT1}"); e(f"s_mul_i32 {sT0}, {sT0}, 896")
            e(f"s_lshl_b32 {sT1}, {sHW}, 12"); e(f"s_add_u32 {sT0}, {sT0}, {sT1}")
            for i in range(4):
                e(f"buffer_load_dwordx4 v[{8+4*i}:{8+4*i+3}], v{vLIN16}, {SRD_WO}, {sT0} offen" + (f" offset:{i*1024}" if i else "") + self.pffl)
        c("clears: M1[g][recv=hw][sender=j] (2176B) and M2[b][r][hw] (2048B)")
        e(f"s_lshl_b32 {sT0}, {sG}, 2"); e(f"s_add_u32 {sT0}, {sT0}, {sHW}"); e(f"s_lshl_b32 {sT0}, {sT0}, 2"); e(f"s_add_u32 {sT0}, {sT0}, {sJ}")
        e(f"s_mul_i32 {sM1OUT}, {sT0}, {M1_SLICE}")
        e(f"s_lshl_b32 {sT0}, {sB}, 5"); e(f"s_add_u32 {sT0}, {sT0}, {sR}"); e(f"s_lshl_b32 {sT0}, {sT0}, 13"); e(f"s_lshl_b32 {sT1}, {sHW}, 11")
        e(f"s_add_u32 {sM2OUT}, {sT0}, {sT1}"); e(f"s_add_u32 {sM2OUT}, {sM2OUT}, {M2_BASE:#x}")
        for i in range(4): e(f"v_mov_b32 v{i}, -1")
        if not self.noclr:
            e(f"buffer_store_dwordx4 v[0:3], v{vLIN16}, {SRD_WS}, {sM1OUT} offen sc1")
            e(f"buffer_store_dwordx4 v[0:3], v{vLIN16}, {SRD_WS}, {sM1OUT} offen offset:1024 sc1")
            e(f"buffer_store_dwordx4 v[0:3], v{vLIN16}, {SRD_WS}, {sM2OUT} offen sc1")
            e(f"buffer_store_dwordx4 v[0:3], v{vLIN16}, {SRD_WS}, {sM2OUT} offen offset:1024 sc1")
        e("s_mov_b64 exec, 0xff")
        e(f"buffer_store_dwordx4 v[0:3], v{vLIN16}, {SRD_WS}, {sM1OUT} offen offset:2048 sc1")
        if self.dyn:
            c("group counter := 0 (j==0, hw==0)")
            e(f"s_or_b32 {sT0}, {sJ}, {sHW}"); e(f"s_cmp_lg_u32 {sT0}, 0"); e("s_cbranch_scc1 L_hnogc")
            e("s_mov_b64 exec, 1"); e(f"v_mov_b32 v4, 0"); e(f"s_lshl_b32 {sT0}, {sG}, 7"); e(f"s_add_u32 {sT0}, {sT0}, {GC_BASE:#x}")
            e(f"buffer_store_dword v4, v4, {SRD_WS}, {sT0} offen sc1")
            lab("L_hnogc")
        e("s_mov_b64 exec, -1")
        e("s_waitcnt vmcnt(0)")
        if self.dbgmid: self.stamp(1)
        c("last helper wave signals clears done: lane r' writes CF[consumer wg' = (r'>>2) + 32b + 8(r'&3)][r] := tag")
        e(f"v_mov_b32 v{vT+4}, 1"); e(f"v_mov_b32 v{vT+3}, {CNT+4}")
        e("s_mov_b64 exec, 1")
        e(f"ds_add_rtn_u32 v{vT+6}, v{vT+3}, v{vT+4}"); e("s_waitcnt lgkmcnt(0)")
        e(f"v_readfirstlane_b32 {sT1}, v{vT+6}"); e("s_nop 3")
        e("s_mov_b64 exec, -1")
        e(f"s_cmp_eq_u32 {sT1}, {3 if self.hop1 else 7}"); e("s_cbranch_scc0 L_hnoflag2")
        e(f"v_lshrrev_b32 v{vT+5}, 2, v{vLANE}"); e(f"v_and_b32 v{vT+6}, 3, v{vLANE}"); e(f"v_lshl_add_u32 v{vT+5}, v{vT+6}, 3, v{vT+5}")
        e(f"v_lshlrev_b32 v{vT+5}, 7, v{vT+5}"); e(f"v_mov_b32 v{vT+4}, {sTAG}")
        e(f"s_lshl_b32 {sT4}, {sB}, 12"); e(f"s_lshl_b32 {sT5}, {sR}, 2"); e(f"s_add_u32 {sT4}, {sT4}, {sT5}"); e(f"s_add_u32 {sT4}, {sT4}, {CF_BASE:#x}")
        e("s_mov_b32 exec_lo, -1"); e("s_mov_b32 exec_hi, 0")
        e(f"buffer_store_dword v{vT+4}, v{vT+5}, {SRD_WS}, {sT4} offen sc1")
        lab("L_hnoflag2")
        e("s_mov_b64 exec, -1")
        c("wo: load, transpose, park in AGPRs a[0:127]")
        e(f"s_mov_b32 {sSEL_LO}, 0x05040100"); e(f"s_mov_b32 {sSEL_HI}, 0x07060302")
        e(f"s_lshl_b32 {sT0}, {sR}, 7")
        if self.wosame: e(f"s_mov_b32 {sT0}, 0")
        e(f"v_lshlrev_b32 v{vT}, 3, v{vGQ}"); e(f"v_add_u32 v{vT}, {sT0}, v{vT}")
        e(f"s_movk_i32 {sT1}, 896"); e(f"v_mul_lo_u32 v{vT}, v{vT}, {sT1}")
        e(f"s_mul_i32 {sT0}, {sHW}, {256 if self.wo128 else 224}"); e(f"v_lshl_add_u32 v{vT}, v{vN}, 4, v{vT}"); e(f"v_add_u32 v{vT}, {sT0}, v{vT}")
        if self.wo128:
            c("wave 3 owns only 64 columns: lanes m>=8 stay zero")
            for i in range(32): e(f"v_mov_b32 v{i}, 0")
            e(f"s_cmp_eq_u32 {sHW}, 3"); e(f"s_cselect_b32 {sT2}, 0x00ff00ff, -1")
        if self.wolate:
            e(f"v_mov_b32 v{hWO}, v{vT}"); e(f"s_mov_b32 {sWOM}, {sT2}")
        for ks in range(4):
            if self.nowo or self.wolate: break
            kk = 0 if self.wosame else ks
            e(f"s_mov_b32 {sT0}, {kk*32*896}"); e(f"s_mov_b32 {sT1}, {kk*32*896 + 4*896}")
            if self.wo128: e(f"s_mov_b32 exec_lo, {sT2}"); e(f"s_mov_b32 exec_hi, {sT2}")
            for i in range(8):
                so = sT0 if i < 4 else sT1
                o = (i & 3) * 896
                e(f"buffer_load_dwordx4 v[{4*i}:{4*i+3}], v{vT}, {SRD_WO}, {so} offen" + (f" offset:{o}" if o else "") + self.wofl)
                if self.wopace < 8 and (i + 1) % self.wopace == 0: e("s_waitcnt vmcnt(0)")
            if self.wo128: e("s_mov_b64 exec, -1")
            e("s_waitcnt vmcnt(0)")
            for j in range(8):
                u = j >> 1; sel = sSEL_HI if (j & 1) else sSEL_LO
                for p in range(4):
                    e(f"v_perm_b32 v{32+4*j+p}, v{4*(2*p+1)+u}, v{4*(2*p)+u}, {sel}")
            for k in range(32): e(f"v_accvgpr_write_b32 a{32*ks+k}, v{32+k}")
        if self.dbgmid: self.stamp(2)
        c("wait until all WGs of batch b have cleared their outboxes: dword at kvh*32+4b == 0x01010101 for all kvh")
        e(f"s_cmp_lg_u32 {sHW}, 0"); e("s_cbranch_scc1 L_hclrok")
        e(f"s_lshl_b32 {sT0}, {sLID}, 7"); e(f"s_add_u32 {sT0}, {sT0}, {CF_BASE:#x}")
        e(f"v_and_b32 v{vT+1}, 31, v{vLANE}"); e(f"v_lshlrev_b32 v{vT+1}, 2, v{vT+1}")
        e(f"s_mov_b32 {sSPIN}, {self.spin}")
        lab("L_hclr")
        e(f"buffer_load_dword v{vT+2}, v{vT+1}, {SRD_WS}, {sT0} offen sc1"); e("s_waitcnt vmcnt(0)")
        e(f"v_cmp_ne_u32 vcc, {sTAG}, v{vT+2}"); e("s_nop 1"); e("s_cbranch_vccz L_hclrok")
        e("s_sleep 16")
        self.spin_dec("L_hclr")
        lab("L_hclrok")
        if self.wolate:
            e(f"s_cmp_lg_u32 {sHW}, 0"); e("s_cbranch_scc1 L_hnocf")
            e(f"v_mov_b32 v{vT+1}, {CNT+28}"); e(f"v_mov_b32 v{vT+2}, 1"); e(f"ds_write_b32 v{vT+1}, v{vT+2}")
            lab("L_hnocf")
        if self.dyn:
            e(f"s_cmp_lg_u32 {sHW}, 0"); e("s_cbranch_scc1 L_hnodyn")
            e(f"v_mov_b32 v{vT+1}, {CNT+8}"); e(f"v_mov_b32 v{vT+2}, 1"); e(f"ds_write_b32 v{vT+1}, v{vT+2}")
            lab("L_hnodyn")
        if self.dbgmid: self.stamp(3)
        if self.ldyn:
            c("H0: late balance exchange with partner (lid ^ 8). LDS: CNT+8 tile counter, CNT+12 limit, CNT+16 final")
            e(f"s_cmp_lg_u32 {sHW}, 0"); e("s_cbranch_scc1 L_hbaldone")
            e(f"v_mov_b32 v{vT}, {CNT+8}"); e(f"s_mov_b32 {sSPIN}, {self.spin}")
            lab("L_hb0")
            e(f"ds_read_b32 v0, v{vT}"); e("s_waitcnt lgkmcnt(0)")
            e(f"v_readfirstlane_b32 {sT0}, v0"); e("s_nop 3")
            e(f"s_cmp_ge_u32 {sT0}, {self.t0s}"); e("s_cbranch_scc1 L_hb0ok")
            e("s_sleep 32"); self.spin_dec("L_hb0")
            lab("L_hb0ok")
            e("s_memrealtime s[8:9]"); e("s_waitcnt lgkmcnt(0)")
            e(f"s_lshl_b32 {sT1}, {sLID}, 7"); e(f"s_add_u32 {sT1}, {sT1}, {BAL_BASE:#x}")
            e(f"s_add_u32 s10, s46, {sT1}"); e("s_addc_u32 s11, s47, 0")
            if self.asym: self.byrole(sT4, self.ploA - self.tmarg, self.ploB - self.tmarg)
            else: e(f"s_mov_b32 {sT4}, {self.t1s}")
            c("s64 = clamp lo for nA, s65 = clamp hi for nA, s66 = round, s67 = partner mailbox offset")
            e(f"s_mov_b32 s64, {self.ploA}"); e(f"s_mov_b32 s65, {256-self.ploB}"); e("s_mov_b32 s66, 0")
            e(f"s_xor_b32 s67, {sLID}, 8"); e("s_lshl_b32 s67, s67, 7"); e(f"s_add_u32 s67, s67, {BAL_BASE:#x}")
            lab("L_hbround")
            e(f"s_mov_b32 {sSPIN}, {self.spin}")
            lab("L_hb1")
            e(f"ds_read_b32 v0, v{vT}"); e("s_load_dwordx8 s[12:19], s[10:11], 0 glc"); e("s_waitcnt lgkmcnt(0)")
            e(f"v_readfirstlane_b32 {sT2}, v0"); e("s_nop 3")
            e(f"s_cmp_ge_u32 {sT2}, {sT4}"); e("s_cbranch_scc1 L_hb1ok")
            e(f"s_cmp_eq_u32 s17, {sTAG}"); e("s_cbranch_scc1 L_hb1ok")
            e("s_sleep 12"); self.spin_dec("L_hb1")
            lab("L_hb1ok")
            e("s_memrealtime s[20:21]"); e("s_waitcnt lgkmcnt(0)")
            c("publish {T0|T1<<16, tag, tau0, tag} {tau1, tag}")
            e(f"s_lshl_b32 {sT3}, {sT2}, 16"); e(f"s_or_b32 {sT3}, {sT3}, {sT0}")
            e(f"v_mov_b32 v4, {sT3}"); e(f"v_mov_b32 v5, {sTAG}"); e("v_mov_b32 v6, s8"); e(f"v_mov_b32 v7, {sTAG}"); e("v_mov_b32 v8, s20"); e(f"v_mov_b32 v9, {sTAG}"); e("v_mov_b32 v10, 0")
            e("s_mov_b64 exec, 1")
            e(f"buffer_store_dwordx4 v[4:7], v10, {SRD_WS}, s67 offen sc1")
            e(f"buffer_store_dwordx2 v[8:9], v10, {SRD_WS}, s67 offen offset:16 sc1")
            e(f"s_mov_b32 {sSPIN}, {self.spin}")
            lab("L_hb2")
            e("s_load_dwordx8 s[12:19], s[10:11], 0 glc"); e("s_waitcnt lgkmcnt(0)")
            e(f"s_xor_b32 s22, s13, {sTAG}"); e(f"s_xor_b32 s23, s15, {sTAG}"); e("s_or_b32 s22, s22, s23"); e(f"s_xor_b32 s23, s17, {sTAG}"); e("s_or_b32 s22, s22, s23")
            e("s_cmp_eq_u32 s22, 0"); e("s_cbranch_scc1 L_hb2ok")
            e("s_sleep 4"); self.spin_dec("L_hb2")
            e("v_mov_b32 v20, s64"); e("s_mov_b32 s66, 1"); e("s_branch L_hbn")
            lab("L_hb2ok")
            e(f"s_and_b32 {sT1}, {sJ}, 1"); e(f"s_cmp_eq_u32 {sT1}, 0")
            e(f"s_cselect_b32 s22, {sT3}, s12"); e("s_cselect_b32 s23, s8, s14"); e("s_cselect_b32 s9, s20, s16")
            e(f"s_cselect_b32 s12, s12, {sT3}"); e("s_cselect_b32 s14, s14, s8"); e("s_cselect_b32 s16, s16, s20")
            e("s_lshr_b32 s13, s22, 16"); e("s_and_b32 s22, s22, 0xffff")
            e("s_lshr_b32 s15, s12, 16"); e("s_and_b32 s12, s12, 0xffff")
            e("s_sub_u32 s22, s13, s22"); e("s_sub_u32 s23, s9, s23")
            e("s_sub_u32 s12, s15, s12"); e("s_sub_u32 s14, s16, s14")
            e("s_sub_u32 s16, s16, s9")
            e("v_cvt_f32_u32 v0, s22"); e("v_cvt_f32_u32 v1, s23"); e("v_cvt_f32_u32 v2, s12"); e("v_cvt_f32_u32 v3, s14")
            e("v_cvt_f32_i32 v4, s16"); e("v_cvt_f32_u32 v5, s13"); e("v_cvt_f32_u32 v6, s15")
            c("pA = dtauA/dTA (time per tile), pB = dtauB/dTB ; n = (delta + TA*pA + (256 - TB)*pB) / (pA + pB)")
            e("v_rcp_f32 v0, v0"); e("v_rcp_f32 v2, v2"); e("s_nop 0")
            e("v_mul_f32 v1, v1, v0"); e("v_mul_f32 v3, v3, v2")
            e(f"v_sub_f32 v6, {fbits(256.0):#x}, v6")
            e("v_fmac_f32 v4, v5, v1"); e("v_fmac_f32 v4, v6, v3")
            e("v_add_f32 v6, v1, v3"); e("v_rcp_f32 v6, v6"); e("s_nop 0")
            e("v_mul_f32 v5, v4, v6"); e("v_add_f32 v5, 0.5, v5"); e("v_cvt_i32_f32 v20, v5")
            e("v_max_i32 v20, s64, v20"); e("v_min_i32 v20, s65, v20")
            lab("L_hbn")
            e("s_nop 0"); e(f"v_readfirstlane_b32 s22, v20"); e("s_nop 3")
            e(f"v_mov_b32 v22, {CNT+12}")
            if self.rounds2:
                e("s_cmp_lg_u32 s66, 0"); e("s_cbranch_scc1 L_hbfinal")
                c("round 1: provisional limits pA = max(ploA, nA - delta), pB = max(ploB, 256 - nA - delta)")
                e(f"s_sub_u32 s23, s22, {self.delta}"); e("s_max_i32 s64, s64, s23")
                e(f"s_sub_u32 s23, {256 - self.delta}, s22"); e(f"s_max_i32 s23, s23, {self.ploB}")
                e("s_sub_u32 s65, 256, s23")
                e(f"s_and_b32 {sT1}, {sJ}, 1"); e(f"s_cmp_eq_u32 {sT1}, 0"); e("s_cselect_b32 s23, s64, s23")
                e("v_mov_b32 v21, s23"); e("ds_write_b32 v22, v21")
                e(f"s_sub_u32 {sT4}, s23, {self.tmarg2}")
                e("s_mov_b32 s8, s20"); e(f"s_mov_b32 {sT0}, {sT2}")
                e("s_add_u32 s10, s10, 32"); e("s_addc_u32 s11, s11, 0"); e("s_add_u32 s67, s67, 32")
                e("s_mov_b32 s66, 1"); e("s_mov_b64 exec, -1")
                e("s_branch L_hbround")
                lab("L_hbfinal")
            e(f"s_and_b32 {sT1}, {sJ}, 1"); e(f"s_cmp_eq_u32 {sT1}, 0"); e("s_cbranch_scc1 L_hb3")
            e("s_sub_u32 s22, 256, s22")
            lab("L_hb3")
            e("v_mov_b32 v20, s22"); e("v_mov_b32 v21, 1")
            e("ds_write_b32 v22, v20"); e("s_waitcnt lgkmcnt(0)"); e("ds_write_b32 v22, v21 offset:4")
            e("s_mov_b64 exec, -1")
            lab("L_hbaldone")
        elif self.bal:
            c("H0: balance exchange with partner (lid ^ 8)")
            e(f"s_cmp_lg_u32 {sHW}, 0"); e("s_cbranch_scc1 L_hbaldone")
            e(f"v_mov_b32 v{vT}, {CNT+8}"); e(f"s_mov_b32 {sSPIN}, {self.spin}")
            lab("L_hbal1")
            e(f"ds_read_b64 v[0:1], v{vT}"); e("s_waitcnt lgkmcnt(0)")
            e(f"v_readfirstlane_b32 {sT0}, v1"); e("s_nop 3")
            e(f"s_cmp_lg_u32 {sT0}, 0"); e("s_cbranch_scc1 L_hbal1ok")
            e("s_sleep 32")
            self.spin_dec("L_hbal1")
            lab("L_hbal1ok")
            c("v0 = a (time at ta), v1 = c (time at tb): publish {a, tag, c, tag}")
            e(f"v_mov_b32 v4, v0"); e(f"v_mov_b32 v5, {sTAG}"); e(f"v_mov_b32 v6, v1"); e(f"v_mov_b32 v7, {sTAG}"); e("v_mov_b32 v8, 0")
            e(f"s_xor_b32 {sT0}, {sLID}, 8"); e(f"s_lshl_b32 {sT0}, {sT0}, 7"); e(f"s_add_u32 {sT0}, {sT0}, {BAL_BASE:#x}")
            e("s_mov_b64 exec, 1")
            e(f"buffer_store_dwordx4 v[4:7], v8, {SRD_WS}, {sT0} offen sc1")
            e(f"s_lshl_b32 {sT0}, {sLID}, 7"); e(f"s_add_u32 {sT0}, {sT0}, {BAL_BASE:#x}")
            e(f"s_mov_b32 {sSPIN}, {self.spin}")
            lab("L_hbal2")
            e(f"buffer_load_dwordx4 v[12:15], v8, {SRD_WS}, {sT0} offen sc1"); e("s_waitcnt vmcnt(0)")
            e(f"v_xor_b32 v16, {sTAG}, v13"); e(f"v_xor_b32 v17, {sTAG}, v15"); e("v_or_b32 v16, v16, v17")
            e("s_nop 0"); e(f"v_readfirstlane_b32 {sT1}, v16"); e("s_nop 3")
            e(f"s_cmp_eq_u32 {sT1}, 0"); e("s_cbranch_scc1 L_hbal2ok")
            e("s_sleep 16")
            self.spin_dec("L_hbal2")
            c("timeout: both sides cannot agree -> cannot happen in a healthy run; use N = 32")
            e("v_mov_b32 v20, 32"); e("s_branch L_hbal3")
            lab("L_hbal2ok")
            c("A = role 0, B = role 1: (aA,cA) in v[0:1] / (aB,cB) in v12,v14 for role 0; swapped for role 1")
            e(f"s_and_b32 {sT1}, {sJ}, 1"); e(f"s_cmp_eq_u32 {sT1}, 0")
            e("s_cbranch_scc1 L_hbalA")
            e("v_mov_b32 v18, v0"); e("v_mov_b32 v19, v1"); e("v_mov_b32 v0, v12"); e("v_mov_b32 v1, v14"); e("v_mov_b32 v12, v18"); e("v_mov_b32 v14, v19")
            lab("L_hbalA")
            e("v_sub_u32 v2, v1, v0"); e("v_sub_u32 v3, v14, v12"); e("v_sub_u32 v4, v14, v1")
            e("v_cvt_f32_i32 v2, v2"); e("v_cvt_f32_i32 v3, v3"); e("v_cvt_f32_i32 v4, v4")
            nint = self.tb - self.ta
            e(f"v_mul_f32 v5, {fbits(float(nint)):#x}, v4")
            e(f"v_mov_b32 v6, {fbits(float(64-self.tb)):#x}"); e("v_fmac_f32 v5, v6, v3")
            e(f"v_mov_b32 v6, {fbits(float(self.tb)):#x}"); e("v_fmac_f32 v5, v6, v2")
            e("v_add_f32 v6, v2, v3"); e("v_rcp_f32 v6, v6"); e("s_nop 0")
            e("v_mul_f32 v5, v5, v6"); e("v_add_f32 v5, 0.5, v5"); e("v_cvt_i32_f32 v20, v5")
            e(f"v_max_i32 v20, {self.nlo}, v20"); e(f"v_min_i32 v20, {64-self.nlo}, v20")
            e(f"s_cbranch_scc1 L_hbal3")
            e("v_sub_u32 v20, 64, v20")
            lab("L_hbal3")
            e(f"v_mov_b32 v21, {CNT+16}"); e("ds_write_b32 v21, v20")
            e("s_mov_b64 exec, -1")
            lab("L_hbaldone")
        e(f"s_mov_b32 {sC}, {fbits(C_LOG2E_16):#x}")
        c("precompute tail addresses")
        e(f"s_lshl_b32 {sT0}, {sG}, 2"); e(f"s_add_u32 {sT0}, {sT0}, {sJ}"); e(f"s_mul_i32 {sT0}, {sT0}, {4*M1_SLICE}")
        e(f"s_add_u32 {sT1}, {sT0}, {M1_SLICE}"); e(f"s_add_u32 {sT2}, {sT0}, {2*M1_SLICE}"); e(f"s_add_u32 {sT3}, {sT0}, {3*M1_SLICE}")
        hST = 108
        e(f"v_and_b32 v{hST}, 3, v{vLANE}"); e(f"v_lshlrev_b32 v{hST}, 3, v{hST}")
        hOW, hOR, hYS, hP2, hOUT = 109, 110, 111, 112, 113
        e(f"v_and_b32 v{hOW}, 3, v{vLANE}"); e(f"s_movk_i32 {sT4}, {OROW}"); e(f"v_mul_lo_u32 v{hOW}, v{hOW}, {sT4}")
        e(f"v_lshrrev_b32 v{vT}, 2, v{vLANE}"); e(f"v_lshl_add_u32 v{hOW}, v{vT}, 4, v{hOW}"); e(f"v_add_u32 v{hOW}, {OB}, v{hOW}")
        e(f"v_and_b32 v{hOR}, 3, v{vN}"); e(f"v_mul_lo_u32 v{hOR}, v{hOR}, {sT4}"); e(f"v_lshl_add_u32 v{hOR}, v{vGQ}, 4, v{hOR}"); e(f"v_add_u32 v{hOR}, {OB}, v{hOR}")
        e(f"v_lshlrev_b32 v{hYS}, 6, v{vGQ}"); e(f"v_lshl_add_u32 v{hYS}, v{vN}, 4, v{hYS}")
        e(f"v_lshlrev_b32 v{hP2}, 16, v{vGQ}"); e(f"v_lshl_add_u32 v{hP2}, v{vN}, 4, v{hP2}")
        e(f"v_and_b32 v{hOUT}, 3, v{vN}"); e(f"s_lshl_b32 {sT4}, {sB}, 2"); e(f"v_add_u32 v{hOUT}, {sT4}, v{hOUT}")
        e(f"s_movk_i32 {sT4}, 896"); e(f"v_mul_lo_u32 v{hOUT}, v{hOUT}, {sT4}")
        e(f"v_lshrrev_b32 v{vT}, 2, v{vN}"); e(f"v_lshl_add_u32 v{hOUT}, v{vT}, 6, v{hOUT}")
        e(f"s_lshl_b32 s58, {sB}, 18"); e(f"s_lshr_b32 {sT4}, {sR}, 3"); e(f"s_lshl_b32 {sT4}, {sT4}, 11"); e(f"s_add_u32 s58, s58, {sT4}")
        e(f"s_and_b32 {sT4}, {sR}, 7"); e(f"s_lshl_b32 {sT4}, {sT4}, 8"); e(f"s_add_u32 s58, s58, {sT4}"); e(f"s_add_u32 s58, s58, {M2_BASE:#x}")
        e(f"s_lshr_b32 s59, {sR}, 3"); e(f"s_mul_i32 s59, s59, {256 if self.wo128 else 224}"); e(f"s_and_b32 {sT4}, {sR}, 7"); e(f"s_lshl_b32 {sT4}, {sT4}, 1"); e(f"s_add_u32 s59, s59, {sT4}")
        self.stamp(5)
        if not self.wolate:
            e("s_barrier")
            if self.notail: e("s_branch L_fin")
            e(f"s_cmp_lg_u32 {sHW}, 0"); e("s_cbranch_scc1 L_t3done")
            self.t3(hST, hOW, (sT0, sT1, sT2, sT3), vLIN16)
        else:
            if self.pflate:
                c("late L2 prefetch of this WG's 1/8 share: when the tile counter is within pflate tiles of the limit")
                e(f"v_mov_b32 v{vT+1}, {CNT+8}"); e(f"s_mov_b32 {sSPIN}, {self.spin}")
                lab("L_hpf")
                e(f"ds_read_b32 v{vT+2}, v{vT+1}"); e(f"ds_read2_b32 v[{vT+4}:{vT+5}], v{vT+1} offset0:1 offset1:2"); e("s_waitcnt lgkmcnt(0)")
                e(f"v_readfirstlane_b32 {sT4}, v{vT+2}"); e(f"v_readfirstlane_b32 {sT5}, v{vT+4}"); e(f"v_readfirstlane_b32 s64, v{vT+5}"); e("s_nop 3")
                e(f"s_add_u32 {sT4}, {sT4}, {self.pflate}")
                e(f"s_cmp_ge_u32 {sT4}, {sT5}"); e(f"s_cselect_b32 {sT4}, s64, 0"); e(f"s_cmp_lg_u32 {sT4}, 0"); e("s_cbranch_scc1 L_hpf_ok")
                e("s_sleep 16"); self.spin_dec("L_hpf")
                lab("L_hpf_ok")
                e(f"s_lshl_b32 {sT4}, {sR}, 7"); e(f"s_lshl_b32 {sT5}, {sB}, 4"); e(f"s_add_u32 {sT4}, {sT4}, {sT5}"); e(f"s_mul_i32 {sT4}, {sT4}, 896")
                e(f"s_lshl_b32 {sT5}, {sHW}, 12"); e(f"s_add_u32 {sT4}, {sT4}, {sT5}")
                for i in range(4):
                    e(f"buffer_load_dwordx4 v[{68+4*i}:{68+4*i+3}], v{vLIN16}, {SRD_WO}, {sT4} offen" + (f" offset:{i*1024}" if i else ""))
            c("wait until all streamers have issued their last DMA, then load wo (L2 hits) behind them")
            e(f"v_mov_b32 v{vT+1}, {CNT+20}")
            self.lds_spin("L_hiss", vT+1, vT+2, "ge", 4, 8)
            self.wo_pipeline()
        lab("L_t3done")
        e("s_waitcnt lgkmcnt(0)"); e("s_barrier")
        self.stamp(6)
        BF = 64 + 48 - 64 + 40
        BF = 40
        for ks in range(4):
            e(f"ds_read_b128 v[{BF+4*ks}:{BF+4*ks+3}], v{hOR}" + (f" offset:{ks*64}" if ks else ""))
        YA = 0
        e("s_waitcnt lgkmcnt(0)")
        for ks in range(4):
            for j in range(8):
                A = 32*ks + 4*j
                cc = "0" if ks == 0 else f"v[{YA+4*j}:{YA+4*j+3}]"
                e(f"v_mfma_f32_16x16x32_bf16 v[{YA+4*j}:{YA+4*j+3}], a[{A}:{A+3}], v[{BF+4*ks}:{BF+4*ks+3}], {cc}")
        e("s_mov_b32 exec_lo, 0x000f000f"); e("s_mov_b32 exec_hi, 0x000f000f")
        self.nop(6)
        for j in range(8):
            e(f"buffer_store_dwordx4 v[{YA+4*j}:{YA+4*j+3}], v{hYS}, {SRD_WS}, {sM2OUT} offen offset:{j*256} sc1")
        e("s_mov_b64 exec, -1")
        e(f"s_cmp_lg_u32 {sHW}, 0"); e("s_cbranch_scc1 L_fin")
        e(f"s_mov_b32 {sSPIN}, {self.spin}")
        def issue2(PB):
            for i in range(8):
                if i == 0: so = "s58"
                else:
                    e(f"s_add_u32 {sT1}, s58, {i*8192}"); so = sT1
                e(f"buffer_load_dwordx4 v[{PB+4*i}:{PB+4*i+3}], v{hP2}, {SRD_WS}, {so} offen sc1")
        def check2(PB, oklab):
            mx = 60
            e(f"v_max3_u32 v{mx}, v{PB}, v{PB+1}, v{PB+2}")
            for k in range(3, 31, 2): e(f"v_max3_u32 v{mx}, v{mx}, v{PB+k}, v{PB+k+1}")
            e(f"v_max_u32 v{mx}, v{mx}, v{PB+31}")
            e(f"v_cmp_eq_u32 vcc, -1, v{mx}"); e("s_nop 1"); e(f"s_cbranch_vccz {oklab}")
        def sum2(PB):
            for k in range(4): e(f"v_add_f32 v{32+k}, v{PB+k}, v{PB+4+k}")
            for i in range(2, 8):
                for k in range(4): e(f"v_add_f32 v{32+k}, v{32+k}, v{PB+4*i+k}")
        if not self.pipoll:
            lab("L_poll2"); issue2(64); e("s_waitcnt vmcnt(0)"); check2(64, "L_poll2ok"); self.spin_dec("L_poll2")
            lab("L_poll2ok"); sum2(64)
        else:
            PA, PBb = 64, 0
            issue2(PA); issue2(PBb)
            lab("L_poll2")
            e("s_waitcnt vmcnt(8)"); check2(PA, "L_poll2okA"); issue2(PA)
            e("s_waitcnt vmcnt(8)"); check2(PBb, "L_poll2okB"); issue2(PBb)
            self.spin_dec("L_poll2")
            lab("L_poll2okA"); sum2(PA); e("s_branch L_poll2done")
            lab("L_poll2okB"); sum2(PBb)
            lab("L_poll2done")
        for k in range(4): e(f"v_mov_b32 v{36+k}, v{32+k}")
        e("s_nop 0")
        for k in range(4): e(f"v_permlane32_swap_b32 v{36+k}, v{32+k}")
        for k in range(4): e(f"v_add_f32 v{32+k}, v{32+k}, v{36+k}")
        for k in range(4): e(f"v_mov_b32 v{36+k}, v{32+k}")
        e("s_nop 0")
        for k in range(4): e(f"v_permlane16_swap_b32 v{36+k}, v{32+k}")
        for k in range(4): e(f"v_add_f32 v{32+k}, v{32+k}, v{36+k}")
        e("v_cvt_pk_bf16_f32 v40, v32, v33"); e("v_cvt_pk_bf16_f32 v41, v34, v35")
        if self.wo128:
            e(f"s_cmp_ge_u32 {sR}, 24"); e(f"s_cselect_b32 {sT1}, 0xff, -1"); e(f"s_and_b32 exec_lo, {sT1}, 0xffff"); e("s_mov_b32 exec_hi, 0")
        else:
            e("s_mov_b64 exec, 0xffff")
        e(f"buffer_store_short v40, v{hOUT}, {SRD_OUT}, s59 offen{self.outsc}")
        e(f"buffer_store_short_d16_hi v40, v{hOUT}, {SRD_OUT}, s59 offen offset:16{self.outsc}")
        if not self.wo128: e("s_mov_b64 exec, 0xfff")
        e(f"buffer_store_short v41, v{hOUT}, {SRD_OUT}, s59 offen offset:32{self.outsc}")
        e(f"buffer_store_short_d16_hi v41, v{hOUT}, {SRD_OUT}, s59 offen offset:48{self.outsc}")
        e(f"s_cmp_lg_u32 {sLID}, 0"); e("s_cbranch_scc1 L_noep")
        e("s_mov_b64 exec, 1")
        e(f"v_mov_b32 v42, s60"); e(f"v_mov_b32 v43, s61"); e(f"v_mov_b32 v44, 0"); e(f"s_mov_b32 {sT0}, {EPOCH_OFF:#x}")
        e(f"buffer_store_dwordx2 v[42:43], v44, {SRD_WS}, {sT0} offen sc1")
        lab("L_noep")
        e("s_mov_b64 exec, -1")
        lab("L_fin")
        if self.errlog:
            e("s_cmp_eq_u32 s101, 0"); e("s_cbranch_scc1 L_noerr")
            self.srd(52, 44, 45, 256)
            e("s_mov_b64 exec, 1"); e("v_mov_b32 v0, s101"); e(f"v_mov_b32 v1, {sLID}"); e(f"v_mov_b32 v2, {sW}"); e(f"v_mov_b32 v3, {sWG}"); e("v_mov_b32 v4, 0")
            e(f"s_and_b32 s100, {sWG}, 15"); e("s_lshl_b32 s100, s100, 4")
            e(f"buffer_store_dwordx4 v[0:3], v4, {SRD_DBG}, s100 offen sc1"); e("s_waitcnt vmcnt(0)")
            lab("L_noerr")
        if self.dbgspan:
            c("debug: WGs 0,85,170,255 -> dwords 4k..: start, loop begin, loop end (S0), fin (H0)")
            e("s_memrealtime s[98:99]"); e("s_waitcnt vmcnt(0) lgkmcnt(0)")
            e(f"s_mul_i32 s97, {sWG}, 3"); e("s_mul_hi_u32 s96, s97, 0x1010102"); e("s_mul_i32 s95, s96, 255"); e("s_cmp_lg_u32 s95, s97"); e("s_cbranch_scc1 L_dbgdone")
            self.srd(52, 44, 45, 256)
            e(f"s_mul_i32 s96, {sWG}, 3"); e("s_lshr_b32 s96, s96, 8"); e(f"s_cmp_eq_u32 {sWG}, 0"); e("s_cselect_b32 s96, 0, s96")
            e(f"s_mul_hi_u32 s96, {sWG}, 0x3030304")
            e("s_lshl_b32 s96, s96, 4")
            e("s_mov_b64 exec, 1"); e("v_mov_b32 v2, 0")
            e(f"s_cmp_eq_u32 {sW}, 4"); e("s_cbranch_scc1 L_dbgh")
            e(f"s_cmp_eq_u32 {sW}, 0"); e("s_cbranch_scc0 L_dbgdone")
            e("v_mov_b32 v4, s100"); e("v_mov_b32 v5, s88"); e("v_mov_b32 v6, s90")
            e(f"buffer_store_dwordx3 v[4:6], v2, {SRD_DBG}, s96 offen sc1"); e("s_branch L_dbgdone")
            lab("L_dbgh")
            e("v_mov_b32 v4, s98")
            e(f"buffer_store_dword v4, v2, {SRD_DBG}, s96 offen offset:12 sc1")
            lab("L_dbgdone")
            e("s_waitcnt vmcnt(0)")
        if self.stamps:
            self.stamp(7)
            e("s_waitcnt vmcnt(0) lgkmcnt(0)")
            e(f"s_lshl_b32 {sT0}, {sWG}, 3"); e(f"s_add_u32 {sT0}, {sT0}, {sW}"); e(f"s_lshl_b32 {sT0}, {sT0}, 5"); e(f"s_add_u32 {sT0}, {sT0}, {STAMP_BASE:#x}")
            if (self.bal or self.ldyn) and not self.dbgs:
                e(f"s_cmp_lt_u32 {sW}, 4"); e("s_cbranch_scc0 L_non"); e(f"s_mov_b32 s96, {sN}"); lab("L_non")
            for i in range(8): e(f"v_mov_b32 v{i}, s{84+2*i}")
            e("v_mov_b32 v8, 0")
            e("s_mov_b64 exec, 1")
            e(f"buffer_store_dwordx4 v[0:3], v8, {SRD_WS}, {sT0} offen")
            e(f"buffer_store_dwordx4 v[4:7], v8, {SRD_WS}, {sT0} offen offset:16")
            e("s_waitcnt vmcnt(0)")
        lab("L_end")
        e("s_endpgm")
        L.append('.section .rodata,"a"'); L.append(".p2align 6"); L.append(f".amdhsa_kernel {NAME}_kernel")
        for d in ("next_free_vgpr 256", "next_free_sgpr 102", "accum_offset 128", "group_segment_fixed_size 0", "kernarg_size 64",
                  "user_sgpr_count 2", "user_sgpr_kernarg_segment_ptr 1", "system_sgpr_workgroup_id_x 1"):
            L.append("  .amdhsa_" + d)
        L.append(".end_amdhsa_kernel")
        return "\n".join(L) + "\n"

if __name__ == "__main__":
    import argparse
    ap = argparse.ArgumentParser()
    ap.add_argument("out"); ap.add_argument("--stamps", action="store_true"); ap.add_argument("--opt", default="{}")
    a = ap.parse_args()
    G = Gen(stamps=a.stamps, **eval("dict(" + a.opt + ")" if not a.opt.startswith(("{", "dict")) else a.opt))
    open(a.out, "w").write(G.build())
    if G.errlog: print(list(enumerate(G.errnames)))
```

```python
import sys, struct

NAME = "standalone__gqa_block_cached__sampling"
HDR = open("standalone__gqa_block_cached__sampling.s.ref").read().split("; Override")[0]

QB = 131072; QROW = 528
STB = QB + 8 * QROW
OB = STB + 256
OROW = 272
CNT = OB + 4 * OROW
WQS = 136704
RED = WQS + 16384
OWROW = 1040
LDS_BYTES = 163840
assert RED + 8192 <= LDS_BYTES

M1_SLICE = 2176
M2_BASE = 0x400000
QM_BASE = 0x600000
QF_BASE = 0x740000
CF_BASE = 0x760000
BAL_BASE = 0x7a0000
GC_BASE = 0x788000
EPOCH_OFF = 0x790000
TAG_C = 0x9E3779B9
STAMP_BASE = 0x800000
WS_BYTES = 0x1000000

sWG, sW, sKVH, sJ, sB = "s2", "s3", "s4", "s5", "s6"
sHW = "s7"
SRD_K, SRD_V, SRD_WQ, SRD_X, SRD_WO, SRD_WS = "s[8:11]", "s[12:15]", "s[16:19]", "s[20:23]", "s[24:27]", "s[28:31]"
SRD_OUT, SRD_DBG = "s[48:51]", "s[52:55]"
sKOFF, sVOFF = "s60", "s61"
sWB = "s62"
sKSLOT, sVSLOT = "s63", "s64"
sT = "s65"
sC, sNC = "s66", "s67"
sG = "s68"; sR = "s69"
sM1OUT, sM2OUT = "s70", "s71"
sT0, sT1, sT2, sT3, sT4, sT5 = "s72", "s73", "s74", "s75", "s76", "s77"
sSEL_LO, sSEL_HI = "s78", "s79"
sY = "s80"; sSPIN = "s81"; sTAG = "s82"; sLID = "s83"; sTL = "s59"
sN = "s56"; sGB = "s57"; sGC = "s58"; sSTAT = "s59"; sSTEP = "s57"; sPLO = "s55"
vA = 108; vZERO = 110
hWO = 114; sWOM = "s63"
STAMPS = ["s[84:85]", "s[86:87]", "s[88:89]", "s[90:91]", "s[92:93]", "s[94:95]", "s[96:97]", "s[98:99]"]

vO = 0
vLANE, vN, vGQ, vTMPA = 64, 65, 66, 67
vDMA = 68; vKA = 72; vVA = 76; vS = 84; vP = 88; vM, vL = 90, 91; vAL = 92
vT = 94
vLIN16 = 104; vODUMP = 105; vT2A, vT2B = 106, 107
AQ, AK, AV = 0, 32, 64

C_LOG2E_16 = 1.4426950408889634 / 16.0
def fbits(x): return struct.unpack("<I", struct.pack("<f", x))[0]

DOC = '; ---------------------------------------------------------------------------------------------------\n; ---------------------------------------------------------------------------------------------------'

class Gen:
    def __init__(self, stamps=False, flags="nt", spin=1 << 18, kwait=16, nocomp=False, notail=False, wopace=8, hprio=0, qsleep=2, pace=3, dbgmid=False, nowo=False, noclr=False, v0pre=True, wosame=False, wopf=True, vwait=24, rate=False, noqwait=False, hexit=False, order2=True, kwait2=24, dyn=False, n0=16, pairmap=True, bal=True, ta=4, tb=11, tc=21, nlo=24, quiet=0, dbgq=False, hop1=True, qdelay=True, pre0=2, ldyn=False, t0s=44, t1s=92, plo=108, xmap=1, dbgspan=False, qcontig=False, nox=False, nowq=False, wo128=True, wolate=False, pflate=0, ploB=None, tmarg=8, rounds2=False, delta=6, tmarg2=6, kflags=None, vflags=None, dbgs=False, nob0=False, q8=False, q8v=False, qrot=False, outsc='', pipoll=False, pretail=False, split=4, errlog=False, perm=None, wqfl='', xfl='', wofl='', pffl='', yq=False, sround=False):
        self.sround = sround
        self.yq = yq
        self.wqfl = wqfl; self.xfl = xfl; self.wofl = wofl; self.pffl = pffl
        if perm is None: perm = {4: ((2,3),(0,1,4)), 2: ((1,2),(0,3,4)), 1: ((0,1),(2,3,4))}[split]
        self.wb, self.ib = perm
        self.errlog = errlog; self.errn = 0; self.errnames = []
        self.split = split
        self.pipoll = pipoll; self.pretail = pretail
        self.outsc = outsc
        self.qrot = qrot
        self.q8v = q8v
        if q8v: q8 = True
        self.q8 = q8
        self.nob0 = nob0
        self.dbgs = dbgs
        self.kflags = kflags; self.vflags = vflags
        self.rounds2 = rounds2; self.delta = delta; self.tmarg2 = tmarg2
        self.ploA = plo; self.ploB = ploB if ploB else plo; self.tmarg = tmarg; self.asym = ploB is not None
        self.pflate = pflate
        self.wolate = wolate
        self.wo128 = wo128
        self.nox = nox; self.nowq = nowq
        self.qcontig = qcontig
        self.dbgspan = dbgspan
        self.xmap = xmap
        self.ldyn = ldyn; self.t0s = t0s; self.t1s = t1s; self.plo = plo
        self.pre0 = pre0
        self.qdelay = qdelay
        self.hop1 = hop1
        self.dbgq = dbgq
        self.quiet = quiet
        self.bal = bal; self.ta = ta; self.tb = tb; self.tc = tc; self.nlo = nlo
        assert not (dyn and bal)
        self.dyn = dyn; self.n0 = n0; self.pairmap = pairmap
        self.order2 = order2; self.kwait2 = kwait2
        self.rate = rate; self.noqwait = noqwait; self.hexit = hexit
        self.vwait = vwait
        self.wopf = wopf
        self.wosame = wosame
        self.v0pre = v0pre
        self.dbgmid = dbgmid; self.nowo = nowo; self.noclr = noclr
        self.pace = pace
        self.qsleep = qsleep
        self.L = []; self.stamps = stamps; self.flags = flags; self.spin = spin; self.kwait = kwait
        self.nocomp = nocomp; self.notail = notail; self.wopace = wopace; self.hprio = hprio
    def e(self, s): self.L.append("  " + s)
    def lab(self, s): self.L.append(s + ":")
    def c(self, s): self.L.append("  ; " + s)
    def stamp(self, i):
        if self.stamps or (getattr(self, "dbgspan", False) and i in (2, 3)): self.e(f"s_memrealtime {STAMPS[i]}")
    def nop(self, n):
        while n > 0:
            k = min(n, 16); self.e(f"s_nop {k-1}"); n -= k
    def dma_half(self, srd, soff):
        fl = self.flags
        if srd == SRD_K and self.kflags is not None: fl = self.kflags
        if srd == SRD_V and self.vflags is not None: fl = self.vflags
        for i in range(4):
            o = f" offset:{i*1024}" if i else ""
            self.e(f"buffer_load_dwordx4 v{vDMA+i}, {srd}, {soff} offen{o} {fl} lds")
    def dma_tile(self, srd, goff, slot):
        e = self.e
        e(f"s_mov_b32 m0, {slot}"); e(f"s_add_u32 {sT0}, {goff}, {1024 << self.ib[2]}")
        self.dma_half(srd, goff)
        e(f"s_add_u32 m0, {slot}, 4096"); e("s_nop 0")
        self.dma_half(srd, sT0)
    def dma_tile_static(self, isv, tile):
        e = self.e
        for half in range(2):
            e(f"s_add_u32 m0, {sWB}, {isv*16384 + tile*8192 + half*4096}")
            e(f"s_add_u32 {sT5}, {sKOFF}, {tile*32768 + half*16384}")
            self.dma_half(SRD_V if isv else SRD_K, sT5)
    def dma_half_static(self, hn):
        e = self.e
        tile, half, isv = hn >> 2, hn & 1, (hn >> 1) & 1
        if self.dyn:
            e(f"s_add_u32 m0, {sWB}, {isv*16384 + tile*8192 + half*4096}")
            e(f"s_add_u32 {sT5}, {sKOFF}, {tile*32768 + half*16384}")
        else:
            e(f"s_add_u32 {sT5}, {sKOFF}, {half*(1024 << self.ib[2])}")
            if tile: e(f"s_add_u32 {sT5}, {sT5}, {sSTEP}")
            e(f"s_add_u32 m0, {sWB}, {isv*16384 + tile*8192 + half*4096}"); e("s_nop 0")
        self.dma_half(SRD_V if isv else SRD_K, sT5)
    def read_k(self):
        for s in range(8):
            a, u = s >> 2, s & 3
            self.e(f"ds_read_b128 a[{AK+4*s}:{AK+4*s+3}], v{vKA+u}" + (f" offset:{a*256}" if a else ""))
    def read_v(self):
        for t in range(16):
            a, u = t >> 3, t & 7
            self.e(f"ds_read_b64_tr_b16 a[{AV+2*t}:{AV+2*t+1}], v{vVA+u}" + (f" offset:{a*256}" if a else ""))
    def srd(self, base, lo, hi, size):
        e = self.e
        e(f"s_mov_b32 s{base}, s{lo}"); e(f"s_and_b32 s{base+1}, s{hi}, 0xffff"); e(f"s_mov_b32 s{base+2}, {size:#x}"); e(f"s_mov_b32 s{base+3}, 0x20000")
    def spin_dec(self, label):
        e = self.e
        e(f"s_sub_u32 {sSPIN}, {sSPIN}, 1"); e(f"s_cmp_lg_u32 {sSPIN}, 0"); e(f"s_cbranch_scc1 {label}")
        if self.errlog:
            e(f"s_or_b32 s101, s101, {1 << self.errn:#x}"); self.errnames.append(label); self.errn += 1

    def loop1(self):
        e, lab, c = self.e, self.lab, self.c
        lab("L_loop")
        if self.rate:
            for tt, si in ((8, 1), (16, 4), (24, 5)):
                e(f"s_cmp_lg_u32 {sT}, {tt}"); e(f"s_cbranch_scc1 L_rs{tt}"); e(f"s_memrealtime {STAMPS[si]}"); lab(f"L_rs{tt}")
        for s in range(8):
            if self.nocomp: break
            cc = "0" if s == 0 else f"v[{vS}:{vS+3}]"
            e(f"v_mfma_f32_16x16x32_bf16 v[{vS}:{vS+3}], a[{AK+4*s}:{AK+4*s+3}], a[{AQ+4*s}:{AQ+4*s+3}], {cc}")
        e(f"s_cmp_eq_u32 {sT}, 31"); e("s_cbranch_scc1 L_k31")
        e(f"s_waitcnt vmcnt({self.kwait})")
        self.read_k()
        e("s_waitcnt lgkmcnt(0)")
        e(f"s_cmp_ge_u32 {sT}, 29"); e("s_cbranch_scc1 L_kdone")
        self.dma_tile(SRD_K, sKOFF, sKSLOT)
        e(f"s_add_u32 {sKOFF}, {sKOFF}, 32768"); e(f"s_xor_b32 {sKSLOT}, {sKSLOT}, 8192")
        lab("L_kdone")
        for u in range(4): e(f"v_xor_b32 v{vKA+u}, 8192, v{vKA+u}")
        lab("L_soft")
        t0, t1, t2 = vT, vT+1, vT+2
        if self.nocomp: e("s_branch L_noresc")
        e(f"v_max3_f32 v{t0}, v{vS}, v{vS+1}, v{vS+2}")
        e(f"v_max_f32 v{t0}, v{t0}, v{vS+3}")
        e(f"v_mov_b32 v{t1}, v{t0}"); e("s_nop 1")
        e(f"v_permlane32_swap_b32 v{t1}, v{t0}")
        e(f"v_max_f32 v{t0}, v{t0}, v{t1}")
        e(f"v_mov_b32 v{t1}, v{t0}"); e("s_nop 1")
        e(f"v_permlane16_swap_b32 v{t1}, v{t0}")
        e(f"v_max3_f32 v{t0}, v{t0}, v{t1}, v{vM}")
        e(f"v_sub_f32 v{t1}, v{vM}, v{t0}")
        e(f"v_mul_f32 v{t1}, {sC}, v{t1}")
        e(f"v_mul_f32 v{t2}, {sNC}, v{t0}")
        e(f"v_exp_f32 v{vAL}, v{t1}")
        e(f"v_mov_b32 v{vM}, v{t0}")
        for r in range(4): e(f"v_fma_f32 v{vS+r}, v{vS+r}, {sC}, v{t2}")
        for r in range(4): e(f"v_exp_f32 v{vS+r}, v{vS+r}")
        e(f"v_cmp_neq_f32 vcc, 1.0, v{vAL}")
        e(f"v_add_f32 v{t0}, v{vS}, v{vS+1}"); e(f"v_add_f32 v{t1}, v{vS+2}, v{vS+3}")
        e(f"v_cvt_pk_bf16_f32 v{vP}, v{vS}, v{vS+1}"); e(f"v_cvt_pk_bf16_f32 v{vP+1}, v{vS+2}, v{vS+3}")
        e(f"v_add_f32 v{t0}, v{t0}, v{t1}"); e(f"v_fma_f32 v{vL}, v{vL}, v{vAL}, v{t0}")
        e("s_cbranch_vccz L_noresc")
        for i in range(32):
            e(f"v_pk_mul_f32 v[{vO+2*i}:{vO+2*i+1}], v[{vO+2*i}:{vO+2*i+1}], v[{vAL}:{vAL+1}] op_sel_hi:[1,0]")
        lab("L_noresc")
        c("V point: steady state vmcnt(24); near the end fewer ops are outstanding")
        if self.v0pre:
            e(f"s_cmp_eq_u32 {sT}, 0"); e("s_cbranch_scc1 L_pv")
        e(f"s_cmp_ge_u32 {sT}, 29"); e("s_cbranch_scc1 L_vlate")
        e(f"s_waitcnt vmcnt({self.vwait})")
        lab("L_vrd")
        self.read_v()
        e("s_waitcnt lgkmcnt(0)")
        e(f"s_cmp_ge_u32 {sT}, 30"); e("s_cbranch_scc1 L_vdone")
        self.dma_tile(SRD_V, sVOFF, sVSLOT)
        e(f"s_add_u32 {sVOFF}, {sVOFF}, 32768"); e(f"s_xor_b32 {sVSLOT}, {sVSLOT}, 8192")
        lab("L_vdone")
        for u in range(8): e(f"v_xor_b32 v{vVA+u}, 8192, v{vVA+u}")
        lab("L_pv")
        for t in range(16):
            if self.nocomp: break
            e(f"v_mfma_f32_16x16x16_bf16 v[{vO+4*t}:{vO+4*t+3}], a[{AV+2*t}:{AV+2*t+1}], v[{vP}:{vP+1}], v[{vO+4*t}:{vO+4*t+3}]")
        e(f"s_add_u32 {sT}, {sT}, 1"); e(f"s_cmp_lt_u32 {sT}, 32"); e("s_cbranch_scc1 L_loop")
        e("s_branch L_tail")
        lab("L_vlate")
        e(f"s_cmp_eq_u32 {sT}, 29"); e("s_cbranch_scc1 L_vrd")
        e(f"s_cmp_eq_u32 {sT}, 30"); e("s_cbranch_scc0 L_vlast")
        e("s_waitcnt vmcnt(8)"); e("s_branch L_vrd")
        lab("L_vlast")
        e("s_waitcnt vmcnt(0)"); e("s_branch L_vrd")
        lab("L_k31")
        self.nop(8)
        e("s_branch L_soft")


    def loop2(self):
        e, lab, c = self.e, self.lab, self.c
        dyn = self.dyn
        ld = self.ldyn
        lab("L_loop")
        if self.rate:
            for tt, si in ((8, 1), (16, 4), (24, 5)):
                e(f"s_cmp_lg_u32 {sT}, {tt}"); e(f"s_cbranch_scc1 L_rs{tt}"); e(f"s_memrealtime {STAMPS[si]}"); lab(f"L_rs{tt}")
        t0, t1, t2 = vT, vT+1, vT+2
        def cmpN(op, k):
            if dyn or self.bal or ld:
                e(f"s_sub_u32 {sT1}, {sN}, {k}"); e(f"s_cmp_{op}_u32 {sT}, {sT1}")
            else:
                e(f"s_cmp_{op}_u32 {sT}, {32-k}")
        if ld:
            c("grab next tile id (lane 0) and read limit/final early")
            cmpN("ge", 3); e("s_cbranch_scc1 L_nograb")
            e("s_mov_b64 exec, 1")
            e(f"ds_add_rtn_u32 v{vA}, v{vZERO}, v{vA+1}")
            e("s_mov_b64 exec, -1")
            lab("L_nograb")
        c("A: QK")
        for s in range(8):
            if self.nocomp: break
            cc = "0" if s == 0 else f"v[{vS}:{vS+3}]"
            e(f"v_mfma_f32_16x16x32_bf16 v[{vS}:{vS+3}], a[{AK+4*s}:{AK+4*s+3}], a[{AQ+4*s}:{AQ+4*s+3}], {cc}")
        c("B: K point")
        if self.bal and not ld:
            e(f"s_cmp_eq_u32 {sT}, {self.ta}"); e("s_cbranch_scc1 L_balst")
            e(f"s_cmp_eq_u32 {sT}, {self.tb}"); e("s_cbranch_scc1 L_balst")
            e(f"s_cmp_eq_u32 {sT}, {self.tc}"); e("s_cbranch_scc1 L_balget")
            lab("L_balback")
        cmpN("ge", 2); e("s_cbranch_scc1 L_klate")
        e(f"s_waitcnt vmcnt({self.kwait2})")
        lab("L_krd")
        self.read_k()
        if dyn:
            cmpN("ge", 3); e("s_cbranch_scc1 L_knoref")
            c("tile id for t+3 ; atomics run two iterations ahead (regs vA, vA+1 by parity of t)")
            e(f"s_cmp_ge_u32 {sT}, {self.n0-3}"); e("s_cbranch_scc1 L_dynid")
            e(f"s_mov_b32 {sT2}, {sSTAT}"); e(f"s_add_u32 {sSTAT}, {sSTAT}, 16")
            e(f"s_cmp_eq_u32 {sT}, {self.n0-5}"); e("s_cbranch_scc1 L_dynchk")
            e(f"s_cmp_eq_u32 {sT}, {self.n0-4}"); e("s_cbranch_scc1 L_atom")
            e("s_branch L_mkoff")
            lab("L_dynid")
            e(f"s_bitcmp1_b32 {sT}, 0"); e("s_cbranch_scc1 L_dynid1")
            e(f"v_readfirstlane_b32 {sT2}, v{vA}"); e("s_branch L_dynid2")
            lab("L_dynid1")
            e(f"v_readfirstlane_b32 {sT2}, v{vA+1}")
            lab("L_dynid2")
            e("s_nop 3")
            e(f"s_add_u32 {sT2}, {sT2}, {self.n0*16}")
            e(f"s_cmp_ge_u32 {sT2}, 512"); e("s_cbranch_scc1 L_exhaust")
            lab("L_atom")
            e("s_mov_b64 exec, 1")
            e(f"s_bitcmp1_b32 {sT}, 0"); e("s_cbranch_scc1 L_atom1")
            e(f"v_mov_b32 v{vA}, 1")
            e(f"buffer_atomic_add v{vA}, v{vZERO}, {SRD_WS}, {sGC} offen sc0 sc1"); e("s_branch L_atom2")
            lab("L_atom1")
            e(f"v_mov_b32 v{vA+1}, 1")
            e(f"buffer_atomic_add v{vA+1}, v{vZERO}, {SRD_WS}, {sGC} offen sc0 sc1")
            lab("L_atom2")
            e("s_mov_b64 exec, -1")
            lab("L_mkoff")
            e(f"s_lshr_b32 {sT3}, {sT2}, 2"); e(f"s_and_b32 {sT3}, {sT3}, 3"); e(f"s_lshl_b32 {sT3}, {sT3}, 20")
            e(f"s_lshr_b32 {sT4}, {sT2}, 4"); e(f"s_lshl_b32 {sT4}, {sT4}, 15"); e(f"s_add_u32 {sT3}, {sT3}, {sT4}")
            e(f"s_and_b32 {sT4}, {sT2}, 3"); e(f"s_lshl_b32 {sT4}, {sT4}, 12"); e(f"s_add_u32 {sT3}, {sT3}, {sT4}")
            e(f"s_add_u32 {sKOFF}, {sGB}, {sT3}")
            e("s_waitcnt lgkmcnt(0)")
            self.dma_tile(SRD_K, sKOFF, sKSLOT)
            e(f"s_xor_b32 {sKSLOT}, {sKSLOT}, 8192")
            e("s_branch L_kdone")
            lab("L_knoref")
            e("s_waitcnt lgkmcnt(0)")
        elif ld:
            e("s_waitcnt lgkmcnt(0)")
            cmpN("ge", 3); e("s_cbranch_scc1 L_kdone")
            e(f"v_readfirstlane_b32 {sT2}, v{vA}"); e("s_nop 3")
            e(f"s_cmp_ge_u32 {sT2}, {sPLO}"); e("s_cbranch_scc1 L_limchk")
            lab("L_tileok")
            e(f"s_xor_b32 {sT2}, {sT2}, {sSTAT}")
            e(f"s_lshr_b32 {sT3}, {sT2}, 2"); e(f"s_lshl_b32 {sT3}, {sT3}, 15"); self.wavepart(sT2, sT2, sT4)
            e(f"s_add_u32 {sKOFF}, {sGC}, {sT3}"); e(f"s_add_u32 {sKOFF}, {sKOFF}, {sT2}")
            self.dma_tile(SRD_K, sKOFF, sKSLOT)
            e(f"s_xor_b32 {sKSLOT}, {sKSLOT}, 8192")
        else:
            e("s_waitcnt lgkmcnt(0)")
            cmpN("ge", 3); e("s_cbranch_scc1 L_kdone")
            self.dma_tile(SRD_K, sKOFF, sKSLOT)
            e(f"s_add_u32 {sKOFF}, {sKOFF}, {sSTEP}"); e(f"s_xor_b32 {sKSLOT}, {sKSLOT}, 8192")
        lab("L_kdone")
        for u in range(4): e(f"v_xor_b32 v{vKA+u}, 8192, v{vKA+u}")
        lab("L_soft")
        c("C: softmax")
        if self.nocomp: e("s_branch L_noresc")
        if self.sround:
            c("the reference keeps the scores in bf16: round them the same way")
            e(f"v_cvt_pk_bf16_f32 v{t0}, v{vS}, v{vS+1}"); e(f"v_cvt_pk_bf16_f32 v{t1}, v{vS+2}, v{vS+3}")
            e(f"v_lshlrev_b32 v{vS}, 16, v{t0}"); e(f"v_and_b32 v{vS+1}, 0xffff0000, v{t0}")
            e(f"v_lshlrev_b32 v{vS+2}, 16, v{t1}"); e(f"v_and_b32 v{vS+3}, 0xffff0000, v{t1}")
        e(f"v_max3_f32 v{t0}, v{vS}, v{vS+1}, v{vS+2}")
        e(f"v_max_f32 v{t0}, v{t0}, v{vS+3}")
        e(f"v_mov_b32 v{t1}, v{t0}"); e("s_nop 1")
        e(f"v_permlane32_swap_b32 v{t1}, v{t0}")
        e(f"v_max_f32 v{t0}, v{t0}, v{t1}")
        e(f"v_mov_b32 v{t1}, v{t0}"); e("s_nop 1")
        e(f"v_permlane16_swap_b32 v{t1}, v{t0}")
        e(f"v_max3_f32 v{t0}, v{t0}, v{t1}, v{vM}")
        e(f"v_sub_f32 v{t1}, v{vM}, v{t0}")
        e(f"v_mul_f32 v{t1}, {sC}, v{t1}")
        e(f"v_mul_f32 v{t2}, {sNC}, v{t0}")
        e(f"v_exp_f32 v{vAL}, v{t1}")
        e(f"v_mov_b32 v{vM}, v{t0}")
        for r in range(4): e(f"v_fma_f32 v{vS+r}, v{vS+r}, {sC}, v{t2}")
        for r in range(4): e(f"v_exp_f32 v{vS+r}, v{vS+r}")
        e(f"v_cmp_neq_f32 vcc, 1.0, v{vAL}")
        e(f"v_add_f32 v{t0}, v{vS}, v{vS+1}"); e(f"v_add_f32 v{t1}, v{vS+2}, v{vS+3}")
        e(f"v_cvt_pk_bf16_f32 v{vP}, v{vS}, v{vS+1}"); e(f"v_cvt_pk_bf16_f32 v{vP+1}, v{vS+2}, v{vS+3}")
        e(f"v_add_f32 v{t0}, v{t0}, v{t1}"); e(f"v_fma_f32 v{vL}, v{vL}, v{vAL}, v{t0}")
        e("s_cbranch_vccz L_noresc")
        for i in range(32):
            e(f"v_pk_mul_f32 v[{vO+2*i}:{vO+2*i+1}], v[{vO+2*i}:{vO+2*i+1}], v[{vAL}:{vAL+1}] op_sel_hi:[1,0]")
        lab("L_noresc")
        cmpN("eq", 1); e("s_cbranch_scc1 L_vjit")
        lab("L_pv")
        c("D: PV")
        for t in range(16):
            if self.nocomp: break
            e(f"v_mfma_f32_16x16x16_bf16 v[{vO+4*t}:{vO+4*t+3}], a[{AV+2*t}:{AV+2*t+1}], v[{vP}:{vP+1}], v[{vO+4*t}:{vO+4*t+3}]")
        c("E: V point")
        cmpN("ge", 3); e("s_cbranch_scc1 L_vlate")
        e(f"s_waitcnt vmcnt({self.vwait})")
        if self.q8v:
            e(f"s_cmp_lg_u32 {sT}, 0"); e("s_cbranch_scc1 L_vnz"); e("s_waitcnt vmcnt(16)"); lab("L_vnz")
        self.read_v()
        e("s_waitcnt lgkmcnt(0)")
        if dyn or ld:
            self.dma_tile(SRD_V, sKOFF, sVSLOT)
            e(f"s_xor_b32 {sVSLOT}, {sVSLOT}, 8192")
        else:
            self.dma_tile(SRD_V, sVOFF, sVSLOT)
            e(f"s_add_u32 {sVOFF}, {sVOFF}, {sSTEP}"); e(f"s_xor_b32 {sVSLOT}, {sVSLOT}, 8192")
        lab("L_vdone")
        for u in range(8): e(f"v_xor_b32 v{vVA+u}, 8192, v{vVA+u}")
        lab("L_next")
        e(f"s_add_u32 {sT}, {sT}, 1")
        if dyn or self.bal or ld: e(f"s_cmp_lt_u32 {sT}, {sN}")
        else: e(f"s_cmp_lt_u32 {sT}, 32")
        e("s_cbranch_scc1 L_loop")
        e("s_branch L_tail")
        lab("L_klate")
        cmpN("eq", 1); e("s_cbranch_scc1 L_k31")
        e("s_waitcnt vmcnt(8)"); e("s_branch L_krd")
        lab("L_k31")
        self.nop(8)
        e("s_branch L_soft")
        lab("L_vlate")
        cmpN("eq", 3); e("s_cbranch_scc0 L_next")
        if self.wolate:
            e(f"v_mov_b32 v{t0}, {CNT+20}"); e(f"v_mov_b32 v{t1}, 1"); e("s_mov_b64 exec, 1"); e(f"ds_add_u32 v{t0}, v{t1}"); e("s_mov_b64 exec, -1")
        e("s_waitcnt vmcnt(16)")
        self.read_v()
        e("s_waitcnt lgkmcnt(0)")
        e("s_branch L_vdone")
        lab("L_vjit")
        e("s_waitcnt vmcnt(0)")
        self.read_v()
        e("s_waitcnt lgkmcnt(0)")
        e("s_branch L_pv")
        if ld:
            lab("L_limchk")
            e(f"s_mov_b32 {sSPIN}, {self.spin}")
            e(f"v_mov_b32 v{t0}, {CNT+12}")
            lab("L_limchk1")
            e(f"ds_read2_b32 v[{t1+1}:{t1+2}], v{t0} offset0:0 offset1:1"); e("s_waitcnt lgkmcnt(0)")
            e(f"v_readfirstlane_b32 {sT3}, v{t1+2}"); e(f"v_readfirstlane_b32 {sT4}, v{t1+1}"); e("s_nop 3")
            e(f"s_mov_b32 {sPLO}, {sT4}")
            e(f"s_cmp_lt_u32 {sT2}, {sT4}"); e("s_cbranch_scc1 L_tileok")
            e(f"s_cmp_lg_u32 {sT3}, 0"); e("s_cbranch_scc1 L_limfin")
            e("s_sleep 2")
            self.spin_dec("L_limchk1")
            lab("L_limfin")
            e(f"s_add_u32 {sN}, {sT}, 3")
            e("s_branch L_kdone")
        if self.bal and not ld:
            lab("L_balst")
            e(f"s_cmp_lg_u32 {sW}, 0"); e("s_cbranch_scc1 L_balback")
            e(f"s_memrealtime s[{sT2[1:]}:{sT3[1:]}]"); e("s_waitcnt lgkmcnt(0)")
            e(f"s_or_b32 {sT2}, {sT2}, 1")
            e(f"s_cmp_eq_u32 {sT}, {self.tb}"); e(f"s_cselect_b32 {sT3}, 4, 0"); e(f"s_add_u32 {sT3}, {sT3}, {CNT+8}")
            e(f"v_mov_b32 v{t0}, {sT3}"); e(f"v_mov_b32 v{t1}, {sT2}")
            e(f"ds_write_b32 v{t0}, v{t1}")
            e("s_branch L_balback")
            lab("L_balget")
            e(f"s_mov_b32 {sSPIN}, {self.spin}")
            e(f"v_mov_b32 v{t0}, {CNT+16}")
            lab("L_balget1")
            e(f"ds_read_b32 v{t1}, v{t0}"); e("s_waitcnt lgkmcnt(0)")
            e(f"v_readfirstlane_b32 {sN}, v{t1}"); e("s_nop 3")
            e(f"s_cmp_lg_u32 {sN}, 0"); e("s_cbranch_scc1 L_balback")
            e("s_sleep 4")
            self.spin_dec("L_balget1")
            e(f"s_mov_b32 {sN}, 32")
            e("s_branch L_balback")
        if dyn:
            lab("L_exhaust")
            e(f"s_add_u32 {sN}, {sT}, 3")
            e("s_branch L_knoref")
            lab("L_dynchk")
            e(f"s_mov_b32 {sSPIN}, {self.spin}")
            e(f"v_mov_b32 v{t0}, {CNT+8}")
            lab("L_dynchk1")
            e(f"ds_read_b32 v{t1}, v{t0}"); e("s_waitcnt lgkmcnt(0)")
            e(f"v_readfirstlane_b32 {sT3}, v{t1}"); e("s_nop 3")
            e(f"s_cmp_eq_u32 {sT3}, 1"); e("s_cbranch_scc1 L_atom")
            e("s_sleep 8")
            self.spin_dec("L_dynchk1")
            e("s_branch L_atom")

    def t3(self, hST, hOW, so4, lin16):
        e, lab, c = self.e, self.lab, self.c
        def issue(PB):
            for jj, so in enumerate(so4):
                e(f"buffer_load_dwordx4 v[{PB+8*jj}:{PB+8*jj+3}], v{lin16}, {SRD_WS}, {so} offen sc1")
                e(f"buffer_load_dwordx4 v[{PB+8*jj+4}:{PB+8*jj+7}], v{lin16}, {SRD_WS}, {so} offen offset:1024 sc1")
                e(f"buffer_load_dwordx2 v[{PB+32+2*jj}:{PB+32+2*jj+1}], v{hST}, {SRD_WS}, {so} offen offset:2048 sc1")
        def check(PB, oklab):
            mx = vT + 1
            e(f"v_max3_u32 v{mx}, v{PB}, v{PB+1}, v{PB+2}")
            for k in range(3, 39, 2): e(f"v_max3_u32 v{mx}, v{mx}, v{PB+k}, v{PB+k+1}")
            e(f"v_max_u32 v{mx}, v{mx}, v{PB+39}")
            e(f"v_cmp_eq_u32 vcc, -1, v{mx}"); e("s_nop 1"); e(f"s_cbranch_vccz {oklab}")
        def finish(PB):
            ST = PB + 32; a0 = vT + 2; F = vT + 4
            e(f"v_max3_f32 v{a0}, v{ST}, v{ST+2}, v{ST+4}"); e(f"v_max_f32 v{a0}, v{a0}, v{ST+6}")
            for w in range(4): e(f"v_sub_f32 v{F+w}, v{ST+2*w}, v{a0}")
            for w in range(4): e(f"v_mul_f32 v{F+w}, {sC}, v{F+w}")
            for w in range(4): e(f"v_exp_f32 v{F+w}, v{F+w}")
            e("s_nop 0")
            e(f"v_mul_f32 v{a0}, v{F}, v{ST+1}")
            for w in range(1, 4): e(f"v_fmac_f32 v{a0}, v{F+w}, v{ST+2*w+1}")
            e(f"v_rcp_f32 v{a0}, v{a0}"); e("s_nop 0")
            for w in range(4): e(f"v_mul_f32 v{F+w}, v{F+w}, v{a0}")
            ACC = ST
            for k in range(8): e(f"v_mul_f32 v{ACC+k}, v{F}, v{PB+k}")
            for w in range(1, 4):
                for k in range(8): e(f"v_fmac_f32 v{ACC+k}, v{F+w}, v{PB+8*w+k}")
            for p in range(4): e(f"v_cvt_pk_bf16_f32 v{PB+p}, v{ACC+2*p}, v{ACC+2*p+1}")
            e(f"ds_write_b128 v{hOW}, v[{PB}:{PB+3}]")
        e(f"s_mov_b32 {sSPIN}, {self.spin}")
        if True:
            lab("L_poll1"); issue(0); e("s_waitcnt vmcnt(0)"); check(0, "L_poll1ok"); self.spin_dec("L_poll1")
            lab("L_poll1ok"); finish(0)
        else:
            PA, PBb = 0, 40
            issue(PA); issue(PBb)
            lab("L_poll1")
            e("s_waitcnt vmcnt(12)"); check(PA, "L_poll1okA"); issue(PA)
            e("s_waitcnt vmcnt(12)"); check(PBb, "L_poll1okB"); issue(PBb)
            self.spin_dec("L_poll1")
            lab("L_poll1okA"); finish(PA); e("s_waitcnt vmcnt(0)"); e("s_branch L_poll1done")
            lab("L_poll1okB"); finish(PBb); e("s_waitcnt vmcnt(0)")
            lab("L_poll1done")

    def wavepart(self, dst, src, tmp):
        e = self.e
        e(f"s_and_b32 {tmp}, {src}, 1"); e(f"s_lshl_b32 {tmp}, {tmp}, {10 + self.wb[0]}")
        e(f"s_lshr_b32 {dst}, {src}, 1"); e(f"s_and_b32 {dst}, {dst}, 1"); e(f"s_lshl_b32 {dst}, {dst}, {10 + self.wb[1]}"); e(f"s_or_b32 {dst}, {dst}, {tmp}")

    def byrole(self, dst, a, b):
        e = self.e
        e(f"s_and_b32 {dst}, {sJ}, 1"); e(f"s_mul_i32 {dst}, {dst}, {b - a}"); e(f"s_add_u32 {dst}, {dst}, {a}")

    def lds_spin(self, label, addr_v, tmp_v, cmp_op, val, sleep):
        e, lab = self.e, self.lab
        e(f"s_mov_b32 {sSPIN}, {self.spin}")
        lab(label)
        e(f"ds_read_b32 v{tmp_v}, v{addr_v}"); e("s_waitcnt lgkmcnt(0)")
        e(f"v_readfirstlane_b32 {sT5}, v{tmp_v}"); e("s_nop 3")
        e(f"s_cmp_{cmp_op}_u32 {sT5}, {val}"); e(f"s_cbranch_scc1 {label}_ok")
        if sleep: e(f"s_sleep {sleep}")
        self.spin_dec(label)
        lab(label + "_ok")

    def wo_pipeline(self):
        e = self.e
        def issue(ks, R):
            e(f"s_mov_b32 {sT4}, {ks*32*896}"); e(f"s_mov_b32 {sT5}, {ks*32*896 + 4*896}")
            e(f"s_mov_b32 exec_lo, {sWOM}"); e(f"s_mov_b32 exec_hi, {sWOM}")
            for i in range(8):
                so = sT4 if i < 4 else sT5
                o = (i & 3) * 896
                e(f"buffer_load_dwordx4 v[{R+4*i}:{R+4*i+3}], v{hWO}, {SRD_WO}, {so} offen" + (f" offset:{o}" if o else ""))
            e("s_mov_b64 exec, -1")
        def proc(ks, R):
            TMP = 116
            n = 0
            for j in range(8):
                u = j >> 1; sel = sSEL_HI if (j & 1) else sSEL_LO
                for p in range(4):
                    tmp = TMP + (n % 8); n += 1
                    e(f"v_perm_b32 v{tmp}, v{R+4*(2*p+1)+u}, v{R+4*(2*p)+u}, {sel}")
                for p in range(4):
                    tmp = TMP + ((n - 4 + p) % 8)
                    e(f"v_accvgpr_write_b32 a{32*ks+4*j+p}, v{tmp}")
        for i in range(32, 64): e(f"v_mov_b32 v{i}, 0")
        issue(0, 0); issue(1, 32)
        e("s_waitcnt vmcnt(8)"); proc(0, 0); issue(2, 0)
        e("s_waitcnt vmcnt(8)"); proc(1, 32); issue(3, 32)
        e("s_waitcnt vmcnt(8)"); proc(2, 0)
        e("s_waitcnt vmcnt(0)"); proc(3, 32)

    def q32_phase(self):
        e, lab, c = self.e, self.lab, self.c
        c("wq DMA voffset: (l>>1)*8192 + (l&1)*16 + (kvh*512 + 16y)*2 ; x voffset: n*896 + g*16")
        hX = 0
        hA = 32
        hD = 48
        e(f"v_lshrrev_b32 v{vT}, 1, v{vLANE}"); e(f"v_lshlrev_b32 v{vT}, 13, v{vT}")
        e(f"v_and_b32 v{vT+1}, 1, v{vLANE}"); e(f"v_lshl_add_u32 v{vT}, v{vT+1}, 4, v{vT}")
        if self.yq:
            c("column block: the 4 workgroups that share a 128-B line of wq sit on one XCD: yq = (2j + (b>>2))*4 + (b&3)")
            e(f"s_lshl_b32 s65, {sJ}, 1"); e(f"s_lshr_b32 {sT0}, {sB}, 2"); e(f"s_add_u32 s65, s65, {sT0}"); e("s_lshl_b32 s65, s65, 2"); e(f"s_and_b32 {sT0}, {sB}, 3"); e(f"s_add_u32 s65, s65, {sT0}")
        else:
            e(f"s_mov_b32 s65, {sY}")
        e(f"s_lshl_b32 {sT0}, {sKVH}, 10"); e(f"s_lshl_b32 {sT1}, s65, 5"); e(f"s_add_u32 {sT0}, {sT0}, {sT1}")
        e(f"v_add_u32 v{vDMA}, {sT0}, v{vT}")
        e(f"s_movk_i32 {sT1}, 896"); e(f"v_mul_lo_u32 v{vDMA+1}, v{vN}, {sT1}"); e(f"v_lshl_add_u32 v{vDMA+1}, v{vGQ}, 4, v{vDMA+1}")
        e(f"s_lshl_b32 {sWB}, {sHW}, 12"); e(f"s_add_u32 {sWB}, {sWB}, {WQS}")
        c("H0 zeroes the LDS counters")
        e(f"v_mov_b32 v{vT+2}, {CNT}")
        for i in range(4): e(f"v_mov_b32 v{vT+4+i}, 0")
        e(f"ds_write_b128 v{vT+2}, v[{vT+4}:{vT+7}] offset:16")
        if self.ldyn:
            self.byrole(sT3, self.ploA, self.ploB)
            e(f"v_mov_b32 v{vT+6}, 12"); e(f"v_mov_b32 v{vT+7}, {sT3}")
        e(f"ds_write_b128 v{vT+2}, v[{vT+4}:{vT+7}]")
        e("s_waitcnt lgkmcnt(0)")
        if self.dbgq: self.stamp(2)
        e(f"s_add_u32 s56, s46, {EPOCH_OFF:#x}"); e("s_addc_u32 s57, s47, 0")
        e(f"s_load_dwordx2 s[60:61], s[56:57], 0")
        self.srd(16, 38, 39, 3670016); self.srd(20, 32, 33, 28672)
        if self.qcontig:
            e(f"s_lshl_b32 {sT2}, {sHW}, 20"); e(f"s_lshl_b32 {sT3}, {sHW}, 8")
        else:
            e(f"s_lshl_b32 {sT2}, {sHW}, 18")
            e(f"s_lshl_b32 {sT3}, {sHW}, 6")
        for idx in range(4):
            if idx == 2 and self.qcontig:
                e(f"s_cmp_eq_u32 {sHW}, 3"); e("s_cbranch_scc1 L_hq_issued")
            if idx == 3 and not self.qcontig:
                e(f"s_cmp_ge_u32 {sHW}, 2"); e("s_cbranch_scc1 L_hq_issued")
            e(f"s_add_u32 m0, {sWB}, {idx*1024}")
            e(f"s_add_u32 {sT4}, {sT3}, 14336")
            if not self.nowq: e(f"buffer_load_dwordx4 v{vDMA}, {SRD_WQ}, {sT2} offen{self.wqfl} lds")
            if not self.nox:
                e(f"buffer_load_dwordx4 v[{hX+8*idx}:{hX+8*idx+3}], v{vDMA+1}, {SRD_X}, {sT3} offen{self.xfl}")
                e(f"buffer_load_dwordx4 v[{hX+8*idx+4}:{hX+8*idx+7}], v{vDMA+1}, {SRD_X}, {sT4} offen{self.xfl}")
            if idx < 3:
                if self.qcontig:
                    e(f"s_add_u32 {sT2}, {sT2}, 262144"); e(f"s_add_u32 {sT3}, {sT3}, 64")
                else:
                    e(f"s_add_u32 {sT2}, {sT2}, {4*262144}"); e(f"s_add_u32 {sT3}, {sT3}, 256")
        lab("L_hq_issued")
        if self.dbgq: self.stamp(3)
        if not self.nob0: e("s_barrier")
        if self.dbgq: self.stamp(4)
        self.srd(28, 46, 47, WS_BYTES); self.srd(24, 40, 41, 3670016)
        e("s_mov_b32 s34, s42"); e("s_mov_b32 s35, s43")
        c("tr-read address: wb + (8g + (i>>2))*32 + (i&3)*8  (+128 for second half, +1024*idx)")
        e(f"v_lshrrev_b32 v{vT}, 2, v{vN}"); e(f"v_lshl_add_u32 v{vT}, v{vGQ}, 3, v{vT}"); e(f"v_lshlrev_b32 v{vT}, 5, v{vT}")
        e(f"v_and_b32 v{vT+1}, 3, v{vN}"); e(f"v_lshl_add_u32 v{vT}, v{vT+1}, 3, v{vT}"); e(f"v_add_u32 v{vT}, {sWB}, v{vT}")
        for i in range(8): e(f"v_mov_b32 v{hD+i}, 0")
        c("partial write address: RED + hw*2048 + n*64 + g*16 (+1024 for h=1)")
        e(f"s_lshl_b32 {sT0}, {sHW}, 11"); e(f"s_add_u32 {sT0}, {sT0}, {RED}")
        e(f"v_lshlrev_b32 v{vT+2}, 6, v{vN}"); e(f"v_lshl_add_u32 v{vT+2}, v{vGQ}, 4, v{vT+2}"); e(f"v_add_u32 v{vT+2}, {sT0}, v{vT+2}")
        e("s_waitcnt vmcnt(0)")
        self.stamp(1)
        for idx in range(4):
            if idx == 2 and self.qcontig:
                e(f"s_cmp_eq_u32 {sHW}, 3"); e("s_cbranch_scc1 L_hq_mm")
            if idx == 3 and not self.qcontig:
                e(f"s_cmp_ge_u32 {sHW}, 2"); e("s_cbranch_scc1 L_hq_mm")
            e(f"ds_read_b64_tr_b16 v[{hA+4*idx}:{hA+4*idx+1}], v{vT} offset:{idx*1024}")
            e(f"ds_read_b64_tr_b16 v[{hA+4*idx+2}:{hA+4*idx+3}], v{vT} offset:{idx*1024+128}")
            e("s_waitcnt lgkmcnt(0)")
            for h in range(2):
                e(f"v_mfma_f32_16x16x32_bf16 v[{hD+4*h}:{hD+4*h+3}], v[{hA+4*idx}:{hA+4*idx+3}], v[{hX+8*idx+4*h}:{hX+8*idx+4*h+3}], v[{hD+4*h}:{hD+4*h+3}]")
        lab("L_hq_mm")
        self.nop(8)
        e(f"ds_write_b128 v{vT+2}, v[{hD}:{hD+3}]"); e(f"ds_write_b128 v{vT+2}, v[{hD+4}:{hD+7}] offset:1024")
        if self.nob0:
            c("launch tag: E' = E + C (64 bit); TL = low 16 bits << 16, sTAG = bits 16..47")
            e(f"s_add_u32 s60, s60, 0x7f4a7c15"); e(f"s_addc_u32 s61, s61, 0x9e3779b9")
            e(f"s_lshl_b32 {sTL}, s60, 16"); e(f"s_lshr_b32 {sTAG}, s60, 16"); e(f"s_lshl_b32 {sT1}, s61, 16"); e(f"s_or_b32 {sTAG}, {sTAG}, {sT1}")
            e(f"s_lshl_b32 {sT1}, {sHW}, 2"); e(f"s_add_u32 {sT1}, {sT1}, {CNT+32}")
            e(f"v_mov_b32 v{vT+3}, {sT1}"); e(f"v_mov_b32 v{vT+4}, {sTAG}")
            e("s_waitcnt lgkmcnt(0)")
            e(f"ds_write_b32 v{vT+3}, v{vT+4}")
            e(f"v_mov_b32 v{vT+3}, {CNT+32}")
        else:
            e(f"v_mov_b32 v{vT+3}, {CNT}"); e(f"v_mov_b32 v{vT+4}, 1")
            e("s_waitcnt lgkmcnt(0)")
            e("s_mov_b64 exec, 1"); e(f"ds_add_u32 v{vT+3}, v{vT+4}"); e("s_mov_b64 exec, -1")
        c("reduce read address: RED + rho*64 + cp*8, rho = 8hw + (l>>3), cp = l&7")
        e(f"v_lshrrev_b32 v{vT}, 3, v{vLANE}"); e(f"s_lshl_b32 {sT0}, {sHW}, 3"); e(f"v_add_u32 v{vT}, {sT0}, v{vT}")
        e(f"v_and_b32 v{vT+1}, 7, v{vLANE}")
        e(f"v_lshlrev_b32 v{vT+2}, 6, v{vT}"); e(f"v_lshl_add_u32 v{vT+2}, v{vT+1}, 3, v{vT+2}"); e(f"v_add_u32 v{vT+2}, {RED}, v{vT+2}")
        if True:
            if not self.nob0:
                c("launch tag: E' = E + C (64 bit); TL = low 16 bits << 16, sTAG = bits 16..47")
                e(f"s_add_u32 s60, s60, 0x7f4a7c15"); e(f"s_addc_u32 s61, s61, 0x9e3779b9")
                e(f"s_lshl_b32 {sTL}, s60, 16"); e(f"s_lshr_b32 {sTAG}, s60, 16"); e(f"s_lshl_b32 {sT1}, s61, 16"); e(f"s_or_b32 {sTAG}, {sTAG}, {sT1}")
            c("publish address: QM + ((kvh*8 + b)*32 + y)*512 + q*128 + cp*16 ; b = rho>>2, q = rho&3")
            e(f"v_lshrrev_b32 v{vT+4}, 2, v{vT}"); e(f"v_lshlrev_b32 v{vT+4}, 14, v{vT+4}")
            e(f"v_and_b32 v{vT+5}, 3, v{vT}"); e(f"v_lshl_add_u32 v{vT+4}, v{vT+5}, 7, v{vT+4}"); e(f"v_lshl_add_u32 v{vT+4}, v{vT+1}, 4, v{vT+4}")
            e(f"s_lshl_b32 {sT0}, {sKVH}, 17"); e(f"s_lshl_b32 {sT1}, s65, 9"); e(f"s_add_u32 {sT0}, {sT0}, {sT1}"); e(f"s_add_u32 {sT0}, {sT0}, {QM_BASE:#x}")
            e(f"s_mov_b32 {sSPIN}, {self.spin}")
            lab("L_hs1")
            if self.nob0:
                e(f"ds_read_b128 v[8:11], v{vT+3}"); e("s_waitcnt lgkmcnt(0)")
                e(f"v_xor_b32 v8, {sTAG}, v8"); e(f"v_xor_b32 v9, {sTAG}, v9"); e(f"v_xor_b32 v10, {sTAG}, v10"); e(f"v_xor_b32 v11, {sTAG}, v11")
                e("v_or3_b32 v8, v8, v9, v10"); e("v_or_b32 v8, v8, v11"); e("s_nop 0")
                e(f"v_readfirstlane_b32 {sT1}, v8"); e("s_nop 3")
                e(f"s_cmp_eq_u32 {sT1}, 0"); e("s_cbranch_scc1 L_hs1ok")
            else:
                e(f"ds_read_b32 v{vT+6}, v{vT+3}"); e("s_waitcnt lgkmcnt(0)")
                e(f"v_readfirstlane_b32 {sT1}, v{vT+6}"); e("s_nop 3")
                e(f"s_cmp_ge_u32 {sT1}, 4"); e("s_cbranch_scc1 L_hs1ok")
            self.spin_dec("L_hs1")
            lab("L_hs1ok")
            for w in range(4): e(f"ds_read_b64 v[{2*w}:{2*w+1}], v{vT+2} offset:{w*2048}")
            e("s_waitcnt lgkmcnt(0)")
            e("v_add_f32 v0, v0, v2"); e("v_add_f32 v1, v1, v3"); e("v_add_f32 v4, v4, v6"); e("v_add_f32 v5, v5, v7")
            e("v_add_f32 v0, v0, v4"); e("v_add_f32 v1, v1, v5")
            e("v_cvt_pk_bf16_f32 v0, v0, v1")
            c("granules {tl|val, tag}")
            e(f"v_and_b32 v4, 0xffff, v0"); e(f"v_lshrrev_b32 v6, 16, v0")
            e(f"v_or_b32 v4, {sTL}, v4"); e(f"v_or_b32 v6, {sTL}, v6"); e(f"v_mov_b32 v5, {sTAG}"); e(f"v_mov_b32 v7, {sTAG}")
            e(f"buffer_store_dwordx4 v[4:7], v{vT+4}, {SRD_WS}, {sT0} offen sc1")

    def build(self):
        e, lab, c = self.e, self.lab, self.c
        L = self.L
        L.append(HDR.rstrip())
        L.append(f"; @launch grid=(256,1,1) block=(512,1,1) lds={LDS_BYTES}")
        L.append(DOC)
        L.append('.amdgcn_target "amdgcn-amd-amdhsa--gfx950"')
        L.append(".text"); L.append(f".globl {NAME}_kernel"); L.append(".p2align 8"); L.append(f".type {NAME}_kernel,@function")
        lab(f"{NAME}_kernel")
        e(f"s_cmp_ge_u32 {sWG}, 256"); e("s_cbranch_scc1 L_end")
        e("s_load_dwordx16 s[32:47], s[0:1], 0")
        if self.errlog: e("s_mov_b32 s101, 0")
        self.stamp(0)
        if self.dbgspan: e("s_memrealtime s[100:101]")
        e(f"v_lshrrev_b32 v{vTMPA}, 6, v0")
        e(f"v_and_b32 v{vLANE}, 63, v0")
        e(f"s_and_b32 {sT0}, {sWG}, 7"); e(f"s_lshr_b32 {sT1}, {sWG}, 3")
        e(f"v_readfirstlane_b32 {sW}, v{vTMPA}")
        if self.pairmap and self.xmap == 3:
            c("pairs on XCDs x, x^3: kvh = 4*(x>>2) + 2*gray(x&3) + (y&1)")
            e(f"s_lshr_b32 {sT2}, {sT0}, 1"); e(f"s_xor_b32 {sT2}, {sT2}, {sT0}"); e(f"s_and_b32 {sT2}, {sT2}, 1"); e(f"s_lshl_b32 {sT2}, {sT2}, 1")
            e(f"s_and_b32 {sKVH}, {sT0}, 4"); e(f"s_add_u32 {sKVH}, {sKVH}, {sT2}"); e(f"s_and_b32 {sT2}, {sT1}, 1"); e(f"s_add_u32 {sKVH}, {sKVH}, {sT2}")
            e(f"s_and_b32 {sJ}, {sT0}, 1"); e(f"s_and_b32 {sT2}, {sT1}, 2"); e(f"s_add_u32 {sJ}, {sJ}, {sT2}")
            e(f"s_lshr_b32 {sB}, {sT1}, 2")
        elif self.pairmap and self.xmap == 9:
            c("pairs on XCDs e, e^m with m = 1 + 2*(y&3): every even XCD is paired with every odd one")
            e(f"s_and_b32 {sT2}, {sT1}, 3"); e(f"s_lshl_b32 {sT2}, {sT2}, 1"); e(f"s_add_u32 {sT2}, {sT2}, 1")
            e(f"s_and_b32 {sT3}, {sT0}, 1"); e(f"s_mul_i32 {sT2}, {sT2}, {sT3}"); e(f"s_xor_b32 {sT2}, {sT2}, {sT0}")
            e(f"s_and_b32 {sKVH}, {sT2}, 6"); e(f"s_and_b32 {sT2}, {sT1}, 1"); e(f"s_add_u32 {sKVH}, {sKVH}, {sT2}")
            e(f"s_and_b32 {sJ}, {sT0}, 1"); e(f"s_and_b32 {sT2}, {sT1}, 2"); e(f"s_add_u32 {sJ}, {sJ}, {sT2}")
            e(f"s_lshr_b32 {sB}, {sT1}, 2")
        elif self.pairmap and self.xmap == 5:
            c("pairs on XCDs x, x^5 : (0,5),(1,4),(2,7),(3,6): pair id = (x ^ (x&1)*5) >> 1 ... canonical even member e = x if even else x^5; kvh = (e & 6) + (y&1)")
            e(f"s_and_b32 {sT2}, {sT0}, 1"); e(f"s_mul_i32 {sT2}, {sT2}, 5"); e(f"s_xor_b32 {sT2}, {sT2}, {sT0}")
            e(f"s_and_b32 {sKVH}, {sT2}, 6"); e(f"s_and_b32 {sT2}, {sT1}, 1"); e(f"s_add_u32 {sKVH}, {sKVH}, {sT2}")
            e(f"s_and_b32 {sJ}, {sT0}, 1"); e(f"s_and_b32 {sT2}, {sT1}, 2"); e(f"s_add_u32 {sJ}, {sJ}, {sT2}")
            e(f"s_lshr_b32 {sB}, {sT1}, 2")
        elif self.pairmap:
            e(f"s_and_b32 {sKVH}, {sT0}, 6"); e(f"s_and_b32 {sT2}, {sT1}, 1"); e(f"s_add_u32 {sKVH}, {sKVH}, {sT2}")
            e(f"s_and_b32 {sJ}, {sT0}, 1"); e(f"s_and_b32 {sT2}, {sT1}, 2"); e(f"s_add_u32 {sJ}, {sJ}, {sT2}")
            e(f"s_lshr_b32 {sB}, {sT1}, 2")
        else:
            e(f"s_mov_b32 {sKVH}, {sT0}"); e(f"s_and_b32 {sJ}, {sT1}, 3"); e(f"s_lshr_b32 {sB}, {sT1}, 2")
        e(f"s_lshl_b32 {sY}, {sB}, 2"); e(f"s_add_u32 {sY}, {sY}, {sJ}")
        e(f"s_lshl_b32 {sLID}, {sY}, 3"); e(f"s_add_u32 {sLID}, {sLID}, {sKVH}")
        e(f"s_lshl_b32 {sG}, {sB}, 3"); e(f"s_add_u32 {sG}, {sG}, {sKVH}")
        e(f"v_and_b32 v{vN}, 15, v{vLANE}"); e(f"v_lshrrev_b32 v{vGQ}, 4, v{vLANE}")
        e(f"s_and_b32 {sHW}, {sW}, 3")
        e(f"s_lshl_b32 {sR}, {sKVH}, 2"); e(f"s_add_u32 {sR}, {sR}, {sJ}")
        e(f"s_cmp_ge_u32 {sW}, 4"); e("s_cbranch_scc1 L_helper")

        c("DMA voffsets")
        e(f"v_lshrrev_b32 v{vT}, 5, v{vLANE}"); e(f"v_and_b32 v{vT+1}, 31, v{vLANE}")
        e(f"v_lshlrev_b32 v{vT+2}, 9, v{vT}"); e(f"v_lshlrev_b32 v{vT+3}, 1, v{vT}")
        for i in range(4):
            e(f"v_xor_b32 v{vT+4}, {4*i}, v{vT+3}"); e(f"v_xor_b32 v{vT+4}, v{vT+4}, v{vT+1}")
            e(f"v_lshl_add_u32 v{vDMA+i}, v{vT+4}, 4, v{vT+2}")
            want = ((i & 1) << self.ib[0] | ((i >> 1) & 1) << self.ib[1]) * 1024
            if want != i * 1024: e(f"v_add_u32 v{vDMA+i}, {(want - i*1024) & 0xffffffff:#x}, v{vDMA+i}")
        if self.bal:
            e(f"s_lshl_b32 {sKOFF}, {sG}, 22"); e(f"s_lshr_b32 {sT0}, {sJ}, 1"); e(f"s_lshl_b32 {sT0}, {sT0}, 21"); e(f"s_add_u32 {sKOFF}, {sKOFF}, {sT0}")
            e(f"s_and_b32 {sT1}, {sJ}, 1"); e(f"s_mul_i32 {sT0}, {sT1}, {63*32768}"); e(f"s_add_u32 {sKOFF}, {sKOFF}, {sT0}")
            e(f"s_mul_i32 {sT1}, {sT1}, -65536"); e(f"s_add_u32 {sSTEP}, {sT1}, 32768")
            e(f"s_mov_b32 {sN}, 100000")
        else:
            e(f"s_lshl_b32 {sKOFF}, {sG}, 22"); e(f"s_lshl_b32 {sT0}, {sJ}, 20"); e(f"s_add_u32 {sKOFF}, {sKOFF}, {sT0}")
            e(f"s_mov_b32 {sSTEP}, 32768") if not self.dyn else None
        self.wavepart(sT0, sW, sT1); e(f"s_add_u32 {sKOFF}, {sKOFF}, {sT0}")
        e(f"s_lshl_b32 {sWB}, {sW}, 15")
        e("s_waitcnt lgkmcnt(0)")
        self.srd(8, 34, 35, 0x10000000); self.srd(12, 36, 37, 0x10000000)
        if self.dbgs: self.stamp(4)
        for hn in range(self.pre0): self.dma_half_static(hn)
        if self.dbgs: self.stamp(5)
        if not self.nob0: e("s_barrier")
        if self.dbgs: self.stamp(6)
        first = self.quiet if self.quiet else self.pace
        if self.q8v:
            assert self.pre0 == 2
            self.dma_half_static(4); self.dma_half_static(5)
        else:
            for hn in range(self.pre0, first): self.dma_half_static(hn)
        self.srd(28, 46, 47, WS_BYTES)
        c("K/V LDS read addresses")
        e(f"v_and_b32 v{vT}, 7, v{vN}"); e(f"v_lshlrev_b32 v{vT}, 1, v{vT}")
        e(f"v_lshlrev_b32 v{vT+1}, 9, v{vN}"); e(f"v_add_u32 v{vT+1}, {sWB}, v{vT+1}")
        for u in range(4):
            e(f"v_add_u32 v{vT+2}, {4*u}, v{vGQ}"); e(f"v_xor_b32 v{vT+2}, v{vT+2}, v{vT}"); e(f"v_lshl_add_u32 v{vKA+u}, v{vT+2}, 4, v{vT+1}")
        e(f"v_lshrrev_b32 v{vT}, 2, v{vN}"); e(f"v_lshl_add_u32 v{vT}, v{vGQ}, 2, v{vT}")
        e(f"v_and_b32 v{vT+1}, 7, v{vT}"); e(f"v_lshlrev_b32 v{vT+2}, 9, v{vT}")
        e(f"v_and_b32 v{vT+3}, 3, v{vN}"); e(f"v_lshl_add_u32 v{vT+2}, v{vT+3}, 3, v{vT+2}")
        e(f"s_add_u32 {sT0}, {sWB}, 16384"); e(f"v_add_u32 v{vT+2}, {sT0}, v{vT+2}")
        for u in range(8):
            e(f"v_xor_b32 v{vT+3}, {u}, v{vT+1}"); e(f"v_lshl_add_u32 v{vVA+u}, v{vT+3}, 5, v{vT+2}")
        c("init O, m, l, consts")
        for i in range(64): e(f"v_mov_b32 v{vO+i}, 0")
        e(f"v_mov_b32 v{vM}, 0xff7fffff"); e(f"v_mov_b32 v{vL}, 0")
        e(f"s_mov_b32 {sC}, {fbits(C_LOG2E_16):#x}"); e(f"s_mov_b32 {sNC}, {fbits(-C_LOG2E_16):#x}")
        e(f"v_lshlrev_b32 v{vLIN16}, 4, v{vLANE}")
        e(f"s_lshl_b32 {sT0}, {sG}, 2"); e(f"s_add_u32 {sT0}, {sT0}, {sW}"); e(f"s_lshl_b32 {sT0}, {sT0}, 2"); e(f"s_add_u32 {sT0}, {sT0}, {sJ}")
        e(f"s_mul_i32 {sM1OUT}, {sT0}, {M1_SLICE}")
        if self.dyn:
            e(f"s_mov_b32 {sN}, 100000"); e(f"s_lshl_b32 {sGB}, {sG}, 22")
            e(f"s_lshl_b32 {sGC}, {sG}, 7"); e(f"s_add_u32 {sGC}, {sGC}, {GC_BASE:#x}")
            e(f"s_lshl_b32 {sSTAT}, {sJ}, 2"); e(f"s_add_u32 {sSTAT}, {sSTAT}, {sW}"); e(f"s_add_u32 {sSTAT}, {sSTAT}, 48")
            e(f"v_mov_b32 v{vZERO}, 0")
        if self.ldyn:
            e(f"s_lshl_b32 {sGC}, {sG}, 22"); e(f"s_lshr_b32 {sT0}, {sJ}, 1"); e(f"s_lshl_b32 {sT0}, {sT0}, 21"); e(f"s_add_u32 {sGC}, {sGC}, {sT0}")
            e(f"s_and_b32 {sSTAT}, {sJ}, 1"); e(f"s_mul_i32 {sSTAT}, {sSTAT}, 255")
            e(f"v_mov_b32 v{vA+1}, 1"); e(f"v_mov_b32 v{vZERO}, {CNT+8}")
            self.byrole(sPLO, self.ploA, self.ploB)
        c("Q frag read address")
        e(f"s_movk_i32 {sT1}, {QROW}")
        e(f"v_and_b32 v{vT+5}, 7, v{vN}"); e(f"v_mul_lo_u32 v{vT+5}, v{vT+5}, {sT1}"); e(f"v_lshl_add_u32 v{vT+5}, v{vGQ}, 4, v{vT+5}"); e(f"v_add_u32 v{vT+5}, {QB}, v{vT+5}")
        if self.q8v:
            c("q8v prologue: K0 K1 [K0->regs] K2 | staging free | V0 V1 [V0->regs] V2")
            e("s_waitcnt vmcnt(8)")
            self.read_k()
            e(f"s_add_u32 {sT3}, {sKOFF}, {sSTEP}"); e(f"s_add_u32 {sT3}, {sT3}, {sSTEP}")
            e(f"s_mov_b32 {sKSLOT}, {sWB}"); e(f"s_add_u32 {sVSLOT}, {sWB}, 16384")
            e("s_waitcnt lgkmcnt(0)")
            self.dma_tile(SRD_K, sT3, sKSLOT)
            e(f"s_xor_b32 {sKSLOT}, {sKSLOT}, 8192")
            for u in range(4): e(f"v_xor_b32 v{vKA+u}, 8192, v{vKA+u}")
            e(f"v_mov_b32 v{vT+6}, {CNT+20}")
            self.lds_spin("L_sfree", vT+6, vT+7, "ge", 4, 2)
            for hn in (2, 3, 6, 7): self.dma_half_static(hn)
            e("s_waitcnt vmcnt(8)")
            self.read_v()
            e(f"s_add_u32 {sT3}, {sKOFF}, {sSTEP}"); e(f"s_add_u32 {sT3}, {sT3}, {sSTEP}")
            e("s_waitcnt lgkmcnt(0)")
            self.dma_tile(SRD_V, sT3, sVSLOT)
            e(f"s_xor_b32 {sVSLOT}, {sVSLOT}, 8192")
            for u in range(8): e(f"v_xor_b32 v{vVA+u}, 8192, v{vVA+u}")
            e(f"s_add_u32 {sKOFF}, {sT3}, {sSTEP}"); e(f"s_mov_b32 {sVOFF}, {sKOFF}")
        else:
            c("paced fill of halves: K0a K0b V0a V0b K1a K1b V1a V1b, then K2 (slot A after reading K0)")
            P = self.pace
            if self.quiet:
                e("s_barrier")
                for hn in range(max(self.quiet, self.pre0), P): self.dma_half_static(hn)
            if self.q8:
                assert P <= 4 and not self.quiet
                for hn in range(max(P, self.pre0), 4):
                    e(f"s_waitcnt vmcnt({4*(P-1)})")
                    self.dma_half_static(hn)
                e(f"v_mov_b32 v{vT+6}, {CNT+20}")
                self.lds_spin("L_sfree", vT+6, vT+7, "ge", 4, 2)
                for hn in range(4, 8):
                    e(f"s_waitcnt vmcnt({4*(P-1)})")
                    self.dma_half_static(hn)
            else:
              for hn in range(max(P, self.quiet, self.pre0), 8):
                e(f"s_waitcnt vmcnt({4*(P-1)})")
                self.dma_half_static(hn)
                if hn == max(P, 2) + 1 - (0 if P <= 2 else 0) and False: pass
            c("K0 landed")
            e("s_waitcnt vmcnt(24)")
            self.read_k()
            if self.dyn:
                e(f"s_add_u32 {sKOFF}, {sKOFF}, 65536")
            else:
                e(f"s_add_u32 {sKOFF}, {sKOFF}, {sSTEP}"); e(f"s_add_u32 {sKOFF}, {sKOFF}, {sSTEP}")
            e(f"s_mov_b32 {sVOFF}, {sKOFF}")
            e(f"s_mov_b32 {sKSLOT}, {sWB}"); e(f"s_add_u32 {sVSLOT}, {sWB}, 16384")
            e(f"s_add_u32 {sT4}, {sKOFF}, {1024 << self.ib[2]}")
            e(f"s_waitcnt vmcnt({4*(P-1)}) lgkmcnt(0)")
            e(f"s_mov_b32 m0, {sKSLOT}"); e("s_nop 0")
            self.dma_half(SRD_K, sKOFF)
            e(f"s_waitcnt vmcnt({4*(P-1)})")
            e(f"s_add_u32 m0, {sKSLOT}, 4096"); e("s_nop 0")
            self.dma_half(SRD_K, sT4)
            e(f"s_add_u32 {sKOFF}, {sKOFF}, {32768 if self.dyn else sSTEP}"); e(f"s_xor_b32 {sKSLOT}, {sKSLOT}, 8192")
            for u in range(4): e(f"v_xor_b32 v{vKA+u}, 8192, v{vKA+u}")
            if self.v0pre:
                c("V0 -> regs, refill V2")
                e("s_waitcnt vmcnt(24)")
                self.read_v()
                e(f"s_add_u32 {sT4}, {sVOFF}, {1024 << self.ib[2]}")
                e(f"s_waitcnt vmcnt({4*(P-1)}) lgkmcnt(0)")
                e(f"s_mov_b32 m0, {sVSLOT}"); e("s_nop 0")
                self.dma_half(SRD_V, sVOFF)
                e(f"s_waitcnt vmcnt({4*(P-1)})")
                e(f"s_add_u32 m0, {sVSLOT}, 4096"); e("s_nop 0")
                self.dma_half(SRD_V, sT4)
                e(f"s_add_u32 {sVOFF}, {sVOFF}, {32768 if self.dyn else sSTEP}"); e(f"s_xor_b32 {sVSLOT}, {sVSLOT}, 8192")
                for u in range(8): e(f"v_xor_b32 v{vVA+u}, 8192, v{vVA+u}")
        if not self.rate: self.stamp(1)
        e("s_barrier")
        for s in range(8):
            e(f"ds_read_b128 a[{AQ+4*s}:{AQ+4*s+3}], v{vT+5}" + (f" offset:{s*64}" if s else ""))
        e(f"s_mov_b32 {sT}, 0")
        e("s_waitcnt lgkmcnt(0)")
        self.stamp(2)

        if self.order2:
            self.loop2()
        else:
            self.loop1()
        lab("L_tail")
        t0, t1, t2 = vT, vT+1, vT+2
        self.stamp(3)
        e(f"v_mov_b32 v{t1}, v{vL}"); e("s_nop 1")
        e(f"v_permlane32_swap_b32 v{t1}, v{vL}"); e(f"v_add_f32 v{vL}, v{vL}, v{t1}")
        e(f"v_mov_b32 v{t1}, v{vL}"); e("s_nop 1")
        e(f"v_permlane16_swap_b32 v{t1}, v{vL}"); e(f"v_add_f32 v{vL}, v{vL}, v{t1}")
        e(f"s_movk_i32 {sT1}, {OWROW}"); e(f"v_mul_lo_u32 v{vODUMP}, v{vN}, {sT1}")
        e(f"v_lshl_add_u32 v{vODUMP}, v{vGQ}, 4, v{vODUMP}"); e(f"v_add_u32 v{vODUMP}, {sWB}, v{vODUMP}")
        e(f"s_lshl_b32 {sT0}, {sW}, 6"); e(f"s_add_u32 {sT0}, {sT0}, {STB}")
        e(f"v_lshlrev_b32 v{t2}, 3, v{vN}"); e(f"v_add_u32 v{t2}, {sT0}, v{t2}")
        e("s_mov_b32 exec_lo, 0x00ff00ff"); e("s_mov_b32 exec_hi, 0x00ff00ff")
        for t in range(16):
            e(f"ds_write_b128 v{vODUMP}, v[{vO+4*t}:{vO+4*t+3}]" + (f" offset:{t*64}" if t else ""))
        e("s_mov_b64 exec, 0xff")
        e(f"ds_write_b64 v{t2}, v[{vM}:{vM+1}]")
        e("s_mov_b64 exec, -1")
        e(f"v_and_b32 v{vT}, 3, v{vLANE}"); e(f"v_lshrrev_b32 v{vT+1}, 2, v{vLANE}")
        e(f"s_lshr_b32 {sT0}, {sW}, 1"); e(f"s_lshl_b32 {sT0}, {sT0}, 2")
        e(f"v_add_u32 v{vT}, {sT0}, v{vT}")
        e(f"v_mul_lo_u32 v{vT2A}, v{vT}, {sT1}"); e(f"v_lshl_add_u32 v{vT2A}, v{vT+1}, 5, v{vT2A}")
        e(f"s_and_b32 {sT0}, {sW}, 1"); e(f"s_lshl_b32 {sT0}, {sT0}, 9"); e(f"v_add_u32 v{vT2A}, {sT0}, v{vT2A}")
        e(f"v_add_u32 v{vT2B}, 65536, v{vT2A}")
        e(f"v_lshlrev_b32 v{vT+2}, 3, v{vT}"); e(f"v_add_u32 v{vT+2}, {STB}, v{vT+2}")
        if self.wolate:
            e("s_waitcnt lgkmcnt(0)")
            e(f"v_mov_b32 v{vT+3}, {CNT+24}"); e(f"v_mov_b32 v{vT+4}, 1"); e("s_mov_b64 exec, 1"); e(f"ds_add_u32 v{vT+3}, v{vT+4}"); e("s_mov_b64 exec, -1")
            self.lds_spin("L_sb2", vT+3, vT+4, "ge", 4, 0)
        else:
            e("s_waitcnt lgkmcnt(0)"); e("s_barrier")
        if not self.rate and not self.dbgs: self.stamp(4)
        for w in range(4): e(f"ds_read_b64 v[{2*w}:{2*w+1}], v{vT+2} offset:{w*64}")
        for w in range(4):
            for u in range(2):
                a = vT2A if w < 2 else vT2B
                o = (w & 1) * 32768 + u * 16
                e(f"ds_read_b128 v[{8+8*w+4*u}:{8+8*w+4*u+3}], v{a}" + (f" offset:{o}" if o else ""))
        e("s_waitcnt lgkmcnt(8)")
        e("v_max3_f32 v40, v0, v2, v4"); e("v_max_f32 v40, v40, v6")
        for w in range(4): e(f"v_sub_f32 v{44+w}, v{2*w}, v40")
        for w in range(4): e(f"v_mul_f32 v{44+w}, {sC}, v{44+w}")
        for w in range(4): e(f"v_exp_f32 v{44+w}, v{44+w}")
        e("s_nop 0")
        e("v_mul_f32 v41, v44, v1"); e("v_fmac_f32 v41, v45, v3"); e("v_fmac_f32 v41, v46, v5"); e("v_fmac_f32 v41, v47, v7")
        e("s_waitcnt lgkmcnt(0)")
        for k in range(8): e(f"v_mul_f32 v{48+k}, v44, v{8+k}")
        for w in range(1, 4):
            for k in range(8): e(f"v_fmac_f32 v{48+k}, v{44+w}, v{8+8*w+k}")
        e(f"buffer_store_dwordx4 v[48:51], v{vLIN16}, {SRD_WS}, {sM1OUT} offen sc1")
        e(f"buffer_store_dwordx4 v[52:55], v{vLIN16}, {SRD_WS}, {sM1OUT} offen offset:1024 sc1")
        e(f"v_lshlrev_b32 v{vT}, 3, v{vLANE}")
        e("s_mov_b64 exec, 0xf")
        e(f"buffer_store_dwordx2 v[40:41], v{vT}, {SRD_WS}, {sM1OUT} offen offset:2048 sc1")
        e("s_mov_b64 exec, -1")
        if not self.rate and not self.dbgs: self.stamp(5)
        if self.wolate:
            e(f"s_cmp_lg_u32 {sW}, 0"); e("s_cbranch_scc1 L_fin")
            c("S0: hop 1 (T3)")
            e(f"s_lshl_b32 {sT0}, {sG}, 2"); e(f"s_add_u32 {sT0}, {sT0}, {sJ}"); e(f"s_mul_i32 {sT0}, {sT0}, {4*M1_SLICE}")
            e(f"s_add_u32 {sT1}, {sT0}, {M1_SLICE}"); e(f"s_add_u32 {sT2}, {sT0}, {2*M1_SLICE}"); e(f"s_add_u32 {sT3}, {sT0}, {3*M1_SLICE}")
            e(f"v_and_b32 v112, 3, v{vLANE}"); e(f"v_lshlrev_b32 v112, 3, v112")
            e(f"v_and_b32 v113, 3, v{vLANE}"); e(f"s_movk_i32 {sT4}, {OROW}"); e(f"v_mul_lo_u32 v113, v113, {sT4}")
            e(f"v_lshrrev_b32 v{vT}, 2, v{vLANE}"); e(f"v_lshl_add_u32 v113, v{vT}, 4, v113"); e(f"v_add_u32 v113, {OB}, v113")
            e(f"v_mov_b32 v{vT+1}, {CNT+28}")
            self.lds_spin("L_scf", vT+1, vT+2, "ge", 1, 4)
            self.t3(112, 113, (sT0, sT1, sT2, sT3), vLIN16)
            e("s_waitcnt lgkmcnt(0)"); e("s_barrier")
        e("s_branch L_fin")

        lab("L_helper")
        if self.hexit:
            e("s_waitcnt lgkmcnt(0)"); self.srd(28, 46, 47, WS_BYTES)
            e("s_barrier"); e("s_barrier"); e("s_barrier")
            if self.quiet: e("s_barrier")
            e("s_branch L_fin")
        if self.hprio: e(f"s_setprio {self.hprio}")
        if self.q8:
            c("Q phase (q8): 8 rows (batch pair) x 64 columns per WG, staged through the not yet used ring slots")
            FIRST = [0, 4, 8, 11]; NST = [4, 4, 3, 3]
            e(f"v_lshrrev_b32 v{vT}, 3, v{vLANE}"); e(f"v_lshlrev_b32 v{vT}, 13, v{vT}")
            e(f"v_and_b32 v{vT+1}, 7, v{vLANE}"); e(f"v_lshl_add_u32 v{vT}, v{vT+1}, 4, v{vT}")
            e(f"s_and_b32 {sT2}, {sY}, 7")
            e(f"s_lshl_b32 {sT0}, {sKVH}, 10"); e(f"s_lshl_b32 {sT1}, {sT2}, 7"); e(f"s_add_u32 {sT0}, {sT0}, {sT1}")
            e(f"v_add_u32 v{vDMA}, {sT0}, v{vT}")
            e(f"v_lshlrev_b32 v{vDMA+1}, 4, v{vLANE}")
            c("H0 zeroes the LDS counters")
            e(f"v_mov_b32 v{vT+2}, {CNT}")
            for i in range(4): e(f"v_mov_b32 v{vT+4+i}, 0")
            e(f"ds_write_b128 v{vT+2}, v[{vT+4}:{vT+7}] offset:16")
            if self.ldyn:
                self.byrole(sT3, self.ploA, self.ploB)
                e(f"v_mov_b32 v{vT+6}, 12"); e(f"v_mov_b32 v{vT+7}, {sT3}")
            e(f"ds_write_b128 v{vT+2}, v[{vT+4}:{vT+7}]")
            c("first step: 4*hw (hw<3) or 11 ; soffset = step*262144")
            e(f"s_lshl_b32 {sT2}, {sHW}, 2"); e(f"s_cmp_eq_u32 {sHW}, 3"); e(f"s_cselect_b32 {sT2}, 11, {sT2}"); e(f"s_lshl_b32 {sT2}, {sT2}, 18")
            e(f"s_lshl_b32 {sWB}, {sHW}, 15")
            e(f"s_lshr_b32 {sT3}, {sB}, 1"); e(f"s_mul_i32 {sT3}, {sT3}, 7168"); e(f"s_lshl_b32 {sT4}, {sHW}, 11"); e(f"s_add_u32 {sT3}, {sT3}, {sT4}")
            e(f"s_add_u32 {sT4}, {sT4}, {WQS}")
            e("s_waitcnt lgkmcnt(0)")
            if self.dbgq: self.stamp(2)
            e(f"s_add_u32 s56, s46, {EPOCH_OFF:#x}"); e("s_addc_u32 s57, s47, 0")
            e(f"s_load_dwordx2 s[60:61], s[56:57], 0")
            self.srd(16, 38, 39, 3670016); self.srd(20, 32, 33, 28672)
            e(f"s_mov_b32 m0, {sT4}"); e("s_nop 0")
            e(f"buffer_load_dwordx4 v{vDMA+1}, {SRD_X}, {sT3} offen lds")
            e(f"buffer_load_dwordx4 v{vDMA+1}, {SRD_X}, {sT3} offen offset:1024 lds")
            def wq_issue(endlab):
                for ls in range(4):
                    if ls == 3:
                        e(f"s_cmp_ge_u32 {sHW}, 2"); e(f"s_cbranch_scc1 {endlab}")
                    slot = (16384 + ls * 4096) if self.q8v else (8192 + ls * 4096 if ls < 2 else 24576 + (ls - 2) * 4096)
                    for i in range(4):
                        e(f"s_add_u32 m0, {sWB}, {slot + i*1024}")
                        if ls or i: e(f"s_add_u32 {sT2}, {sT2}, 65536")
                        else: e("s_nop 0")
                        e(f"buffer_load_dwordx4 v{vDMA}, {SRD_WQ}, {sT2} offen lds")
                lab(endlab)
            if self.qrot:
                c("the 4 WGs (batch pairs) that share these wq columns fetch a different part first; the rest then hits in L2")
                e(f"s_lshr_b32 {sT5}, {sB}, 1"); e(f"s_cmp_lg_u32 {sHW}, {sT5}"); e("s_cbranch_scc1 L_hq_late")
                wq_issue("L_hq_issued")
                e("s_barrier")
                e("s_waitcnt vmcnt(0)")
                e(f"v_mov_b32 v{vT+3}, {CNT+24}"); e(f"v_mov_b32 v{vT+4}, 1"); e(f"ds_write_b32 v{vT+3}, v{vT+4}")
                e("s_branch L_hq_go")
                lab("L_hq_late")
                e("s_barrier")
                e(f"v_mov_b32 v{vT+3}, {CNT+24}")
                self.lds_spin("L_hqw", vT+3, vT+4, "ge", 1, 1)
                wq_issue("L_hq_issued2")
                lab("L_hq_go")
            else:
                wq_issue("L_hq_issued")
                if self.dbgq: self.stamp(3)
                e("s_barrier")
            if self.dbgq: self.stamp(4)
            self.srd(28, 46, 47, WS_BYTES); self.srd(24, 40, 41, 3670016)
            e("s_mov_b32 s34, s42"); e("s_mov_b32 s35, s43")
            c("A tr-read base: (8g + (i>>2))*128 + (i&3)*8 + hw*32 ; B read base: WQS + (n&7)*896 + g*16")
            vTR0, vTR1, vXB = vT, vT+1, vT+2
            e(f"v_lshrrev_b32 v{vTR0}, 2, v{vN}"); e(f"v_lshl_add_u32 v{vTR0}, v{vGQ}, 3, v{vTR0}"); e(f"v_lshlrev_b32 v{vTR0}, 7, v{vTR0}")
            e(f"v_and_b32 v{vTR1}, 3, v{vN}"); e(f"v_lshl_add_u32 v{vTR0}, v{vTR1}, 3, v{vTR0}")
            e(f"s_lshl_b32 {sT0}, {sHW}, 5"); e(f"v_add_u32 v{vTR0}, {sT0}, v{vTR0}"); e(f"v_add_u32 v{vTR1}, 65536, v{vTR0}")
            e(f"v_and_b32 v{vXB}, 7, v{vN}"); e(f"s_movk_i32 {sT1}, 896"); e(f"v_mul_lo_u32 v{vXB}, v{vXB}, {sT1}"); e(f"v_lshl_add_u32 v{vXB}, v{vGQ}, 4, v{vXB}"); e(f"v_add_u32 v{vXB}, {WQS}, v{vXB}")
            hD = 48
            for i in range(4): e(f"v_mov_b32 v{hD+i}, 0")
            e(f"v_mov_b32 v{vT+3}, {CNT}"); e(f"v_mov_b32 v{vT+4}, 1")
            e("s_waitcnt vmcnt(0)")
            self.stamp(1)
            e("s_mov_b64 exec, 1"); e(f"ds_add_u32 v{vT+3}, v{vT+4}"); e("s_mov_b64 exec, -1")
            c("publish address while waiting: QM + ((kvh*8 + b')*32 + 4*y8 + hw)*512 + q*128 + (2g + (n>>3))*16 ; b' = (b&~1) + ((n&7)>>2), q = n&3")
            e(f"v_bfe_u32 v{vT+5}, v{vN}, 2, 1"); e(f"v_lshlrev_b32 v{vT+5}, 14, v{vT+5}")
            e(f"v_and_b32 v{vT+6}, 3, v{vN}"); e(f"v_lshl_add_u32 v{vT+5}, v{vT+6}, 7, v{vT+5}")
            e(f"v_lshrrev_b32 v{vT+6}, 3, v{vN}"); e(f"v_lshl_add_u32 v{vT+6}, v{vGQ}, 1, v{vT+6}"); e(f"v_lshl_add_u32 v{vT+5}, v{vT+6}, 4, v{vT+5}")
            e(f"s_lshl_b32 {sT0}, {sKVH}, 3"); e(f"s_and_b32 {sT1}, {sB}, 6"); e(f"s_add_u32 {sT0}, {sT0}, {sT1}"); e(f"s_lshl_b32 {sT0}, {sT0}, 14")
            e(f"s_and_b32 {sT1}, {sY}, 7"); e(f"s_lshl_b32 {sT1}, {sT1}, 2"); e(f"s_add_u32 {sT1}, {sT1}, {sHW}"); e(f"s_lshl_b32 {sT1}, {sT1}, 9")
            e(f"s_add_u32 {sT0}, {sT0}, {sT1}"); e(f"s_add_u32 {sT0}, {sT0}, {QM_BASE:#x}")
            e(f"s_mov_b32 {sSPIN}, {self.spin}")
            lab("L_hs1")
            e(f"ds_read_b32 v{vT+6}, v{vT+3}"); e("s_waitcnt lgkmcnt(0)")
            e(f"v_readfirstlane_b32 {sT1}, v{vT+6}"); e("s_nop 3")
            e(f"s_cmp_ge_u32 {sT1}, 4"); e("s_cbranch_scc1 L_hs1ok")
            self.spin_dec("L_hs1")
            lab("L_hs1ok")
            def rd(sg):
                p = max(k for k in range(4) if FIRST[k] <= sg); ls = sg - FIRST[p]
                slot = (16384 + ls * 4096) if self.q8v else (8192 + ls * 4096 if ls < 2 else 24576 + (ls - 2) * 4096)
                base = (p & 1) * 32768 + slot; ar = vTR0 if p < 2 else vTR1
                R = 8 * (sg % 5)
                e(f"ds_read_b64_tr_b16 v[{R}:{R+1}], v{ar} offset:{base}")
                e(f"ds_read_b64_tr_b16 v[{R+2}:{R+3}], v{ar} offset:{base+512}")
                e(f"ds_read_b128 v[{R+4}:{R+7}], v{vXB}" + (f" offset:{sg*64}" if sg else ""))
            for sg in range(4): rd(sg)
            for sg in range(14):
                if sg + 4 < 14: rd(sg + 4)
                outstanding = min(4, 13 - sg)
                e(f"s_waitcnt lgkmcnt({3*outstanding})")
                R = 8 * (sg % 5)
                e(f"v_mfma_f32_16x16x32_bf16 v[{hD}:{hD+3}], v[{R}:{R+3}], v[{R+4}:{R+7}], v[{hD}:{hD+3}]")
            c("staging is free now: tell the streamers")
            e(f"v_mov_b32 v{vT+3}, {CNT+20}"); e(f"v_mov_b32 v{vT+4}, 1")
            e("s_mov_b64 exec, 1"); e(f"ds_add_u32 v{vT+3}, v{vT+4}"); e("s_mov_b64 exec, -1")
            c("launch tag: E' = E + C (64 bit); TL = low 16 bits << 16, sTAG = bits 16..47")
            e(f"s_add_u32 s60, s60, 0x7f4a7c15"); e(f"s_addc_u32 s61, s61, 0x9e3779b9")
            e(f"s_lshl_b32 {sTL}, s60, 16"); e(f"s_lshr_b32 {sTAG}, s60, 16"); e(f"s_lshl_b32 {sT1}, s61, 16"); e(f"s_or_b32 {sTAG}, {sTAG}, {sT1}")
            e(f"v_cmp_gt_u32 vcc, 8, v{vN}")
            self.nop(2)
            e(f"v_cndmask_b32 v0, v{hD+2}, v{hD}, vcc"); e(f"v_cndmask_b32 v1, v{hD+3}, v{hD+1}, vcc")
            e("v_cvt_pk_bf16_f32 v0, v0, v1")
            e(f"v_and_b32 v4, 0xffff, v0"); e(f"v_lshrrev_b32 v6, 16, v0")
            e(f"v_or_b32 v4, {sTL}, v4"); e(f"v_or_b32 v6, {sTL}, v6"); e(f"v_mov_b32 v5, {sTAG}"); e(f"v_mov_b32 v7, {sTAG}")
            e(f"buffer_store_dwordx4 v[4:7], v{vT+5}, {SRD_WS}, {sT0} offen sc1")
        else:
            self.q32_phase()
        if True:
            self.stamp(2) if not self.dbgq else None
            if self.quiet: e("s_barrier")
            e(f"v_lshlrev_b32 v{vLIN16}, 4, v{vLANE}")
            c("poll own 4 KB: QM + (kvh*8+b)*16384 + hw*4096 + i*1024 + l*16")
            e(f"s_lshl_b32 {sT0}, {sKVH}, 3"); e(f"s_add_u32 {sT0}, {sT0}, {sB}"); e(f"s_lshl_b32 {sT0}, {sT0}, 14"); e(f"s_lshl_b32 {sT1}, {sHW}, 12")
            e(f"s_add_u32 {sT0}, {sT0}, {sT1}"); e(f"s_add_u32 {sT0}, {sT0}, {QM_BASE:#x}")
            c("LDS write address: QB + (4h+q)*528 + (128*(hw&1) + 16yy + 2cp)*2 ; yy = 2i + (l>>5), q=(l&31)>>3, cp=l&7, h=hw>>1")
            e(f"v_bfe_u32 v{vT}, v{vLANE}, 3, 2")
            e(f"s_lshr_b32 {sT1}, {sHW}, 1"); e(f"s_lshl_b32 {sT1}, {sT1}, 2"); e(f"v_add_u32 v{vT}, {sT1}, v{vT}")
            e(f"s_movk_i32 {sT1}, {QROW}"); e(f"v_mul_lo_u32 v{vT}, v{vT}, {sT1}")
            e(f"v_lshrrev_b32 v{vT+1}, 5, v{vLANE}"); e(f"v_lshl_add_u32 v{vT}, v{vT+1}, 5, v{vT}")
            e(f"v_and_b32 v{vT+1}, 7, v{vLANE}"); e(f"v_lshl_add_u32 v{vT}, v{vT+1}, 2, v{vT}")
            e(f"s_and_b32 {sT1}, {sHW}, 1"); e(f"s_lshl_b32 {sT1}, {sT1}, 8"); e(f"s_add_u32 {sT1}, {sT1}, {QB}"); e(f"v_add_u32 v{vT}, {sT1}, v{vT}")
            e(f"s_mov_b32 {sSPIN}, {self.spin}"); e(f"s_mov_b32 {sT2}, 0xffff0000"); e(f"s_mov_b32 {sT3}, 0x05040100")
            if self.qdelay: e(f"s_waitcnt vmcnt(0)")
            lab("L_hq_poll")
            for i in range(4):
                e(f"buffer_load_dwordx4 v[{8+4*i}:{8+4*i+3}], v{vLIN16}, {SRD_WS}, {sT0} offen" + (f" offset:{i*1024}" if i else "") + " sc1")
            e("s_waitcnt vmcnt(0)")
            for i in range(4):
                b = 8 + 4*i
                e(f"v_and_b32 v{24+2*i}, {sT2}, v{b}"); e(f"v_and_b32 v{25+2*i}, {sT2}, v{b+2}")
                e(f"v_xor_b32 v{24+2*i}, {sTL}, v{24+2*i}"); e(f"v_xor_b32 v{25+2*i}, {sTL}, v{25+2*i}")
                e(f"v_xor_b32 v{32+2*i}, {sTAG}, v{b+1}"); e(f"v_xor_b32 v{33+2*i}, {sTAG}, v{b+3}")
            e("v_or3_b32 v24, v24, v25, v26"); e("v_or3_b32 v27, v27, v28, v29"); e("v_or3_b32 v30, v30, v31, v32"); e("v_or3_b32 v33, v33, v34, v35")
            e("v_or3_b32 v36, v36, v37, v38"); e("v_or3_b32 v24, v24, v27, v30"); e("v_or3_b32 v33, v33, v36, v39"); e("v_or_b32 v24, v24, v33")
            e("v_cmp_ne_u32 vcc, 0, v24"); e("s_nop 1"); e("s_cbranch_vccz L_hq_ok")
            self.spin_dec("L_hq_poll")
            lab("L_hq_ok")
            if not self.dbgq: self.stamp(3)
            for i in range(4):
                b = 8 + 4*i
                e(f"v_perm_b32 v{24+i}, v{b+2}, v{b}, {sT3}")
            for i in range(4):
                e(f"ds_write_b32 v{vT}, v{24+i}" + (f" offset:{i*64}" if i else ""))
            e("s_waitcnt lgkmcnt(0)")
            if not self.dbgq: self.stamp(4)
        lab("L_hq_done")
        e("s_barrier")
        self.srd(48, 34, 35, 28672)
        if self.wopf and not self.pflate:
            c("L2 prefetch of this WG's 1/8 share of the wo quarter: rows r*128 + 16b .. +16 (14336 B contiguous); wave hw: 4KB pieces")
            e(f"s_lshl_b32 {sT0}, {sR}, 7"); e(f"s_lshl_b32 {sT1}, {sB}, 4"); e(f"s_add_u32 {sT0}, {sT0}, {sT1}"); e(f"s_mul_i32 {sT0}, {sT0}, 896")
            e(f"s_lshl_b32 {sT1}, {sHW}, 12"); e(f"s_add_u32 {sT0}, {sT0}, {sT1}")
            for i in range(4):
                e(f"buffer_load_dwordx4 v[{8+4*i}:{8+4*i+3}], v{vLIN16}, {SRD_WO}, {sT0} offen" + (f" offset:{i*1024}" if i else "") + self.pffl)
        c("clears: M1[g][recv=hw][sender=j] (2176B) and M2[b][r][hw] (2048B)")
        e(f"s_lshl_b32 {sT0}, {sG}, 2"); e(f"s_add_u32 {sT0}, {sT0}, {sHW}"); e(f"s_lshl_b32 {sT0}, {sT0}, 2"); e(f"s_add_u32 {sT0}, {sT0}, {sJ}")
        e(f"s_mul_i32 {sM1OUT}, {sT0}, {M1_SLICE}")
        e(f"s_lshl_b32 {sT0}, {sB}, 5"); e(f"s_add_u32 {sT0}, {sT0}, {sR}"); e(f"s_lshl_b32 {sT0}, {sT0}, 13"); e(f"s_lshl_b32 {sT1}, {sHW}, 11")
        e(f"s_add_u32 {sM2OUT}, {sT0}, {sT1}"); e(f"s_add_u32 {sM2OUT}, {sM2OUT}, {M2_BASE:#x}")
        for i in range(4): e(f"v_mov_b32 v{i}, -1")
        if not self.noclr:
            e(f"buffer_store_dwordx4 v[0:3], v{vLIN16}, {SRD_WS}, {sM1OUT} offen sc1")
            e(f"buffer_store_dwordx4 v[0:3], v{vLIN16}, {SRD_WS}, {sM1OUT} offen offset:1024 sc1")
            e(f"buffer_store_dwordx4 v[0:3], v{vLIN16}, {SRD_WS}, {sM2OUT} offen sc1")
            e(f"buffer_store_dwordx4 v[0:3], v{vLIN16}, {SRD_WS}, {sM2OUT} offen offset:1024 sc1")
        e("s_mov_b64 exec, 0xff")
        e(f"buffer_store_dwordx4 v[0:3], v{vLIN16}, {SRD_WS}, {sM1OUT} offen offset:2048 sc1")
        if self.dyn:
            c("group counter := 0 (j==0, hw==0)")
            e(f"s_or_b32 {sT0}, {sJ}, {sHW}"); e(f"s_cmp_lg_u32 {sT0}, 0"); e("s_cbranch_scc1 L_hnogc")
            e("s_mov_b64 exec, 1"); e(f"v_mov_b32 v4, 0"); e(f"s_lshl_b32 {sT0}, {sG}, 7"); e(f"s_add_u32 {sT0}, {sT0}, {GC_BASE:#x}")
            e(f"buffer_store_dword v4, v4, {SRD_WS}, {sT0} offen sc1")
            lab("L_hnogc")
        e("s_mov_b64 exec, -1")
        e("s_waitcnt vmcnt(0)")
        if self.dbgmid: self.stamp(1)
        c("last helper wave signals clears done: lane r' writes CF[consumer wg' = (r'>>2) + 32b + 8(r'&3)][r] := tag")
        e(f"v_mov_b32 v{vT+4}, 1"); e(f"v_mov_b32 v{vT+3}, {CNT+4}")
        e("s_mov_b64 exec, 1")
        e(f"ds_add_rtn_u32 v{vT+6}, v{vT+3}, v{vT+4}"); e("s_waitcnt lgkmcnt(0)")
        e(f"v_readfirstlane_b32 {sT1}, v{vT+6}"); e("s_nop 3")
        e("s_mov_b64 exec, -1")
        e(f"s_cmp_eq_u32 {sT1}, {3 if self.hop1 else 7}"); e("s_cbranch_scc0 L_hnoflag2")
        e(f"v_lshrrev_b32 v{vT+5}, 2, v{vLANE}"); e(f"v_and_b32 v{vT+6}, 3, v{vLANE}"); e(f"v_lshl_add_u32 v{vT+5}, v{vT+6}, 3, v{vT+5}")
        e(f"v_lshlrev_b32 v{vT+5}, 7, v{vT+5}"); e(f"v_mov_b32 v{vT+4}, {sTAG}")
        e(f"s_lshl_b32 {sT4}, {sB}, 12"); e(f"s_lshl_b32 {sT5}, {sR}, 2"); e(f"s_add_u32 {sT4}, {sT4}, {sT5}"); e(f"s_add_u32 {sT4}, {sT4}, {CF_BASE:#x}")
        e("s_mov_b32 exec_lo, -1"); e("s_mov_b32 exec_hi, 0")
        e(f"buffer_store_dword v{vT+4}, v{vT+5}, {SRD_WS}, {sT4} offen sc1")
        lab("L_hnoflag2")
        e("s_mov_b64 exec, -1")
        c("wo: load, transpose, park in AGPRs a[0:127]")
        e(f"s_mov_b32 {sSEL_LO}, 0x05040100"); e(f"s_mov_b32 {sSEL_HI}, 0x07060302")
        e(f"s_lshl_b32 {sT0}, {sR}, 7")
        if self.wosame: e(f"s_mov_b32 {sT0}, 0")
        e(f"v_lshlrev_b32 v{vT}, 3, v{vGQ}"); e(f"v_add_u32 v{vT}, {sT0}, v{vT}")
        e(f"s_movk_i32 {sT1}, 896"); e(f"v_mul_lo_u32 v{vT}, v{vT}, {sT1}")
        e(f"s_mul_i32 {sT0}, {sHW}, {256 if self.wo128 else 224}"); e(f"v_lshl_add_u32 v{vT}, v{vN}, 4, v{vT}"); e(f"v_add_u32 v{vT}, {sT0}, v{vT}")
        if self.wo128:
            c("wave 3 owns only 64 columns: lanes m>=8 stay zero")
            for i in range(32): e(f"v_mov_b32 v{i}, 0")
            e(f"s_cmp_eq_u32 {sHW}, 3"); e(f"s_cselect_b32 {sT2}, 0x00ff00ff, -1")
        if self.wolate:
            e(f"v_mov_b32 v{hWO}, v{vT}"); e(f"s_mov_b32 {sWOM}, {sT2}")
        for ks in range(4):
            if self.nowo or self.wolate: break
            kk = 0 if self.wosame else ks
            e(f"s_mov_b32 {sT0}, {kk*32*896}"); e(f"s_mov_b32 {sT1}, {kk*32*896 + 4*896}")
            if self.wo128: e(f"s_mov_b32 exec_lo, {sT2}"); e(f"s_mov_b32 exec_hi, {sT2}")
            for i in range(8):
                so = sT0 if i < 4 else sT1
                o = (i & 3) * 896
                e(f"buffer_load_dwordx4 v[{4*i}:{4*i+3}], v{vT}, {SRD_WO}, {so} offen" + (f" offset:{o}" if o else "") + self.wofl)
                if self.wopace < 8 and (i + 1) % self.wopace == 0: e("s_waitcnt vmcnt(0)")
            if self.wo128: e("s_mov_b64 exec, -1")
            e("s_waitcnt vmcnt(0)")
            for j in range(8):
                u = j >> 1; sel = sSEL_HI if (j & 1) else sSEL_LO
                for p in range(4):
                    e(f"v_perm_b32 v{32+4*j+p}, v{4*(2*p+1)+u}, v{4*(2*p)+u}, {sel}")
            for k in range(32): e(f"v_accvgpr_write_b32 a{32*ks+k}, v{32+k}")
        if self.dbgmid: self.stamp(2)
        c("wait until all WGs of batch b have cleared their outboxes: dword at kvh*32+4b == 0x01010101 for all kvh")
        e(f"s_cmp_lg_u32 {sHW}, 0"); e("s_cbranch_scc1 L_hclrok")
        e(f"s_lshl_b32 {sT0}, {sLID}, 7"); e(f"s_add_u32 {sT0}, {sT0}, {CF_BASE:#x}")
        e(f"v_and_b32 v{vT+1}, 31, v{vLANE}"); e(f"v_lshlrev_b32 v{vT+1}, 2, v{vT+1}")
        e(f"s_mov_b32 {sSPIN}, {self.spin}")
        lab("L_hclr")
        e(f"buffer_load_dword v{vT+2}, v{vT+1}, {SRD_WS}, {sT0} offen sc1"); e("s_waitcnt vmcnt(0)")
        e(f"v_cmp_ne_u32 vcc, {sTAG}, v{vT+2}"); e("s_nop 1"); e("s_cbranch_vccz L_hclrok")
        e("s_sleep 16")
        self.spin_dec("L_hclr")
        lab("L_hclrok")
        if self.wolate:
            e(f"s_cmp_lg_u32 {sHW}, 0"); e("s_cbranch_scc1 L_hnocf")
            e(f"v_mov_b32 v{vT+1}, {CNT+28}"); e(f"v_mov_b32 v{vT+2}, 1"); e(f"ds_write_b32 v{vT+1}, v{vT+2}")
            lab("L_hnocf")
        if self.dyn:
            e(f"s_cmp_lg_u32 {sHW}, 0"); e("s_cbranch_scc1 L_hnodyn")
            e(f"v_mov_b32 v{vT+1}, {CNT+8}"); e(f"v_mov_b32 v{vT+2}, 1"); e(f"ds_write_b32 v{vT+1}, v{vT+2}")
            lab("L_hnodyn")
        if self.dbgmid: self.stamp(3)
        if self.ldyn:
            c("H0: late balance exchange with partner (lid ^ 8). LDS: CNT+8 tile counter, CNT+12 limit, CNT+16 final")
            e(f"s_cmp_lg_u32 {sHW}, 0"); e("s_cbranch_scc1 L_hbaldone")
            e(f"v_mov_b32 v{vT}, {CNT+8}"); e(f"s_mov_b32 {sSPIN}, {self.spin}")
            lab("L_hb0")
            e(f"ds_read_b32 v0, v{vT}"); e("s_waitcnt lgkmcnt(0)")
            e(f"v_readfirstlane_b32 {sT0}, v0"); e("s_nop 3")
            e(f"s_cmp_ge_u32 {sT0}, {self.t0s}"); e("s_cbranch_scc1 L_hb0ok")
            e("s_sleep 32"); self.spin_dec("L_hb0")
            lab("L_hb0ok")
            e("s_memrealtime s[8:9]"); e("s_waitcnt lgkmcnt(0)")
            e(f"s_lshl_b32 {sT1}, {sLID}, 7"); e(f"s_add_u32 {sT1}, {sT1}, {BAL_BASE:#x}")
            e(f"s_add_u32 s10, s46, {sT1}"); e("s_addc_u32 s11, s47, 0")
            if self.asym: self.byrole(sT4, self.ploA - self.tmarg, self.ploB - self.tmarg)
            else: e(f"s_mov_b32 {sT4}, {self.t1s}")
            c("s64 = clamp lo for nA, s65 = clamp hi for nA, s66 = round, s67 = partner mailbox offset")
            e(f"s_mov_b32 s64, {self.ploA}"); e(f"s_mov_b32 s65, {256-self.ploB}"); e("s_mov_b32 s66, 0")
            e(f"s_xor_b32 s67, {sLID}, 8"); e("s_lshl_b32 s67, s67, 7"); e(f"s_add_u32 s67, s67, {BAL_BASE:#x}")
            lab("L_hbround")
            e(f"s_mov_b32 {sSPIN}, {self.spin}")
            lab("L_hb1")
            e(f"ds_read_b32 v0, v{vT}"); e("s_load_dwordx8 s[12:19], s[10:11], 0 glc"); e("s_waitcnt lgkmcnt(0)")
            e(f"v_readfirstlane_b32 {sT2}, v0"); e("s_nop 3")
            e(f"s_cmp_ge_u32 {sT2}, {sT4}"); e("s_cbranch_scc1 L_hb1ok")
            e(f"s_cmp_eq_u32 s17, {sTAG}"); e("s_cbranch_scc1 L_hb1ok")
            e("s_sleep 12"); self.spin_dec("L_hb1")
            lab("L_hb1ok")
            e("s_memrealtime s[20:21]"); e("s_waitcnt lgkmcnt(0)")
            c("publish {T0|T1<<16, tag, tau0, tag} {tau1, tag}")
            e(f"s_lshl_b32 {sT3}, {sT2}, 16"); e(f"s_or_b32 {sT3}, {sT3}, {sT0}")
            e(f"v_mov_b32 v4, {sT3}"); e(f"v_mov_b32 v5, {sTAG}"); e("v_mov_b32 v6, s8"); e(f"v_mov_b32 v7, {sTAG}"); e("v_mov_b32 v8, s20"); e(f"v_mov_b32 v9, {sTAG}"); e("v_mov_b32 v10, 0")
            e("s_mov_b64 exec, 1")
            e(f"buffer_store_dwordx4 v[4:7], v10, {SRD_WS}, s67 offen sc1")
            e(f"buffer_store_dwordx2 v[8:9], v10, {SRD_WS}, s67 offen offset:16 sc1")
            e(f"s_mov_b32 {sSPIN}, {self.spin}")
            lab("L_hb2")
            e("s_load_dwordx8 s[12:19], s[10:11], 0 glc"); e("s_waitcnt lgkmcnt(0)")
            e(f"s_xor_b32 s22, s13, {sTAG}"); e(f"s_xor_b32 s23, s15, {sTAG}"); e("s_or_b32 s22, s22, s23"); e(f"s_xor_b32 s23, s17, {sTAG}"); e("s_or_b32 s22, s22, s23")
            e("s_cmp_eq_u32 s22, 0"); e("s_cbranch_scc1 L_hb2ok")
            e("s_sleep 4"); self.spin_dec("L_hb2")
            e("v_mov_b32 v20, s64"); e("s_mov_b32 s66, 1"); e("s_branch L_hbn")
            lab("L_hb2ok")
            e(f"s_and_b32 {sT1}, {sJ}, 1"); e(f"s_cmp_eq_u32 {sT1}, 0")
            e(f"s_cselect_b32 s22, {sT3}, s12"); e("s_cselect_b32 s23, s8, s14"); e("s_cselect_b32 s9, s20, s16")
            e(f"s_cselect_b32 s12, s12, {sT3}"); e("s_cselect_b32 s14, s14, s8"); e("s_cselect_b32 s16, s16, s20")
            e("s_lshr_b32 s13, s22, 16"); e("s_and_b32 s22, s22, 0xffff")
            e("s_lshr_b32 s15, s12, 16"); e("s_and_b32 s12, s12, 0xffff")
            e("s_sub_u32 s22, s13, s22"); e("s_sub_u32 s23, s9, s23")
            e("s_sub_u32 s12, s15, s12"); e("s_sub_u32 s14, s16, s14")
            e("s_sub_u32 s16, s16, s9")
            e("v_cvt_f32_u32 v0, s22"); e("v_cvt_f32_u32 v1, s23"); e("v_cvt_f32_u32 v2, s12"); e("v_cvt_f32_u32 v3, s14")
            e("v_cvt_f32_i32 v4, s16"); e("v_cvt_f32_u32 v5, s13"); e("v_cvt_f32_u32 v6, s15")
            c("pA = dtauA/dTA (time per tile), pB = dtauB/dTB ; n = (delta + TA*pA + (256 - TB)*pB) / (pA + pB)")
            e("v_rcp_f32 v0, v0"); e("v_rcp_f32 v2, v2"); e("s_nop 0")
            e("v_mul_f32 v1, v1, v0"); e("v_mul_f32 v3, v3, v2")
            e(f"v_sub_f32 v6, {fbits(256.0):#x}, v6")
            e("v_fmac_f32 v4, v5, v1"); e("v_fmac_f32 v4, v6, v3")
            e("v_add_f32 v6, v1, v3"); e("v_rcp_f32 v6, v6"); e("s_nop 0")
            e("v_mul_f32 v5, v4, v6"); e("v_add_f32 v5, 0.5, v5"); e("v_cvt_i32_f32 v20, v5")
            e("v_max_i32 v20, s64, v20"); e("v_min_i32 v20, s65, v20")
            lab("L_hbn")
            e("s_nop 0"); e(f"v_readfirstlane_b32 s22, v20"); e("s_nop 3")
            e(f"v_mov_b32 v22, {CNT+12}")
            if self.rounds2:
                e("s_cmp_lg_u32 s66, 0"); e("s_cbranch_scc1 L_hbfinal")
                c("round 1: provisional limits pA = max(ploA, nA - delta), pB = max(ploB, 256 - nA - delta)")
                e(f"s_sub_u32 s23, s22, {self.delta}"); e("s_max_i32 s64, s64, s23")
                e(f"s_sub_u32 s23, {256 - self.delta}, s22"); e(f"s_max_i32 s23, s23, {self.ploB}")
                e("s_sub_u32 s65, 256, s23")
                e(f"s_and_b32 {sT1}, {sJ}, 1"); e(f"s_cmp_eq_u32 {sT1}, 0"); e("s_cselect_b32 s23, s64, s23")
                e("v_mov_b32 v21, s23"); e("ds_write_b32 v22, v21")
                e(f"s_sub_u32 {sT4}, s23, {self.tmarg2}")
                e("s_mov_b32 s8, s20"); e(f"s_mov_b32 {sT0}, {sT2}")
                e("s_add_u32 s10, s10, 32"); e("s_addc_u32 s11, s11, 0"); e("s_add_u32 s67, s67, 32")
                e("s_mov_b32 s66, 1"); e("s_mov_b64 exec, -1")
                e("s_branch L_hbround")
                lab("L_hbfinal")
            e(f"s_and_b32 {sT1}, {sJ}, 1"); e(f"s_cmp_eq_u32 {sT1}, 0"); e("s_cbranch_scc1 L_hb3")
            e("s_sub_u32 s22, 256, s22")
            lab("L_hb3")
            e("v_mov_b32 v20, s22"); e("v_mov_b32 v21, 1")
            e("ds_write_b32 v22, v20"); e("s_waitcnt lgkmcnt(0)"); e("ds_write_b32 v22, v21 offset:4")
            e("s_mov_b64 exec, -1")
            lab("L_hbaldone")
        elif self.bal:
            c("H0: balance exchange with partner (lid ^ 8)")
            e(f"s_cmp_lg_u32 {sHW}, 0"); e("s_cbranch_scc1 L_hbaldone")
            e(f"v_mov_b32 v{vT}, {CNT+8}"); e(f"s_mov_b32 {sSPIN}, {self.spin}")
            lab("L_hbal1")
            e(f"ds_read_b64 v[0:1], v{vT}"); e("s_waitcnt lgkmcnt(0)")
            e(f"v_readfirstlane_b32 {sT0}, v1"); e("s_nop 3")
            e(f"s_cmp_lg_u32 {sT0}, 0"); e("s_cbranch_scc1 L_hbal1ok")
            e("s_sleep 32")
            self.spin_dec("L_hbal1")
            lab("L_hbal1ok")
            c("v0 = a (time at ta), v1 = c (time at tb): publish {a, tag, c, tag}")
            e(f"v_mov_b32 v4, v0"); e(f"v_mov_b32 v5, {sTAG}"); e(f"v_mov_b32 v6, v1"); e(f"v_mov_b32 v7, {sTAG}"); e("v_mov_b32 v8, 0")
            e(f"s_xor_b32 {sT0}, {sLID}, 8"); e(f"s_lshl_b32 {sT0}, {sT0}, 7"); e(f"s_add_u32 {sT0}, {sT0}, {BAL_BASE:#x}")
            e("s_mov_b64 exec, 1")
            e(f"buffer_store_dwordx4 v[4:7], v8, {SRD_WS}, {sT0} offen sc1")
            e(f"s_lshl_b32 {sT0}, {sLID}, 7"); e(f"s_add_u32 {sT0}, {sT0}, {BAL_BASE:#x}")
            e(f"s_mov_b32 {sSPIN}, {self.spin}")
            lab("L_hbal2")
            e(f"buffer_load_dwordx4 v[12:15], v8, {SRD_WS}, {sT0} offen sc1"); e("s_waitcnt vmcnt(0)")
            e(f"v_xor_b32 v16, {sTAG}, v13"); e(f"v_xor_b32 v17, {sTAG}, v15"); e("v_or_b32 v16, v16, v17")
            e("s_nop 0"); e(f"v_readfirstlane_b32 {sT1}, v16"); e("s_nop 3")
            e(f"s_cmp_eq_u32 {sT1}, 0"); e("s_cbranch_scc1 L_hbal2ok")
            e("s_sleep 16")
            self.spin_dec("L_hbal2")
            c("timeout: both sides cannot agree -> cannot happen in a healthy run; use N = 32")
            e("v_mov_b32 v20, 32"); e("s_branch L_hbal3")
            lab("L_hbal2ok")
            c("A = role 0, B = role 1: (aA,cA) in v[0:1] / (aB,cB) in v12,v14 for role 0; swapped for role 1")
            e(f"s_and_b32 {sT1}, {sJ}, 1"); e(f"s_cmp_eq_u32 {sT1}, 0")
            e("s_cbranch_scc1 L_hbalA")
            e("v_mov_b32 v18, v0"); e("v_mov_b32 v19, v1"); e("v_mov_b32 v0, v12"); e("v_mov_b32 v1, v14"); e("v_mov_b32 v12, v18"); e("v_mov_b32 v14, v19")
            lab("L_hbalA")
            e("v_sub_u32 v2, v1, v0"); e("v_sub_u32 v3, v14, v12"); e("v_sub_u32 v4, v14, v1")
            e("v_cvt_f32_i32 v2, v2"); e("v_cvt_f32_i32 v3, v3"); e("v_cvt_f32_i32 v4, v4")
            nint = self.tb - self.ta
            e(f"v_mul_f32 v5, {fbits(float(nint)):#x}, v4")
            e(f"v_mov_b32 v6, {fbits(float(64-self.tb)):#x}"); e("v_fmac_f32 v5, v6, v3")
            e(f"v_mov_b32 v6, {fbits(float(self.tb)):#x}"); e("v_fmac_f32 v5, v6, v2")
            e("v_add_f32 v6, v2, v3"); e("v_rcp_f32 v6, v6"); e("s_nop 0")
            e("v_mul_f32 v5, v5, v6"); e("v_add_f32 v5, 0.5, v5"); e("v_cvt_i32_f32 v20, v5")
            e(f"v_max_i32 v20, {self.nlo}, v20"); e(f"v_min_i32 v20, {64-self.nlo}, v20")
            e(f"s_cbranch_scc1 L_hbal3")
            e("v_sub_u32 v20, 64, v20")
            lab("L_hbal3")
            e(f"v_mov_b32 v21, {CNT+16}"); e("ds_write_b32 v21, v20")
            e("s_mov_b64 exec, -1")
            lab("L_hbaldone")
        e(f"s_mov_b32 {sC}, {fbits(C_LOG2E_16):#x}")
        c("precompute tail addresses")
        e(f"s_lshl_b32 {sT0}, {sG}, 2"); e(f"s_add_u32 {sT0}, {sT0}, {sJ}"); e(f"s_mul_i32 {sT0}, {sT0}, {4*M1_SLICE}")
        e(f"s_add_u32 {sT1}, {sT0}, {M1_SLICE}"); e(f"s_add_u32 {sT2}, {sT0}, {2*M1_SLICE}"); e(f"s_add_u32 {sT3}, {sT0}, {3*M1_SLICE}")
        hST = 108
        e(f"v_and_b32 v{hST}, 3, v{vLANE}"); e(f"v_lshlrev_b32 v{hST}, 3, v{hST}")
        hOW, hOR, hYS, hP2, hOUT = 109, 110, 111, 112, 113
        e(f"v_and_b32 v{hOW}, 3, v{vLANE}"); e(f"s_movk_i32 {sT4}, {OROW}"); e(f"v_mul_lo_u32 v{hOW}, v{hOW}, {sT4}")
        e(f"v_lshrrev_b32 v{vT}, 2, v{vLANE}"); e(f"v_lshl_add_u32 v{hOW}, v{vT}, 4, v{hOW}"); e(f"v_add_u32 v{hOW}, {OB}, v{hOW}")
        e(f"v_and_b32 v{hOR}, 3, v{vN}"); e(f"v_mul_lo_u32 v{hOR}, v{hOR}, {sT4}"); e(f"v_lshl_add_u32 v{hOR}, v{vGQ}, 4, v{hOR}"); e(f"v_add_u32 v{hOR}, {OB}, v{hOR}")
        e(f"v_lshlrev_b32 v{hYS}, 6, v{vGQ}"); e(f"v_lshl_add_u32 v{hYS}, v{vN}, 4, v{hYS}")
        e(f"v_lshlrev_b32 v{hP2}, 16, v{vGQ}"); e(f"v_lshl_add_u32 v{hP2}, v{vN}, 4, v{hP2}")
        e(f"v_and_b32 v{hOUT}, 3, v{vN}"); e(f"s_lshl_b32 {sT4}, {sB}, 2"); e(f"v_add_u32 v{hOUT}, {sT4}, v{hOUT}")
        e(f"s_movk_i32 {sT4}, 896"); e(f"v_mul_lo_u32 v{hOUT}, v{hOUT}, {sT4}")
        e(f"v_lshrrev_b32 v{vT}, 2, v{vN}"); e(f"v_lshl_add_u32 v{hOUT}, v{vT}, 6, v{hOUT}")
        e(f"s_lshl_b32 s58, {sB}, 18"); e(f"s_lshr_b32 {sT4}, {sR}, 3"); e(f"s_lshl_b32 {sT4}, {sT4}, 11"); e(f"s_add_u32 s58, s58, {sT4}")
        e(f"s_and_b32 {sT4}, {sR}, 7"); e(f"s_lshl_b32 {sT4}, {sT4}, 8"); e(f"s_add_u32 s58, s58, {sT4}"); e(f"s_add_u32 s58, s58, {M2_BASE:#x}")
        e(f"s_lshr_b32 s59, {sR}, 3"); e(f"s_mul_i32 s59, s59, {256 if self.wo128 else 224}"); e(f"s_and_b32 {sT4}, {sR}, 7"); e(f"s_lshl_b32 {sT4}, {sT4}, 1"); e(f"s_add_u32 s59, s59, {sT4}")
        self.stamp(5)
        if not self.wolate:
            e("s_barrier")
            if self.notail: e("s_branch L_fin")
            e(f"s_cmp_lg_u32 {sHW}, 0"); e("s_cbranch_scc1 L_t3done")
            self.t3(hST, hOW, (sT0, sT1, sT2, sT3), vLIN16)
        else:
            if self.pflate:
                c("late L2 prefetch of this WG's 1/8 share: when the tile counter is within pflate tiles of the limit")
                e(f"v_mov_b32 v{vT+1}, {CNT+8}"); e(f"s_mov_b32 {sSPIN}, {self.spin}")
                lab("L_hpf")
                e(f"ds_read_b32 v{vT+2}, v{vT+1}"); e(f"ds_read2_b32 v[{vT+4}:{vT+5}], v{vT+1} offset0:1 offset1:2"); e("s_waitcnt lgkmcnt(0)")
                e(f"v_readfirstlane_b32 {sT4}, v{vT+2}"); e(f"v_readfirstlane_b32 {sT5}, v{vT+4}"); e(f"v_readfirstlane_b32 s64, v{vT+5}"); e("s_nop 3")
                e(f"s_add_u32 {sT4}, {sT4}, {self.pflate}")
                e(f"s_cmp_ge_u32 {sT4}, {sT5}"); e(f"s_cselect_b32 {sT4}, s64, 0"); e(f"s_cmp_lg_u32 {sT4}, 0"); e("s_cbranch_scc1 L_hpf_ok")
                e("s_sleep 16"); self.spin_dec("L_hpf")
                lab("L_hpf_ok")
                e(f"s_lshl_b32 {sT4}, {sR}, 7"); e(f"s_lshl_b32 {sT5}, {sB}, 4"); e(f"s_add_u32 {sT4}, {sT4}, {sT5}"); e(f"s_mul_i32 {sT4}, {sT4}, 896")
                e(f"s_lshl_b32 {sT5}, {sHW}, 12"); e(f"s_add_u32 {sT4}, {sT4}, {sT5}")
                for i in range(4):
                    e(f"buffer_load_dwordx4 v[{68+4*i}:{68+4*i+3}], v{vLIN16}, {SRD_WO}, {sT4} offen" + (f" offset:{i*1024}" if i else ""))
            c("wait until all streamers have issued their last DMA, then load wo (L2 hits) behind them")
            e(f"v_mov_b32 v{vT+1}, {CNT+20}")
            self.lds_spin("L_hiss", vT+1, vT+2, "ge", 4, 8)
            self.wo_pipeline()
        lab("L_t3done")
        e("s_waitcnt lgkmcnt(0)"); e("s_barrier")
        self.stamp(6)
        BF = 64 + 48 - 64 + 40
        BF = 40
        for ks in range(4):
            e(f"ds_read_b128 v[{BF+4*ks}:{BF+4*ks+3}], v{hOR}" + (f" offset:{ks*64}" if ks else ""))
        YA = 0
        e("s_waitcnt lgkmcnt(0)")
        for ks in range(4):
            for j in range(8):
                A = 32*ks + 4*j
                cc = "0" if ks == 0 else f"v[{YA+4*j}:{YA+4*j+3}]"
                e(f"v_mfma_f32_16x16x32_bf16 v[{YA+4*j}:{YA+4*j+3}], a[{A}:{A+3}], v[{BF+4*ks}:{BF+4*ks+3}], {cc}")
        e("s_mov_b32 exec_lo, 0x000f000f"); e("s_mov_b32 exec_hi, 0x000f000f")
        self.nop(6)
        for j in range(8):
            e(f"buffer_store_dwordx4 v[{YA+4*j}:{YA+4*j+3}], v{hYS}, {SRD_WS}, {sM2OUT} offen offset:{j*256} sc1")
        e("s_mov_b64 exec, -1")
        e(f"s_cmp_lg_u32 {sHW}, 0"); e("s_cbranch_scc1 L_fin")
        e(f"s_mov_b32 {sSPIN}, {self.spin}")
        def issue2(PB):
            for i in range(8):
                if i == 0: so = "s58"
                else:
                    e(f"s_add_u32 {sT1}, s58, {i*8192}"); so = sT1
                e(f"buffer_load_dwordx4 v[{PB+4*i}:{PB+4*i+3}], v{hP2}, {SRD_WS}, {so} offen sc1")
        def check2(PB, oklab):
            mx = 60
            e(f"v_max3_u32 v{mx}, v{PB}, v{PB+1}, v{PB+2}")
            for k in range(3, 31, 2): e(f"v_max3_u32 v{mx}, v{mx}, v{PB+k}, v{PB+k+1}")
            e(f"v_max_u32 v{mx}, v{mx}, v{PB+31}")
            e(f"v_cmp_eq_u32 vcc, -1, v{mx}"); e("s_nop 1"); e(f"s_cbranch_vccz {oklab}")
        def sum2(PB):
            for k in range(4): e(f"v_add_f32 v{32+k}, v{PB+k}, v{PB+4+k}")
            for i in range(2, 8):
                for k in range(4): e(f"v_add_f32 v{32+k}, v{32+k}, v{PB+4*i+k}")
        if not self.pipoll:
            lab("L_poll2"); issue2(64); e("s_waitcnt vmcnt(0)"); check2(64, "L_poll2ok"); self.spin_dec("L_poll2")
            lab("L_poll2ok"); sum2(64)
        else:
            PA, PBb = 64, 0
            issue2(PA); issue2(PBb)
            lab("L_poll2")
            e("s_waitcnt vmcnt(8)"); check2(PA, "L_poll2okA"); issue2(PA)
            e("s_waitcnt vmcnt(8)"); check2(PBb, "L_poll2okB"); issue2(PBb)
            self.spin_dec("L_poll2")
            lab("L_poll2okA"); sum2(PA); e("s_branch L_poll2done")
            lab("L_poll2okB"); sum2(PBb)
            lab("L_poll2done")
        for k in range(4): e(f"v_mov_b32 v{36+k}, v{32+k}")
        e("s_nop 0")
        for k in range(4): e(f"v_permlane32_swap_b32 v{36+k}, v{32+k}")
        for k in range(4): e(f"v_add_f32 v{32+k}, v{32+k}, v{36+k}")
        for k in range(4): e(f"v_mov_b32 v{36+k}, v{32+k}")
        e("s_nop 0")
        for k in range(4): e(f"v_permlane16_swap_b32 v{36+k}, v{32+k}")
        for k in range(4): e(f"v_add_f32 v{32+k}, v{32+k}, v{36+k}")
        e("v_cvt_pk_bf16_f32 v40, v32, v33"); e("v_cvt_pk_bf16_f32 v41, v34, v35")
        if self.wo128:
            e(f"s_cmp_ge_u32 {sR}, 24"); e(f"s_cselect_b32 {sT1}, 0xff, -1"); e(f"s_and_b32 exec_lo, {sT1}, 0xffff"); e("s_mov_b32 exec_hi, 0")
        else:
            e("s_mov_b64 exec, 0xffff")
        e(f"buffer_store_short v40, v{hOUT}, {SRD_OUT}, s59 offen{self.outsc}")
        e(f"buffer_store_short_d16_hi v40, v{hOUT}, {SRD_OUT}, s59 offen offset:16{self.outsc}")
        if not self.wo128: e("s_mov_b64 exec, 0xfff")
        e(f"buffer_store_short v41, v{hOUT}, {SRD_OUT}, s59 offen offset:32{self.outsc}")
        e(f"buffer_store_short_d16_hi v41, v{hOUT}, {SRD_OUT}, s59 offen offset:48{self.outsc}")
        e(f"s_cmp_lg_u32 {sLID}, 0"); e("s_cbranch_scc1 L_noep")
        e("s_mov_b64 exec, 1")
        e(f"v_mov_b32 v42, s60"); e(f"v_mov_b32 v43, s61"); e(f"v_mov_b32 v44, 0"); e(f"s_mov_b32 {sT0}, {EPOCH_OFF:#x}")
        e(f"buffer_store_dwordx2 v[42:43], v44, {SRD_WS}, {sT0} offen sc1")
        lab("L_noep")
        e("s_mov_b64 exec, -1")
        lab("L_fin")
        if self.errlog:
            e("s_cmp_eq_u32 s101, 0"); e("s_cbranch_scc1 L_noerr")
            self.srd(52, 44, 45, 256)
            e("s_mov_b64 exec, 1"); e("v_mov_b32 v0, s101"); e(f"v_mov_b32 v1, {sLID}"); e(f"v_mov_b32 v2, {sW}"); e(f"v_mov_b32 v3, {sWG}"); e("v_mov_b32 v4, 0")
            e(f"s_and_b32 s100, {sWG}, 15"); e("s_lshl_b32 s100, s100, 4")
            e(f"buffer_store_dwordx4 v[0:3], v4, {SRD_DBG}, s100 offen sc1"); e("s_waitcnt vmcnt(0)")
            lab("L_noerr")
        if self.dbgspan:
            c("debug: WGs 0,85,170,255 -> dwords 4k..: start, loop begin, loop end (S0), fin (H0)")
            e("s_memrealtime s[98:99]"); e("s_waitcnt vmcnt(0) lgkmcnt(0)")
            e(f"s_mul_i32 s97, {sWG}, 3"); e("s_mul_hi_u32 s96, s97, 0x1010102"); e("s_mul_i32 s95, s96, 255"); e("s_cmp_lg_u32 s95, s97"); e("s_cbranch_scc1 L_dbgdone")
            self.srd(52, 44, 45, 256)
            e(f"s_mul_i32 s96, {sWG}, 3"); e("s_lshr_b32 s96, s96, 8"); e(f"s_cmp_eq_u32 {sWG}, 0"); e("s_cselect_b32 s96, 0, s96")
            e(f"s_mul_hi_u32 s96, {sWG}, 0x3030304")
            e("s_lshl_b32 s96, s96, 4")
            e("s_mov_b64 exec, 1"); e("v_mov_b32 v2, 0")
            e(f"s_cmp_eq_u32 {sW}, 4"); e("s_cbranch_scc1 L_dbgh")
            e(f"s_cmp_eq_u32 {sW}, 0"); e("s_cbranch_scc0 L_dbgdone")
            e("v_mov_b32 v4, s100"); e("v_mov_b32 v5, s88"); e("v_mov_b32 v6, s90")
            e(f"buffer_store_dwordx3 v[4:6], v2, {SRD_DBG}, s96 offen sc1"); e("s_branch L_dbgdone")
            lab("L_dbgh")
            e("v_mov_b32 v4, s98")
            e(f"buffer_store_dword v4, v2, {SRD_DBG}, s96 offen offset:12 sc1")
            lab("L_dbgdone")
            e("s_waitcnt vmcnt(0)")
        if self.stamps:
            self.stamp(7)
            e("s_waitcnt vmcnt(0) lgkmcnt(0)")
            e(f"s_lshl_b32 {sT0}, {sWG}, 3"); e(f"s_add_u32 {sT0}, {sT0}, {sW}"); e(f"s_lshl_b32 {sT0}, {sT0}, 5"); e(f"s_add_u32 {sT0}, {sT0}, {STAMP_BASE:#x}")
            if (self.bal or self.ldyn) and not self.dbgs:
                e(f"s_cmp_lt_u32 {sW}, 4"); e("s_cbranch_scc0 L_non"); e(f"s_mov_b32 s96, {sN}"); lab("L_non")
            for i in range(8): e(f"v_mov_b32 v{i}, s{84+2*i}")
            e("v_mov_b32 v8, 0")
            e("s_mov_b64 exec, 1")
            e(f"buffer_store_dwordx4 v[0:3], v8, {SRD_WS}, {sT0} offen")
            e(f"buffer_store_dwordx4 v[4:7], v8, {SRD_WS}, {sT0} offen offset:16")
            e("s_waitcnt vmcnt(0)")
        lab("L_end")
        e("s_endpgm")
        L.append('.section .rodata,"a"'); L.append(".p2align 6"); L.append(f".amdhsa_kernel {NAME}_kernel")
        for d in ("next_free_vgpr 256", "next_free_sgpr 102", "accum_offset 128", "group_segment_fixed_size 0", "kernarg_size 64",
                  "user_sgpr_count 2", "user_sgpr_kernarg_segment_ptr 1", "system_sgpr_workgroup_id_x 1"):
            L.append("  .amdhsa_" + d)
        L.append(".end_amdhsa_kernel")
        return "\n".join(L) + "\n"

if __name__ == "__main__":
    import argparse
    ap = argparse.ArgumentParser()
    ap.add_argument("out"); ap.add_argument("--stamps", action="store_true"); ap.add_argument("--opt", default="{}")
    a = ap.parse_args()
    G = Gen(stamps=a.stamps, **eval("dict(" + a.opt + ")" if not a.opt.startswith(("{", "dict")) else a.opt))
    open(a.out, "w").write(G.build())
    if G.errlog: print(list(enumerate(G.errnames)))
```
